```python
import torch

def _softmax(x, axis=-1):
    return torch.softmax(x, dim=axis)
def _gelu(x):
    return torch.nn.functional.gelu(x, approximate="tanh")
def _silu(x):
    return torch.nn.functional.silu(x)
def _sigmoid(x):
    return torch.sigmoid(x)
def _layernorm(x, axis=-1, eps=1e-5):
    m = x.mean(dim=axis, keepdim=True)
    v = x.var(dim=axis, keepdim=True, unbiased=False)
    return (x - m) / torch.sqrt(v + eps)
def _scatter_add(tgt, idx, src, axis=0):
    return tgt.clone().index_add_(axis, idx, src)
def _segment_sum(src, seg, n):
    out = torch.zeros((n,) + src.shape[1:], dtype=src.dtype)
    return out.index_add_(0, seg, src)
def _pad(x, pw):
    flat = tuple(v for pair in reversed(pw) for v in pair)
    return torch.nn.functional.pad(x, flat)

kernel_name = 'interleave_layers__spectral_fnet__glu_gated_glu__prompt'

def setup_inputs():

    _w = (lambda a: (lambda t: t.to(torch.bfloat16) if t.is_floating_point() else t)(torch.as_tensor(a)))
    def _A_setup():
        B, S, D = 1, 2048, 576
        ns = torch.arange(S)[:, None] * torch.arange(S)[None, :]
        nd = torch.arange(D)[:, None] * torch.arange(D)[None, :]
        Ws_re = torch.cos(-2.0 * torch.pi * ns / S).to(float)
        Ws_im = torch.sin(-2.0 * torch.pi * ns / S).to(float)
        Wd_re = torch.cos(-2.0 * torch.pi * nd / D).to(float)
        Wd_im = torch.sin(-2.0 * torch.pi * nd / D).to(float)
        return {
            "x": _w((lambda *s: torch.randn(*s, dtype=torch.bfloat16) * 0.05)(B, S, D)),
            "dft_seq_re": _w(Ws_re),
            "dft_seq_im": _w(Ws_im),
            "dft_hid_re": _w(Wd_re),
            "dft_hid_im": _w(Wd_im),
        }
    _A_in = _A_setup()

    def _B_setup():
        B, S, D, F = 1, 2048, 576, 4608
        return {
            "x": _w((lambda *s: torch.randn(*s, dtype=torch.bfloat16) * 0.05)(B, S, D)),
            "w_gate": _w((lambda *s: torch.randn(*s, dtype=torch.bfloat16) * 1.6)(D, F)),
            "w_up": _w((lambda *s: torch.randn(*s, dtype=torch.bfloat16) * 0.4)(D, F)),
            "w_down": _w((lambda *s: torch.randn(*s, dtype=torch.bfloat16) * 0.4)(F, D)),
        }
    _B_in = _B_setup()

    return {
        "A_x": _A_in["x"],
        "A_dft_seq_re": _A_in["dft_seq_re"],
        "A_dft_seq_im": _A_in["dft_seq_im"],
        "A_dft_hid_re": _A_in["dft_hid_re"],
        "A_dft_hid_im": _A_in["dft_hid_im"],
        "B_x": _B_in["x"],
        "B_w_gate": _B_in["w_gate"],
        "B_w_up": _B_in["w_up"],
        "B_w_down": _B_in["w_down"],
    }

def reference(A_x, A_dft_seq_re, A_dft_seq_im, A_dft_hid_re, A_dft_hid_im, B_x, B_w_gate, B_w_up, B_w_down):
    def _A_ref(x, dft_seq_re, dft_seq_im, dft_hid_re, dft_hid_im):
        a = torch.einsum("bsd,ed->bse", x, dft_hid_re)
        b = torch.einsum("bsd,ed->bse", x, dft_hid_im)
        y = torch.einsum("ts,bse->bte", dft_seq_re, a) - torch.einsum("ts,bse->bte", dft_seq_im, b)
        return y

    def _B_ref(x, w_gate, w_up, w_down):
        g = torch.einsum("bsd,df->bsf", x, w_gate)
        u = torch.einsum("bsd,df->bsf", x, w_up)
        h = _sigmoid(g) * u
        return torch.einsum("bsf,fd->bsd", h, w_down)

    x = A_x
    x = x + _A_ref(_layernorm(x, axis=-1), A_dft_seq_re, A_dft_seq_im, A_dft_hid_re, A_dft_hid_im)
    x = x + _B_ref(_layernorm(x, axis=-1), B_w_gate, B_w_up, B_w_down)
    x = x + _A_ref(_layernorm(x, axis=-1), A_dft_seq_re, A_dft_seq_im, A_dft_hid_re, A_dft_hid_im)
    x = x + _B_ref(_layernorm(x, axis=-1), B_w_gate, B_w_up, B_w_down)
    return x
```

```python
import sys

S, D, F = 2048, 576, 4608

XC_SZ = S * D * 2
ST_SZ = S * 8 * 2 * 4
AB_SZ = 2 * 8 * 256 * 72 * 16
HC_SZ = 64 * 576 * 32 * 16
WGU_SZ = 32 * 36 * 9 * 1024
WD_SZ = 8 * 576 * 72 * 16
CS_SZ = 288 * 2 * 2 * 8 * 4
RS_SZ = 2 * 8 * 80 * 4


def _al(x, a=4096):
    return (x + a - 1) // a * a


_off = 0
WS = {}
for name, sz in [("XC0", XC_SZ), ("XC1", XC_SZ), ("XC2", XC_SZ), ("XC3", XC_SZ),
                 ("ST0", ST_SZ), ("ST1", ST_SZ), ("ST2", ST_SZ), ("ST3", ST_SZ),
                 ("AB", AB_SZ), ("HC", HC_SZ), ("WGU", WGU_SZ), ("WD", WD_SZ),
                 ("CS", CS_SZ), ("RS", RS_SZ)]:
    WS[name] = (_off, sz)
    _off += _al(sz + 4096)
WS_TOTAL = _off

KA = dict(x=0, seq_re=8, seq_im=16, hid_re=24, hid_im=32, bx=40, wg=48, wu=56, wd=64, out=72, dbg=80, ws=88)


class Kern:
    def __init__(self, name, nvgpr, nagpr=0, nsgpr=100):
        self.name = name
        self.L = []
        self.vq = []
        self.lq = []
        self.nvgpr = nvgpr
        self.nagpr = nagpr
        self.nsgpr = nsgpr
        self.lab = 0

    def e(self, s):
        self.L.append("    " + s)

    def c(self, s):
        self.L.append("    ; " + s)

    def label(self, s):
        self.L.append(s + ":")

    def newlabel(self, p="L"):
        self.lab += 1
        return f"{self.name}_{p}{self.lab}"

    def vm(self, s, tag):
        self.e(s)
        self.vq.append(tag)
        assert len(self.vq) <= 63, f"too many vmem outstanding in {self.name}"

    def wait_vm(self, tags):
        if not isinstance(tags, (list, set)):
            tags = [tags]
        idx = -1
        for i, t in enumerate(self.vq):
            if t in tags:
                idx = i
        if idx < 0:
            return
        n = len(self.vq) - 1 - idx
        self.e(f"s_waitcnt vmcnt({n})")
        self.vq = self.vq[idx + 1:]

    def wait_vm_all(self):
        self.e("s_waitcnt vmcnt(0)")
        self.vq = []

    def ds(self, s, tag):
        self.e(s)
        self.lq.append(tag)

    def wait_ds(self, tags):
        if not isinstance(tags, (list, set)):
            tags = [tags]
        idx = -1
        for i, t in enumerate(self.lq):
            if t in tags:
                idx = i
        if idx < 0:
            return
        n = len(self.lq) - 1 - idx
        assert n <= 15
        self.e(f"s_waitcnt lgkmcnt({n})")
        self.lq = self.lq[idx + 1:]

    def wait_ds_all(self):
        self.e("s_waitcnt lgkmcnt(0)")
        self.lq = []

    def srd_ptr(self, d, base, nbytes):
        self.e(f"s_mov_b32 s{d}, s{base}")
        self.e(f"s_and_b32 s{d+1}, s{base+1}, 0xffff")
        self.e(f"s_mov_b32 s{d+2}, {nbytes}")
        self.e(f"s_mov_b32 s{d+3}, 0x00020000")

    def srd_ws(self, d, wsbase, region):
        off, sz = WS[region]
        self.e(f"s_add_u32 s{d}, s{wsbase}, {off}")
        self.e(f"s_addc_u32 s{d+1}, s{wsbase+1}, 0")
        self.e(f"s_and_b32 s{d+1}, s{d+1}, 0xffff")
        self.e(f"s_mov_b32 s{d+2}, {sz}")
        self.e(f"s_mov_b32 s{d+3}, 0x00020000")

    def text(self):
        tot = self.nvgpr if self.nagpr == 0 else (self.nvgpr + 3) // 4 * 4 + self.nagpr
        acc = (self.nvgpr + 3) // 4 * 4
        out = [f".globl {self.name}", ".p2align 8", f".type {self.name},@function", f"{self.name}:"]
        out += self.L
        out += ["    s_endpgm"]
        desc = [f".amdhsa_kernel {self.name}",
                f"  .amdhsa_next_free_vgpr {tot}",
                f"  .amdhsa_next_free_sgpr {self.nsgpr}",
                f"  .amdhsa_accum_offset {acc}",
                "  .amdhsa_group_segment_fixed_size 0",
                "  .amdhsa_kernarg_size 96",
                "  .amdhsa_user_sgpr_count 2",
                "  .amdhsa_user_sgpr_kernarg_segment_ptr 1",
                "  .amdhsa_system_sgpr_workgroup_id_x 1",
                ".end_amdhsa_kernel"]
        return "\n".join(out), "\n".join(desc)


def R(kind, i, n=1):
    if n == 1:
        return f"{kind}{i}"
    return f"{kind}[{i}:{i+n-1}]"


def unpack_sum(k, src, lo, hi, sacc, qacc):
    k.e(f"v_lshlrev_b32 v{lo}, 16, v{src}")
    k.e(f"v_and_b32 v{hi}, 0xffff0000, v{src}")
    k.e(f"v_add_f32 v{sacc}, v{sacc}, v{lo}")
    if qacc is not None:
        k.e(f"v_fmac_f32 v{qacc}, v{lo}, v{lo}")
    k.e(f"v_add_f32 v{sacc}, v{sacc}, v{hi}")
    if qacc is not None:
        k.e(f"v_fmac_f32 v{qacc}, v{hi}, v{hi}")


def xlane_add(k, val, tmp, addr, lane, mask):
    k.e(f"v_xor_b32 v{addr}, {mask}, v{lane}")
    k.e(f"v_lshlrev_b32 v{addr}, 2, v{addr}")
    k.e(f"ds_bpermute_b32 v{tmp}, v{addr}, v{val}")
    k.e("s_waitcnt lgkmcnt(0)")
    k.e(f"v_add_f32 v{val}, v{val}, v{tmp}")


def slotmap_v(k, dd, out, t0, t1):
    k.e(f"v_and_b32 v{out}, 0x23, v{dd}")
    k.e(f"v_bfe_u32 v{t0}, v{dd}, 2, 1")
    k.e(f"v_lshl_or_b32 v{out}, v{t0}, 4, v{out}")
    k.e(f"v_bfe_u32 v{t0}, v{dd}, 3, 2")
    k.e(f"v_lshl_or_b32 v{out}, v{t0}, 2, v{out}")
    k.e(f"v_cmp_gt_u32 vcc, 64, v{dd}")
    k.e("s_nop 1")
    k.e(f"v_cndmask_b32 v{out}, v{dd}, v{out}, vcc")


NA_, NB_, NC_, ND_ = 64, 36, 144, 144


def gen_k0():
    k = Kern("k0_kernel", 64, 0, 64)
    total = NA_ + NB_ + NC_ + ND_
    Lend = "k0_end"
    k.e(f"s_cmp_ge_u32 s2, {total}")
    k.e(f"s_cbranch_scc1 {Lend}")
    k.e("s_load_dwordx2 s[4:5], s[0:1], 0")
    k.e("s_load_dwordx4 s[8:11], s[0:1], 24")
    k.e("s_load_dwordx4 s[12:15], s[0:1], 48")
    k.e("s_load_dwordx2 s[16:17], s[0:1], 64")
    k.e("s_load_dwordx2 s[18:19], s[0:1], 88")
    k.e("v_lshrrev_b32 v1, 6, v0")
    k.e("v_and_b32 v2, 63, v0")
    k.e("v_readfirstlane_b32 s20, v1")
    k.e("s_waitcnt lgkmcnt(0)")
    k.e(f"s_cmp_lt_u32 s2, {NC_}")
    k.e("s_cbranch_scc1 k0_roleC")
    k.e(f"s_cmp_lt_u32 s2, {NC_ + ND_}")
    k.e("s_cbranch_scc1 k0_roleD")
    k.e(f"s_cmp_lt_u32 s2, {NC_ + ND_ + NA_}")
    k.e("s_cbranch_scc1 k0_roleA")
    k.e("s_branch k0_roleB")

    k.label("k0_roleA")
    k.e(f"s_sub_u32 s21, s2, {NC_ + ND_}")
    k.srd_ptr(24, 4, XC_SZ)
    k.srd_ws(28, 18, "XC0")
    k.srd_ws(32, 18, "ST0")
    k.e("v_and_b32 v3, 31, v0")
    k.e("v_lshrrev_b32 v4, 5, v0")
    k.e("v_and_b32 v5, 3, v3")
    k.e("v_bfe_u32 v6, v3, 2, 2")
    k.e("v_lshl_or_b32 v5, v6, 3, v5")
    k.e("v_bfe_u32 v6, v3, 4, 1")
    k.e("v_lshl_or_b32 v5, v6, 2, v5")
    k.e("s_movk_i32 s22, 1152")
    k.e("v_mul_lo_u32 v5, v5, s22")
    k.e("v_mul_u32_u24 v6, 144, v4")
    k.e("v_add_u32 v5, v5, v6")
    k.e("s_mul_i32 s23, s21, 36864")
    for it in range(9):
        k.e(f"buffer_load_dwordx4 v[{16+4*it}:{19+4*it}], v5, s[24:27], s23 offen offset:{16*it}")
    k.e("v_mul_u32_u24 v6, 4608, v4")
    k.e("v_lshl_add_u32 v6, v3, 4, v6")
    k.e("v_add_u32 v7, 2048, v6")
    k.e("v_mov_b32 v8, 0")
    k.e("v_mov_b32 v9, 0")
    k.e("s_waitcnt vmcnt(0)")
    for it in range(9):
        vo, im = (6, it * 512) if it < 4 else (7, (it - 4) * 512)
        k.e(f"buffer_store_dwordx4 v[{16+4*it}:{19+4*it}], v{vo}, s[28:31], s23 offen offset:{im}")
    for r in range(36):
        unpack_sum(k, 16 + r, 10, 11, 8, 9)
    k.e("v_lshlrev_b32 v10, 6, v3")
    k.e("v_lshl_add_u32 v10, v4, 3, v10")
    k.e("s_lshl_b32 s23, s21, 11")
    k.e("buffer_store_dwordx2 v[8:9], v10, s[32:35], s23 offen")
    k.e(f"s_branch {Lend}")

    k.label("k0_roleB")
    k.e(f"s_sub_u32 s21, s2, {NC_ + ND_ + NA_}")
    k.e("s_cmp_ge_u32 s21, 18")
    k.e("s_cselect_b32 s22, 1, 0")
    k.e("s_cselect_b32 s4, s10, s8")
    k.e("s_cselect_b32 s5, s11, s9")
    k.e("s_mul_i32 s23, s22, 18")
    k.e("s_sub_u32 s21, s21, s23")
    k.srd_ptr(24, 4, D * D * 2)
    k.srd_ws(28, 18, "RS")
    k.e("s_lshl_b32 s23, s21, 5")
    k.e("s_lshl_b32 s36, s20, 3")
    k.e("s_add_u32 s23, s23, s36")
    k.e("v_lshrrev_b32 v3, 3, v2")
    k.e("v_add_u32 v3, s23, v3")
    k.e("v_and_b32 v4, 7, v2")
    k.e("s_movk_i32 s36, 1152")
    k.e("v_mul_lo_u32 v5, v3, s36")
    k.e("v_lshl_add_u32 v5, v4, 4, v5")
    for it in range(9):
        k.e(f"buffer_load_dwordx4 v[{16+4*it}:{19+4*it}], v5, s[24:27], 0 offen offset:{128*it}")
    k.e("v_mov_b32 v8, 0")
    k.e("s_waitcnt vmcnt(0)")
    for r in range(36):
        unpack_sum(k, 16 + r, 10, 11, 8, None)
    for m in (1, 2, 4):
        xlane_add(k, 8, 10, 11, 2, m)
    k.e("v_mul_u32_u24 v6, 911, v3")
    k.e("v_lshrrev_b32 v6, 16, v6")
    k.e("v_mul_u32_u24 v7, 72, v6")
    k.e("v_sub_u32 v7, v3, v7")
    slotmap_v(k, 7, 12, 13, 14)
    k.e("v_mul_u32_u24 v6, 80, v6")
    k.e("v_add_u32 v6, v6, v12")
    k.e("v_lshlrev_b32 v6, 2, v6")
    k.e("s_mul_i32 s23, s22, 2560")
    k.e("v_cmp_eq_u32 vcc, 0, v4")
    k.e("s_and_saveexec_b64 s[38:39], vcc")
    k.e("buffer_store_dword v8, v6, s[28:31], s23 offen")
    k.e(f"s_branch {Lend}")

    k.label("k0_roleC")
    k.e("s_cmp_ge_u32 s2, 72")
    k.e("s_cselect_b32 s22, 1, 0")
    k.e("s_cselect_b32 s4, s14, s12")
    k.e("s_cselect_b32 s5, s15, s13")
    k.e("s_mul_i32 s23, s22, 72")
    k.e("s_sub_u32 s21, s2, s23")
    k.srd_ptr(24, 4, D * F * 2)
    k.srd_ws(28, 18, "WGU")
    k.srd_ws(32, 18, "CS")
    k.e("v_lshrrev_b32 v3, 3, v2")
    k.e("v_and_b32 v4, 7, v2")
    k.e("v_mul_u32_u24 v5, 9216, v3")
    k.e("v_lshl_add_u32 v5, v4, 4, v5")
    k.e("s_mul_i32 s36, s20, 73728")
    k.e("s_lshl_b32 s37, s21, 7")
    k.e("s_add_u32 s36, s36, s37")
    k.e("s_lshl_b32 s37, s20, 10")
    for i in range(18):
        k.e(f"s_add_u32 m0, s37, {4096*i}")
        k.e("s_nop 0")
        k.e("buffer_load_dwordx4 v5, s[24:27], s36 offen lds")
        k.e(f"s_add_u32 s36, s36, {4*73728}")
    k.e("v_lshrrev_b32 v3, 4, v2")
    k.e("v_and_b32 v4, 15, v2")
    k.e("v_bfe_u32 v6, v2, 2, 2")
    k.e("v_lshlrev_b32 v7, 10, v3")
    k.e("v_lshl_add_u32 v7, v6, 7, v7")
    k.e("v_and_b32 v6, 1, v2")
    k.e("v_lshl_add_u32 v7, v6, 4, v7")
    k.e("v_bfe_u32 v6, v2, 1, 1")
    k.e("v_lshl_add_u32 v7, v6, 3, v7")
    k.e("s_lshl_b32 s36, s20, 5")
    k.e("v_add_u32 v7, s36, v7")
    k.e("v_add_u32 v8, 0x8000, v7")
    k.e("s_lshl_b32 s36, s21, 2")
    k.e("s_add_u32 s36, s36, s20")
    k.e("s_mul_i32 s37, s36, 7282")
    k.e("s_lshr_b32 s37, s37, 16")
    k.e("s_mul_i32 s38, s37, 9")
    k.e("s_sub_u32 s38, s36, s38")
    k.e("s_mul_i32 s39, s37, 331776")
    k.e("s_lshl_b32 s38, s38, 10")
    k.e("s_add_u32 s39, s39, s38")
    k.e("s_lshl_b32 s38, s22, 8")
    k.e("s_add_u32 s39, s39, s38")
    k.e("v_lshrrev_b32 v9, 1, v3")
    k.e("v_mul_u32_u24 v9, 9216, v9")
    k.e("v_and_b32 v6, 1, v3")
    k.e("v_lshl_add_u32 v9, v6, 9, v9")
    k.e("v_lshl_add_u32 v9, v4, 4, v9")
    k.e("v_mov_b32 v10, 0")
    k.e("s_waitcnt vmcnt(0)")
    k.e("s_barrier")
    for it in range(18):
        base, im = (7, it * 4096) if it < 8 else (8, (it - 8) * 4096)
        rg = 16 + 4 * (it % 8)
        k.e(f"ds_read_b64_tr_b16 v[{rg}:{rg+1}], v{base} offset:{im}")
        k.e(f"ds_read_b64_tr_b16 v[{rg+2}:{rg+3}], v{base} offset:{im+512}")
        k.e("s_waitcnt lgkmcnt(0)")
        k.e(f"buffer_store_dwordx4 v[{rg}:{rg+3}], v9, s[28:31], s39 offen")
        k.e(f"s_add_u32 s39, s39, 18432")
        for r in range(4):
            unpack_sum(k, rg + r, 11, 12, 10, None)
        if it % 8 == 7:
            k.e("s_waitcnt vmcnt(0)")
    xlane_add(k, 10, 11, 12, 2, 16)
    xlane_add(k, 10, 11, 12, 2, 32)
    k.e("v_bfe_u32 v11, v4, 2, 1")
    k.e("v_lshlrev_b32 v11, 6, v11")
    k.e("v_bfe_u32 v12, v4, 3, 1")
    k.e("v_lshl_add_u32 v11, v12, 4, v11")
    k.e("v_and_b32 v12, 3, v4")
    k.e("v_lshl_add_u32 v11, v12, 2, v11")
    k.e("s_lshl_b32 s36, s36, 7")
    k.e("s_lshl_b32 s38, s22, 5")
    k.e("s_add_u32 s36, s36, s38")
    k.e("v_cmp_gt_u32 vcc, 16, v2")
    k.e("s_and_saveexec_b64 s[38:39], vcc")
    k.e("buffer_store_dword v10, v11, s[32:35], s36 offen")
    k.e(f"s_branch {Lend}")

    k.label("k0_roleD")
    k.e(f"s_sub_u32 s21, s2, {NC_}")
    k.e("s_mul_i32 s22, s21, 7282")
    k.e("s_lshr_b32 s22, s22, 16")
    k.e("s_mul_i32 s23, s22, 9")
    k.e("s_sub_u32 s21, s21, s23")
    k.srd_ptr(24, 16, D * F * 2)
    k.srd_ws(28, 18, "WD")
    k.e("v_lshrrev_b32 v3, 3, v2")
    k.e("v_and_b32 v4, 7, v2")
    k.e("v_mul_u32_u24 v5, 1152, v3")
    k.e("v_lshl_add_u32 v5, v4, 4, v5")
    k.e(f"s_mul_i32 s36, s22, {288*1152}")
    k.e("s_mul_i32 s37, s20, 9216")
    k.e("s_add_u32 s36, s36, s37")
    k.e("s_lshl_b32 s37, s21, 7")
    k.e("s_add_u32 s36, s36, s37")
    k.e("s_lshl_b32 s37, s20, 10")
    for i in range(9):
        k.e(f"s_add_u32 m0, s37, {4096*i}")
        k.e("s_nop 0")
        k.e("buffer_load_dwordx4 v5, s[24:27], s36 offen lds")
        k.e(f"s_add_u32 s36, s36, {4*9216}")
    k.e("v_lshrrev_b32 v3, 4, v2")
    k.e("v_and_b32 v4, 15, v2")
    k.e("v_bfe_u32 v6, v2, 2, 2")
    k.e("v_lshlrev_b32 v7, 10, v3")
    k.e("v_lshl_add_u32 v7, v6, 7, v7")
    k.e("v_and_b32 v6, 3, v2")
    k.e("v_lshl_add_u32 v7, v6, 3, v7")
    k.e("s_lshl_b32 s36, s20, 5")
    k.e("v_add_u32 v7, s36, v7")
    k.e("s_lshl_b32 s36, s21, 6")
    k.e("s_lshl_b32 s37, s20, 4")
    k.e("s_add_u32 s36, s36, s37")
    k.e("v_add_u32 v8, s36, v4")
    k.e("v_mul_u32_u24 v9, 911, v8")
    k.e("v_lshrrev_b32 v9, 16, v9")
    k.e("v_mul_u32_u24 v10, 72, v9")
    k.e("v_sub_u32 v10, v8, v10")
    slotmap_v(k, 10, 11, 12, 13)
    k.e("s_mov_b32 s36, 663552")
    k.e("v_mul_lo_u32 v9, v9, s36")
    k.e("v_lshl_add_u32 v9, v11, 4, v9")
    k.e("v_mul_u32_u24 v12, 1152, v3")
    k.e("v_add_u32 v9, v9, v12")
    k.e(f"s_mul_i32 s39, s22, {36*1152}")
    k.e("s_waitcnt vmcnt(0)")
    k.e("s_barrier")
    for it in range(9):
        rg = 16 + 4 * it
        k.e(f"ds_read_b64_tr_b16 v[{rg}:{rg+1}], v7 offset:{it*4096}")
        k.e(f"ds_read_b64_tr_b16 v[{rg+2}:{rg+3}], v7 offset:{it*4096+512}")
    for it in range(9):
        rg = 16 + 4 * it
        k.e(f"s_waitcnt lgkmcnt({min(15, 2*(8-it))})")
        k.e(f"buffer_store_dwordx4 v[{rg}:{rg+3}], v9, s[28:31], s39 offen")
        k.e(f"s_add_u32 s39, s39, 4608")
    k.label(Lend)
    return k, total, 256, 73728


def stats_finish(k, base, vm_, vr, t0, t1, t2):
    for j in range(1, 8):
        k.e(f"v_add_f32 v{base}, v{base}, v{base+2*j}")
        k.e(f"v_add_f32 v{base+1}, v{base+1}, v{base+2*j+1}")
    k.e(f"v_mov_b32 v{t0}, 0x3ae38e39")
    k.e(f"v_mul_f32 v{t1}, v{base}, v{t0}")
    k.e(f"v_mul_f32 v{t2}, v{base+1}, v{t0}")
    k.e(f"v_fma_f32 v{t2}, -v{t1}, v{t1}, v{t2}")
    k.e(f"v_max_f32 v{t2}, 0, v{t2}")
    k.e(f"v_cvt_pk_bf16_f32 v{t0}, v{t1}, v{t2}")
    k.e(f"v_lshlrev_b32 v{vm_}, 16, v{t0}")
    k.e(f"v_and_b32 v{t2}, 0xffff0000, v{t0}")
    k.e(f"v_add_f32 v{t2}, 0x3727c5ac, v{t2}")
    k.e(f"v_cvt_pk_bf16_f32 v{t0}, v{t2}, v{t2}")
    k.e(f"v_lshlrev_b32 v{t2}, 16, v{t0}")
    k.e(f"v_sqrt_f32 v{t2}, v{t2}")
    k.e("s_nop 0")
    k.e(f"v_cvt_pk_bf16_f32 v{t0}, v{t2}, v{t2}")
    k.e(f"v_lshlrev_b32 v{t2}, 16, v{t0}")
    k.e(f"v_rcp_f32 v{vr}, v{t2}")
    k.e("s_nop 0")


def gen_kh(name, xc, st):
    k = Kern(name, 232, 40, 64)
    Lend = name + "_end"
    LDS_W = 9 * 9216
    k.e("s_cmp_ge_u32 s2, 256")
    k.e(f"s_cbranch_scc1 {Lend}")
    k.e("s_load_dwordx4 s[8:11], s[0:1], 24")
    k.e("s_load_dwordx2 s[18:19], s[0:1], 88")
    k.e("v_lshrrev_b32 v1, 6, v0")
    k.e("v_and_b32 v2, 63, v0")
    k.e("v_readfirstlane_b32 s20, v1")
    k.e("s_and_b32 s21, s2, 7")
    k.e("s_lshr_b32 s22, s2, 3")
    k.e("s_lshl_b32 s21, s21, 1")
    k.e("s_and_b32 s23, s22, 1")
    k.e("s_add_u32 s21, s21, s23")
    k.e("s_lshr_b32 s22, s22, 1")
    k.e("s_and_b32 s23, s22, 7")
    k.e("s_lshr_b32 s22, s22, 3")
    k.e("s_lshl_b32 s21, s21, 2")
    k.e("s_add_u32 s21, s21, s20")
    k.e("s_waitcnt lgkmcnt(0)")
    k.e("s_cmp_eq_u32 s22, 1")
    k.e("s_cselect_b32 s4, s10, s8")
    k.e("s_cselect_b32 s5, s11, s9")
    k.srd_ptr(24, 4, D * D * 2)
    k.srd_ws(28, 18, xc)
    k.srd_ws(32, 18, st)
    k.srd_ws(36, 18, "RS")
    k.srd_ws(40, 18, "AB")
    k.e("v_lshrrev_b32 v3, 3, v2")
    k.e("v_and_b32 v4, 7, v2")
    k.e("v_lshrrev_b32 v5, 1, v3")
    k.e("v_xor_b32 v5, v5, v4")
    k.e("v_lshlrev_b32 v5, 4, v5")
    k.e("v_lshrrev_b32 v6, 2, v3")
    k.e("v_and_b32 v7, 3, v3")
    k.e("v_lshl_add_u32 v6, v6, 3, v7")
    k.e("v_mul_u32_u24 v6, 1152, v6")
    k.e("v_add_u32 v8, v6, v5")
    k.e("v_xor_b32 v7, 64, v5")
    k.e("v_add_u32 v9, v6, v7")
    k.e("v_mul_u32_u24 v6, 1152, v3")
    k.e("v_add_u32 v10, v6, v5")
    k.e("v_and_b32 v11, 15, v2")
    k.e("v_lshrrev_b32 v12, 4, v2")
    k.e("v_lshlrev_b32 v13, 9, v12")
    k.e("v_lshl_add_u32 v13, v11, 4, v13")
    k.e("s_mul_i32 s44, s21, 36864")
    k.e("v_and_b32 v14, 31, v2")
    k.e("v_lshlrev_b32 v15, 6, v14")
    k.e("s_lshl_b32 s45, s21, 11")
    for j in range(4):
        k.e(f"buffer_load_dwordx4 v[{16+4*j}:{19+4*j}], v15, s[32:35], s45 offen offset:{16*j}")
    k.e("s_lshl_b32 s46, s22, 3")
    k.e("s_add_u32 s46, s46, s23")
    k.e("s_mul_i32 s47, s46, 320")
    k.e("v_lshlrev_b32 v15, 2, v11")
    for T in range(5):
        k.e(f"buffer_load_dword v{32+T}, v15, s[36:39], s47 offen offset:{64*T}")
    k.e(f"s_mul_i32 s48, s23, {72*1152}")
    k.e("s_lshl_b32 s49, s20, 7")
    k.e("s_add_u32 s48, s48, s49")
    k.e("s_mul_i32 s49, s20, 9216")
    def dma_kq():
        for q in range(9):
            if q < 8:
                c = (32 * (q >> 2) + 16 * (q & 1) + 4 * ((q >> 1) & 1)) * 1152
                v = 8 + (q & 1)
            else:
                c = 64 * 1152
                v = 10
            k.e(f"s_add_u32 m0, s49, {1024*q}")
            k.e(f"s_add_u32 s50, s48, {c}")
            k.e(f"buffer_load_dwordx4 v{v}, s[24:27], s50 offen lds")
    dma_kq()
    k.e("s_add_u32 s48, s48, 512")
    k.e(f"s_add_u32 s49, s49, {4*9216}")
    dma_kq()
    k.e("s_cmp_lg_u32 s20, 0")
    k.e(f"s_cbranch_scc1 {name}_nodma3")
    k.e("s_add_u32 s48, s48, 512")
    k.e(f"s_add_u32 s49, s49, {4*9216}")
    dma_kq()
    k.label(f"{name}_nodma3")
    AF = 88
    for kb in range(18):
        if kb % 2 == 0 and kb > 0:
            k.e("s_add_u32 s44, s44, 4096")
        if kb == 10:
            k.e("s_waitcnt vmcnt(40)")
        for u in range(2):
            rg = AF + (kb * 2 + u) * 4
            k.e(f"buffer_load_dwordx4 v[{rg}:{rg+3}], v13, s[28:31], s44 offen offset:{(kb%2)*2048 + u*256}")
    for a in range(40):
        k.e(f"v_accvgpr_write_b32 a{a}, 0")
    k.e("v_lshrrev_b32 v15, 1, v11")
    k.e("v_xor_b32 v15, v15, v12")
    k.e("v_lshlrev_b32 v15, 4, v15")
    k.e("v_lshl_add_u32 v40, v11, 7, v15")
    k.e("v_xor_b32 v41, 64, v40")
    k.e(f"v_add_u32 v42, {5*9216}, v40")
    k.e(f"v_add_u32 v43, {5*9216}, v41")
    k.e("s_waitcnt vmcnt(36)")
    stats_finish(k, 16, 44, 45, 46, 47, 48)
    k.e("v_mul_f32 v44, v44, v45")
    k.e("s_lshl_b32 s50, s20, 8")
    k.e(f"s_add_u32 s50, s50, {LDS_W + 1024}")
    k.e("v_lshl_add_u32 v46, v14, 3, s50")
    k.e("ds_write_b64 v46, v[44:45]")
    k.e("v_lshl_add_u32 v46, v12, 5, s50")
    k.e("s_waitcnt lgkmcnt(0)")
    k.e("ds_read_b128 v[48:51], v46")
    k.e("ds_read_b128 v[52:55], v46 offset:16")
    k.e("ds_read_b128 v[56:59], v46 offset:128")
    k.e("ds_read_b128 v[60:63], v46 offset:144")
    k.e("s_waitcnt vmcnt(0) lgkmcnt(0)")
    k.e("s_barrier")
    BF = 64
    def bread(kb, setbase):
        kq, half = kb >> 1, kb & 1
        base = 40 + half + (2 if kq >= 5 else 0)
        kq_ = kq - 5 if kq >= 5 else kq
        for T in range(5):
            k.ds(f"ds_read_b128 v[{setbase+4*T}:{setbase+4*T+3}], v{base} offset:{kq_*9216 + T*2048}", ("b", kb))
    sets = [64, 16]
    for T in range(5):
        k.e(f"v_mov_b32 v{3+T}, v{32+T}")
    bread(0, sets[0])
    for kb in range(18):
        if kb + 1 < 18:
            bread(kb + 1, sets[(kb + 1) & 1])
        k.wait_ds(("b", kb))
        sb = sets[kb & 1]
        for u in range(2):
            for T in range(5):
                acc = (u * 5 + T) * 4
                af = AF + (kb * 2 + u) * 4
                k.e(f"v_mfma_f32_16x16x32_bf16 a[{acc}:{acc+3}], v[{af}:{af+3}], v[{sb+4*T}:{sb+4*T+3}], a[{acc}:{acc+3}]")
    k.e("s_nop 15")
    k.e("v_mul_u32_u24 v15, 1152, v12")
    k.e("v_lshl_add_u32 v15, v11, 4, v15")
    k.e("s_lshl_b32 s46, s46, 8")
    k.e("s_lshl_b32 s47, s21, 2")
    k.e("s_add_u32 s46, s46, s47")
    k.e("s_mul_i32 s46, s46, 1152")
    for T in range(5):
        o = 16 + 12 * (T & 1)
        for u in range(2):
            for r in range(4):
                acc = (u * 5 + T) * 4 + r
                k.e(f"v_accvgpr_read_b32 v{o+4*u+r}, a{acc}")
        for u in range(2):
            for r in range(4):
                sr = 48 + 8 * u + 2 * r
                k.e(f"v_mul_f32 v{o+4*u+r}, v{o+4*u+r}, v{sr+1}")
                k.e(f"v_fma_f32 v{o+4*u+r}, -v{sr}, v{3+T}, v{o+4*u+r}")
        for j in range(4):
            k.e(f"v_cvt_pk_bf16_f32 v{o+8+j}, v{o+2*j}, v{o+2*j+1}")
        if T == 4:
            k.e("v_cmp_gt_u32 vcc, 8, v11")
            k.e("s_and_saveexec_b64 s[50:51], vcc")
        k.e(f"buffer_store_dwordx4 v[{o+8}:{o+11}], v15, s[40:43], s46 offen offset:{256*T}")
    k.label(Lend)
    return k, 256, 256, LDS_W + 2048


def t1_reduce_epilogue(k, name, mode, region, xin_srd, xout_srd, st_srd, out_srd, sW, sTB, sJ, vlane, vn, vg, final):
    k.e("s_nop 15")
    k.e(f"s_mul_i32 s60, s{sW}, {region}")
    k.e(f"v_lshl_add_u32 v3, v{vlane}, 4, s60")
    for b in range(4):
        for a in range(5):
            acc = (a * 4 + b) * 4
            k.e(f"ds_write_b128 v3, a[{acc}:{acc+3}] offset:{(b*5+a)*1024}")
    k.e(f"s_lshr_b32 s61, s{sW}, 1")
    k.e(f"s_lshl_b32 s62, s{sTB}, 1")
    k.e("s_add_u32 s61, s61, s62")
    k.e(f"s_and_b32 s62, s{sW}, 1")
    k.e("s_mul_i32 s63, s61, 36864")
    k.e(f"s_mul_i32 s64, s{sJ}, 4608")
    k.e("s_add_u32 s63, s63, s64")
    k.e("s_lshl_b32 s64, s62, 8")
    k.e("s_add_u32 s63, s63, s64")
    k.e(f"v_lshlrev_b32 v4, 9, v{vg}")
    k.e(f"v_lshl_add_u32 v4, v{vn}, 4, v4")
    k.e(f"v_lshlrev_b32 v5, 3, v{vg}")
    k.e(f"v_lshl_add_u32 v5, v{vn}, 4, v5")
    k.e("s_add_u32 s64, s63, 4096")
    k.e(f"buffer_load_dwordx4 v[112:115], v4, s[{xin_srd}:{xin_srd+3}], s63 offen")
    k.e(f"buffer_load_dwordx4 v[116:119], v4, s[{xin_srd}:{xin_srd+3}], s63 offen offset:2048")
    k.e(f"buffer_load_dwordx2 v[120:121], v5, s[{xin_srd}:{xin_srd+3}], s64 offen")
    k.e("s_waitcnt lgkmcnt(0)")
    k.e("s_barrier")
    k.e(f"s_mul_i32 s60, s{sW}, 5120")
    k.e(f"v_lshl_add_u32 v3, v{vlane}, 4, s60")
    T0 = 32
    for v in range(4):
        if v * region > 60000:
            pass
    k.e(f"v_add_u32 v6, {2*region}, v3")
    for v in range(4):
        for a in range(5):
            rg = T0 + (v * 5 + a) * 4
            base = 3 if v < 2 else 6
            k.e(f"ds_read_b128 v[{rg}:{rg+3}], v{base} offset:{(v%2)*region + a*1024}")
    k.e("s_waitcnt lgkmcnt(0)")
    for a in range(5):
        for r in range(4):
            x0, x1, x2, x3 = [T0 + (v * 5 + a) * 4 + r for v in range(4)]
            if mode == "S":
                k.e(f"v_add_f32 v{x0}, v{x0}, v{x1}")
                k.e(f"v_add_f32 v{x2}, v{x2}, v{x3}")
            else:
                k.e(f"v_add_f32 v{x0}, v{x0}, v{x1}")
                k.e(f"v_add_f32 v{x2}, v{x2}, v{x3}")
                k.e(f"v_add_f32 v{x0}, v{x0}, v{x2}")
    if mode == "S":
        for a in range(5):
            for r in range(0, 4, 2):
                p0 = T0 + a * 4 + r
                q0 = T0 + (10 + a) * 4 + r
                k.e(f"v_cvt_pk_bf16_f32 v18, v{p0}, v{p0+1}")
                k.e(f"v_cvt_pk_bf16_f32 v19, v{q0}, v{q0+1}")
                k.e(f"v_lshlrev_b32 v{p0}, 16, v18")
                k.e(f"v_and_b32 v{p0+1}, 0xffff0000, v18")
                k.e(f"v_lshlrev_b32 v{q0}, 16, v19")
                k.e(f"v_and_b32 v{q0+1}, 0xffff0000, v19")
                k.e(f"v_sub_f32 v{p0}, v{p0}, v{q0}")
                k.e(f"v_sub_f32 v{p0+1}, v{p0+1}, v{q0+1}")
    k.e("s_waitcnt vmcnt(0)")
    k.e("v_mov_b32 v20, 0")
    k.e("v_mov_b32 v21, 0")
    for a in range(5):
        for h in range(2):
            y0 = T0 + a * 4 + 2 * h
            xr = 112 + a * 2 + h
            k.e(f"v_cvt_pk_bf16_f32 v18, v{y0}, v{y0+1}")
            k.e(f"v_lshlrev_b32 v{y0}, 16, v18")
            k.e(f"v_and_b32 v{y0+1}, 0xffff0000, v18")
            k.e(f"v_lshlrev_b32 v22, 16, v{xr}")
            k.e(f"v_and_b32 v23, 0xffff0000, v{xr}")
            k.e(f"v_add_f32 v{y0}, v{y0}, v22")
            k.e(f"v_add_f32 v{y0+1}, v{y0+1}, v23")
            k.e(f"v_cvt_pk_bf16_f32 v{xr}, v{y0}, v{y0+1}")
            if a == 4 and h == 0 and not final:
                k.e(f"v_cmp_gt_u32 vcc, 2, v{vg}")
                k.e("s_and_saveexec_b64 s[66:67], vcc")
            if not final:
                unpack_sum(k, xr, 22, 23, 20, 21)
    if not final:
        k.e("s_mov_b64 exec, s[66:67]")
        xlane_add(k, 20, 22, 23, vlane, 16)
        xlane_add(k, 21, 22, 23, vlane, 16)
        xlane_add(k, 20, 22, 23, vlane, 32)
        xlane_add(k, 21, 22, 23, vlane, 32)
        k.e(f"buffer_store_dwordx4 v[112:115], v4, s[{xout_srd}:{xout_srd+3}], s63 offen")
        k.e(f"buffer_store_dwordx4 v[116:119], v4, s[{xout_srd}:{xout_srd+3}], s63 offen offset:2048")
        k.e("s_lshl_b32 s65, s61, 11")
        k.e("s_lshl_b32 s62, s62, 10")
        k.e("s_add_u32 s65, s65, s62")
        k.e(f"s_lshl_b32 s62, s{sJ}, 3")
        k.e("s_add_u32 s65, s65, s62")
        k.e(f"v_lshlrev_b32 v22, 6, v{vn}")
        k.e(f"v_cmp_gt_u32 vcc, 2, v{vg}")
        k.e("s_and_saveexec_b64 s[66:67], vcc")
        k.e(f"buffer_store_dwordx2 v[120:121], v5, s[{xout_srd}:{xout_srd+3}], s64 offen")
        k.e(f"v_cmp_gt_u32 vcc, 1, v{vg}")
        k.e("s_and_saveexec_b64 s[68:69], vcc")
        k.e(f"buffer_store_dwordx2 v[20:21], v22, s[{st_srd}:{st_srd+3}], s65 offen")
    else:
        k.e(f"v_lshrrev_b32 v22, 2, v{vn}")
        k.e(f"v_and_b32 v23, 3, v{vn}")
        k.e("v_lshl_add_u32 v22, v22, 3, v23")
        k.e("v_mul_u32_u24 v22, 1152, v22")
        k.e(f"v_lshl_add_u32 v23, v{vg}, 4, v22")
        k.e(f"v_lshl_add_u32 v22, v{vg}, 3, v22")
        k.e("s_lshl_b32 s65, s61, 5")
        k.e("s_lshl_b32 s62, s62, 2")
        k.e("s_add_u32 s65, s65, s62")
        k.e("s_mul_i32 s65, s65, 1152")
        k.e(f"s_mul_i32 s62, s{sJ}, 144")
        k.e("s_add_u32 s65, s65, s62")
        k.e(f"buffer_store_dwordx4 v[112:115], v23, s[{out_srd}:{out_srd+3}], s65 offen")
        k.e(f"buffer_store_dwordx4 v[116:119], v23, s[{out_srd}:{out_srd+3}], s65 offen offset:64")
        k.e(f"v_cmp_gt_u32 vcc, 2, v{vg}")
        k.e("s_and_saveexec_b64 s[66:67], vcc")
        k.e(f"buffer_store_dwordx2 v[120:121], v22, s[{out_srd}:{out_srd+3}], s65 offen offset:128")


def t1_decode(k):
    k.e("v_lshrrev_b32 v1, 6, v0")
    k.e("v_and_b32 v2, 63, v0")
    k.e("v_readfirstlane_b32 s20, v1")
    k.e("s_and_b32 s22, s2, 7")
    k.e("s_lshr_b32 s23, s2, 3")
    k.e("s_lshr_b32 s21, s22, 1")
    k.e("s_lshl_b32 s21, s21, 3")
    k.e("s_and_b32 s44, s23, 7")
    k.e("s_add_u32 s21, s21, s44")
    k.e("s_and_b32 s22, s22, 1")
    k.e("s_lshl_b32 s22, s22, 2")
    k.e("s_lshr_b32 s23, s23, 3")
    k.e("s_add_u32 s23, s23, s22")
    k.e("v_and_b32 v11, 15, v2")
    k.e("v_lshrrev_b32 v12, 4, v2")


def gen_ks(name, xin, xout, stout):
    k = Kern(name, 256, 80, 72)
    Lend = name + "_end"
    REG = 32768
    k.e("s_cmp_ge_u32 s2, 256")
    k.e(f"s_cbranch_scc1 {Lend}")
    k.e("s_load_dwordx4 s[8:11], s[0:1], 8")
    k.e("s_load_dwordx2 s[18:19], s[0:1], 88")
    t1_decode(k)
    k.e("s_lshr_b32 s22, s20, 1")
    k.e("s_and_b32 s45, s20, 1")
    k.e("s_waitcnt lgkmcnt(0)")
    k.e("s_cmp_eq_u32 s22, 1")
    k.e("s_cselect_b32 s4, s10, s8")
    k.e("s_cselect_b32 s5, s11, s9")
    k.srd_ptr(24, 4, S * S * 2)
    k.srd_ws(28, 18, "AB")
    k.srd_ws(32, 18, xin)
    k.srd_ws(36, 18, xout)
    k.srd_ws(40, 18, stout)
    VD = 240
    k.e("v_lshrrev_b32 v3, 3, v2")
    k.e("v_and_b32 v4, 7, v2")
    k.e("v_lshrrev_b32 v5, 1, v3")
    k.e("v_xor_b32 v5, v5, v4")
    k.e("v_lshlrev_b32 v5, 4, v5")
    k.e("v_lshrrev_b32 v6, 2, v3")
    k.e("v_and_b32 v7, 3, v3")
    k.e("v_lshl_add_u32 v6, v6, 3, v7")
    k.e("v_lshlrev_b32 v6, 12, v6")
    k.e("v_add_u32 v8, v6, v5")
    k.e("v_xor_b32 v7, 64, v5")
    k.e("v_add_u32 v9, v6, v7")
    for q in range(8):
        c = (32 * (q >> 2) + 16 * (q & 1) + 4 * ((q >> 1) & 1)) * 4096
        k.e(f"v_add_u32 v{VD+q}, {c}, v{8 + (q & 1)}")
    k.e("v_mul_u32_u24 v3, 1152, v12")
    k.e("v_lshl_add_u32 v248, v11, 4, v3")
    k.e("v_and_b32 v4, 7, v11")
    k.e("v_lshl_add_u32 v249, v4, 4, v3")
    k.e("v_add_u32 v249, 1024, v249")
    k.e("v_add_u32 v250, 4608, v248")
    k.e("v_add_u32 v251, 4608, v249")
    k.e(f"s_mul_i32 s46, s20, {REG}")
    k.e("v_lshrrev_b32 v3, 1, v11")
    k.e("v_xor_b32 v3, v3, v12")
    k.e("v_lshlrev_b32 v3, 4, v3")
    k.e("v_lshl_add_u32 v3, v11, 7, v3")
    k.e("v_add_u32 v252, s46, v3")
    k.e("v_xor_b32 v3, 64, v3")
    k.e("v_add_u32 v253, s46, v3")
    k.e("s_lshl_b32 s47, s21, 18")
    k.e("s_lshl_b32 s49, s45, 11")
    k.e("s_add_u32 s47, s47, s49")
    k.e("s_lshl_b32 s48, s22, 3")
    k.e("s_add_u32 s48, s48, s23")
    k.e("s_lshl_b32 s48, s48, 8")
    k.e("s_lshl_b32 s49, s45, 7")
    k.e("s_add_u32 s48, s48, s49")
    k.e("s_mul_i32 s48, s48, 1152")
    for a in range(80):
        k.e(f"v_accvgpr_write_b32 a{a}, 0")
    NST, RING = 16, 4
    AFB = 16
    CFB = 176

    def issue(st):
        slot = st % RING
        for q in range(8):
            k.e(f"s_add_u32 m0, s46, {slot*8192 + q*1024}")
            k.e("s_nop 0")
            k.vm(f"buffer_load_dwordx4 v{VD+q}, s[24:27], s47 offen lds", st)
        for h in range(2):
            for T in range(5):
                rg = AFB + slot * 40 + (h * 5 + T) * 4
                if T < 4:
                    k.vm(f"buffer_load_dwordx4 v[{rg}:{rg+3}], v{248+2*h}, s[28:31], s48 offen offset:{256*T}", st)
                else:
                    k.vm(f"buffer_load_dwordx4 v[{rg}:{rg+3}], v{249+2*h}, s[28:31], s48 offen", st)
        k.e("s_add_u32 s47, s47, 128")
        k.e("s_add_u32 s48, s48, 9216")

    for st in range(RING - 1):
        issue(st)
    for st in range(NST):
        if st + RING - 1 < NST:
            if len(k.vq) + 18 > 63:
                k.wait_vm(st)
            issue(st + RING - 1)
        k.wait_vm(st)
        slot = st % RING
        for h in range(2):
            for u in range(4):
                rg = CFB + (h * 4 + u) * 4
                k.ds(f"ds_read_b128 v[{rg}:{rg+3}], v{252+h} offset:{slot*8192 + u*2048}", ("c", st, h))
        for h in range(2):
            k.wait_ds(("c", st, h))
            for T in range(5):
                af = AFB + slot * 40 + (h * 5 + T) * 4
                for u in range(4):
                    cf = CFB + (h * 4 + u) * 4
                    acc = (T * 4 + u) * 4
                    k.e(f"v_mfma_f32_16x16x32_bf16 a[{acc}:{acc+3}], v[{af}:{af+3}], v[{cf}:{cf+3}], a[{acc}:{acc+3}]")
    t1_reduce_epilogue(k, name, "S", REG, 32, 36, 40, None, 20, 21, 23, 2, 11, 12, False)
    k.label(Lend)
    return k, 256, 256, 4 * REG


def gen_kd(name, xin, xout, stout, final):
    k = Kern(name, 256, 80 + 144, 72)
    Lend = name + "_end"
    REG = 20480
    k.e("s_cmp_ge_u32 s2, 256")
    k.e(f"s_cbranch_scc1 {Lend}")
    k.e("s_load_dwordx2 s[8:9], s[0:1], 72")
    k.e("s_load_dwordx2 s[18:19], s[0:1], 88")
    t1_decode(k)
    k.e("s_waitcnt lgkmcnt(0)")
    k.srd_ws(24, 18, "HC")
    k.srd_ws(28, 18, "WD")
    k.srd_ws(32, 18, xin)
    if final:
        k.srd_ptr(36, 8, XC_SZ)
    else:
        k.srd_ws(36, 18, xout)
        k.srd_ws(40, 18, stout)
    k.e("v_mul_u32_u24 v3, 1152, v12")
    k.e("v_lshl_add_u32 v248, v11, 4, v3")
    k.e("v_and_b32 v4, 7, v11")
    k.e("v_lshl_add_u32 v249, v4, 4, v3")
    k.e("v_add_u32 v249, 1024, v249")
    k.e("v_lshlrev_b32 v3, 9, v12")
    k.e("v_lshl_add_u32 v250, v11, 4, v3")
    k.e("v_add_u32 v251, 294912, v250")
    k.e("s_mul_i32 s47, s21, 589824")
    k.e(f"s_mul_i32 s49, s20, {36*2048}")
    k.e("s_add_u32 s47, s47, s49")
    k.e("s_mul_i32 s48, s23, 576")
    k.e("s_mul_i32 s49, s20, 144")
    k.e("s_add_u32 s48, s48, s49")
    k.e("s_mul_i32 s48, s48, 1152")
    for a in range(80):
        k.e(f"v_accvgpr_write_b32 a{a}, 0")
    NST, RING = 36, 8

    def reg(slot, f):
        if slot < 6:
            return "v", 16 + slot * 36 + f * 4
        return "a", 80 + (slot - 6) * 36 + f * 4

    def issue(st):
        slot = st % RING
        for T in range(5):
            kd, rg = reg(slot, T)
            if T < 4:
                k.vm(f"buffer_load_dwordx4 {kd}[{rg}:{rg+3}], v248, s[28:31], s48 offen offset:{256*T}", st)
            else:
                k.vm(f"buffer_load_dwordx4 {kd}[{rg}:{rg+3}], v249, s[28:31], s48 offen", st)
        for u in range(4):
            kd, rg = reg(slot, 5 + u)
            k.vm(f"buffer_load_dwordx4 {kd}[{rg}:{rg+3}], v{250+(u>>1)}, s[24:27], s47 offen offset:{256*(u&1)}", st)
        k.e("s_add_u32 s47, s47, 2048")
        k.e("s_add_u32 s48, s48, 4608")

    for st in range(RING - 1):
        issue(st)
    for st in range(NST):
        if st + RING - 1 < NST:
            if len(k.vq) + 9 > 63:
                k.wait_vm(st)
            issue(st + RING - 1)
        k.wait_vm(st)
        slot = st % RING
        for T in range(5):
            ka, ra = reg(slot, T)
            for u in range(4):
                kb_, rb = reg(slot, 5 + u)
                acc = (T * 4 + u) * 4
                k.e(f"v_mfma_f32_16x16x32_bf16 a[{acc}:{acc+3}], {ka}[{ra}:{ra+3}], {kb_}[{rb}:{rb+3}], a[{acc}:{acc+3}]")
    t1_reduce_epilogue(k, name, "D", REG, 32, 36, 40, 36, 20, 21, 23, 2, 11, 12, final)
    k.label(Lend)
    return k, 256, 256, 4 * REG


def gen_kg(name, xc, st):
    k = Kern(name, 112, 144, 72)
    Lend = name + "_end"
    STG = 36864
    k.e("s_cmp_ge_u32 s2, 256")
    k.e(f"s_cbranch_scc1 {Lend}")
    k.e("s_load_dwordx2 s[18:19], s[0:1], 88")
    k.e("v_lshrrev_b32 v1, 6, v0")
    k.e("v_and_b32 v2, 63, v0")
    k.e("v_readfirstlane_b32 s20, v1")
    k.e("s_and_b32 s22, s2, 7")
    k.e("s_lshr_b32 s23, s2, 3")
    k.e("s_and_b32 s21, s23, 7")
    k.e("s_lshr_b32 s23, s23, 3")
    k.e("s_lshl_b32 s22, s22, 2")
    k.e("s_add_u32 s23, s23, s22")
    k.e("s_lshl_b32 s21, s21, 3")
    k.e("s_add_u32 s21, s21, s20")
    k.e("s_waitcnt lgkmcnt(0)")
    k.srd_ws(24, 18, "WGU")
    k.srd_ws(28, 18, xc)
    k.srd_ws(32, 18, st)
    k.srd_ws(36, 18, "CS")
    k.srd_ws(40, 18, "HC")
    k.e("v_lshlrev_b32 v3, 4, v2")
    k.e("s_mul_i32 s44, s23, 331776")
    k.e("s_mul_i32 s45, s20, 4608")
    k.e("s_add_u32 s44, s44, s45")
    k.e("s_mul_i32 s46, s21, 36864")
    for s_ in range(4):
        if s_ == 0:
            k.e("v_mov_b32 v4, v3")
        else:
            k.e(f"v_add_u32 v{4+s_}, {s_*STG}, v3")
    for a in range(144):
        k.e(f"v_accvgpr_write_b32 a{a}, 0")
    NST = 9
    BFB = 16
    AFB = 64
    NF, DEP = 8, 6

    def dma(st_):
        slot = st_ % 4
        k.e(f"s_add_u32 m0, s45, {slot*STG}")
        k.e(f"s_add_u32 s47, s44, {st_*STG}")
        for e_ in range(4):
            k.vm(f"buffer_load_dwordx4 v3, s[24:27], s47 offen offset:{e_*1024} lds", ("d", st_))
        k.e(f"s_add_u32 m0, s45, {slot*STG + 4096}")
        k.e("s_add_u32 s47, s47, 4096")
        k.e("s_mov_b32 exec_hi, 0")
        k.vm("buffer_load_dwordx4 v3, s[24:27], s47 offen lds", ("d", st_))
        k.e("s_mov_b64 exec, -1")

    def bload(st_):
        k.e(f"s_add_u32 s47, s46, {st_*4096}")
        for j in range(4):
            rg = BFB + (st_ % 3) * 16 + j * 4
            k.vm(f"buffer_load_dwordx4 v[{rg}:{rg+3}], v3, s[28:31], s47 offen offset:{j*1024}", ("b", st_))

    dma(0); bload(0); dma(1); bload(1); dma(2); dma(3)
    k.e("v_and_b32 v8, 31, v2")
    k.e("v_lshlrev_b32 v8, 6, v8")
    k.e("s_lshl_b32 s47, s21, 11")
    for j in range(4):
        k.vm(f"buffer_load_dwordx4 v[{96+4*j}:{99+4*j}], v8, s[32:35], s47 offen offset:{16*j}", "st")

    total = NST * 36

    def aread(m):
        st_, r = divmod(m, 36)
        rg = AFB + (m % NF) * 4
        k.ds(f"ds_read_b128 v[{rg}:{rg+3}], v{4 + st_ % 4} offset:{r*1024}", m)

    def stage_sync(st_):
        k.wait_vm(("d", st_))
        k.e("s_barrier")
        if st_ >= 2 and st_ + 2 < NST:
            dma(st_ + 2)
        if st_ >= 1 and st_ + 1 < NST:
            bload(st_ + 1)

    stage_sync(0)
    for m in range(DEP):
        aread(m)
    for m in range(total):
        nxt = m + DEP
        if nxt < total:
            if nxt % 36 == 0:
                stage_sync(nxt // 36)
            aread(nxt)
        st_, r = divmod(m, 36)
        kk, ft = divmod(r, 9)
        if r == 0:
            k.wait_vm(("b", st_))
        k.wait_ds(m)
        af = AFB + (m % NF) * 4
        bf = BFB + (st_ % 3) * 16 + kk * 4
        acc = ft * 16
        k.e(f"v_mfma_f32_32x32x16_bf16 a[{acc}:{acc+15}], v[{af}:{af+3}], v[{bf}:{bf+3}], a[{acc}:{acc+15}]")
    k.wait_vm("st")
    stats_finish(k, 96, 8, 9, 10, 11, 12)
    k.e("v_mul_f32 v8, v8, v9")
    k.e("v_mul_f32 v10, 0xbfb8aa3b, v9")
    k.e("v_mul_f32 v11, 0x3fb8aa3b, v8")
    k.e("v_lshrrev_b32 v12, 5, v2")
    k.e("v_lshlrev_b32 v12, 6, v12")
    k.e("s_mul_i32 s47, s23, 1152")
    k.e("s_mul_i32 s48, s21, 294912")
    k.e("s_mul_i32 s49, s23, 9216")
    k.e("s_add_u32 s48, s48, s49")

    def csload(ft):
        rg = 16 + (ft % 2) * 16
        for j in range(4):
            k.vm(f"buffer_load_dwordx4 v[{rg+4*j}:{rg+4*j+3}], v12, s[36:39], s47 offen offset:{ft*128 + 16*j}", ("cs", ft))

    csload(0)
    k.e("s_nop 7")
    for ft in range(9):
        if ft + 1 < 9:
            csload(ft + 1)
        cs = 16 + (ft % 2) * 16
        o = 48 + (ft % 2) * 24
        for j in range(16):
            k.e(f"v_accvgpr_read_b32 v{o+j}, a{ft*16+j}")
        k.wait_vm(("cs", ft))
        for j in range(8):
            k.e(f"v_mul_f32 v{o+j}, v{o+j}, v10")
            k.e(f"v_fmac_f32 v{o+j}, v{cs+j}, v11")
            k.e(f"v_exp_f32 v{o+j}, v{o+j}")
            k.e(f"v_mul_f32 v{o+8+j}, v{o+8+j}, v9")
            k.e(f"v_fma_f32 v{o+8+j}, -v{cs+8+j}, v8, v{o+8+j}")
            k.e(f"v_add_f32 v{o+j}, 1.0, v{o+j}")
            k.e(f"v_rcp_f32 v{o+j}, v{o+j}")
        k.e("s_nop 0")
        for j in range(8):
            k.e(f"v_mul_f32 v{o+j}, v{o+j}, v{o+8+j}")
        for j in range(4):
            k.e(f"v_cvt_pk_bf16_f32 v{o+16+j}, v{o+2*j}, v{o+2*j+1}")
        k.vm(f"buffer_store_dwordx4 v[{o+16}:{o+19}], v3, s[40:43], s48 offen", ("o", ft))
        k.e("s_add_u32 s48, s48, 1024")
        if ft >= 1:
            k.wait_vm(("o", ft - 1))
    k.label(Lend)
    return k, 256, 512, 4 * STG


def build():
    ks = []
    ks.append(gen_k0())
    ks.append(gen_kh("kh1_kernel", "XC0", "ST0"))
    ks.append(gen_ks("ks1_kernel", "XC0", "XC1", "ST1"))
    ks.append(gen_kg("kg1_kernel", "XC1", "ST1"))
    ks.append(gen_kd("kd1_kernel", "XC1", "XC2", "ST2", False))
    ks.append(gen_kh("kh2_kernel", "XC2", "ST2"))
    ks.append(gen_ks("ks2_kernel", "XC2", "XC3", "ST3"))
    ks.append(gen_kg("kg2_kernel", "XC3", "ST3"))
    ks.append(gen_kd("kd2_kernel", "XC3", None, None, True))
    head = ["; generated by dev/gen.py -- FNet/GLU interleaved layers, launch list"]
    for k, grid, block, lds in ks:
        head.append(f"; @launch kernel={k.name} grid=({grid},1,1) block=({block},1,1) lds={lds}")
    out = head + ['.amdgcn_target "amdgcn-amd-amdhsa--gfx950"', ".text"]
    descs = []
    for k, *_ in ks:
        t, d = k.text()
        out.append(t)
        descs.append(d)
    out.append('.section .rodata,"a"')
    for d in descs:
        out.append(".p2align 6")
        out.append(d)
    return "\n".join(out) + "\n"


if __name__ == "__main__":
    path = sys.argv[1] if len(sys.argv) > 1 else "interleave_layers__spectral_fnet__glu_gated_glu__prompt.s"
    open(path, "w").write(build())
    print("wrote", path, "ws bytes", WS_TOTAL)
```

```python
import sys

S, D, F = 2048, 576, 4608
import os
PROF = bool(int(os.environ.get("PROF", "0")))
NW_T1 = 8

XC_SZ = S * D * 2
ST_SZ = S * 16 * 2 * 4
AB_SZ = 2 * 8 * 256 * 72 * 16
HC_SZ = 64 * 576 * 32 * 16
WGU_SZ = 32 * 37 * 9 * 1024
WGU_CB = 37 * 9216
WD_SZ = 8 * 576 * 72 * 16
CS_SZ = 288 * 2 * 2 * 8 * 4
RS_SZ = 2 * 8 * 80 * 4


def _al(x, a=4096):
    return (x + a - 1) // a * a


_off = 0
WS = {}
for name, sz in [("XC0", XC_SZ), ("XC1", XC_SZ), ("XC2", XC_SZ), ("XC3", XC_SZ),
                 ("ST0", ST_SZ), ("ST1", ST_SZ), ("ST2", ST_SZ), ("ST3", ST_SZ),
                 ("AB", AB_SZ), ("HC", HC_SZ), ("WGU", WGU_SZ), ("WD", WD_SZ),
                 ("CS", CS_SZ), ("RS", RS_SZ), ("DBG", 16*512*256)]:
    WS[name] = (_off, sz)
    _off += _al(sz + 4096)
WS_TOTAL = _off

KA = dict(x=0, seq_re=8, seq_im=16, hid_re=24, hid_im=32, bx=40, wg=48, wu=56, wd=64, out=72, dbg=80, ws=88)


class Kern:
    def __init__(self, name, nvgpr, nagpr=0, nsgpr=100):
        self.name = name
        self.L = []
        self.vq = []
        self.lq = []
        self.nvgpr = nvgpr
        self.nagpr = nagpr
        self.nsgpr = nsgpr
        self.lab = 0

    def e(self, s):
        self.L.append("    " + s)

    def c(self, s):
        self.L.append("    ; " + s)

    def label(self, s):
        self.L.append(s + ":")

    def newlabel(self, p="L"):
        self.lab += 1
        return f"{self.name}_{p}{self.lab}"

    def vm(self, s, tag):
        self.e(s)
        self.vq.append(tag)
        assert len(self.vq) <= 63, f"too many vmem outstanding in {self.name}"

    def wait_vm(self, tags):
        if not isinstance(tags, (list, set)):
            tags = [tags]
        idx = -1
        for i, t in enumerate(self.vq):
            if t in tags:
                idx = i
        if idx < 0:
            return
        n = len(self.vq) - 1 - idx
        self.e(f"s_waitcnt vmcnt({n})")
        self.vq = self.vq[idx + 1:]

    def wait_vm_all(self):
        self.e("s_waitcnt vmcnt(0)")
        self.vq = []

    def ds(self, s, tag):
        self.e(s)
        self.lq.append(tag)

    def wait_ds(self, tags):
        if not isinstance(tags, (list, set)):
            tags = [tags]
        idx = -1
        for i, t in enumerate(self.lq):
            if t in tags:
                idx = i
        if idx < 0:
            return
        n = len(self.lq) - 1 - idx
        assert n <= 15
        self.e(f"s_waitcnt lgkmcnt({n})")
        self.lq = self.lq[idx + 1:]

    def wait_ds_all(self):
        self.e("s_waitcnt lgkmcnt(0)")
        self.lq = []

    def stamp(self, i):
        if not PROF:
            return
        self.e("s_waitcnt lgkmcnt(0)")
        self.lq = []
        self.e(f"s_memtime s[{80+2*i}:{81+2*i}]")
        if i == 0:
            self.e("s_memrealtime s[94:95]")
        self.e("s_waitcnt lgkmcnt(0)")
        self.nst = max(getattr(self, "nst", 0), i + 1)

    def stamp_store(self, kidx, wsbase, swave):
        if not PROF:
            return
        self.e("s_mov_b64 exec, -1")
        self.e("s_memrealtime s[96:97]")
        self.srd_ws(76, wsbase, "DBG")
        self.e("s_waitcnt lgkmcnt(0)")
        self.e(f"s_lshl_b32 s98, s2, 8")
        self.e(f"s_lshl_b32 s99, s{swave}, 5")
        self.e("s_add_u32 s98, s98, s99")
        self.e(f"s_add_u32 s98, s98, {kidx*512*256}")
        self.e("v_mov_b32 v1, 0")
        for i in range(self.nst):
            self.e(f"v_mov_b32 v0, s{80+2*i}")
            self.e(f"buffer_store_dword v0, v1, s[76:79], s98 offen offset:{4*i}")
        self.e("v_mov_b32 v0, s96")
        self.e(f"buffer_store_dword v0, v1, s[76:79], s98 offen offset:28")
        self.e("v_mov_b32 v0, s94")
        self.e(f"buffer_store_dword v0, v1, s[76:79], s98 offen offset:24")

    def srd_ptr(self, d, base, nbytes):
        self.e(f"s_mov_b32 s{d}, s{base}")
        self.e(f"s_and_b32 s{d+1}, s{base+1}, 0xffff")
        self.e(f"s_mov_b32 s{d+2}, {nbytes}")
        self.e(f"s_mov_b32 s{d+3}, 0x00020000")

    def srd_ws(self, d, wsbase, region):
        off, sz = WS[region]
        self.e(f"s_add_u32 s{d}, s{wsbase}, {off}")
        self.e(f"s_addc_u32 s{d+1}, s{wsbase+1}, 0")
        self.e(f"s_and_b32 s{d+1}, s{d+1}, 0xffff")
        self.e(f"s_mov_b32 s{d+2}, {sz}")
        self.e(f"s_mov_b32 s{d+3}, 0x00020000")

    def text(self):
        tot = self.nvgpr if self.nagpr == 0 else (self.nvgpr + 3) // 4 * 4 + self.nagpr
        acc = (self.nvgpr + 3) // 4 * 4
        out = [f".globl {self.name}", ".p2align 8", f".type {self.name},@function", f"{self.name}:"]
        out += self.L
        out += ["    s_endpgm"]
        desc = [f".amdhsa_kernel {self.name}",
                f"  .amdhsa_next_free_vgpr {tot}",
                f"  .amdhsa_next_free_sgpr {100 if PROF else self.nsgpr}",
                f"  .amdhsa_accum_offset {acc}",
                "  .amdhsa_group_segment_fixed_size 0",
                "  .amdhsa_kernarg_size 96",
                "  .amdhsa_user_sgpr_count 2",
                "  .amdhsa_user_sgpr_kernarg_segment_ptr 1",
                "  .amdhsa_system_sgpr_workgroup_id_x 1",
                ".end_amdhsa_kernel"]
        return "\n".join(out), "\n".join(desc)


def R(kind, i, n=1):
    if n == 1:
        return f"{kind}{i}"
    return f"{kind}[{i}:{i+n-1}]"


def unpack_sum(k, src, lo, hi, sacc, qacc):
    k.e(f"v_lshlrev_b32 v{lo}, 16, v{src}")
    k.e(f"v_and_b32 v{hi}, 0xffff0000, v{src}")
    k.e(f"v_add_f32 v{sacc}, v{sacc}, v{lo}")
    if qacc is not None:
        k.e(f"v_fmac_f32 v{qacc}, v{lo}, v{lo}")
    k.e(f"v_add_f32 v{sacc}, v{sacc}, v{hi}")
    if qacc is not None:
        k.e(f"v_fmac_f32 v{qacc}, v{hi}, v{hi}")


def xlane_add(k, val, tmp, addr, lane, mask):
    k.e(f"v_xor_b32 v{addr}, {mask}, v{lane}")
    k.e(f"v_lshlrev_b32 v{addr}, 2, v{addr}")
    k.e(f"ds_bpermute_b32 v{tmp}, v{addr}, v{val}")
    k.e("s_waitcnt lgkmcnt(0)")
    k.e(f"v_add_f32 v{val}, v{val}, v{tmp}")


def slotmap_v(k, dd, out, t0, t1):
    k.e(f"v_and_b32 v{out}, 0x23, v{dd}")
    k.e(f"v_bfe_u32 v{t0}, v{dd}, 2, 1")
    k.e(f"v_lshl_or_b32 v{out}, v{t0}, 4, v{out}")
    k.e(f"v_bfe_u32 v{t0}, v{dd}, 3, 2")
    k.e(f"v_lshl_or_b32 v{out}, v{t0}, 2, v{out}")
    k.e(f"v_cmp_gt_u32 vcc, 64, v{dd}")
    k.e("s_nop 1")
    k.e(f"v_cndmask_b32 v{out}, v{dd}, v{out}, vcc")


NA_, NB_, NC_, ND_ = 64, 36, 144, 144


def gen_k0():
    k = Kern("k0_kernel", 64, 0, 64)
    total = NA_ + NB_ + NC_ + ND_
    Lend = "k0_end"
    k.e(f"s_cmp_ge_u32 s2, {total}")
    k.e(f"s_cbranch_scc1 {Lend}")
    k.e("s_load_dwordx2 s[4:5], s[0:1], 0")
    k.e("s_load_dwordx4 s[8:11], s[0:1], 24")
    k.e("s_load_dwordx4 s[12:15], s[0:1], 48")
    k.e("s_load_dwordx2 s[16:17], s[0:1], 64")
    k.e("s_load_dwordx2 s[18:19], s[0:1], 88")
    k.e("v_lshrrev_b32 v1, 6, v0")
    k.e("v_and_b32 v2, 63, v0")
    k.e("v_readfirstlane_b32 s20, v1")
    k.e("s_waitcnt lgkmcnt(0)")
    k.e(f"s_cmp_lt_u32 s2, {NC_}")
    k.e("s_cbranch_scc1 k0_roleC")
    k.e(f"s_cmp_lt_u32 s2, {NC_ + ND_}")
    k.e("s_cbranch_scc1 k0_roleD")
    k.e(f"s_cmp_lt_u32 s2, {NC_ + ND_ + NA_}")
    k.e("s_cbranch_scc1 k0_roleA")
    k.e("s_branch k0_roleB")

    k.label("k0_roleA")
    k.e(f"s_sub_u32 s21, s2, {NC_ + ND_}")
    k.srd_ptr(24, 4, XC_SZ)
    k.srd_ws(28, 18, "XC0")
    k.srd_ws(32, 18, "ST0")
    k.e("v_and_b32 v3, 31, v0")
    k.e("v_lshrrev_b32 v4, 5, v0")
    k.e("v_and_b32 v5, 3, v3")
    k.e("v_bfe_u32 v6, v3, 2, 2")
    k.e("v_lshl_or_b32 v5, v6, 3, v5")
    k.e("v_bfe_u32 v6, v3, 4, 1")
    k.e("v_lshl_or_b32 v5, v6, 2, v5")
    k.e("s_movk_i32 s22, 1152")
    k.e("v_mul_lo_u32 v5, v5, s22")
    k.e("v_mul_u32_u24 v6, 144, v4")
    k.e("v_add_u32 v5, v5, v6")
    k.e("s_mul_i32 s23, s21, 36864")
    for it in range(9):
        k.e(f"buffer_load_dwordx4 v[{16+4*it}:{19+4*it}], v5, s[24:27], s23 offen offset:{16*it}")
    k.e("v_mul_u32_u24 v6, 4608, v4")
    k.e("v_lshl_add_u32 v6, v3, 4, v6")
    k.e("v_add_u32 v7, 2048, v6")
    k.e("v_mov_b32 v8, 0")
    k.e("v_mov_b32 v9, 0")
    k.e("s_waitcnt vmcnt(0)")
    for it in range(9):
        vo, im = (6, it * 512) if it < 4 else (7, (it - 4) * 512)
        k.e(f"buffer_store_dwordx4 v[{16+4*it}:{19+4*it}], v{vo}, s[28:31], s23 offen offset:{im}")
    for r in range(36):
        unpack_sum(k, 16 + r, 10, 11, 8, 9)
    k.e("v_lshlrev_b32 v12, 3, v3")
    k.e("v_lshl_add_u32 v12, v4, 15, v12")
    k.e("s_lshl_b32 s23, s21, 8")
    k.e("v_mov_b32 v10, 0")
    k.e("v_mov_b32 v11, 0")
    k.e("buffer_store_dwordx2 v[8:9], v12, s[32:35], s23 offen")
    k.e("v_add_u32 v12, 16384, v12")
    k.e("buffer_store_dwordx2 v[10:11], v12, s[32:35], s23 offen")
    k.e(f"s_branch {Lend}")

    k.label("k0_roleB")
    k.e(f"s_sub_u32 s21, s2, {NC_ + ND_ + NA_}")
    k.e("s_cmp_ge_u32 s21, 18")
    k.e("s_cselect_b32 s22, 1, 0")
    k.e("s_cselect_b32 s4, s10, s8")
    k.e("s_cselect_b32 s5, s11, s9")
    k.e("s_mul_i32 s23, s22, 18")
    k.e("s_sub_u32 s21, s21, s23")
    k.srd_ptr(24, 4, D * D * 2)
    k.srd_ws(28, 18, "RS")
    k.e("s_lshl_b32 s23, s21, 5")
    k.e("s_lshl_b32 s36, s20, 3")
    k.e("s_add_u32 s23, s23, s36")
    k.e("v_lshrrev_b32 v3, 3, v2")
    k.e("v_add_u32 v3, s23, v3")
    k.e("v_and_b32 v4, 7, v2")
    k.e("s_movk_i32 s36, 1152")
    k.e("v_mul_lo_u32 v5, v3, s36")
    k.e("v_lshl_add_u32 v5, v4, 4, v5")
    for it in range(9):
        k.e(f"buffer_load_dwordx4 v[{16+4*it}:{19+4*it}], v5, s[24:27], 0 offen offset:{128*it}")
    k.e("v_mov_b32 v8, 0")
    k.e("s_waitcnt vmcnt(0)")
    for r in range(36):
        unpack_sum(k, 16 + r, 10, 11, 8, None)
    for m in (1, 2, 4):
        xlane_add(k, 8, 10, 11, 2, m)
    k.e("v_mul_u32_u24 v6, 911, v3")
    k.e("v_lshrrev_b32 v6, 16, v6")
    k.e("v_mul_u32_u24 v7, 72, v6")
    k.e("v_sub_u32 v7, v3, v7")
    slotmap_v(k, 7, 12, 13, 14)
    k.e("v_mul_u32_u24 v6, 80, v6")
    k.e("v_add_u32 v6, v6, v12")
    k.e("v_lshlrev_b32 v6, 2, v6")
    k.e("s_mul_i32 s23, s22, 2560")
    k.e("v_cmp_eq_u32 vcc, 0, v4")
    k.e("s_and_saveexec_b64 s[38:39], vcc")
    k.e("buffer_store_dword v8, v6, s[28:31], s23 offen")
    k.e(f"s_branch {Lend}")

    k.label("k0_roleC")
    k.e("s_cmp_ge_u32 s2, 72")
    k.e("s_cselect_b32 s22, 1, 0")
    k.e("s_cselect_b32 s4, s14, s12")
    k.e("s_cselect_b32 s5, s15, s13")
    k.e("s_mul_i32 s23, s22, 72")
    k.e("s_sub_u32 s21, s2, s23")
    k.srd_ptr(24, 4, D * F * 2)
    k.srd_ws(28, 18, "WGU")
    k.srd_ws(32, 18, "CS")
    k.e("v_lshrrev_b32 v3, 3, v2")
    k.e("v_and_b32 v4, 7, v2")
    k.e("v_mul_u32_u24 v5, 9216, v3")
    k.e("v_lshl_add_u32 v5, v4, 4, v5")
    k.e("s_mul_i32 s36, s20, 73728")
    k.e("s_lshl_b32 s37, s21, 7")
    k.e("s_add_u32 s36, s36, s37")
    k.e("s_lshl_b32 s37, s20, 10")
    for i in range(18):
        k.e(f"s_add_u32 m0, s37, {4096*i}")
        k.e("s_nop 0")
        k.e("buffer_load_dwordx4 v5, s[24:27], s36 offen lds")
        k.e(f"s_add_u32 s36, s36, {4*73728}")
    k.e("v_lshrrev_b32 v3, 4, v2")
    k.e("v_and_b32 v4, 15, v2")
    k.e("v_bfe_u32 v6, v2, 2, 2")
    k.e("v_lshlrev_b32 v7, 10, v3")
    k.e("v_lshl_add_u32 v7, v6, 7, v7")
    k.e("v_and_b32 v6, 1, v2")
    k.e("v_lshl_add_u32 v7, v6, 4, v7")
    k.e("v_bfe_u32 v6, v2, 1, 1")
    k.e("v_lshl_add_u32 v7, v6, 3, v7")
    k.e("s_lshl_b32 s36, s20, 5")
    k.e("v_add_u32 v7, s36, v7")
    k.e("v_add_u32 v8, 0x8000, v7")
    k.e("s_lshl_b32 s36, s21, 2")
    k.e("s_add_u32 s36, s36, s20")
    k.e("s_mul_i32 s37, s36, 7282")
    k.e("s_lshr_b32 s37, s37, 16")
    k.e("s_mul_i32 s38, s37, 9")
    k.e("s_sub_u32 s38, s36, s38")
    k.e(f"s_mul_i32 s39, s37, {WGU_CB}")
    k.e("s_lshl_b32 s38, s38, 10")
    k.e("s_add_u32 s39, s39, s38")
    k.e("s_lshl_b32 s38, s22, 8")
    k.e("s_add_u32 s39, s39, s38")
    k.e("v_lshrrev_b32 v9, 1, v3")
    k.e("v_mul_u32_u24 v9, 9216, v9")
    k.e("v_and_b32 v6, 1, v3")
    k.e("v_lshl_add_u32 v9, v6, 9, v9")
    k.e("v_lshl_add_u32 v9, v4, 4, v9")
    k.e("v_mov_b32 v10, 0")
    k.e("s_waitcnt vmcnt(0)")
    k.e("s_barrier")
    for it in range(18):
        base, im = (7, it * 4096) if it < 8 else (8, (it - 8) * 4096)
        rg = 16 + 4 * (it % 8)
        k.e(f"ds_read_b64_tr_b16 v[{rg}:{rg+1}], v{base} offset:{im}")
        k.e(f"ds_read_b64_tr_b16 v[{rg+2}:{rg+3}], v{base} offset:{im+512}")
        k.e("s_waitcnt lgkmcnt(0)")
        k.e(f"buffer_store_dwordx4 v[{rg}:{rg+3}], v9, s[28:31], s39 offen")
        k.e(f"s_add_u32 s39, s39, 18432")
        for r in range(4):
            unpack_sum(k, rg + r, 11, 12, 10, None)
        if it % 8 == 7:
            k.e("s_waitcnt vmcnt(0)")
    xlane_add(k, 10, 11, 12, 2, 16)
    xlane_add(k, 10, 11, 12, 2, 32)
    k.e("v_cvt_pk_bf16_f32 v11, v10, v10")
    k.e("v_lshlrev_b32 v12, 16, v11")
    k.e("v_sub_f32 v13, v10, v12")
    k.e("v_cvt_pk_bf16_f32 v14, v13, v13")
    k.e("v_lshlrev_b32 v15, 16, v14")
    k.e("v_sub_f32 v13, v13, v15")
    k.e("v_cvt_pk_bf16_f32 v17, v13, v13")
    k.e("v_and_b32 v17, 0xffff, v17")
    k.e("v_and_b32 v16, 0xffff, v11")
    k.e("v_or_b32 v16, v16, v15")
    k.e("v_mov_b32 v18, 0")
    k.e("v_mov_b32 v19, 0")
    k.e("v_cmp_gt_u32 vcc, 16, v2")
    k.e("s_nop 1")
    k.e("v_cndmask_b32 v16, 0, v16, vcc")
    k.e("v_cndmask_b32 v17, 0, v17, vcc")
    k.e("v_lshlrev_b32 v11, 4, v4")
    k.e("v_lshl_add_u32 v11, v3, 9, v11")
    k.e("v_cmp_gt_u32 vcc, 32, v2")
    k.e("s_and_saveexec_b64 s[40:41], vcc")
    k.e("buffer_store_dwordx4 v[16:19], v11, s[28:31], s39 offen")
    k.e(f"s_branch {Lend}")

    k.label("k0_roleD")
    k.e(f"s_sub_u32 s21, s2, {NC_}")
    k.e("s_mul_i32 s22, s21, 7282")
    k.e("s_lshr_b32 s22, s22, 16")
    k.e("s_mul_i32 s23, s22, 9")
    k.e("s_sub_u32 s21, s21, s23")
    k.srd_ptr(24, 16, D * F * 2)
    k.srd_ws(28, 18, "WD")
    k.e("v_lshrrev_b32 v3, 3, v2")
    k.e("v_and_b32 v4, 7, v2")
    k.e("v_mul_u32_u24 v5, 1152, v3")
    k.e("v_lshl_add_u32 v5, v4, 4, v5")
    k.e(f"s_mul_i32 s36, s22, {288*1152}")
    k.e("s_mul_i32 s37, s20, 9216")
    k.e("s_add_u32 s36, s36, s37")
    k.e("s_lshl_b32 s37, s21, 7")
    k.e("s_add_u32 s36, s36, s37")
    k.e("s_lshl_b32 s37, s20, 10")
    for i in range(9):
        k.e(f"s_add_u32 m0, s37, {4096*i}")
        k.e("s_nop 0")
        k.e("buffer_load_dwordx4 v5, s[24:27], s36 offen lds")
        k.e(f"s_add_u32 s36, s36, {4*9216}")
    k.e("v_lshrrev_b32 v3, 4, v2")
    k.e("v_and_b32 v4, 15, v2")
    k.e("v_bfe_u32 v6, v2, 2, 2")
    k.e("v_lshlrev_b32 v7, 10, v3")
    k.e("v_lshl_add_u32 v7, v6, 7, v7")
    k.e("v_and_b32 v6, 3, v2")
    k.e("v_lshl_add_u32 v7, v6, 3, v7")
    k.e("s_lshl_b32 s36, s20, 5")
    k.e("v_add_u32 v7, s36, v7")
    k.e("s_lshl_b32 s36, s21, 6")
    k.e("s_lshl_b32 s37, s20, 4")
    k.e("s_add_u32 s36, s36, s37")
    k.e("v_add_u32 v8, s36, v4")
    k.e("v_mul_u32_u24 v9, 911, v8")
    k.e("v_lshrrev_b32 v9, 16, v9")
    k.e("v_mul_u32_u24 v10, 72, v9")
    k.e("v_sub_u32 v10, v8, v10")
    slotmap_v(k, 10, 11, 12, 13)
    k.e("s_mov_b32 s36, 663552")
    k.e("v_mul_lo_u32 v9, v9, s36")
    k.e("v_lshl_add_u32 v9, v11, 4, v9")
    k.e("v_mul_u32_u24 v12, 1152, v3")
    k.e("v_add_u32 v9, v9, v12")
    k.e(f"s_mul_i32 s39, s22, {36*1152}")
    k.e("s_waitcnt vmcnt(0)")
    k.e("s_barrier")
    for it in range(9):
        rg = 16 + 4 * it
        k.e(f"ds_read_b64_tr_b16 v[{rg}:{rg+1}], v7 offset:{it*4096}")
        k.e(f"ds_read_b64_tr_b16 v[{rg+2}:{rg+3}], v7 offset:{it*4096+512}")
    for it in range(9):
        rg = 16 + 4 * it
        k.e(f"s_waitcnt lgkmcnt({min(15, 2*(8-it))})")
        k.e(f"buffer_store_dwordx4 v[{rg}:{rg+3}], v9, s[28:31], s39 offen")
        k.e(f"s_add_u32 s39, s39, 4608")
    k.label(Lend)
    return k, total, 256, 73728


def srd_ws_s(k, d, wsbase, sreg, size):
    k.e(f"s_add_u32 s{d}, s{wsbase}, s{sreg}")
    k.e(f"s_addc_u32 s{d+1}, s{wsbase+1}, 0")
    k.e(f"s_and_b32 s{d+1}, s{d+1}, 0xffff")
    k.e(f"s_mov_b32 s{d+2}, {size}")
    k.e(f"s_mov_b32 s{d+3}, 0x00020000")


def ktext(k, entries):
    tot = k.nvgpr if k.nagpr == 0 else (k.nvgpr + 3) // 4 * 4 + k.nagpr
    acc = (k.nvgpr + 3) // 4 * 4
    out, descs = [], []
    for name, ins in entries:
        out += [f".globl {name}", ".p2align 8", f".type {name},@function", f"{name}:"]
        out += [" " + x for x in ins]
        out += [f" s_branch {k.name}_body"]
        descs.append("\n".join([f".amdhsa_kernel {name}",
                f"  .amdhsa_next_free_vgpr {tot}",
                f"  .amdhsa_next_free_sgpr {100 if PROF else k.nsgpr}",
                f"  .amdhsa_accum_offset {acc}",
                "  .amdhsa_group_segment_fixed_size 0",
                "  .amdhsa_kernarg_size 96",
                "  .amdhsa_user_sgpr_count 2",
                "  .amdhsa_user_sgpr_kernarg_segment_ptr 1",
                "  .amdhsa_system_sgpr_workgroup_id_x 1",
                ".end_amdhsa_kernel"]))
    out += [".p2align 6", f"{k.name}_body:"]
    out += [x.replace("    ", " ", 1) for x in k.L]
    out += [" s_endpgm"]
    return "\n".join(out), descs


def stats_load(k, base, vaddr, srd, soff, tag=None):
    for i in range(8):
        k.e(f"s_add_u32 s57, s{soff}, {i*16384}")
        ins = f"buffer_load_dwordx2 v[{base+2*i}:{base+2*i+1}], v{vaddr}, s[{srd}:{srd+3}], s57 offen"
        if tag is None:
            k.e(ins)
        else:
            k.vm(ins, tag)


def stats_finish(k, base, vm_, vsd, t0, t1, t2):
    for j in range(1, 8):
        k.e(f"v_add_f32 v{base}, v{base}, v{base+2*j}")
        k.e(f"v_add_f32 v{base+1}, v{base+1}, v{base+2*j+1}")
    k.e(f"v_mov_b32 v{base+2}, v{base}")
    k.e(f"v_mov_b32 v{base+3}, v{base+1}")
    k.e("s_nop 1")
    k.e(f"v_permlane32_swap_b32 v{base}, v{base+2}")
    k.e(f"v_permlane32_swap_b32 v{base+1}, v{base+3}")
    k.e("s_nop 1")
    k.e(f"v_add_f32 v{base}, v{base}, v{base+2}")
    k.e(f"v_add_f32 v{base+1}, v{base+1}, v{base+3}")
    stats_core(k, base, vm_, vsd, t0, t1, t2)


def stats_core(k, base, vm_, vsd, t0, t1, t2):
    k.e(f"v_mov_b32 v{t0}, 0x3ae38e39")
    k.e(f"v_mul_f32 v{t1}, v{base}, v{t0}")
    k.e(f"v_mul_f32 v{t2}, v{base+1}, v{t0}")
    k.e(f"v_fma_f32 v{t2}, -v{t1}, v{t1}, v{t2}")
    k.e(f"v_max_f32 v{t2}, 0, v{t2}")
    k.e(f"v_cvt_pk_bf16_f32 v{t0}, v{t1}, v{t2}")
    k.e(f"v_lshlrev_b32 v{vm_}, 16, v{t0}")
    k.e(f"v_and_b32 v{t2}, 0xffff0000, v{t0}")
    k.e(f"v_add_f32 v{t2}, 0x3727c5ac, v{t2}")
    k.e(f"v_cvt_pk_bf16_f32 v{t0}, v{t2}, v{t2}")
    k.e(f"v_lshlrev_b32 v{t2}, 16, v{t0}")
    k.e(f"v_sqrt_f32 v{t2}, v{t2}")
    k.e("s_nop 0")
    k.e(f"v_cvt_pk_bf16_f32 v{t0}, v{t2}, v{t2}")
    k.e(f"v_lshlrev_b32 v{vsd}, 16, v{t0}")


def gen_kh(first):
    name = "kh1" if first else "kh"
    k = Kern(name, 256, 0, 92)
    Lend = name + "_end"
    LDS_W = 9 * 9216
    SCR = LDS_W + 1024
    RPK = 87040
    k.e("s_cmp_ge_u32 s2, 256")
    k.e(f"s_cbranch_scc1 {Lend}")
    k.e("s_load_dwordx4 s[8:11], s[0:1], 24")
    k.e("s_load_dwordx2 s[18:19], s[0:1], 88")
    if first:
        k.e("s_load_dwordx2 s[6:7], s[0:1], 0")
        k.e("s_load_dwordx4 s[12:15], s[0:1], 48")
        k.e("s_load_dwordx2 s[16:17], s[0:1], 64")
    k.e("v_lshrrev_b32 v1, 6, v0")
    k.e("v_and_b32 v2, 63, v0")
    k.e("v_readfirstlane_b32 s20, v1")
    k.e("s_and_b32 s21, s2, 7")
    k.e("s_lshr_b32 s22, s2, 3")
    k.e("s_lshl_b32 s21, s21, 1")
    k.e("s_and_b32 s23, s22, 1")
    k.e("s_add_u32 s21, s21, s23")
    k.e("s_lshr_b32 s22, s22, 1")
    k.e("s_mov_b32 s54, s22")
    k.e("s_and_b32 s23, s22, 7")
    k.e("s_lshr_b32 s22, s22, 3")
    k.e("s_and_b32 s55, s20, 3")
    k.e("s_lshr_b32 s56, s20, 2")
    k.e("s_lshl_b32 s21, s21, 2")
    k.e("s_add_u32 s21, s21, s55")
    k.e("s_waitcnt lgkmcnt(0)")
    k.stamp(0)
    k.e("s_cmp_eq_u32 s22, 1")
    k.e("s_cselect_b32 s4, s10, s8")
    k.e("s_cselect_b32 s5, s11, s9")
    k.srd_ptr(24, 4, D * D * 2)
    if first:
        k.srd_ptr(28, 6, XC_SZ)
        k.srd_ws(32, 18, "XC0")
    else:
        srd_ws_s(k, 28, 18, 70, XC_SZ)
        srd_ws_s(k, 32, 18, 71, ST_SZ)
    k.srd_ws(40, 18, "AB")
    k.e("v_lshrrev_b32 v3, 3, v2")
    k.e("v_and_b32 v4, 7, v2")
    k.e("v_lshrrev_b32 v5, 1, v3")
    k.e("v_xor_b32 v5, v5, v4")
    k.e("v_lshlrev_b32 v5, 4, v5")
    k.e("v_lshrrev_b32 v6, 2, v3")
    k.e("v_and_b32 v7, 3, v3")
    k.e("v_lshl_add_u32 v6, v6, 3, v7")
    k.e("v_mul_u32_u24 v6, 1152, v6")
    k.e("v_add_u32 v8, v6, v5")
    k.e("v_xor_b32 v7, 64, v5")
    k.e("v_add_u32 v9, v6, v7")
    k.e("v_mul_u32_u24 v6, 1152, v3")
    k.e("v_add_u32 v10, v6, v5")
    k.e("v_and_b32 v11, 15, v2")
    k.e("v_lshrrev_b32 v12, 4, v2")
    k.e("v_lshlrev_b32 v13, 9, v12")
    k.e("v_lshl_add_u32 v13, v11, 4, v13")
    k.e(f"s_mul_i32 s48, s23, {72*1152}")
    k.e("s_lshl_b32 s49, s20, 7")
    k.e("s_add_u32 s50, s48, s49")
    k.e("s_mul_i32 s49, s20, 9216")
    qc = lambda q: (32 * (q >> 2) + 16 * (q & 1) + 4 * ((q >> 1) & 1)) * 1152 if q < 8 else 64 * 1152
    for q in range(9):
        v = 8 + (q & 1) if q < 8 else 10
        k.e(f"s_add_u32 m0, s49, {1024*q}")
        k.e(f"s_add_u32 s51, s50, {qc(q)}")
        k.vm(f"buffer_load_dwordx4 v{v}, s[24:27], s51 offen lds", "w")
    k.e("s_lshl_b32 s49, s56, 5")
    k.e("s_and_b32 s50, s20, 1")
    k.e("s_lshl_b32 s51, s50, 4")
    k.e("s_add_u32 s49, s49, s51")
    k.e("s_bfe_u32 s51, s20, 0x10001")
    k.e("s_lshl_b32 s51, s51, 2")
    k.e("s_add_u32 s49, s49, s51")
    k.e("s_mul_i32 s49, s49, 1152")
    k.e("s_add_u32 s49, s49, s48")
    k.e("s_add_u32 s49, s49, 1024")
    k.e("s_cmp_eq_u32 s50, 1")
    k.e("s_cselect_b64 vcc, -1, 0")
    k.e("v_cndmask_b32 v14, v8, v9, vcc")
    k.e("s_lshl_b32 s51, s20, 10")
    k.e(f"s_add_u32 m0, s51, {8*9216}")
    k.e("s_nop 0")
    k.vm("buffer_load_dwordx4 v14, s[24:27], s49 offen lds", "w")
    k.e(f"s_mov_b32 m0, {8*9216 + 8192}")
    k.e(f"s_add_u32 s49, s48, {64*1152 + 1024}")
    k.e("s_cmp_eq_u32 s20, 0")
    k.e("s_cselect_b32 s49, s49, 0x7f000000")
    k.e("s_cselect_b64 exec, -1, 0")
    k.e(f"s_cbranch_execz {name}_skipq8")
    k.e("buffer_load_dwordx4 v10, s[24:27], s49 offen lds")
    k.label(f"{name}_skipq8")
    k.e("s_mov_b64 exec, -1")
    AF = 16
    if first:
        k.e("v_lshrrev_b32 v240, 2, v11")
        k.e("v_and_b32 v241, 3, v11")
        k.e("v_lshl_add_u32 v240, v240, 3, v241")
        k.e("v_mul_u32_u24 v240, 1152, v240")
        k.e("v_lshl_add_u32 v240, v12, 4, v240")
        k.e("v_add_u32 v241, 4608, v240")
        k.e("s_mul_i32 s44, s21, 36864")
        k.e("s_mul_i32 s45, s56, 576")
        k.e("s_add_u32 s45, s45, s44")

        def aload(j):
            for u in range(2):
                rg = AF + (j * 2 + u) * 4
                k.vm(f"buffer_load_dwordx4 v[{rg}:{rg+3}], v{240+u}, s[28:31], s45 offen offset:{64*j}", ("a", j))
    else:
        k.e("s_mul_i32 s44, s21, 36864")
        k.e(f"s_mul_i32 s45, s56, {9*2048}")
        k.e("s_add_u32 s45, s45, s44")

        def aload(j):
            if j % 2 == 0 and j > 0:
                k.e("s_add_u32 s45, s45, 4096")
            for u in range(2):
                rg = AF + (j * 2 + u) * 4
                k.vm(f"buffer_load_dwordx4 v[{rg}:{rg+3}], v13, s[28:31], s45 offen offset:{(j%2)*2048 + u*256}", ("a", j))
    APRE = 3
    for j in range(APRE):
        aload(j)
    if not first:
        k.e("v_and_b32 v14, 31, v2")
        k.e("v_lshrrev_b32 v15, 5, v2")
        k.e("v_lshlrev_b32 v15, 17, v15")
        k.e("v_lshl_add_u32 v242, v14, 3, v15")
        k.e("s_lshl_b32 s53, s21, 8")
    if first:
        k.e("s_cmp_lt_u32 s2, 72")
        k.e("s_cselect_b32 s4, s12, s14")
        k.e("s_cselect_b32 s5, s13, s15")
        k.e("s_cselect_b32 s60, 0, 1")
        k.e("s_cmp_lt_u32 s2, 144")
        k.e("s_cselect_b32 s4, s4, s16")
        k.e("s_cselect_b32 s5, s5, s17")
        k.e("s_movk_i32 s61, 1152")
        k.e("s_cselect_b32 s61, 9216, s61")
        k.e("s_cselect_b32 s62, 1, 0")
        k.srd_ptr(36, 4, D * F * 2)
        k.e("s_mul_i32 s63, s60, 72")
        k.e("s_sub_u32 s63, s2, s63")
        k.e("s_sub_u32 s64, s2, 144")
        k.e("s_mul_i32 s65, s64, 7282")
        k.e("s_lshr_b32 s65, s65, 16")
        k.e("s_mul_i32 s66, s65, 9")
        k.e("s_sub_u32 s64, s64, s66")
        k.e(f"s_mul_i32 s66, s65, {384*1152}")
        k.e("s_lshl_b32 s67, s64, 7")
        k.e("s_add_u32 s66, s66, s67")
        k.e("s_lshl_b32 s67, s63, 7")
        k.e("s_cmp_eq_u32 s62, 1")
        k.e("s_cselect_b32 s66, s67, s66")
        k.e("s_cselect_b32 s67, 9, 6")
        k.e("s_cmp_ge_u32 s2, 252")
        k.e("s_cselect_b32 s67, 0, s67")
        k.e("s_lshl_b32 s68, s61, 3")
        k.e("s_mul_i32 s69, s20, s68")
        k.e("s_add_u32 s66, s66, s69")
        k.e("s_lshl_b32 s68, s68, 3")
        k.e("v_mul_lo_u32 v6, v3, s61")
        k.e("v_lshl_add_u32 v6, v4, 4, v6")
        k.e("s_lshl_b32 s69, s20, 10")

        def rdma(i):
            k.e(f"s_cmp_gt_u32 s67, {i}")
            k.e("s_cselect_b32 s51, s66, 0x7f000000")
            k.e(f"s_add_u32 m0, s69, {RPK + 8192*i}")
            k.e("s_add_u32 s66, s66, s68")
            k.vm("buffer_load_dwordx4 v6, s[36:39], s51 offen lds", "r")
    ACC = 128
    for a in range(60):
        k.e(f"v_mov_b32 v{ACC+a}, 0")
    ONE = 188
    for a in range(4):
        k.e(f"v_mov_b32 v{ONE+a}, 0x3f803f80")
    k.e("v_lshrrev_b32 v15, 1, v11")
    k.e("v_xor_b32 v15, v15, v12")
    k.e("v_lshlrev_b32 v15, 4, v15")
    k.e("v_lshl_add_u32 v192, v11, 7, v15")
    k.e("v_xor_b32 v193, 64, v192")
    k.e("s_cmp_eq_u32 s56, 1")
    k.e("s_cselect_b64 vcc, -1, 0")
    k.e(f"v_add_u32 v194, {4*9216}, v193")
    k.e(f"v_add_u32 v195, {5*9216}, v192")
    k.e("v_cndmask_b32 v192, v192, v194, vcc")
    k.e("v_cndmask_b32 v193, v193, v195, vcc")
    if first:
        k.e("v_mov_b32 v196, 0"); k.e("v_mov_b32 v197, 0"); k.e("v_mov_b32 v198, 0"); k.e("v_mov_b32 v199, 0")
    k.stamp(1)
    k.wait_vm("w")
    k.e("s_barrier")
    k.stamp(2)
    sets = [88, 108]

    def bread(j):
        sb = sets[j & 1]
        for T in range(5):
            k.ds(f"ds_read_b128 v[{sb+4*T}:{sb+4*T+3}], v{192 + (j & 1)} offset:{(j>>1)*9216 + T*2048}", ("b", j))
    bread(0)
    for j in range(9):
        if j + 1 < 9:
            bread(j + 1)
        if j + APRE < 9:
            aload(j + APRE)
        elif not first and j + APRE == 9:
            stats_load(k, 224, 242, 32, 53, "st")
        if first:
            rdma(j)
        k.wait_vm(("a", j))
        k.wait_ds(("b", j))
        sb = sets[j & 1]
        for u in range(2):
            af = AF + (j * 2 + u) * 4
            for T in range(5):
                acc = ACC + (u * 5 + T) * 4
                k.e(f"v_mfma_f32_16x16x32_bf16 v[{acc}:{acc+3}], v[{af}:{af+3}], v[{sb+4*T}:{sb+4*T+3}], v[{acc}:{acc+3}]")
            if first:
                for r in range(4):
                    k.e(f"v_dot2_f32_bf16 v{196+2*u}, v{af+r}, v{ONE}, v{196+2*u}")
                    k.e(f"v_dot2_f32_bf16 v{197+2*u}, v{af+r}, v{af+r}, v{197+2*u}")
        for T in range(5):
            acc = ACC + 40 + T * 4
            k.e(f"v_mfma_f32_16x16x32_bf16 v[{acc}:{acc+3}], v[{ONE}:{ONE+3}], v[{sb+4*T}:{sb+4*T+3}], v[{acc}:{acc+3}]")
    k.stamp(3)
    if first:
        k.e("s_cmp_lg_u32 s54, 0")
        k.e(f"s_cbranch_scc1 {name}_noxc")
        k.e(f"s_mul_i32 s45, s56, {9*2048}")
        k.e("s_add_u32 s45, s45, s44")
        for j in range(9):
            if j % 2 == 0 and j > 0:
                k.e("s_add_u32 s45, s45, 4096")
            for u in range(2):
                rg = AF + (j * 2 + u) * 4
                k.e(f"buffer_store_dwordx4 v[{rg}:{rg+3}], v13, s[32:35], s45 offen offset:{(j%2)*2048 + u*256}")
        k.label(f"{name}_noxc")
        k.e("s_nop 3")
        for sw in ("16", "32"):
            for r in range(4):
                k.e(f"v_mov_b32 v{200+r}, v{196+r}")
            k.e("s_nop 1")
            for r in range(4):
                k.e(f"v_permlane{sw}_swap_b32 v{196+r}, v{200+r}")
            k.e("s_nop 1")
            for r in range(4):
                k.e(f"v_add_f32 v{196+r}, v{196+r}, v{200+r}")
        k.e("s_lshl_b32 s50, s20, 8")
        k.e(f"s_add_u32 s50, s50, {SCR}")
        k.e("v_lshl_add_u32 v200, v11, 3, s50")
        k.e("ds_write_b64 v200, v[196:197]")
        k.e("ds_write_b64 v200, v[198:199] offset:128")
    k.e("s_waitcnt lgkmcnt(0)")
    k.lq = []
    k.e("s_barrier")
    k.e("s_mul_i32 s50, s20, 9216")
    k.e("v_lshl_add_u32 v200, v2, 4, s50")
    k.e("s_xor_b32 s51, s20, 4")
    k.e("s_mul_i32 s51, s51, 9216")
    k.e("v_lshl_add_u32 v201, v2, 4, s51")
    k.e("s_cmp_eq_u32 s56, 1")
    k.e(f"s_cbranch_scc1 {name}_w1")
    def wr(Ts):
        n = 0
        for T in Ts:
            for part in (ACC + T * 4, ACC + 20 + T * 4, ACC + 40 + T * 4):
                k.e(f"ds_write_b128 v200, v[{part}:{part+3}] offset:{n*1024}")
                n += 1
    wr((3, 4))
    k.e(f"s_branch {name}_w2")
    k.label(f"{name}_w1")
    wr((0, 1, 2))
    k.label(f"{name}_w2")
    k.e("s_waitcnt lgkmcnt(0)")
    k.e("s_barrier")
    k.e("v_and_b32 v14, 31, v2")
    if first:
        k.e("s_lshl_b32 s50, s55, 8")
        k.e(f"s_add_u32 s50, s50, {SCR}")
        k.e("v_lshl_add_u32 v202, v14, 3, s50")
        k.e("ds_read_b64 v[204:205], v202")
        k.e("ds_read_b64 v[206:207], v202 offset:1024")
        k.e("s_waitcnt lgkmcnt(0)")
        k.e("v_add_f32 v204, v204, v206")
        k.e("v_add_f32 v205, v205, v207")
        stats_core(k, 204, 208, 209, 210, 211, 212)
    else:
        k.wait_vm("st")
    return k, name, Lend, SCR, RPK, ACC, AF


def gen_kh_full(first):
    k, name, Lend, SCR, RPK, ACC, AF = gen_kh(first)
    LDS_W = 9 * 9216
    if not first:
        stats_finish(k, 224, 208, 209, 210, 211, 212)
    k.e("v_rcp_f32 v209, v209")
    k.e("s_nop 0")
    k.e("v_mul_f32 v208, v208, v209")
    k.e("s_lshl_b32 s50, s20, 8")
    k.e(f"s_add_u32 s50, s50, {LDS_W - 4096}")
    k.e("v_lshl_add_u32 v202, v14, 3, s50")
    k.e("ds_write_b64 v202, v[208:209]")
    k.e("v_lshl_add_u32 v202, v12, 5, s50")
    k.e("s_waitcnt lgkmcnt(0)")
    k.e("ds_read_b128 v[208:211], v202")
    k.e("ds_read_b128 v[212:215], v202 offset:16")
    k.e("ds_read_b128 v[216:219], v202 offset:128")
    k.e("ds_read_b128 v[220:223], v202 offset:144")
    k.e("v_mul_u32_u24 v15, 1152, v12")
    k.e("v_lshl_add_u32 v15, v11, 4, v15")
    k.e("s_lshl_b32 s46, s54, 8")
    k.e("s_lshl_b32 s47, s21, 2")
    k.e("s_add_u32 s46, s46, s47")
    k.e("s_mul_i32 s46, s46, 1152")

    def fin(Ts):
        n = 0
        for T in Ts:
            for j in range(3):
                k.e(f"ds_read_b128 v[{88+(n%9)*4}:{91+(n%9)*4}], v201 offset:{n*1024}")
                n += 1
        k.e("s_waitcnt lgkmcnt(0)")
        n = 0
        for T in Ts:
            a0, a1, rr = ACC + T * 4, ACC + 20 + T * 4, ACC + 40 + T * 4
            p = 88 + n * 4
            for r in range(4):
                k.e(f"v_add_f32 v{a0+r}, v{a0+r}, v{p+r}")
                k.e(f"v_add_f32 v{a1+r}, v{a1+r}, v{p+4+r}")
            k.e(f"v_add_f32 v{rr}, v{rr}, v{p+8}")
            for u, a in ((0, a0), (1, a1)):
                for r in range(4):
                    sr = 208 + 8 * u + 2 * r
                    k.e(f"v_mul_f32 v{a+r}, v{a+r}, v{sr+1}")
                    k.e(f"v_fma_f32 v{a+r}, -v{sr}, v{rr}, v{a+r}")
            o = p
            k.e(f"v_cvt_pk_bf16_f32 v{o}, v{a0}, v{a0+1}")
            k.e(f"v_cvt_pk_bf16_f32 v{o+1}, v{a0+2}, v{a0+3}")
            k.e(f"v_cvt_pk_bf16_f32 v{o+2}, v{a1}, v{a1+1}")
            k.e(f"v_cvt_pk_bf16_f32 v{o+3}, v{a1+2}, v{a1+3}")
            if T == 4:
                k.e("v_cmp_gt_u32 vcc, 8, v11")
                k.e("s_and_saveexec_b64 s[50:51], vcc")
            k.e(f"buffer_store_dwordx4 v[{o}:{o+3}], v15, s[40:43], s46 offen offset:{256*T}")
            if T == 4:
                k.e("s_mov_b64 exec, -1")
            n += 3
    k.e("s_cmp_eq_u32 s56, 1")
    k.e(f"s_cbranch_scc1 {name}_f1")
    fin((0, 1, 2))
    k.e(f"s_branch {name}_f2")
    k.label(f"{name}_f1")
    fin((3, 4))
    k.label(f"{name}_f2")
    k.stamp(4)
    if first:
        k.e("s_cmp_ge_u32 s2, 252")
        k.e(f"s_cbranch_scc1 {name}_rdone")
        k.e("s_waitcnt vmcnt(0)")
        k.e("s_barrier")
        k.e("v_lshrrev_b32 v3, 4, v2")
        k.e("v_and_b32 v4, 15, v2")
        k.e("v_bfe_u32 v6, v2, 2, 2")
        k.e("v_lshlrev_b32 v7, 10, v3")
        k.e("v_lshl_add_u32 v7, v6, 7, v7")
        k.e("s_lshl_b32 s50, s55, 5")
        k.e(f"s_add_u32 s50, s50, {RPK}")
        k.e("s_cmp_eq_u32 s62, 0")
        k.e(f"s_cbranch_scc1 {name}_roleD")
        k.srd_ws(28, 18, "WGU")
        k.e("v_and_b32 v6, 1, v2")
        k.e("v_lshl_add_u32 v7, v6, 4, v7")
        k.e("v_bfe_u32 v6, v2, 1, 1")
        k.e("v_lshl_add_u32 v7, v6, 3, v7")
        k.e(f"s_mul_i32 s51, s56, {9*4096}")
        k.e("s_add_u32 s50, s50, s51")
        k.e("v_add_u32 v7, s50, v7")
        k.e("s_lshl_b32 s36, s63, 2")
        k.e("s_add_u32 s36, s36, s55")
        k.e("s_mul_i32 s37, s36, 7282")
        k.e("s_lshr_b32 s37, s37, 16")
        k.e("s_mul_i32 s38, s37, 9")
        k.e("s_sub_u32 s38, s36, s38")
        k.e(f"s_mul_i32 s39, s37, {WGU_CB}")
        k.e("s_lshl_b32 s38, s38, 10")
        k.e("s_add_u32 s39, s39, s38")
        k.e("s_lshl_b32 s38, s60, 8")
        k.e("s_add_u32 s39, s39, s38")
        k.e(f"s_add_u32 s52, s39, {36*9216}")
        k.e(f"s_mul_i32 s38, s56, {9*18432}")
        k.e("s_add_u32 s39, s39, s38")
        k.e("v_lshrrev_b32 v9, 1, v3")
        k.e("v_mul_u32_u24 v9, 9216, v9")
        k.e("v_and_b32 v6, 1, v3")
        k.e("v_lshl_add_u32 v9, v6, 9, v9")
        k.e("v_lshl_add_u32 v9, v4, 4, v9")
        k.e("v_mov_b32 v10, 0")
        for it in range(9):
            rg = 16 + 4 * it
            k.e(f"ds_read_b64_tr_b16 v[{rg}:{rg+1}], v7 offset:{it*4096}")
            k.e(f"ds_read_b64_tr_b16 v[{rg+2}:{rg+3}], v7 offset:{it*4096+512}")
        for it in range(9):
            rg = 16 + 4 * it
            k.e(f"s_waitcnt lgkmcnt({min(15, 2*(8-it))})")
            k.e(f"buffer_store_dwordx4 v[{rg}:{rg+3}], v9, s[28:31], s39 offen")
            k.e("s_add_u32 s39, s39, 18432")
            for r in range(4):
                k.e(f"v_dot2_f32_bf16 v10, v{rg+r}, v188, v10")
        k.e("s_nop 3")
        for sw in ("16", "32"):
            k.e("v_mov_b32 v11, v10")
            k.e("s_nop 1")
            k.e(f"v_permlane{sw}_swap_b32 v10, v11")
            k.e("s_nop 1")
            k.e("v_add_f32 v10, v10, v11")
        k.e("s_lshl_b32 s50, s20, 6")
        k.e(f"s_add_u32 s50, s50, {SCR + 2048}")
        k.e("v_lshl_add_u32 v11, v4, 2, s50")
        k.e("ds_write_b32 v11, v10")
        k.e("s_waitcnt lgkmcnt(0)")
        k.e("s_barrier")
        k.e("s_cmp_lg_u32 s56, 0")
        k.e(f"s_cbranch_scc1 {name}_rdone")
        k.e("ds_read_b32 v12, v11 offset:256")
        k.e("s_waitcnt lgkmcnt(0)")
        k.e("v_add_f32 v10, v10, v12")
        k.e("v_cvt_pk_bf16_f32 v11, v10, v10")
        k.e("v_lshlrev_b32 v12, 16, v11")
        k.e("v_sub_f32 v13, v10, v12")
        k.e("v_cvt_pk_bf16_f32 v14, v13, v13")
        k.e("v_lshlrev_b32 v15, 16, v14")
        k.e("v_sub_f32 v13, v13, v15")
        k.e("v_cvt_pk_bf16_f32 v57, v13, v13")
        k.e("v_and_b32 v57, 0xffff, v57")
        k.e("v_and_b32 v56, 0xffff, v11")
        k.e("v_or_b32 v56, v56, v15")
        k.e("v_mov_b32 v58, 0")
        k.e("v_mov_b32 v59, 0")
        k.e("v_cmp_gt_u32 vcc, 16, v2")
        k.e("s_nop 1")
        k.e("v_cndmask_b32 v56, 0, v56, vcc")
        k.e("v_cndmask_b32 v57, 0, v57, vcc")
        k.e("v_lshlrev_b32 v11, 4, v4")
        k.e("v_lshl_add_u32 v11, v3, 9, v11")
        k.e("v_cmp_gt_u32 vcc, 32, v2")
        k.e("s_and_saveexec_b64 s[50:51], vcc")
        k.e("buffer_store_dwordx4 v[56:59], v11, s[28:31], s52 offen")
        k.e(f"s_branch {name}_rdone")
        k.label(f"{name}_roleD")
        k.srd_ws(28, 18, "WD")
        k.e("v_and_b32 v6, 3, v2")
        k.e("v_lshl_add_u32 v7, v6, 3, v7")
        k.e(f"s_mul_i32 s51, s56, {6*4096}")
        k.e("s_add_u32 s50, s50, s51")
        k.e("v_add_u32 v7, s50, v7")
        k.e("s_lshl_b32 s36, s64, 6")
        k.e("s_lshl_b32 s37, s55, 4")
        k.e("s_add_u32 s36, s36, s37")
        k.e("v_add_u32 v8, s36, v4")
        k.e("v_mul_u32_u24 v9, 911, v8")
        k.e("v_lshrrev_b32 v9, 16, v9")
        k.e("v_mul_u32_u24 v10, 72, v9")
        k.e("v_sub_u32 v10, v8, v10")
        slotmap_v(k, 10, 11, 12, 13)
        k.e("s_mov_b32 s36, 663552")
        k.e("v_mul_lo_u32 v9, v9, s36")
        k.e("v_lshl_add_u32 v9, v11, 4, v9")
        k.e("v_mul_u32_u24 v12, 1152, v3")
        k.e("v_add_u32 v9, v9, v12")
        k.e(f"s_mul_i32 s39, s65, {48*1152}")
        k.e(f"s_mul_i32 s38, s56, {24*1152}")
        k.e("s_add_u32 s39, s39, s38")
        for it in range(6):
            rg = 16 + 4 * it
            k.e(f"ds_read_b64_tr_b16 v[{rg}:{rg+1}], v7 offset:{it*4096}")
            k.e(f"ds_read_b64_tr_b16 v[{rg+2}:{rg+3}], v7 offset:{it*4096+512}")
        for it in range(6):
            rg = 16 + 4 * it
            k.e(f"s_waitcnt lgkmcnt({2*(5-it)})")
            k.e(f"buffer_store_dwordx4 v[{rg}:{rg+3}], v9, s[28:31], s39 offen")
            k.e("s_add_u32 s39, s39, 4608")
        k.label(f"{name}_rdone")
    if PROF:
        k.e("s_mov_b64 exec, -1")
        k.wait_vm_all()
    k.stamp(5)
    k.stamp_store(5 if first else 1, 18, 20)
    k.label(Lend)
    return k, 256, 512, (RPK + 73728) if first else RPK


REG = 20480
EXP_NOMFMA = int(os.environ.get("EXP_NOMFMA", "0"))
EXP_PAD = int(os.environ.get("EXP_PAD", "0"))
BAR = int(os.environ.get("BAR", "0"))
EXP_NOWD = int(os.environ.get("EXP_NOWD", "0"))
EXP_NOHC = int(os.environ.get("EXP_NOHC", "0"))
ILV = int(os.environ.get("ILV", "1"))
KD_W, KD_S = (1, 8) if ILV else (18, 1)
KS_W, KS_S = (1, 4) if ILV else (8, 1)


def t1_decode(k):
    k.e("v_lshrrev_b32 v1, 6, v0")
    k.e("v_and_b32 v2, 63, v0")
    k.e("v_readfirstlane_b32 s20, v1")
    k.e("s_and_b32 s22, s2, 7")
    k.e("s_lshr_b32 s23, s2, 3")
    k.e("s_lshr_b32 s21, s22, 1")
    k.e("s_lshl_b32 s21, s21, 3")
    k.e("s_and_b32 s44, s23, 7")
    k.e("s_add_u32 s21, s21, s44")
    k.e("s_and_b32 s22, s22, 1")
    k.e("s_lshl_b32 s22, s22, 2")
    k.e("s_lshr_b32 s23, s23, 3")
    k.e("s_add_u32 s23, s23, s22")


def t1_epilogue(k, name, mode, ACC, xin_srd, xout_srd, st_srd, sfinal):
    sW, sTB, sJ = 20, 21, 23
    k.e("v_and_b32 v2, 63, v0")
    k.e("v_and_b32 v11, 15, v2")
    k.e("v_lshrrev_b32 v12, 4, v2")
    k.e(f"s_mul_i32 s60, s{sW}, {REG}")
    k.e("v_lshl_add_u32 v3, v2, 4, s60")
    k.e(f"s_and_b32 s61, s{sW}, 3")
    k.e(f"s_lshr_b32 s59, s{sW}, 2")
    k.e("s_lshr_b32 s62, s61, 1")
    k.e(f"s_lshl_b32 s63, s{sTB}, 1")
    k.e("s_add_u32 s58, s62, s63")
    k.e("s_and_b32 s62, s61, 1")
    k.e("s_mul_i32 s63, s58, 36864")
    k.e(f"s_mul_i32 s64, s{sJ}, 4608")
    k.e("s_add_u32 s63, s63, s64")
    k.e("s_lshl_b32 s64, s62, 8")
    k.e("s_add_u32 s63, s63, s64")
    k.e("s_add_u32 s64, s63, 4096")
    k.e("s_lshl_b32 s65, s59, 11")
    k.e("s_add_u32 s63, s63, s65")
    k.e("v_lshlrev_b32 v4, 9, v12")
    k.e("v_lshl_add_u32 v4, v11, 4, v4")
    k.e("v_lshlrev_b32 v5, 3, v12")
    k.e("v_lshl_add_u32 v5, v11, 4, v5")
    k.e(f"buffer_load_dwordx4 v[8:11+0], v4, s[{xin_srd}:{xin_srd+3}], s63 offen".replace("v[8:11+0]", "v[16:19]"))
    k.e(f"buffer_load_dwordx2 v[20:21], v5, s[{xin_srd}:{xin_srd+3}], s64 offen")
    k.e("s_nop 4")
    for b in range(4):
        for a in range(5):
            acc = ACC + (a * 4 + b) * 4
            k.e(f"ds_write_b128 v3, v[{acc}:{acc+3}] offset:{(b*5+a)*1024}")
    k.e("s_mul_i32 s60, s61, 5120")
    k.e("v_lshl_add_u32 v6, v2, 4, s60")
    k.e("v_add_u32 v7, s65, v6")
    for j in range(1, 3):
        k.e(f"v_add_u32 v{7+j}, {3*REG*j}, v7")
        k.e(f"v_add_u32 v{12+j}, {3*REG*j}, v6")
    k.e("s_waitcnt lgkmcnt(0)")
    k.e("s_barrier")
    T0 = 24
    for v in range(8):
        base = 7 + v // 3
        for t in range(2):
            rg = T0 + (v * 2 + t) * 4
            k.e(f"ds_read_b128 v[{rg}:{rg+3}], v{base} offset:{(v%3)*REG + t*1024}")
    k.e("s_cmp_lg_u32 s59, 0")
    k.e(f"s_cbranch_scc1 {name}_no4a")
    for v in range(8):
        base = 6 if v < 3 else 12 + v // 3
        rg = 88 + v * 4
        k.e(f"ds_read_b128 v[{rg}:{rg+3}], v{base} offset:{(v%3)*REG + 4096}")
    k.label(f"{name}_no4a")
    k.e("s_waitcnt lgkmcnt(0)")

    def combine(regs_of_wave, n):
        for j in range(n):
            r = [regs_of_wave(v) + j for v in range(8)]
            k.e(f"v_add_f32 v{r[0]}, v{r[0]}, v{r[1]}")
            k.e(f"v_add_f32 v{r[2]}, v{r[2]}, v{r[3]}")
            k.e(f"v_add_f32 v{r[4]}, v{r[4]}, v{r[5]}")
            k.e(f"v_add_f32 v{r[6]}, v{r[6]}, v{r[7]}")
            k.e(f"v_add_f32 v{r[0]}, v{r[0]}, v{r[2]}")
            k.e(f"v_add_f32 v{r[4]}, v{r[4]}, v{r[6]}")
            if mode == "D":
                k.e(f"v_add_f32 v{r[0]}, v{r[0]}, v{r[4]}")
        if mode == "S":
            for j in range(0, n, 2):
                p0 = regs_of_wave(0) + j
                q0 = regs_of_wave(4) + j
                k.e(f"v_cvt_pk_bf16_f32 v22, v{p0}, v{p0+1}")
                k.e(f"v_cvt_pk_bf16_f32 v23, v{q0}, v{q0+1}")
                k.e(f"v_lshlrev_b32 v{p0}, 16, v22")
                k.e(f"v_and_b32 v{p0+1}, 0xffff0000, v22")
                k.e(f"v_lshlrev_b32 v{q0}, 16, v23")
                k.e(f"v_and_b32 v{q0+1}, 0xffff0000, v23")
                k.e(f"v_sub_f32 v{p0}, v{p0}, v{q0}")
                k.e(f"v_sub_f32 v{p0+1}, v{p0+1}, v{q0+1}")

    def resid(ybase, xbase, n):
        for j in range(0, n, 2):
            y0 = ybase + j
            xr = xbase + j // 2
            k.e(f"v_cvt_pk_bf16_f32 v22, v{y0}, v{y0+1}")
            k.e(f"v_lshlrev_b32 v{y0}, 16, v22")
            k.e(f"v_and_b32 v{y0+1}, 0xffff0000, v22")
            k.e(f"v_lshlrev_b32 v22, 16, v{xr}")
            k.e(f"v_and_b32 v23, 0xffff0000, v{xr}")
            k.e(f"v_add_f32 v{y0}, v{y0}, v22")
            k.e(f"v_add_f32 v{y0+1}, v{y0+1}, v23")
            k.e(f"v_cvt_pk_bf16_f32 v{xr}, v{y0}, v{y0+1}")
            unpack_sum(k, xr, 22, 23, 120, 121)

    combine(lambda v: T0 + v * 8, 8)
    k.e("v_mov_b32 v120, 0")
    k.e("v_mov_b32 v121, 0")
    k.e("s_waitcnt vmcnt(0)")
    resid(T0, 16, 8)
    k.e("s_cmp_lg_u32 s59, 0")
    k.e(f"s_cbranch_scc1 {name}_no4b")
    k.e("v_cmp_gt_u32 vcc, 2, v12")
    k.e("s_and_saveexec_b64 s[66:67], vcc")
    combine(lambda v: 88 + v * 4, 4)
    resid(88, 20, 4)
    k.e("s_mov_b64 exec, s[66:67]")
    k.label(f"{name}_no4b")
    if sfinal is not None:
        k.e(f"s_cmp_lg_u32 s{sfinal}, 0")
        k.e(f"s_cbranch_scc1 {name}_fin")
    for sw in ("16", "32"):
        k.e("v_mov_b32 v22, v120")
        k.e("v_mov_b32 v23, v121")
        k.e("s_nop 1")
        k.e(f"v_permlane{sw}_swap_b32 v120, v22")
        k.e(f"v_permlane{sw}_swap_b32 v121, v23")
        k.e("s_nop 1")
        k.e("v_add_f32 v120, v120, v22")
        k.e("v_add_f32 v121, v121, v23")
    k.e(f"buffer_store_dwordx4 v[16:19], v4, s[{xout_srd}:{xout_srd+3}], s63 offen")
    k.e("s_lshl_b32 s65, s58, 8")
    k.e("s_lshl_b32 s62, s62, 7")
    k.e("s_add_u32 s65, s65, s62")
    k.e(f"s_lshl_b32 s62, s{sJ}, 15")
    k.e("s_add_u32 s65, s65, s62")
    k.e("s_lshl_b32 s62, s59, 14")
    k.e("s_add_u32 s65, s65, s62")
    k.e("v_lshlrev_b32 v22, 3, v11")
    k.e("v_cmp_gt_u32 vcc, 1, v12")
    k.e("s_and_saveexec_b64 s[68:69], vcc")
    k.e(f"buffer_store_dwordx2 v[120:121], v22, s[{st_srd}:{st_srd+3}], s65 offen")
    k.e("s_mov_b64 exec, s[68:69]")
    k.e("s_cmp_lg_u32 s59, 0")
    k.e(f"s_cbranch_scc1 {name}_done")
    k.e("v_cmp_gt_u32 vcc, 2, v12")
    k.e("s_and_saveexec_b64 s[66:67], vcc")
    k.e(f"buffer_store_dwordx2 v[20:21], v5, s[{xout_srd}:{xout_srd+3}], s64 offen")
    if sfinal is not None:
        k.e(f"s_branch {name}_done")
        k.label(f"{name}_fin")
        k.e("v_lshrrev_b32 v22, 2, v11")
        k.e("v_and_b32 v23, 3, v11")
        k.e("v_lshl_add_u32 v22, v22, 3, v23")
        k.e("v_mul_u32_u24 v22, 1152, v22")
        k.e("v_lshl_add_u32 v23, v12, 4, v22")
        k.e("v_lshl_add_u32 v22, v12, 3, v22")
        k.e("s_lshl_b32 s65, s58, 5")
        k.e("s_lshl_b32 s62, s62, 2")
        k.e("s_add_u32 s65, s65, s62")
        k.e("s_mul_i32 s65, s65, 1152")
        k.e(f"s_mul_i32 s62, s{sJ}, 144")
        k.e("s_add_u32 s65, s65, s62")
        k.e("s_lshl_b32 s62, s59, 6")
        k.e("s_add_u32 s62, s62, s65")
        k.e(f"buffer_store_dwordx4 v[16:19], v23, s[{xout_srd}:{xout_srd+3}], s62 offen")
        k.e("s_cmp_lg_u32 s59, 0")
        k.e(f"s_cbranch_scc1 {name}_done")
        k.e("v_cmp_gt_u32 vcc, 2, v12")
        k.e("s_and_saveexec_b64 s[66:67], vcc")
        k.e(f"buffer_store_dwordx2 v[20:21], v22, s[{xout_srd}:{xout_srd+3}], s65 offen offset:128")
    k.label(f"{name}_done")


def gen_ks():
    name = "ks"
    k = Kern(name, 256, 0, 80)
    Lend = name + "_end"
    k.e("s_cmp_ge_u32 s2, 256")
    k.e(f"s_cbranch_scc1 {Lend}")
    k.e("s_load_dwordx4 s[8:11], s[0:1], 8")
    k.e("s_load_dwordx2 s[18:19], s[0:1], 88")
    t1_decode(k)
    k.e("s_lshr_b32 s22, s20, 2")
    k.e("s_and_b32 s45, s20, 3")
    k.e("s_waitcnt lgkmcnt(0)")
    k.stamp(0)
    k.e("s_cmp_eq_u32 s22, 1")
    k.e("s_cselect_b32 s4, s10, s8")
    k.e("s_cselect_b32 s5, s11, s9")
    k.srd_ptr(24, 4, S * S * 2)
    k.srd_ws(28, 18, "AB")
    srd_ws_s(k, 32, 18, 70, XC_SZ)
    srd_ws_s(k, 36, 18, 71, XC_SZ)
    srd_ws_s(k, 40, 18, 72, ST_SZ)
    VD = 1
    t = 248
    k.e(f"v_lshrrev_b32 v{t}, 3, v2")
    k.e(f"v_and_b32 v{t+1}, 7, v2")
    k.e(f"v_lshrrev_b32 v{t+2}, 1, v{t}")
    k.e(f"v_xor_b32 v{t+2}, v{t+2}, v{t+1}")
    k.e(f"v_lshlrev_b32 v{t+2}, 4, v{t+2}")
    k.e(f"v_lshrrev_b32 v{t+3}, 2, v{t}")
    k.e(f"v_and_b32 v{t+4}, 3, v{t}")
    k.e(f"v_lshl_add_u32 v{t+3}, v{t+3}, 3, v{t+4}")
    k.e(f"v_lshlrev_b32 v{t+3}, 12, v{t+3}")
    k.e(f"v_add_u32 v{t+5}, v{t+3}, v{t+2}")
    k.e(f"v_xor_b32 v{t+4}, 64, v{t+2}")
    k.e(f"v_add_u32 v{t+6}, v{t+3}, v{t+4}")
    k.e(f"v_and_b32 v{t}, 15, v2")
    k.e(f"v_lshrrev_b32 v{t+1}, 4, v2")
    k.e(f"v_mul_u32_u24 v{t+2}, 1152, v{t+1}")
    k.e(f"v_lshl_add_u32 v9, v{t}, 4, v{t+2}")
    k.e(f"v_and_b32 v{t+3}, 7, v{t}")
    k.e(f"v_lshl_add_u32 v10, v{t+3}, 4, v{t+2}")
    k.e("v_add_u32 v10, 1024, v10")
    k.e("v_add_u32 v11, 4608, v9")
    k.e("v_add_u32 v12, 4608, v10")
    k.e(f"s_mul_i32 s46, s20, {REG}")
    k.e(f"v_lshrrev_b32 v{t+2}, 1, v{t}")
    k.e(f"v_xor_b32 v{t+2}, v{t+2}, v{t+1}")
    k.e(f"v_lshlrev_b32 v{t+2}, 4, v{t+2}")
    k.e(f"v_lshl_add_u32 v{t+2}, v{t}, 7, v{t+2}")
    k.e(f"v_add_u32 v13, s46, v{t+2}")
    k.e(f"v_xor_b32 v{t+2}, 64, v{t+2}")
    k.e(f"v_add_u32 v14, s46, v{t+2}")
    for q in range(8):
        c = (32 * (q >> 2) + 16 * (q & 1) + 4 * ((q >> 1) & 1)) * 4096
        k.e(f"v_add_u32 v{VD+q}, {c}, v{t + 5 + (q & 1)}")
    k.e("s_lshl_b32 s47, s21, 18")
    k.e(f"s_mul_i32 s49, s45, {128*KS_W}")
    k.e("s_add_u32 s47, s47, s49")
    k.e("s_lshl_b32 s48, s22, 3")
    k.e("s_add_u32 s48, s48, s23")
    k.e("s_lshl_b32 s48, s48, 8")
    k.e(f"s_mul_i32 s49, s45, {8*KS_W}")
    k.e("s_add_u32 s48, s48, s49")
    k.e("s_mul_i32 s48, s48, 1152")
    NST = 8
    AFB, CFB, ACC = 16, 136, 168

    def dma(st):
        slot = st % 2
        for q in range(8):
            k.e(f"s_add_u32 m0, s46, {slot*8192 + q*1024}")
            k.e("s_nop 0")
            k.vm(f"buffer_load_dwordx4 v{VD+q}, s[24:27], s47 offen lds", ("d", st))
        k.e(f"s_add_u32 s47, s47, {128*KS_S}")

    def aload(st):
        slot = st % 3
        for h in range(2):
            for T in range(5):
                rg = AFB + slot * 40 + (h * 5 + T) * 4
                if T < 4:
                    k.vm(f"buffer_load_dwordx4 v[{rg}:{rg+3}], v{9+2*h}, s[28:31], s48 offen offset:{256*T}", ("a", st))
                else:
                    k.vm(f"buffer_load_dwordx4 v[{rg}:{rg+3}], v{10+2*h}, s[28:31], s48 offen", ("a", st))
        k.e(f"s_add_u32 s48, s48, {9216*KS_S}")

    dma(0); aload(0); dma(1); aload(1)
    for a in range(80):
        k.e(f"v_mov_b32 v{ACC+a}, 0")
    aload(2)
    for st in range(NST):
        k.wait_vm(("d", st))
        if st == 0:
            k.stamp(2)
        for h in range(2):
            for u in range(4):
                rg = CFB + (h * 4 + u) * 4
                k.ds(f"ds_read_b128 v[{rg}:{rg+3}], v{13+h} offset:{(st%2)*8192 + u*2048}", ("c", st, h))
        k.wait_ds(("c", st, 1))
        if st + 2 < NST:
            dma(st + 2)
        k.wait_vm(("a", st))
        if BAR:
            k.e("s_barrier")
        for h in range(2):
            for T in range(5):
                af = AFB + (st % 3) * 40 + (h * 5 + T) * 4
                for u in range(4):
                    cf = CFB + (h * 4 + u) * 4
                    acc = ACC + (T * 4 + u) * 4
                    k.e(f"v_mfma_f32_16x16x32_bf16 v[{acc}:{acc+3}], v[{af}:{af+3}], v[{cf}:{cf+3}], v[{acc}:{acc+3}]")
        if st + 3 < NST:
            aload(st + 3)
    k.stamp(3)
    t1_epilogue(k, name, "S", ACC, 32, 36, 40, None)
    k.stamp(4)
    if PROF:
        k.wait_vm_all()
    k.stamp(5)
    k.stamp_store(2, 18, 20)
    k.label(Lend)
    return k, 256, 512, 8 * REG


def gen_kd():
    name = "kd"
    k = Kern(name, 256, 0, 80)
    Lend = name + "_end"
    k.e("s_cmp_ge_u32 s2, 256")
    k.e(f"s_cbranch_scc1 {Lend}")
    k.e("s_load_dwordx2 s[8:9], s[0:1], 72")
    k.e("s_load_dwordx2 s[18:19], s[0:1], 88")
    t1_decode(k)
    k.e("s_waitcnt lgkmcnt(0)")
    k.stamp(0)
    k.srd_ws(24, 18, "HC")
    k.srd_ws(28, 18, "WD")
    srd_ws_s(k, 32, 18, 70, XC_SZ)
    srd_ws_s(k, 36, 18, 71, XC_SZ)
    srd_ws_s(k, 40, 18, 72, ST_SZ)
    k.e("s_cmp_lg_u32 s73, 0")
    k.e("s_cselect_b32 s36, s8, s36")
    k.e("s_cselect_b32 s37, s9, s37")
    k.e("s_and_b32 s37, s37, 0xffff")
    k.e("v_and_b32 v11, 15, v2")
    k.e("v_lshrrev_b32 v12, 4, v2")
    k.e("v_mul_u32_u24 v3, 1152, v12")
    k.e("v_lshl_add_u32 v4, v11, 4, v3")
    k.e("v_and_b32 v8, 7, v11")
    k.e("v_lshl_add_u32 v5, v8, 4, v3")
    k.e("v_add_u32 v5, 1024, v5")
    k.e("v_lshlrev_b32 v3, 9, v12")
    k.e("v_lshl_add_u32 v6, v11, 4, v3")
    k.e(f"v_add_u32 v7, {294912-EXP_PAD}, v6")
    k.e(f"s_mul_i32 s47, s21, {589824-2*EXP_PAD}")
    k.e(f"s_mul_i32 s49, s20, {KD_W*2048}")
    k.e("s_add_u32 s47, s47, s49")
    k.e("s_mul_i32 s48, s23, 576")
    k.e(f"s_mul_i32 s49, s20, {KD_W*4}")
    k.e("s_add_u32 s48, s48, s49")
    k.e("s_mul_i32 s48, s48, 1152")
    if EXP_PAD:
        k.e(f"s_mul_i32 s49, s23, {EXP_PAD}")
        k.e("s_sub_u32 s48, s48, s49")
    NST, RING = 18, 4
    FB, ACC = 16, 160

    def issue(st):
        base = FB + (st % RING) * 36
        for T in range(5 if not EXP_NOWD else 0):
            rg = base + T * 4
            if T < 4:
                k.vm(f"buffer_load_dwordx4 v[{rg}:{rg+3}], v4, s[28:31], s48 offen offset:{256*T}", st)
            else:
                k.vm(f"buffer_load_dwordx4 v[{rg}:{rg+3}], v5, s[28:31], s48 offen", st)
        for u in range(4 if not EXP_NOHC else 0):
            rg = base + (5 + u) * 4
            k.vm(f"buffer_load_dwordx4 v[{rg}:{rg+3}], v{6+(u>>1)}, s[24:27], s47 offen offset:{256*(u&1)}", st)
        k.e(f"s_add_u32 s47, s47, {2048*KD_S}")
        k.e(f"s_add_u32 s48, s48, {4608*KD_S}")

    issue(0); issue(1)
    for a in range(80):
        k.e(f"v_mov_b32 v{ACC+a}, 0")
    issue(2)
    for st in range(NST):
        if st + RING - 1 < NST:
            issue(st + RING - 1)
        k.wait_vm(st)
        if BAR and st % BAR == BAR - 1:
            k.e("s_barrier")
        if st == 0:
            k.stamp(2)
        base = FB + (st % RING) * 36
        for T in range(5 if not EXP_NOMFMA else 0):
            ra = base + T * 4
            for u in range(4):
                rb = base + (5 + u) * 4
                acc = ACC + (T * 4 + u) * 4
                k.e(f"v_mfma_f32_16x16x32_bf16 v[{acc}:{acc+3}], v[{ra}:{ra+3}], v[{rb}:{rb+3}], v[{acc}:{acc+3}]")
    k.stamp(3)
    t1_epilogue(k, name, "D", ACC, 32, 36, 40, 73)
    k.stamp(4)
    if PROF:
        k.wait_vm_all()
    k.stamp(5)
    k.stamp_store(4, 18, 20)
    k.label(Lend)
    return k, 256, 512, 8 * REG


def gen_kg():
    name = "kg"
    k = Kern(name, 256, 0, 80)
    Lend = name + "_end"
    STG = 36864
    EXT = 4 * STG
    k.e("s_cmp_ge_u32 s2, 256")
    k.e(f"s_cbranch_scc1 {Lend}")
    k.e("s_load_dwordx2 s[18:19], s[0:1], 88")
    k.e("v_lshrrev_b32 v1, 6, v0")
    k.e("v_and_b32 v2, 63, v0")
    k.e("v_readfirstlane_b32 s20, v1")
    k.e("s_and_b32 s22, s2, 7")
    k.e("s_lshr_b32 s23, s2, 3")
    k.e("s_and_b32 s21, s23, 7")
    k.e("s_lshr_b32 s23, s23, 3")
    k.e("s_lshl_b32 s22, s22, 2")
    k.e("s_add_u32 s23, s23, s22")
    k.e("s_lshl_b32 s21, s21, 3")
    k.e("s_add_u32 s21, s21, s20")
    k.e("s_waitcnt lgkmcnt(0)")
    k.stamp(0)
    k.srd_ws(24, 18, "WGU")
    srd_ws_s(k, 28, 18, 70, XC_SZ)
    srd_ws_s(k, 32, 18, 71, ST_SZ)
    k.srd_ws(40, 18, "HC")
    k.e("v_lshlrev_b32 v3, 4, v2")
    k.e(f"s_mul_i32 s44, s23, {WGU_CB}")
    k.e("s_mul_i32 s45, s20, 4608")
    k.e("s_add_u32 s43+1, s44, s45".replace("s43+1", "s50"))
    k.e("s_mul_i32 s46, s21, 36864")
    k.e("s_mul_i32 s52, s20, 1152")
    k.e(f"s_add_u32 s51, s44, {36*9216}")
    k.e("s_add_u32 s51, s51, s52")
    NST = 9
    ACC = 112
    BFB = 16
    AFB = 80
    XB = 104
    NF, DEP = 6, 4
    for s_ in range(5):
        if s_ == 0:
            k.e("v_mov_b32 v4, v3")
        else:
            k.e(f"v_add_u32 v{4+s_}, {s_*STG}, v3")

    pend = []

    def dma_ops(st_):
        slot = st_ % 4
        ops = []
        for e_ in range(4):
            def f(e_=e_):
                k.e(f"s_add_u32 m0, s45, {slot*STG}")
                k.e(f"s_add_u32 s47, s50, {st_*STG}")
                k.vm(f"buffer_load_dwordx4 v3, s[24:27], s47 offen offset:{e_*1024} lds", ("d", st_))
            ops.append(f)
        def f5():
            k.e(f"s_add_u32 m0, s45, {slot*STG + 4096}")
            k.e(f"s_add_u32 s47, s50, {st_*STG + 4096}")
            k.e("s_mov_b32 exec_hi, 0")
            k.vm("buffer_load_dwordx4 v3, s[24:27], s47 offen lds", ("d", st_))
            k.e("s_mov_b64 exec, -1")
        ops.append(f5)
        return ops

    def ext_ops():
        def f1():
            k.e(f"s_add_u32 m0, s52, {EXT}")
            k.e("s_nop 0")
            k.vm("buffer_load_dwordx4 v3, s[24:27], s51 offen lds", ("d", "x"))
        def f2():
            k.e(f"s_add_u32 m0, s52, {EXT}")
            k.e("s_mov_b64 exec, 0xff")
            k.vm("buffer_load_dwordx4 v3, s[24:27], s51 offen offset:1024 lds", ("d", "x"))
            k.e("s_mov_b64 exec, -1")
        return [f1, f2]

    def b_ops(st_):
        ops = []
        for j in range(4):
            def f(j=j):
                rg = BFB + (st_ % 4) * 16 + j * 4
                k.e(f"s_add_u32 s47, s46, {st_*4096}")
                k.vm(f"buffer_load_dwordx4 v[{rg}:{rg+3}], v3, s[28:31], s47 offen offset:{j*1024}", ("b", st_))
            ops.append(f)
        return ops

    STB = 64

    for f in dma_ops(0) + b_ops(0) + dma_ops(1):
        f()
    k.e("v_and_b32 v9, 31, v2")
    k.e("v_lshrrev_b32 v10, 5, v2")
    k.e("v_lshlrev_b32 v10, 17, v10")
    k.e("v_lshl_add_u32 v9, v9, 3, v10")
    k.e("s_lshl_b32 s53, s21, 8")
    for a in range(144):
        k.e(f"v_mov_b32 v{ACC+a}, 0")

    def st_ops():
        ops = []
        for i in range(8):
            def f(i=i):
                k.e(f"s_add_u32 s57, s53, {i*16384}")
                k.vm(f"buffer_load_dwordx2 v[{STB+2*i}:{STB+2*i+1}], v9, s[32:35], s57 offen", "st")
            ops.append(f)
        return ops

    def st_finish():
        k.wait_vm("st")
        stats_finish(k, STB, 12, 10, 13, 14, 15)
        k.e("v_rcp_f32 v11, v10")
        k.e("v_xor_b32 v12, 0x80000000, v12")
        k.e("v_mul_f32 v11, 0xbfb8aa3b, v11")
        k.e("v_lshrrev_b32 v13, 16, v12")
        k.e("v_or_b32 v14, v12, v13")
        k.e("v_cmp_gt_u32 vcc, 32, v2")
        k.e("s_nop 1")
        k.e(f"v_cndmask_b32 v{XB}, 0, v14, vcc")
        k.e(f"v_cndmask_b32 v{XB+1}, 0, v13, vcc")
        k.e(f"v_mov_b32 v{XB+2}, 0")
        k.e(f"v_mov_b32 v{XB+3}, 0")
    k.stamp(1)
    k.wait_vm(("d", 0))
    k.e("s_barrier")
    k.stamp(2)
    pend += b_ops(1) + dma_ops(2) + st_ops() + b_ops(2) + dma_ops(3) + ext_ops()

    seq = []
    for st_ in range(7):
        for kk in range(4):
            for ft in range(9):
                seq.append((st_, kk, ft))
    NMAIN = len(seq)
    for ft in range(9):
        for st_ in (7, 8):
            for kk in range(4):
                seq.append((st_, kk, ft))
        seq.append(("x", 0, ft))
    total = len(seq)

    def aread(m):
        st_, kk, ft = seq[m]
        rg = AFB + (m % NF) * 4
        if st_ == "x":
            k.ds(f"ds_read_b128 v[{rg}:{rg+3}], v8 offset:{ft*1024}", m)
        else:
            k.ds(f"ds_read_b128 v[{rg}:{rg+3}], v{4 + st_ % 4} offset:{(kk*9+ft)*1024}", m)

    def stage_sync(st_):
        while pend:
            pend.pop(0)()
        if st_ == 7:
            k.wait_vm([("d", 7), ("d", 8), ("d", "x")])
        else:
            k.wait_vm(("d", st_))
        k.e("s_barrier")
        if st_ == 1:
            st_finish()
        if st_ >= 2 and st_ + 2 < NST:
            pend.extend(dma_ops(st_ + 2))
        if st_ >= 1 and st_ + 2 < NST:
            pend.extend(b_ops(st_ + 2))

    k.e("s_mul_i32 s48, s21, 294912")
    k.e("s_mul_i32 s49, s23, 9216")
    k.e("s_add_u32 s48, s48, s49")

    def epi(ft):
        a = ACC + ft * 16
        t = 32 + (ft % 2) * 12
        ins = []
        for j in range(8):
            ins.append(f"v_mul_f32 v{t+j}, v{a+j}, v11")
        for j in range(8):
            ins.append(f"v_exp_f32 v{t+j}, v{t+j}")
        for j in range(8):
            ins.append(f"v_fma_f32 v{t+j}, v{t+j}, v10, v10")
        for j in range(8):
            ins.append(f"v_rcp_f32 v{t+j}, v{t+j}")
        for j in range(8):
            ins.append(f"v_mul_f32 v{t+j}, v{t+j}, v{a+8+j}")
        for j in range(4):
            ins.append(f"v_cvt_pk_bf16_f32 v{t+8+j}, v{t+2*j}, v{t+2*j+1}")
        ins.append(("store", t + 8, ft))
        return ins

    def emit_epi(ins):
        if isinstance(ins, tuple):
            _, rg, ft = ins
            k.vm(f"buffer_store_dwordx4 v[{rg}:{rg+3}], v3, s[40:43], s48 offen", ("o", ft))
            k.e("s_add_u32 s48, s48, 1024")
        else:
            k.e(ins)

    for m in range(DEP):
        aread(m)
    epq = []
    for m in range(total):
        nxt = m + DEP
        if nxt < total:
            if nxt < NMAIN and nxt % 36 == 0:
                stage_sync(nxt // 36)
            if nxt == NMAIN:
                stage_sync(7)
            aread(nxt)
        st_, kk, ft = seq[m]
        if m < NMAIN:
            if m % 36 == 0:
                k.wait_vm(("b", st_))
        elif m == NMAIN:
            k.wait_vm([("b", 7), ("b", 8)])
            k.stamp(3)
        k.wait_ds(m)
        af = AFB + (m % NF) * 4
        bf = XB if st_ == "x" else BFB + (st_ % 4) * 16 + kk * 4
        acc = ACC + ft * 16
        k.e(f"v_mfma_f32_32x32x16_bf16 v[{acc}:{acc+15}], v[{af}:{af+3}], v[{bf}:{bf+3}], v[{acc}:{acc+15}]")
        if pend and (m % 3 == 2 or m < 36):
            pend.pop(0)()
        if m >= NMAIN:
            r = (m - NMAIN) % 9
            if r == 8:
                while epq:
                    emit_epi(epq.pop(0))
                epq = epi(ft)
            elif r >= 3:
                for _ in range(9):
                    if epq:
                        emit_epi(epq.pop(0))
    k.e("s_nop 15")
    while epq:
        emit_epi(epq.pop(0))
    k.stamp(4)
    if PROF:
        k.wait_vm_all()
    k.stamp(5)
    k.stamp_store(3, 18, 20)
    k.label(Lend)
    return k, 256, 512, 4 * STG + 9216


def build():
    def mv(*pairs):
        return [f"s_mov_b32 s{r}, {v}" for r, v in pairs]
    X = lambda i: WS[f"XC{i}"][0]
    T = lambda i: WS[f"ST{i}"][0]
    kh1 = gen_kh_full(True)
    kh = gen_kh_full(False); ks = gen_ks(); kg = gen_kg(); kd = gen_kd()
    ent = {
        "kh1": [("kh1_kernel", [])],
        "kh": [("kh2_kernel", mv((70, X(2)), (71, T(2))))],
        "ks": [("ks1_kernel", mv((70, X(0)), (71, X(1)), (72, T(1)))), ("ks2_kernel", mv((70, X(2)), (71, X(3)), (72, T(3))))],
        "kg": [("kg1_kernel", mv((70, X(1)), (71, T(1)))), ("kg2_kernel", mv((70, X(3)), (71, T(3))))],
        "kd": [("kd1_kernel", mv((70, X(1)), (71, X(2)), (72, T(2)), (73, 0))), ("kd2_kernel", mv((70, X(3)), (71, X(2)), (72, T(2)), (73, 1)))],
    }
    order = [("kh1_kernel", kh1), ("ks1_kernel", ks), ("kg1_kernel", kg), ("kd1_kernel", kd),
             ("kh2_kernel", kh), ("ks2_kernel", ks), ("kg2_kernel", kg), ("kd2_kernel", kd)]
    head = ["; generated by dev/gen3.py -- FNet/GLU interleaved layers, launch list"]
    for nm, (k, grid, block, lds) in order:
        head.append(f"; @launch kernel={nm} grid=({grid},1,1) block=({block},1,1) lds={lds}")
    out = head + ['.amdgcn_target "amdgcn-amd-amdhsa--gfx950"', ".text"]
    descs = []
    for kk_ in (kh1, kh, ks, kg, kd):
        t, ds_ = ktext(kk_[0], ent[kk_[0].name])
        out.append(t); descs += ds_
    out.append('.section .rodata,"a"')
    for d in descs:
        out.append(".p2align 6")
        out.append(d)
    return "\n".join(out) + "\n"


if __name__ == "__main__":
    path = sys.argv[1] if len(sys.argv) > 1 else "interleave_layers__spectral_fnet__glu_gated_glu__prompt.s"
    open(path, "w").write(build())
    print("wrote", path, "ws bytes", WS_TOTAL)
```

```python
import sys

S, D, F = 2048, 576, 4608
import os
PROF = bool(int(os.environ.get("PROF", "0")))
NW_T1 = 8

XC_SZ = S * D * 2
ST_SZ = S * 16 * 2 * 4
AB_SZ = 2 * 8 * 256 * 72 * 16
HC_SZ = 64 * 576 * 32 * 16
WGU_SZ = 32 * 37 * 9 * 1024
WGU_CB = 37 * 9216
WD_SZ = 8 * 576 * 72 * 16
CS_SZ = 288 * 2 * 2 * 8 * 4
RS_SZ = 2 * 8 * 80 * 4


def _al(x, a=4096):
    return (x + a - 1) // a * a


_off = 0
WS = {}
for name, sz in [("XC0", XC_SZ), ("XC1", XC_SZ), ("XC2", XC_SZ), ("XC3", XC_SZ),
                 ("ST0", ST_SZ), ("ST1", ST_SZ), ("ST2", ST_SZ), ("ST3", ST_SZ),
                 ("AB", AB_SZ), ("HC", HC_SZ), ("WGU", WGU_SZ), ("WD", WD_SZ),
                 ("CS", CS_SZ), ("RS", RS_SZ), ("DBG", 16*512*256)]:
    WS[name] = (_off, sz)
    _off += _al(sz + 4096)
WS_TOTAL = _off

KA = dict(x=0, seq_re=8, seq_im=16, hid_re=24, hid_im=32, bx=40, wg=48, wu=56, wd=64, out=72, dbg=80, ws=88)


class Kern:
    def __init__(self, name, nvgpr, nagpr=0, nsgpr=100):
        self.name = name
        self.L = []
        self.vq = []
        self.lq = []
        self.nvgpr = nvgpr
        self.nagpr = nagpr
        self.nsgpr = nsgpr
        self.lab = 0

    def e(self, s):
        self.L.append("    " + s)

    def c(self, s):
        self.L.append("    ; " + s)

    def label(self, s):
        self.L.append(s + ":")

    def newlabel(self, p="L"):
        self.lab += 1
        return f"{self.name}_{p}{self.lab}"

    def vm(self, s, tag):
        self.e(s)
        self.vq.append(tag)
        assert len(self.vq) <= 63, f"too many vmem outstanding in {self.name}"

    def wait_vm(self, tags):
        if not isinstance(tags, (list, set)):
            tags = [tags]
        idx = -1
        for i, t in enumerate(self.vq):
            if t in tags:
                idx = i
        if idx < 0:
            return
        n = len(self.vq) - 1 - idx
        self.e(f"s_waitcnt vmcnt({n})")
        self.vq = self.vq[idx + 1:]

    def wait_vm_all(self):
        self.e("s_waitcnt vmcnt(0)")
        self.vq = []

    def ds(self, s, tag):
        self.e(s)
        self.lq.append(tag)

    def wait_ds(self, tags):
        if not isinstance(tags, (list, set)):
            tags = [tags]
        idx = -1
        for i, t in enumerate(self.lq):
            if t in tags:
                idx = i
        if idx < 0:
            return
        n = len(self.lq) - 1 - idx
        assert n <= 15
        self.e(f"s_waitcnt lgkmcnt({n})")
        self.lq = self.lq[idx + 1:]

    def wait_ds_all(self):
        self.e("s_waitcnt lgkmcnt(0)")
        self.lq = []

    def stamp(self, i):
        if not PROF:
            return
        self.e("s_waitcnt lgkmcnt(0)")
        self.lq = []
        self.e(f"s_memtime s[{80+2*i}:{81+2*i}]")
        if i == 0:
            self.e("s_memrealtime s[94:95]")
        self.e("s_waitcnt lgkmcnt(0)")
        self.nst = max(getattr(self, "nst", 0), i + 1)

    def stamp_store(self, kidx, wsbase, swave):
        if not PROF:
            return
        self.e("s_mov_b64 exec, -1")
        self.e("s_memrealtime s[96:97]")
        self.srd_ws(76, wsbase, "DBG")
        self.e("s_waitcnt lgkmcnt(0)")
        self.e(f"s_lshl_b32 s98, s2, 8")
        self.e(f"s_lshl_b32 s99, s{swave}, 5")
        self.e("s_add_u32 s98, s98, s99")
        self.e("s_add_u32 s98, s98, s74")
        self.e("v_mov_b32 v1, 0")
        for i in range(self.nst):
            self.e(f"v_mov_b32 v0, s{80+2*i}")
            self.e(f"buffer_store_dword v0, v1, s[76:79], s98 offen offset:{4*i}")
        self.e("v_mov_b32 v0, s96")
        self.e(f"buffer_store_dword v0, v1, s[76:79], s98 offen offset:28")
        self.e("v_mov_b32 v0, s94")
        self.e(f"buffer_store_dword v0, v1, s[76:79], s98 offen offset:24")

    def srd_ptr(self, d, base, nbytes):
        self.e(f"s_mov_b32 s{d}, s{base}")
        self.e(f"s_and_b32 s{d+1}, s{base+1}, 0xffff")
        self.e(f"s_mov_b32 s{d+2}, {nbytes}")
        self.e(f"s_mov_b32 s{d+3}, 0x00020000")

    def srd_ws(self, d, wsbase, region):
        off, sz = WS[region]
        self.e(f"s_add_u32 s{d}, s{wsbase}, {off}")
        self.e(f"s_addc_u32 s{d+1}, s{wsbase+1}, 0")
        self.e(f"s_and_b32 s{d+1}, s{d+1}, 0xffff")
        self.e(f"s_mov_b32 s{d+2}, {sz}")
        self.e(f"s_mov_b32 s{d+3}, 0x00020000")

    def text(self):
        tot = self.nvgpr if self.nagpr == 0 else (self.nvgpr + 3) // 4 * 4 + self.nagpr
        acc = (self.nvgpr + 3) // 4 * 4
        out = [f".globl {self.name}", ".p2align 8", f".type {self.name},@function", f"{self.name}:"]
        out += self.L
        out += ["    s_endpgm"]
        desc = [f".amdhsa_kernel {self.name}",
                f"  .amdhsa_next_free_vgpr {tot}",
                f"  .amdhsa_next_free_sgpr {100 if PROF else self.nsgpr}",
                f"  .amdhsa_accum_offset {acc}",
                "  .amdhsa_group_segment_fixed_size 0",
                "  .amdhsa_kernarg_size 96",
                "  .amdhsa_user_sgpr_count 2",
                "  .amdhsa_user_sgpr_kernarg_segment_ptr 1",
                "  .amdhsa_system_sgpr_workgroup_id_x 1",
                ".end_amdhsa_kernel"]
        return "\n".join(out), "\n".join(desc)


def R(kind, i, n=1):
    if n == 1:
        return f"{kind}{i}"
    return f"{kind}[{i}:{i+n-1}]"


def unpack_sum(k, src, lo, hi, sacc, qacc):
    k.e(f"v_lshlrev_b32 v{lo}, 16, v{src}")
    k.e(f"v_and_b32 v{hi}, 0xffff0000, v{src}")
    k.e(f"v_add_f32 v{sacc}, v{sacc}, v{lo}")
    if qacc is not None:
        k.e(f"v_fmac_f32 v{qacc}, v{lo}, v{lo}")
    k.e(f"v_add_f32 v{sacc}, v{sacc}, v{hi}")
    if qacc is not None:
        k.e(f"v_fmac_f32 v{qacc}, v{hi}, v{hi}")


def xlane_add(k, val, tmp, addr, lane, mask):
    k.e(f"v_xor_b32 v{addr}, {mask}, v{lane}")
    k.e(f"v_lshlrev_b32 v{addr}, 2, v{addr}")
    k.e(f"ds_bpermute_b32 v{tmp}, v{addr}, v{val}")
    k.e("s_waitcnt lgkmcnt(0)")
    k.e(f"v_add_f32 v{val}, v{val}, v{tmp}")


def slotmap_v(k, dd, out, t0, t1):
    k.e(f"v_and_b32 v{out}, 0x23, v{dd}")
    k.e(f"v_bfe_u32 v{t0}, v{dd}, 2, 1")
    k.e(f"v_lshl_or_b32 v{out}, v{t0}, 4, v{out}")
    k.e(f"v_bfe_u32 v{t0}, v{dd}, 3, 2")
    k.e(f"v_lshl_or_b32 v{out}, v{t0}, 2, v{out}")
    k.e(f"v_cmp_gt_u32 vcc, 64, v{dd}")
    k.e("s_nop 1")
    k.e(f"v_cndmask_b32 v{out}, v{dd}, v{out}, vcc")


NA_, NB_, NC_, ND_ = 64, 36, 144, 144


def gen_k0():
    k = Kern("k0_kernel", 64, 0, 64)
    total = NA_ + NB_ + NC_ + ND_
    Lend = "k0_end"
    k.e(f"s_cmp_ge_u32 s2, {total}")
    k.e(f"s_cbranch_scc1 {Lend}")
    k.e("s_load_dwordx2 s[4:5], s[0:1], 0")
    k.e("s_load_dwordx4 s[8:11], s[0:1], 24")
    k.e("s_load_dwordx4 s[12:15], s[0:1], 48")
    k.e("s_load_dwordx2 s[16:17], s[0:1], 64")
    k.e("s_load_dwordx2 s[18:19], s[0:1], 88")
    k.e("v_lshrrev_b32 v1, 6, v0")
    k.e("v_and_b32 v2, 63, v0")
    k.e("v_readfirstlane_b32 s20, v1")
    k.e("s_waitcnt lgkmcnt(0)")
    k.e(f"s_cmp_lt_u32 s2, {NC_}")
    k.e("s_cbranch_scc1 k0_roleC")
    k.e(f"s_cmp_lt_u32 s2, {NC_ + ND_}")
    k.e("s_cbranch_scc1 k0_roleD")
    k.e(f"s_cmp_lt_u32 s2, {NC_ + ND_ + NA_}")
    k.e("s_cbranch_scc1 k0_roleA")
    k.e("s_branch k0_roleB")

    k.label("k0_roleA")
    k.e(f"s_sub_u32 s21, s2, {NC_ + ND_}")
    k.srd_ptr(24, 4, XC_SZ)
    k.srd_ws(28, 18, "XC0")
    k.srd_ws(32, 18, "ST0")
    k.e("v_and_b32 v3, 31, v0")
    k.e("v_lshrrev_b32 v4, 5, v0")
    k.e("v_and_b32 v5, 3, v3")
    k.e("v_bfe_u32 v6, v3, 2, 2")
    k.e("v_lshl_or_b32 v5, v6, 3, v5")
    k.e("v_bfe_u32 v6, v3, 4, 1")
    k.e("v_lshl_or_b32 v5, v6, 2, v5")
    k.e("s_movk_i32 s22, 1152")
    k.e("v_mul_lo_u32 v5, v5, s22")
    k.e("v_mul_u32_u24 v6, 144, v4")
    k.e("v_add_u32 v5, v5, v6")
    k.e("s_mul_i32 s23, s21, 36864")
    for it in range(9):
        k.e(f"buffer_load_dwordx4 v[{16+4*it}:{19+4*it}], v5, s[24:27], s23 offen offset:{16*it}")
    k.e("v_mul_u32_u24 v6, 4608, v4")
    k.e("v_lshl_add_u32 v6, v3, 4, v6")
    k.e("v_add_u32 v7, 2048, v6")
    k.e("v_mov_b32 v8, 0")
    k.e("v_mov_b32 v9, 0")
    k.e("s_waitcnt vmcnt(0)")
    for it in range(9):
        vo, im = (6, it * 512) if it < 4 else (7, (it - 4) * 512)
        k.e(f"buffer_store_dwordx4 v[{16+4*it}:{19+4*it}], v{vo}, s[28:31], s23 offen offset:{im}")
    for r in range(36):
        unpack_sum(k, 16 + r, 10, 11, 8, 9)
    k.e("v_lshlrev_b32 v12, 3, v3")
    k.e("v_lshl_add_u32 v12, v4, 15, v12")
    k.e("s_lshl_b32 s23, s21, 8")
    k.e("v_mov_b32 v10, 0")
    k.e("v_mov_b32 v11, 0")
    k.e("buffer_store_dwordx2 v[8:9], v12, s[32:35], s23 offen")
    k.e("v_add_u32 v12, 16384, v12")
    k.e("buffer_store_dwordx2 v[10:11], v12, s[32:35], s23 offen")
    k.e(f"s_branch {Lend}")

    k.label("k0_roleB")
    k.e(f"s_sub_u32 s21, s2, {NC_ + ND_ + NA_}")
    k.e("s_cmp_ge_u32 s21, 18")
    k.e("s_cselect_b32 s22, 1, 0")
    k.e("s_cselect_b32 s4, s10, s8")
    k.e("s_cselect_b32 s5, s11, s9")
    k.e("s_mul_i32 s23, s22, 18")
    k.e("s_sub_u32 s21, s21, s23")
    k.srd_ptr(24, 4, D * D * 2)
    k.srd_ws(28, 18, "RS")
    k.e("s_lshl_b32 s23, s21, 5")
    k.e("s_lshl_b32 s36, s20, 3")
    k.e("s_add_u32 s23, s23, s36")
    k.e("v_lshrrev_b32 v3, 3, v2")
    k.e("v_add_u32 v3, s23, v3")
    k.e("v_and_b32 v4, 7, v2")
    k.e("s_movk_i32 s36, 1152")
    k.e("v_mul_lo_u32 v5, v3, s36")
    k.e("v_lshl_add_u32 v5, v4, 4, v5")
    for it in range(9):
        k.e(f"buffer_load_dwordx4 v[{16+4*it}:{19+4*it}], v5, s[24:27], 0 offen offset:{128*it}")
    k.e("v_mov_b32 v8, 0")
    k.e("s_waitcnt vmcnt(0)")
    for r in range(36):
        unpack_sum(k, 16 + r, 10, 11, 8, None)
    for m in (1, 2, 4):
        xlane_add(k, 8, 10, 11, 2, m)
    k.e("v_mul_u32_u24 v6, 911, v3")
    k.e("v_lshrrev_b32 v6, 16, v6")
    k.e("v_mul_u32_u24 v7, 72, v6")
    k.e("v_sub_u32 v7, v3, v7")
    slotmap_v(k, 7, 12, 13, 14)
    k.e("v_mul_u32_u24 v6, 80, v6")
    k.e("v_add_u32 v6, v6, v12")
    k.e("v_lshlrev_b32 v6, 2, v6")
    k.e("s_mul_i32 s23, s22, 2560")
    k.e("v_cmp_eq_u32 vcc, 0, v4")
    k.e("s_and_saveexec_b64 s[38:39], vcc")
    k.e("buffer_store_dword v8, v6, s[28:31], s23 offen")
    k.e(f"s_branch {Lend}")

    k.label("k0_roleC")
    k.e("s_cmp_ge_u32 s2, 72")
    k.e("s_cselect_b32 s22, 1, 0")
    k.e("s_cselect_b32 s4, s14, s12")
    k.e("s_cselect_b32 s5, s15, s13")
    k.e("s_mul_i32 s23, s22, 72")
    k.e("s_sub_u32 s21, s2, s23")
    k.srd_ptr(24, 4, D * F * 2)
    k.srd_ws(28, 18, "WGU")
    k.srd_ws(32, 18, "CS")
    k.e("v_lshrrev_b32 v3, 3, v2")
    k.e("v_and_b32 v4, 7, v2")
    k.e("v_mul_u32_u24 v5, 9216, v3")
    k.e("v_lshl_add_u32 v5, v4, 4, v5")
    k.e("s_mul_i32 s36, s20, 73728")
    k.e("s_lshl_b32 s37, s21, 7")
    k.e("s_add_u32 s36, s36, s37")
    k.e("s_lshl_b32 s37, s20, 10")
    for i in range(18):
        k.e(f"s_add_u32 m0, s37, {4096*i}")
        k.e("s_nop 0")
        k.e("buffer_load_dwordx4 v5, s[24:27], s36 offen lds")
        k.e(f"s_add_u32 s36, s36, {4*73728}")
    k.e("v_lshrrev_b32 v3, 4, v2")
    k.e("v_and_b32 v4, 15, v2")
    k.e("v_bfe_u32 v6, v2, 2, 2")
    k.e("v_lshlrev_b32 v7, 10, v3")
    k.e("v_lshl_add_u32 v7, v6, 7, v7")
    k.e("v_and_b32 v6, 1, v2")
    k.e("v_lshl_add_u32 v7, v6, 4, v7")
    k.e("v_bfe_u32 v6, v2, 1, 1")
    k.e("v_lshl_add_u32 v7, v6, 3, v7")
    k.e("s_lshl_b32 s36, s20, 5")
    k.e("v_add_u32 v7, s36, v7")
    k.e("v_add_u32 v8, 0x8000, v7")
    k.e("s_lshl_b32 s36, s21, 2")
    k.e("s_add_u32 s36, s36, s20")
    k.e("s_mul_i32 s37, s36, 7282")
    k.e("s_lshr_b32 s37, s37, 16")
    k.e("s_mul_i32 s38, s37, 9")
    k.e("s_sub_u32 s38, s36, s38")
    k.e(f"s_mul_i32 s39, s37, {WGU_CB}")
    k.e("s_lshl_b32 s38, s38, 10")
    k.e("s_add_u32 s39, s39, s38")
    k.e("s_lshl_b32 s38, s22, 8")
    k.e("s_add_u32 s39, s39, s38")
    k.e("v_lshrrev_b32 v9, 1, v3")
    k.e("v_mul_u32_u24 v9, 9216, v9")
    k.e("v_and_b32 v6, 1, v3")
    k.e("v_lshl_add_u32 v9, v6, 9, v9")
    k.e("v_lshl_add_u32 v9, v4, 4, v9")
    k.e("v_mov_b32 v10, 0")
    k.e("s_waitcnt vmcnt(0)")
    k.e("s_barrier")
    for it in range(18):
        base, im = (7, it * 4096) if it < 8 else (8, (it - 8) * 4096)
        rg = 16 + 4 * (it % 8)
        k.e(f"ds_read_b64_tr_b16 v[{rg}:{rg+1}], v{base} offset:{im}")
        k.e(f"ds_read_b64_tr_b16 v[{rg+2}:{rg+3}], v{base} offset:{im+512}")
        k.e("s_waitcnt lgkmcnt(0)")
        k.e(f"buffer_store_dwordx4 v[{rg}:{rg+3}], v9, s[28:31], s39 offen")
        k.e(f"s_add_u32 s39, s39, 18432")
        for r in range(4):
            unpack_sum(k, rg + r, 11, 12, 10, None)
        if it % 8 == 7:
            k.e("s_waitcnt vmcnt(0)")
    xlane_add(k, 10, 11, 12, 2, 16)
    xlane_add(k, 10, 11, 12, 2, 32)
    k.e("v_cvt_pk_bf16_f32 v11, v10, v10")
    k.e("v_lshlrev_b32 v12, 16, v11")
    k.e("v_sub_f32 v13, v10, v12")
    k.e("v_cvt_pk_bf16_f32 v14, v13, v13")
    k.e("v_lshlrev_b32 v15, 16, v14")
    k.e("v_sub_f32 v13, v13, v15")
    k.e("v_cvt_pk_bf16_f32 v17, v13, v13")
    k.e("v_and_b32 v17, 0xffff, v17")
    k.e("v_and_b32 v16, 0xffff, v11")
    k.e("v_or_b32 v16, v16, v15")
    k.e("v_mov_b32 v18, 0")
    k.e("v_mov_b32 v19, 0")
    k.e("v_cmp_gt_u32 vcc, 16, v2")
    k.e("s_nop 1")
    k.e("v_cndmask_b32 v16, 0, v16, vcc")
    k.e("v_cndmask_b32 v17, 0, v17, vcc")
    k.e("v_lshlrev_b32 v11, 4, v4")
    k.e("v_lshl_add_u32 v11, v3, 9, v11")
    k.e("v_cmp_gt_u32 vcc, 32, v2")
    k.e("s_and_saveexec_b64 s[40:41], vcc")
    k.e("buffer_store_dwordx4 v[16:19], v11, s[28:31], s39 offen")
    k.e(f"s_branch {Lend}")

    k.label("k0_roleD")
    k.e(f"s_sub_u32 s21, s2, {NC_}")
    k.e("s_mul_i32 s22, s21, 7282")
    k.e("s_lshr_b32 s22, s22, 16")
    k.e("s_mul_i32 s23, s22, 9")
    k.e("s_sub_u32 s21, s21, s23")
    k.srd_ptr(24, 16, D * F * 2)
    k.srd_ws(28, 18, "WD")
    k.e("v_lshrrev_b32 v3, 3, v2")
    k.e("v_and_b32 v4, 7, v2")
    k.e("v_mul_u32_u24 v5, 1152, v3")
    k.e("v_lshl_add_u32 v5, v4, 4, v5")
    k.e(f"s_mul_i32 s36, s22, {288*1152}")
    k.e("s_mul_i32 s37, s20, 9216")
    k.e("s_add_u32 s36, s36, s37")
    k.e("s_lshl_b32 s37, s21, 7")
    k.e("s_add_u32 s36, s36, s37")
    k.e("s_lshl_b32 s37, s20, 10")
    for i in range(9):
        k.e(f"s_add_u32 m0, s37, {4096*i}")
        k.e("s_nop 0")
        k.e("buffer_load_dwordx4 v5, s[24:27], s36 offen lds")
        k.e(f"s_add_u32 s36, s36, {4*9216}")
    k.e("v_lshrrev_b32 v3, 4, v2")
    k.e("v_and_b32 v4, 15, v2")
    k.e("v_bfe_u32 v6, v2, 2, 2")
    k.e("v_lshlrev_b32 v7, 10, v3")
    k.e("v_lshl_add_u32 v7, v6, 7, v7")
    k.e("v_and_b32 v6, 3, v2")
    k.e("v_lshl_add_u32 v7, v6, 3, v7")
    k.e("s_lshl_b32 s36, s20, 5")
    k.e("v_add_u32 v7, s36, v7")
    k.e("s_lshl_b32 s36, s21, 6")
    k.e("s_lshl_b32 s37, s20, 4")
    k.e("s_add_u32 s36, s36, s37")
    k.e("v_add_u32 v8, s36, v4")
    k.e("v_mul_u32_u24 v9, 911, v8")
    k.e("v_lshrrev_b32 v9, 16, v9")
    k.e("v_mul_u32_u24 v10, 72, v9")
    k.e("v_sub_u32 v10, v8, v10")
    slotmap_v(k, 10, 11, 12, 13)
    k.e("s_mov_b32 s36, 663552")
    k.e("v_mul_lo_u32 v9, v9, s36")
    k.e("v_lshl_add_u32 v9, v11, 4, v9")
    k.e("v_mul_u32_u24 v12, 1152, v3")
    k.e("v_add_u32 v9, v9, v12")
    k.e(f"s_mul_i32 s39, s22, {36*1152}")
    k.e("s_waitcnt vmcnt(0)")
    k.e("s_barrier")
    for it in range(9):
        rg = 16 + 4 * it
        k.e(f"ds_read_b64_tr_b16 v[{rg}:{rg+1}], v7 offset:{it*4096}")
        k.e(f"ds_read_b64_tr_b16 v[{rg+2}:{rg+3}], v7 offset:{it*4096+512}")
    for it in range(9):
        rg = 16 + 4 * it
        k.e(f"s_waitcnt lgkmcnt({min(15, 2*(8-it))})")
        k.e(f"buffer_store_dwordx4 v[{rg}:{rg+3}], v9, s[28:31], s39 offen")
        k.e(f"s_add_u32 s39, s39, 4608")
    k.label(Lend)
    return k, total, 256, 73728


def srd_ws_s(k, d, wsbase, sreg, size):
    k.e(f"s_add_u32 s{d}, s{wsbase}, s{sreg}")
    k.e(f"s_addc_u32 s{d+1}, s{wsbase+1}, 0")
    k.e(f"s_and_b32 s{d+1}, s{d+1}, 0xffff")
    k.e(f"s_mov_b32 s{d+2}, {size}")
    k.e(f"s_mov_b32 s{d+3}, 0x00020000")


def ktext(k, entries):
    tot = k.nvgpr if k.nagpr == 0 else (k.nvgpr + 3) // 4 * 4 + k.nagpr
    acc = (k.nvgpr + 3) // 4 * 4
    out, descs = [], []
    for name, ins in entries:
        out += [f".globl {name}", ".p2align 8", f".type {name},@function", f"{name}:"]
        out += [" " + x for x in ins]
        out += [f" s_branch {k.name}_body"]
        descs.append("\n".join([f".amdhsa_kernel {name}",
                f"  .amdhsa_next_free_vgpr {tot}",
                f"  .amdhsa_next_free_sgpr {100 if PROF else k.nsgpr}",
                f"  .amdhsa_accum_offset {acc}",
                "  .amdhsa_group_segment_fixed_size 0",
                "  .amdhsa_kernarg_size 96",
                "  .amdhsa_user_sgpr_count 2",
                "  .amdhsa_user_sgpr_kernarg_segment_ptr 1",
                "  .amdhsa_system_sgpr_workgroup_id_x 1",
                ".end_amdhsa_kernel"]))
    out += [".p2align 6", f"{k.name}_body:"]
    out += [x.replace("    ", " ", 1) for x in k.L]
    out += [" s_endpgm"]
    return "\n".join(out), descs


def stats_load(k, base, vaddr, srd, soff, tag=None):
    for i in range(8):
        k.e(f"s_add_u32 s57, s{soff}, {i*16384}")
        ins = f"buffer_load_dwordx2 v[{base+2*i}:{base+2*i+1}], v{vaddr}, s[{srd}:{srd+3}], s57 offen"
        if tag is None:
            k.e(ins)
        else:
            k.vm(ins, tag)


def stats_finish(k, base, vm_, vsd, t0, t1, t2):
    for j in range(1, 8):
        k.e(f"v_add_f32 v{base}, v{base}, v{base+2*j}")
        k.e(f"v_add_f32 v{base+1}, v{base+1}, v{base+2*j+1}")
    k.e(f"v_mov_b32 v{base+2}, v{base}")
    k.e(f"v_mov_b32 v{base+3}, v{base+1}")
    k.e("s_nop 1")
    k.e(f"v_permlane32_swap_b32 v{base}, v{base+2}")
    k.e(f"v_permlane32_swap_b32 v{base+1}, v{base+3}")
    k.e("s_nop 1")
    k.e(f"v_add_f32 v{base}, v{base}, v{base+2}")
    k.e(f"v_add_f32 v{base+1}, v{base+1}, v{base+3}")
    stats_core(k, base, vm_, vsd, t0, t1, t2)


def stats_core(k, base, vm_, vsd, t0, t1, t2):
    k.e(f"v_mov_b32 v{t0}, 0x3ae38e39")
    k.e(f"v_mul_f32 v{t1}, v{base}, v{t0}")
    k.e(f"v_mul_f32 v{t2}, v{base+1}, v{t0}")
    k.e(f"v_fma_f32 v{t2}, -v{t1}, v{t1}, v{t2}")
    k.e(f"v_max_f32 v{t2}, 0, v{t2}")
    k.e(f"v_cvt_pk_bf16_f32 v{t0}, v{t1}, v{t2}")
    k.e(f"v_lshlrev_b32 v{vm_}, 16, v{t0}")
    k.e(f"v_and_b32 v{t2}, 0xffff0000, v{t0}")
    k.e(f"v_add_f32 v{t2}, 0x3727c5ac, v{t2}")
    k.e(f"v_cvt_pk_bf16_f32 v{t0}, v{t2}, v{t2}")
    k.e(f"v_lshlrev_b32 v{t2}, 16, v{t0}")
    k.e(f"v_sqrt_f32 v{t2}, v{t2}")
    k.e("s_nop 0")
    k.e(f"v_cvt_pk_bf16_f32 v{t0}, v{t2}, v{t2}")
    k.e(f"v_lshlrev_b32 v{vsd}, 16, v{t0}")


NPF = int(os.environ.get('NPF', '0'))
STP = os.environ.get("STP", "sc1")


def gen_kh_full(first):
    name = "kh1" if first else "kh"
    k = Kern(name, 256, 0, 92)
    Lend = name + "_end"
    LDS_W = 8 * 9216
    SCR = LDS_W + 1024
    total = 256
    RPK = 77824
    k.e(f"s_cmp_ge_u32 s2, {total}")
    k.e(f"s_cbranch_scc1 {Lend}")
    k.e("s_load_dwordx4 s[8:11], s[0:1], 24")
    k.e("s_load_dwordx2 s[18:19], s[0:1], 88")
    if first:
        k.e("s_load_dwordx2 s[6:7], s[0:1], 0")
        k.e("s_load_dwordx4 s[12:15], s[0:1], 48")
        k.e("s_load_dwordx2 s[16:17], s[0:1], 64")
        k.e("s_load_dwordx4 s[60:63], s[0:1], 8")
    k.e("v_lshrrev_b32 v1, 6, v0")
    k.e("v_and_b32 v2, 63, v0")
    k.e("v_readfirstlane_b32 s20, v1")
    k.e("s_and_b32 s21, s2, 7")
    k.e("s_lshr_b32 s22, s2, 3")
    k.e("s_lshl_b32 s21, s21, 1")
    k.e("s_and_b32 s23, s22, 1")
    k.e("s_add_u32 s21, s21, s23")
    k.e("s_mov_b32 s55, s21")
    k.e("s_lshr_b32 s22, s22, 1")
    k.e("s_mov_b32 s54, s22")
    k.e("s_and_b32 s23, s22, 7")
    k.e("s_lshr_b32 s22, s22, 3")
    k.e("s_lshl_b32 s21, s21, 2")
    k.e("s_add_u32 s21, s21, s20")
    k.e("s_waitcnt lgkmcnt(0)")
    k.stamp(0)
    if first:
        k.e("s_cmp_ge_u32 s20, 4")
        k.e(f"s_cbranch_scc1 {name}_rep")
    k.e("s_cmp_eq_u32 s22, 1")
    k.e("s_cselect_b32 s4, s10, s8")
    k.e("s_cselect_b32 s5, s11, s9")
    k.srd_ptr(24, 4, D * D * 2)
    if first:
        k.srd_ptr(28, 6, XC_SZ)
        k.srd_ws(32, 18, "XC0")
    else:
        srd_ws_s(k, 28, 18, 70, XC_SZ)
        srd_ws_s(k, 32, 18, 71, ST_SZ)
    k.srd_ws(36, 18, "RS")
    k.srd_ws(40, 18, "AB")
    k.e("v_lshrrev_b32 v3, 3, v2")
    k.e("v_and_b32 v4, 7, v2")
    k.e("v_lshrrev_b32 v5, 1, v3")
    k.e("v_xor_b32 v5, v5, v4")
    k.e("v_lshlrev_b32 v5, 4, v5")
    k.e("v_lshrrev_b32 v6, 2, v3")
    k.e("v_and_b32 v7, 3, v3")
    k.e("v_lshl_add_u32 v6, v6, 3, v7")
    k.e("v_mul_u32_u24 v6, 1152, v6")
    k.e("v_add_u32 v8, v6, v5")
    k.e("v_xor_b32 v7, 64, v5")
    k.e("v_add_u32 v9, v6, v7")
    k.e("v_mul_u32_u24 v6, 1152, v3")
    k.e("v_add_u32 v10, v6, v5")
    k.e("v_and_b32 v11, 15, v2")
    k.e("v_lshrrev_b32 v12, 4, v2")
    k.e("v_lshlrev_b32 v13, 9, v12")
    k.e("v_lshl_add_u32 v13, v11, 4, v13")
    k.e(f"s_mul_i32 s48, s23, {72*1152}")
    k.e("s_lshl_b32 s49, s20, 7")
    k.e("s_add_u32 s48, s48, s49")
    k.e("s_mul_i32 s49, s20, 9216")
    qc = lambda q: (32 * (q >> 2) + 16 * (q & 1) + 4 * ((q >> 1) & 1)) * 1152 if q < 8 else 64 * 1152

    def dma_kq(tag, track=True):
        for q in range(9):
            v = 8 + (q & 1) if q < 8 else 10
            k.e(f"s_add_u32 m0, s49, {1024*q}")
            k.e(f"s_add_u32 s50, s48, {qc(q)}")
            ins = f"buffer_load_dwordx4 v{v}, s[24:27], s50 offen lds"
            if track:
                k.vm(ins, tag)
            else:
                k.e(ins)
        k.e("s_add_u32 s48, s48, 512")
        k.e(f"s_add_u32 s49, s49, {4*9216}")

    AFR = 12
    AF = 16
    if first:
        k.e("v_lshrrev_b32 v14, 4, v2")
        k.e("v_bfe_u32 v15, v2, 2, 2")
        k.e("v_lshl_add_u32 v14, v14, 3, v15")
        k.e("v_mul_u32_u24 v14, 1152, v14")
        k.e("v_and_b32 v15, 3, v2")
        k.e("v_lshl_add_u32 v14, v15, 4, v14")
        k.e("v_add_u32 v15, 4608, v14")
        k.e("v_lshl_add_u32 v7, v11, 2, v12")
        k.e("s_lshl_b32 s50, s20, 11")
        k.e(f"s_add_u32 s50, s50, {RPK + 73728}")
        k.e("v_lshl_add_u32 v7, v7, 4, s50")
        k.e("v_lshl_add_u32 v5, v2, 4, s50")
    k.e("s_mul_i32 s44, s21, 36864")
    k.e("s_mov_b32 s45, s44")
    k.e("s_mov_b32 s46, s44")

    def aload(kb):
        for u in range(2):
            rg = AF + ((kb % AFR) * 2 + u) * 4
            if first:
                k.vm(f"buffer_load_dwordx4 v[{rg}:{rg+3}], v{14+u}, s[28:31], s44 offen offset:{64*kb}", ("a", kb))
            else:
                if kb % 2 == 0 and kb > 0 and u == 0:
                    k.e("s_add_u32 s45, s45, 4096")
                k.vm(f"buffer_load_dwordx4 v[{rg}:{rg+3}], v13, s[28:31], s45 offen offset:{(kb%2)*2048 + u*256}", ("a", kb))

    dma_kq("w0")
    aload(0); aload(1)
    dma_kq("w1")
    APRE = 11 if first else 6
    for kb_ in range(2, APRE):
        aload(kb_)
    ACC = 152
    for a in range(60 if first else 40):
        k.e(f"v_mov_b32 v{ACC+a}, 0")
    ONE = 212
    if first:
        for a in range(4):
            k.e(f"v_mov_b32 v{ONE+a}, 0x3f803f80")
        for a in list(range(220, 228)) + list(range(248, 256)):
            k.e(f"v_mov_b32 v{a}, 0")
    k.e("v_lshrrev_b32 v1, 1, v11")
    k.e("v_xor_b32 v1, v1, v12")
    k.e("v_lshlrev_b32 v1, 4, v1")
    k.e("v_lshl_add_u32 v216, v11, 7, v1")
    k.e("v_xor_b32 v217, 64, v216")
    k.e(f"v_add_u32 v218, {5*9216}, v216")
    k.e(f"v_add_u32 v219, {5*9216}, v217")
    if not first:
        k.e("v_and_b32 v224, 31, v2")
        k.e("v_lshrrev_b32 v225, 5, v2")
        k.e("v_lshlrev_b32 v225, 17, v225")
        k.e("v_lshl_add_u32 v225, v224, 3, v225")
        k.e("s_lshl_b32 s53, s21, 8")
        k.e("s_mul_i32 s47, s54, 320")
        k.e("v_lshlrev_b32 v226, 2, v11")
    k.stamp(1)
    k.wait_vm("w0")
    k.e("s_barrier")
    k.stamp(2)
    sets = [112, 132]

    def bread(kb):
        kq, half = (kb >> 1) % 8, kb & 1
        base = 216 + half + (2 if kq >= 5 else 0)
        kq_ = kq - 5 if kq >= 5 else kq
        sb = sets[kb & 1]
        for T in range(5):
            k.ds(f"ds_read_b128 v[{sb+4*T}:{sb+4*T+3}], v{base} offset:{kq_*9216 + T*2048}", ("b", kb))
    def aperm(kb):
        k.wait_vm(("a", kb))
        for u in range(2):
            rg = AF + ((kb % AFR) * 2 + u) * 4
            k.ds(f"ds_write_b128 v5, v[{rg}:{rg+3}] offset:{u*1024}", ("pw", kb))
        for u in range(2):
            rg = AF + ((kb % AFR) * 2 + u) * 4
            k.ds(f"ds_read_b128 v[{rg}:{rg+3}], v7 offset:{u*1024}", ("p", kb))
    if first:
        aperm(0)
    bread(0)
    for kb in range(18):
        if kb == 7:
            k.wait_vm("w1")
            k.e("s_barrier")
            k.e("s_and_b32 s50, s20, 1")
            k.e("s_cmp_eq_u32 s50, 1")
            k.e("s_cselect_b64 vcc, -1, 0")
            k.e("v_cndmask_b32 v1, v8, v9, vcc")
            k.e("s_lshl_b32 s50, s50, 4")
            k.e("s_lshr_b32 s51, s20, 1")
            k.e("s_lshl_b32 s51, s51, 2")
            k.e("s_add_u32 s50, s50, s51")
            k.e("s_mul_i32 s50, s50, 1152")
            k.e(f"s_mul_i32 s48, s23, {72*1152}")
            k.e("s_add_u32 s48, s48, 1024")
            k.e("s_add_u32 s50, s50, s48")
            k.e("s_lshl_b32 s51, s20, 10")
            k.e("s_mov_b32 m0, s51")
            k.e("s_nop 0")
            k.vm("buffer_load_dwordx4 v1, s[24:27], s50 offen lds", "w2")
            k.e("s_add_u32 m0, s51, 4096")
            k.e(f"s_add_u32 s50, s50, {32*1152}")
            k.vm("buffer_load_dwordx4 v1, s[24:27], s50 offen lds", "w2")
            k.e("s_mov_b32 m0, 8192")
            k.e(f"s_add_u32 s50, s48, {64*1152}")
            k.e("s_lshl_b32 s51, s20, 4")
            k.e("s_mov_b64 exec, 0xffff")
            k.e("s_lshl_b64 exec, exec, s51")
            k.vm("buffer_load_dwordx4 v10, s[24:27], s50 offen lds", "w2")
            k.e("s_mov_b64 exec, -1")
        if kb == 15:
            k.wait_vm("w2")
            k.e("s_barrier")
        if kb + APRE < 18:
            aload(kb + APRE)
        k.wait_ds(("b", kb))
        if kb + 1 < 18:
            if first:
                aperm(kb + 1)
            bread(kb + 1)
        if not first and kb == 14:
            stats_load(k, 16, 225, 32, 53, "st")
            for T in range(5):
                k.vm(f"buffer_load_dword v{192+4*T}, v226, s[36:39], s47 offen offset:{64*T}", "st")
        k.wait_vm(("a", kb))
        k.wait_ds(("b", kb))
        sb = sets[kb & 1]
        for u in range(2):
            af = AF + ((kb % AFR) * 2 + u) * 4
            for T in range(5):
                acc = ACC + (u * 5 + T) * 4
                k.e(f"v_mfma_f32_16x16x32_bf16 v[{acc}:{acc+3}], v[{af}:{af+3}], v[{sb+4*T}:{sb+4*T+3}], v[{acc}:{acc+3}]")
            if first and not os.environ.get("EXP_NOGRAM"):
                k.e(f"v_mfma_f32_16x16x32_bf16 v[{248+4*u}:{251+4*u}], v[{af}:{af+3}], v[{ONE}:{ONE+3}], v[{248+4*u}:{251+4*u}]")
                k.e(f"v_mfma_f32_16x16x32_bf16 v[{220+4*u}:{223+4*u}], v[{af}:{af+3}], v[{af}:{af+3}], v[{220+4*u}:{223+4*u}]")
    k.stamp(3)
    k.e("s_lshl_b32 s50, s20, 8")
    k.e(f"s_add_u32 s50, s50, {SCR}")
    if first:
        k.e("s_nop 7")
        k.e("v_and_b32 v228, 3, v11")
        for u in range(2):
            for base, dst in ((248 + 4 * u, 232 + 2 * u), (220 + 4 * u, 233 + 2 * u)):
                k.e(f"v_mov_b32 v{dst}, v{base}")
                for r in range(1, 4):
                    k.e(f"v_cmp_eq_u32 vcc, {r}, v228")
                    k.e("s_nop 1")
                    k.e(f"v_cndmask_b32 v{dst}, v{dst}, v{base+r}, vcc")
        k.e("v_lshrrev_b32 v229, 2, v11")
        k.e("v_lshl_add_u32 v230, v11, 3, s50")
        k.e("v_cmp_eq_u32 vcc, v229, v12")
        k.e("s_and_saveexec_b64 s[52:53], vcc")
        k.e("ds_write_b64 v230, v[232:233]")
        k.e("ds_write_b64 v230, v[234:235] offset:128")
        k.e("s_mov_b64 exec, -1")
        k.e("v_and_b32 v224, 31, v2")
        k.e("v_lshl_add_u32 v230, v224, 3, s50")
        k.e("s_waitcnt lgkmcnt(0)")
        k.e("ds_read_b64 v[228:229], v230")
        k.e("s_waitcnt lgkmcnt(0)")
        stats_core(k, 228, 232, 233, 234, 235, 236)
    else:
        k.wait_vm("st")
        stats_finish(k, 16, 232, 233, 234, 235, 236)
    k.e("v_rcp_f32 v233, v233")
    k.e("s_nop 0")
    k.e("v_mul_f32 v232, v232, v233")
    k.e("v_lshl_add_u32 v226, v224, 3, s50")
    k.e("ds_write_b64 v226, v[232:233]")
    k.e("v_lshl_add_u32 v226, v12, 5, s50")
    k.e("s_waitcnt lgkmcnt(0)")
    k.lq = []
    if first:
        k.e("s_barrier")
        k.e("v_lshlrev_b32 v227, 2, v11")
        k.e(f"v_add_u32 v227, {SCR + 1024}, v227")
        for T in range(5):
            k.e(f"ds_read_b32 v{ACC+40+4*T}, v227 offset:{64*T}")
    k.e("ds_read_b128 v[232:235], v226")
    k.e("ds_read_b128 v[236:239], v226 offset:16")
    k.e("ds_read_b128 v[240:243], v226 offset:128")
    k.e("ds_read_b128 v[244:247], v226 offset:144")
    k.e("v_mul_u32_u24 v15, 1152, v12")
    k.e("v_lshl_add_u32 v15, v11, 4, v15")
    k.e("s_lshl_b32 s46, s54, 8")
    k.e("s_lshl_b32 s47, s21, 2")
    k.e("s_add_u32 s46, s46, s47")
    k.e("s_mul_i32 s46, s46, 1152")
    k.e("s_waitcnt lgkmcnt(0)")
    if first:
        k.e("s_add_u32 s51, s55, s20")
        k.e("s_mul_i32 s47, s54, 320")
        k.e("s_cmp_eq_u32 s51, 0")
        k.e("s_cselect_b32 s47, s47, 0x7f000000")
        k.e("v_lshlrev_b32 v227, 2, v11")
        for T in range(5):
            k.e(f"buffer_store_dword v{ACC+40+4*T}, v227, s[36:39], s47 offen offset:{64*T}")
    for T in range(5):
        a0, a1, rr = ACC + T * 4, ACC + 20 + T * 4, ACC + 40 + T * 4
        for u, a in ((0, a0), (1, a1)):
            for r in range(4):
                sr = 232 + 8 * u + 2 * r
                k.e(f"v_mul_f32 v{a+r}, v{a+r}, v{sr+1}")
                k.e(f"v_fma_f32 v{a+r}, -v{sr}, v{rr}, v{a+r}")
        o = 48 + 4 * T
        k.e(f"v_cvt_pk_bf16_f32 v{o}, v{a0}, v{a0+1}")
        k.e(f"v_cvt_pk_bf16_f32 v{o+1}, v{a0+2}, v{a0+3}")
        k.e(f"v_cvt_pk_bf16_f32 v{o+2}, v{a1}, v{a1+1}")
        k.e(f"v_cvt_pk_bf16_f32 v{o+3}, v{a1+2}, v{a1+3}")
        if T == 4:
            k.e("v_cmp_gt_u32 vcc, 8, v11")
            k.e("s_and_saveexec_b64 s[50:51], vcc")
        k.e(f"buffer_store_dwordx4 v[{o}:{o+3}], v15, s[40:43], s46 offen offset:{256*T} {STP}")
    k.stamp(4)
    if first:
        k.e(f"s_branch {name}_rdone")
        k.label(f"{name}_rep")
        k.e("s_sub_u32 s20, s20, 4")
        k.e("s_cmp_lt_u32 s2, 72")
        k.e("s_cselect_b32 s4, s12, s14")
        k.e("s_cselect_b32 s5, s13, s15")
        k.e("s_cselect_b32 s64, 0, 1")
        k.e("s_cmp_lt_u32 s2, 144")
        k.e("s_cselect_b32 s4, s4, s16")
        k.e("s_cselect_b32 s5, s5, s17")
        k.e("s_movk_i32 s65, 1152")
        k.e("s_cselect_b32 s65, 9216, s65")
        k.e("s_cselect_b32 s66, 1, 0")
        k.srd_ptr(24, 4, D * F * 2)
        k.e("s_mul_i32 s67, s64, 72")
        k.e("s_sub_u32 s67, s2, s67")
        k.e("s_sub_u32 s68, s2, 144")
        k.e("s_mul_i32 s69, s68, 7282")
        k.e("s_lshr_b32 s69, s69, 16")
        k.e("s_mul_i32 s75, s69, 9")
        k.e("s_sub_u32 s68, s68, s75")
        k.e(f"s_mul_i32 s75, s69, {384*1152}")
        k.e("s_lshl_b32 s58, s68, 7")
        k.e("s_add_u32 s75, s75, s58")
        k.e("s_lshl_b32 s58, s67, 7")
        k.e("s_cmp_eq_u32 s66, 1")
        k.e("s_cselect_b32 s75, s58, s75")
        k.e("s_cselect_b32 s58, 18, 12")
        k.e("s_lshl_b32 s59, s65, 3")
        k.e("s_mul_i32 s56, s20, s59")
        k.e("s_mul_i32 s56, s56, s58")
        k.e("s_add_u32 s75, s75, s56")
        k.e("s_cmp_ge_u32 s2, 252")
        k.e("s_cselect_b32 s58, 0, s58")
        if os.environ.get("EXP_NOC"):
            k.e(f"s_cmp_lt_u32 s2, {os.environ['EXP_NOC']}")
            k.e("s_cselect_b32 s58, 0, s58")
        k.e("v_lshrrev_b32 v3, 3, v2")
        k.e("v_and_b32 v4, 7, v2")
        k.e("v_mul_lo_u32 v6, v3, s65")
        k.e("v_lshl_add_u32 v6, v4, 4, v6")
        k.e("s_mul_i32 s56, s20, 18432")
        k.e(f"s_add_u32 s56, s56, {RPK}")
        def rdma(i):
            k.e(f"s_cmp_gt_u32 s58, {i}")
            k.e("s_cselect_b32 s51, s75, 0x7f000000")
            k.e(f"s_add_u32 m0, s56, {1024*i}")
            k.e("s_add_u32 s75, s75, s59")
            k.e("buffer_load_dwordx4 v6, s[24:27], s51 offen lds")
        k.srd_ptr(28, 6, XC_SZ)
        k.srd_ws(32, 18, "XC0")
        k.e("v_and_b32 v8, 31, v2")
        k.e("v_and_b32 v9, 3, v8")
        k.e("v_bfe_u32 v10, v8, 2, 2")
        k.e("v_lshl_or_b32 v9, v10, 3, v9")
        k.e("v_bfe_u32 v10, v8, 4, 1")
        k.e("v_lshl_or_b32 v9, v10, 2, v9")
        k.e("v_mul_u32_u24 v9, 1152, v9")
        k.e("v_lshrrev_b32 v10, 5, v2")
        k.e("v_lshl_add_u32 v9, v10, 4, v9")
        k.e("v_lshlrev_b32 v8, 4, v8")
        k.e("v_lshl_add_u32 v8, v10, 9, v8")
        k.e("s_lshr_b32 s36, s2, 2")
        k.e("s_mul_i32 s36, s36, 36864")
        k.e("s_and_b32 s37, s2, 3")
        k.e("s_mul_i32 s37, s37, 18")
        k.e("s_lshl_b32 s38, s20, 1")
        k.e("s_add_u32 s37, s37, s38")
        k.e("s_lshl_b32 s38, s37, 4")
        k.e("s_add_u32 s38, s38, s36")
        k.e("s_lshl_b32 s39, s37, 9")
        k.e("s_add_u32 s39, s39, s36")
        k.e("s_add_u32 s40, s38, 256")
        k.e("s_add_u32 s41, s39, 8192")
        k.e("s_cmp_eq_u32 s20, 0")
        k.e("s_cselect_b32 s40, s40, 0x7f000000")
        k.e("s_cselect_b32 s41, s41, 0x7f000000")
        k.e("buffer_load_dwordx4 v[16:19], v9, s[28:31], s38 offen")
        k.e("buffer_load_dwordx4 v[20:23], v9, s[28:31], s38 offen offset:128")
        k.e("buffer_load_dwordx4 v[24:27], v9, s[28:31], s40 offen")
        for i in range(6):
            rdma(i)
        k.e("v_lshrrev_b32 v3, 4, v2")
        k.e("v_and_b32 v4, 15, v2")
        k.e("v_bfe_u32 v10, v2, 2, 2")
        k.e("v_lshlrev_b32 v7, 7, v10")
        k.e("v_lshl_add_u32 v7, v3, 5, v7")
        k.e("v_add_u32 v7, s56, v7")
        k.e("v_and_b32 v10, 1, v2")
        k.e("v_lshlrev_b32 v10, 4, v10")
        k.e("v_bfe_u32 v11, v2, 1, 1")
        k.e("v_lshl_add_u32 v10, v11, 3, v10")
        k.e("v_and_b32 v11, 3, v2")
        k.e("v_lshlrev_b32 v11, 3, v11")
        k.e("s_cmp_eq_u32 s66, 1")
        k.e("s_cselect_b64 s[42:43], -1, 0")
        k.e("s_nop 1")
        k.e("v_cndmask_b32 v10, v11, v10, s[42:43]")
        k.e("v_add_u32 v7, v7, v10")
        k.e("s_lshl_b32 s36, s67, 2")
        k.e("v_add_u32 v12, s36, v3")
        k.e("v_mul_u32_u24 v13, 7282, v12")
        k.e("v_lshrrev_b32 v13, 16, v13")
        k.e("v_mul_u32_u24 v14, 9, v13")
        k.e("v_sub_u32 v14, v12, v14")
        k.e(f"s_mov_b32 s36, {WGU_CB}")
        k.e("v_mul_lo_u32 v13, v13, s36")
        k.e("v_lshl_add_u32 v13, v14, 10, v13")
        k.e("v_lshl_add_u32 v13, v4, 4, v13")
        k.e("s_lshl_b32 s36, s68, 6")
        k.e("v_add_u32 v12, s36, v2")
        k.e("v_mul_u32_u24 v14, 911, v12")
        k.e("v_lshrrev_b32 v14, 16, v14")
        k.e("v_mul_u32_u24 v15, 72, v14")
        k.e("v_sub_u32 v15, v12, v15")
        slotmap_v(k, 15, 12, 10, 11)
        k.e("s_mov_b32 s36, 663552")
        k.e("v_mul_lo_u32 v14, v14, s36")
        k.e("v_lshl_add_u32 v14, v12, 4, v14")
        k.e("v_cndmask_b32 v5, v14, v13, s[42:43]")
        k.e(f"s_mov_b32 s36, {WS['WD'][0]}")
        k.e(f"s_mov_b32 s37, {WD_SZ}")
        k.e("s_cmp_eq_u32 s66, 1")
        k.e(f"s_cselect_b32 s36, {WS['WGU'][0]}, s36")
        k.e(f"s_cselect_b32 s46, {WGU_SZ}, s37")
        k.e("s_add_u32 s44, s18, s36")
        k.e("s_addc_u32 s45, s19, 0")
        k.e("s_and_b32 s45, s45, 0xffff")
        k.e("s_mov_b32 s47, 0x00020000")
        k.e("s_lshl_b32 s48, s64, 8")
        k.e(f"s_mul_i32 s49, s20, {9*9216}")
        k.e("s_add_u32 s49, s49, s48")
        k.e(f"s_mul_i32 s36, s69, {48*1152}")
        k.e(f"s_mul_i32 s37, s20, {12*1152}")
        k.e("s_add_u32 s36, s36, s37")
        k.e("s_cmp_eq_u32 s66, 1")
        k.e("s_cselect_b32 s49, s49, s36")
        k.e("s_movk_i32 s52, 1152")
        k.e("s_cselect_b32 s52, 512, s52")
        k.e("s_movk_i32 s53, 1152")
        k.e(f"s_cselect_b32 s53, {9216-512}, s53")
        k.e("v_mov_b32 v14, 0")
        k.e("v_mov_b32 v15, 0")

        def tchunk(c):
            for it in range(6 * c, 6 * c + 6):
                rg = 112 + 4 * it
                k.e(f"ds_read_b64_tr_b16 v[{rg}:{rg+1}], v7 offset:{it*1024}")
                k.e(f"ds_read_b64_tr_b16 v[{rg+2}:{rg+3}], v7 offset:{it*1024+512}")
            for it in range(6 * c, 6 * c + 6):
                rg = 112 + 4 * it
                k.e(f"s_cmp_gt_u32 s58, {it}")
                k.e("s_cselect_b32 s51, s49, 0x7f000000")
                k.e(f"s_waitcnt lgkmcnt({2*(6*c+5-it)})")
                k.e(f"buffer_store_dwordx4 v[{rg}:{rg+3}], v5, s[44:47], s51 offen {STP}")
                k.e(f"s_add_u32 s49, s49, s{52 + (it & 1)}")
                for r in range(4):
                    k.e(f"v_dot2_f32_bf16 v{14 + (r & 1)}, v{rg+r}, v32, v{14 + (r & 1)}")
        k.e("v_and_b32 v11, 15, v2")
        k.e("v_lshrrev_b32 v12, 4, v2")
        k.e("v_lshrrev_b32 v1, 1, v11")
        k.e("v_xor_b32 v1, v1, v12")
        k.e("v_lshlrev_b32 v1, 4, v1")
        k.e("v_lshl_add_u32 v28, v11, 7, v1")
        k.e("v_xor_b32 v29, 64, v28")
        k.e("s_lshl_b32 s36, s20, 11")
        k.e("v_add_u32 v30, s36, v28")
        k.e("v_add_u32 v31, s36, v29")
        for a_ in range(4):
            k.e(f"v_mov_b32 v{32+a_}, 0x3f803f80")
        for a_ in range(8):
            k.e(f"v_mov_b32 v{36+a_}, 0")

        def rpart(kbs):
            for n_, kb in enumerate(kbs):
                kq, half = (kb >> 1) % 8, kb & 1
                rg = 44 + n_ * 8
                off = kq * 9216
                if off + 8192 > 65000:
                    k.e(f"v_add_u32 v1, {off}, v{30+half}")
                    k.e(f"ds_read_b128 v[{rg}:{rg+3}], v1")
                    k.e(f"v_add_u32 v1, {off + 8192}, v{28+half}")
                    k.e(f"ds_read_b128 v[{rg+4}:{rg+7}], v1")
                else:
                    k.e(f"ds_read_b128 v[{rg}:{rg+3}], v{30+half} offset:{off}")
                    k.e(f"ds_read_b128 v[{rg+4}:{rg+7}], v{28+half} offset:{off + 8192}")
            k.e("s_waitcnt lgkmcnt(0)")
            for n_, kb in enumerate(kbs):
                rg = 44 + n_ * 8
                k.e(f"v_mfma_f32_16x16x32_bf16 v[36:39], v[32:35], v[{rg}:{rg+3}], v[36:39]")
                k.e(f"v_mfma_f32_16x16x32_bf16 v[40:43], v[32:35], v[{rg+4}:{rg+7}], v[40:43]")
        k.e("s_barrier")
        rpart(range(0, 8))
        for i in range(6, 12):
            rdma(i)
        k.e("s_waitcnt vmcnt(12)")
        k.e("buffer_store_dwordx4 v[16:19], v8, s[32:35], s39 offen")
        k.e("s_add_u32 s39, s39, 4096")
        k.e("buffer_store_dwordx4 v[20:23], v8, s[32:35], s39 offen")
        k.e("buffer_store_dwordx4 v[24:27], v8, s[32:35], s41 offen")
        k.e("s_barrier")
        rpart(range(8, 16))
        for i in range(12, 18):
            rdma(i)
        k.e("s_waitcnt vmcnt(15)")
        tchunk(0)
        k.e("s_barrier")
        rpart(range(16, 18))
        k.e("s_lshl_b32 s36, s20, 6")
        k.e(f"s_add_u32 s36, s36, {SCR + 1024}")
        k.e("v_lshl_add_u32 v1, v11, 2, s36")
        k.e("v_lshlrev_b32 v28, 2, v11")
        k.e(f"v_add_u32 v28, {SCR + 1024 + 256}, v28")
        k.e("s_nop 7")
        k.e("ds_write_b32 v1, v36")
        k.e("ds_write_b32 v28, v40")
        k.e("s_waitcnt lgkmcnt(0)")
        k.e("s_barrier")
        k.e("s_waitcnt vmcnt(15)")
        tchunk(1)
        k.e("s_waitcnt vmcnt(12)")
        tchunk(2)
        k.e("s_nop 3")
        k.e("v_add_f32 v10, v14, v15")
        k.e("v_cvt_pk_bf16_f32 v11, v10, v10")
        k.e("v_lshlrev_b32 v12, 16, v11")
        k.e("v_sub_f32 v13, v10, v12")
        k.e("v_cvt_pk_bf16_f32 v14, v13, v13")
        k.e("v_lshlrev_b32 v15, 16, v14")
        k.e("v_sub_f32 v13, v13, v15")
        k.e("v_cvt_pk_bf16_f32 v201, v13, v13")
        k.e("v_and_b32 v201, 0xffff, v201")
        k.e("v_and_b32 v200, 0xffff, v11")
        k.e("v_or_b32 v200, v200, v15")
        k.e("s_lshr_b32 s39, s20, 1")
        k.e("s_lshl_b32 s39, s39, 9")
        k.e("s_and_b32 s37, s20, 1")
        k.e("s_lshl_b32 s37, s37, 3")
        k.e("s_add_u32 s39, s39, s37")
        k.e("s_add_u32 s39, s39, s48")
        k.e(f"s_add_u32 s39, s39, {36*9216}")
        k.e("s_cmp_eq_u32 s66, 1")
        k.e("s_cselect_b32 s39, s39, 0x7f000000")
        k.e("buffer_store_dwordx2 v[200:201], v5, s[44:47], s39 offen")
        k.label(f"{name}_rdone")
        if PROF:
            k.e("v_lshrrev_b32 v1, 6, v0")
            k.e("s_nop 0")
            k.e("v_readfirstlane_b32 s20, v1")
    if PROF:
        k.e("s_mov_b64 exec, -1")
        k.wait_vm_all()
    k.stamp(5)
    k.stamp_store(0, 18, 20)
    k.label(Lend)
    return k, total, 512 if first else 256, (RPK + 73728 + 8192) if first else RPK


REG = 20480
CPF = int(os.environ.get("CPF", "0"))
MAPG = int(os.environ.get("MAPG", "0"))
MAPD = int(os.environ.get("MAPD", "0"))
STPG = os.environ.get("STPG", "sc1")
EXP_NOMFMA = int(os.environ.get("EXP_NOMFMA", "0"))
EXP_PAD = int(os.environ.get("EXP_PAD", "0"))
BAR = int(os.environ.get("BAR", "0"))
EXP_NOWD = int(os.environ.get("EXP_NOWD", "0"))
EXP_NOHC = int(os.environ.get("EXP_NOHC", "0"))
ILV = int(os.environ.get("ILV", "1"))
KD_W, KD_S = (1, 8) if ILV else (18, 1)
KS_W, KS_S = (1, 4) if ILV else (8, 1)


def t1_decode(k, mp=0):
    k.e("v_lshrrev_b32 v1, 6, v0")
    k.e("v_and_b32 v2, 63, v0")
    k.e("v_readfirstlane_b32 s20, v1")
    k.e("s_and_b32 s22, s2, 7")
    k.e("s_lshr_b32 s23, s2, 3")
    if mp == 0:
        k.e("s_lshr_b32 s21, s22, 1")
        k.e("s_lshl_b32 s21, s21, 3")
        k.e("s_and_b32 s44, s23, 7")
        k.e("s_add_u32 s21, s21, s44")
        k.e("s_and_b32 s22, s22, 1")
        k.e("s_lshl_b32 s22, s22, 2")
        k.e("s_lshr_b32 s23, s23, 3")
        k.e("s_add_u32 s23, s23, s22")
    else:
        k.e("s_lshl_b32 s21, s22, 2")
        k.e("s_and_b32 s44, s23, 3")
        k.e("s_add_u32 s21, s21, s44")
        k.e("s_lshr_b32 s23, s23, 2")


def t1_pre(k, xin_srd):
    sW, sTB, sJ = 20, 21, 23
    k.e(f"s_and_b32 s61, s{sW}, 3")
    k.e(f"s_lshr_b32 s59, s{sW}, 2")
    k.e("s_lshr_b32 s62, s61, 1")
    k.e(f"s_lshl_b32 s63, s{sTB}, 1")
    k.e("s_add_u32 s58, s62, s63")
    k.e("s_and_b32 s62, s61, 1")
    k.e("s_mul_i32 s63, s58, 36864")
    k.e(f"s_mul_i32 s64, s{sJ}, 4608")
    k.e("s_add_u32 s63, s63, s64")
    k.e("s_lshl_b32 s64, s62, 8")
    k.e("s_add_u32 s63, s63, s64")
    k.e("s_add_u32 s64, s63, 4096")
    k.e("s_lshl_b32 s65, s59, 11")
    k.e("s_add_u32 s63, s63, s65")
    k.e("v_and_b32 v248, 15, v0")
    k.e("v_bfe_u32 v249, v0, 4, 2")
    k.e("v_lshlrev_b32 v254, 9, v249")
    k.e("v_lshl_add_u32 v254, v248, 4, v254")
    k.e("v_lshlrev_b32 v255, 3, v249")
    k.e("v_lshl_add_u32 v255, v248, 4, v255")
    k.vm(f"buffer_load_dwordx4 v[248:251], v254, s[{xin_srd}:{xin_srd+3}], s63 offen", "res")
    k.vm(f"buffer_load_dwordx2 v[252:253], v255, s[{xin_srd}:{xin_srd+3}], s64 offen", "res")


def t1_epilogue(k, name, mode, ACC, xin_srd, xout_srd, st_srd, sfinal):
    sW, sTB, sJ = 20, 21, 23
    k.e("v_and_b32 v2, 63, v0")
    k.e(f"s_mul_i32 s60, s{sW}, {REG}")
    k.e("v_lshl_add_u32 v3, v2, 4, s60")
    k.e("v_and_b32 v11, 15, v2")
    k.e("v_lshrrev_b32 v12, 4, v2")
    k.e("v_mov_b32 v4, v254")
    k.e("v_mov_b32 v5, v255")
    k.e("s_nop 2")
    for b in range(4):
        for a in range(5):
            acc = ACC + (a * 4 + b) * 4
            k.e(f"ds_write_b128 v3, v[{acc}:{acc+3}] offset:{(b*5+a)*1024}")
    k.e("s_mul_i32 s60, s61, 5120")
    k.e("v_lshl_add_u32 v6, v2, 4, s60")
    k.e("v_add_u32 v7, s65, v6")
    for j in range(1, 3):
        k.e(f"v_add_u32 v{7+j}, {3*REG*j}, v7")
        k.e(f"v_add_u32 v{12+j}, {3*REG*j}, v6")
    k.e("s_waitcnt lgkmcnt(0)")
    k.e("s_barrier")
    T0 = 24
    for v in range(8):
        base = 7 + v // 3
        for t in range(2):
            rg = T0 + (v * 2 + t) * 4
            k.e(f"ds_read_b128 v[{rg}:{rg+3}], v{base} offset:{(v%3)*REG + t*1024}")
    k.e("s_cmp_lg_u32 s59, 0")
    k.e(f"s_cbranch_scc1 {name}_no4a")
    for v in range(8):
        base = 6 if v < 3 else 12 + v // 3
        rg = 88 + v * 4
        k.e(f"ds_read_b128 v[{rg}:{rg+3}], v{base} offset:{(v%3)*REG + 4096}")
    k.label(f"{name}_no4a")
    k.e("s_waitcnt lgkmcnt(0)")

    def combine(regs_of_wave, n):
        for j in range(n):
            r = [regs_of_wave(v) + j for v in range(8)]
            k.e(f"v_add_f32 v{r[0]}, v{r[0]}, v{r[1]}")
            k.e(f"v_add_f32 v{r[2]}, v{r[2]}, v{r[3]}")
            k.e(f"v_add_f32 v{r[4]}, v{r[4]}, v{r[5]}")
            k.e(f"v_add_f32 v{r[6]}, v{r[6]}, v{r[7]}")
            k.e(f"v_add_f32 v{r[0]}, v{r[0]}, v{r[2]}")
            k.e(f"v_add_f32 v{r[4]}, v{r[4]}, v{r[6]}")
            if mode == "D":
                k.e(f"v_add_f32 v{r[0]}, v{r[0]}, v{r[4]}")
        if mode == "S":
            for j in range(0, n, 2):
                p0 = regs_of_wave(0) + j
                q0 = regs_of_wave(4) + j
                k.e(f"v_cvt_pk_bf16_f32 v22, v{p0}, v{p0+1}")
                k.e(f"v_cvt_pk_bf16_f32 v23, v{q0}, v{q0+1}")
                k.e(f"v_lshlrev_b32 v{p0}, 16, v22")
                k.e(f"v_and_b32 v{p0+1}, 0xffff0000, v22")
                k.e(f"v_lshlrev_b32 v{q0}, 16, v23")
                k.e(f"v_and_b32 v{q0+1}, 0xffff0000, v23")
                k.e(f"v_sub_f32 v{p0}, v{p0}, v{q0}")
                k.e(f"v_sub_f32 v{p0+1}, v{p0+1}, v{q0+1}")

    def resid(ybase, xbase, n):
        for j in range(0, n, 2):
            y0 = ybase + j
            xr = xbase + j // 2
            k.e(f"v_cvt_pk_bf16_f32 v22, v{y0}, v{y0+1}")
            k.e(f"v_lshlrev_b32 v{y0}, 16, v22")
            k.e(f"v_and_b32 v{y0+1}, 0xffff0000, v22")
            k.e(f"v_lshlrev_b32 v22, 16, v{xr}")
            k.e(f"v_and_b32 v23, 0xffff0000, v{xr}")
            k.e(f"v_add_f32 v{y0}, v{y0}, v22")
            k.e(f"v_add_f32 v{y0+1}, v{y0+1}, v23")
            k.e(f"v_cvt_pk_bf16_f32 v{xr}, v{y0}, v{y0+1}")
            unpack_sum(k, xr, 22, 23, 120, 121)

    combine(lambda v: T0 + v * 8, 8)
    k.e("v_mov_b32 v120, 0")
    k.e("v_mov_b32 v121, 0")
    resid(T0, 248, 8)
    k.e("s_cmp_lg_u32 s59, 0")
    k.e(f"s_cbranch_scc1 {name}_no4b")
    k.e("v_cmp_gt_u32 vcc, 2, v12")
    k.e("s_and_saveexec_b64 s[66:67], vcc")
    combine(lambda v: 88 + v * 4, 4)
    resid(88, 252, 4)
    k.e("s_mov_b64 exec, s[66:67]")
    k.label(f"{name}_no4b")
    if sfinal is not None:
        k.e(f"s_cmp_lg_u32 s{sfinal}, 0")
        k.e(f"s_cbranch_scc1 {name}_fin")
    for sw in ("16", "32"):
        k.e("v_mov_b32 v22, v120")
        k.e("v_mov_b32 v23, v121")
        k.e("s_nop 1")
        k.e(f"v_permlane{sw}_swap_b32 v120, v22")
        k.e(f"v_permlane{sw}_swap_b32 v121, v23")
        k.e("s_nop 1")
        k.e("v_add_f32 v120, v120, v22")
        k.e("v_add_f32 v121, v121, v23")
    k.e(f"buffer_store_dwordx4 v[248:251], v4, s[{xout_srd}:{xout_srd+3}], s63 offen")
    k.e("s_lshl_b32 s65, s58, 8")
    k.e("s_lshl_b32 s62, s62, 7")
    k.e("s_add_u32 s65, s65, s62")
    k.e(f"s_lshl_b32 s62, s{sJ}, 15")
    k.e("s_add_u32 s65, s65, s62")
    k.e("s_lshl_b32 s62, s59, 14")
    k.e("s_add_u32 s65, s65, s62")
    k.e("v_lshlrev_b32 v22, 3, v11")
    k.e("v_cmp_gt_u32 vcc, 1, v12")
    k.e("s_and_saveexec_b64 s[68:69], vcc")
    k.e(f"buffer_store_dwordx2 v[120:121], v22, s[{st_srd}:{st_srd+3}], s65 offen")
    k.e("s_mov_b64 exec, s[68:69]")
    k.e("s_cmp_lg_u32 s59, 0")
    k.e(f"s_cbranch_scc1 {name}_done")
    k.e("v_cmp_gt_u32 vcc, 2, v12")
    k.e("s_and_saveexec_b64 s[66:67], vcc")
    k.e(f"buffer_store_dwordx2 v[252:253], v5, s[{xout_srd}:{xout_srd+3}], s64 offen")
    if sfinal is not None:
        k.e(f"s_branch {name}_done")
        k.label(f"{name}_fin")
        k.e("v_lshrrev_b32 v22, 2, v11")
        k.e("v_and_b32 v23, 3, v11")
        k.e("v_lshl_add_u32 v22, v22, 3, v23")
        k.e("v_mul_u32_u24 v22, 1152, v22")
        k.e("v_lshl_add_u32 v23, v12, 4, v22")
        k.e("v_lshl_add_u32 v22, v12, 3, v22")
        k.e("s_lshl_b32 s65, s58, 5")
        k.e("s_lshl_b32 s62, s62, 2")
        k.e("s_add_u32 s65, s65, s62")
        k.e("s_mul_i32 s65, s65, 1152")
        k.e(f"s_mul_i32 s62, s{sJ}, 144")
        k.e("s_add_u32 s65, s65, s62")
        k.e("s_lshl_b32 s62, s59, 6")
        k.e("s_add_u32 s62, s62, s65")
        k.e(f"buffer_store_dwordx4 v[248:251], v23, s[{xout_srd}:{xout_srd+3}], s62 offen")
        k.e("s_cmp_lg_u32 s59, 0")
        k.e(f"s_cbranch_scc1 {name}_done")
        k.e("v_cmp_gt_u32 vcc, 2, v12")
        k.e("s_and_saveexec_b64 s[66:67], vcc")
        k.e(f"buffer_store_dwordx2 v[252:253], v22, s[{xout_srd}:{xout_srd+3}], s65 offen offset:128")
    k.label(f"{name}_done")


def gen_ks():
    name = "ks"
    k = Kern(name, 256, 0, 80)
    Lend = name + "_end"
    k.e("s_cmp_ge_u32 s2, 256")
    k.e(f"s_cbranch_scc1 {Lend}")
    k.e("s_load_dwordx4 s[8:11], s[0:1], 8")
    k.e("s_load_dwordx2 s[18:19], s[0:1], 88")
    t1_decode(k)
    k.e("s_lshr_b32 s22, s20, 2")
    k.e("s_and_b32 s45, s20, 3")
    k.e("s_waitcnt lgkmcnt(0)")
    k.stamp(0)
    k.e("s_cmp_eq_u32 s22, 1")
    k.e("s_cselect_b32 s4, s10, s8")
    k.e("s_cselect_b32 s5, s11, s9")
    k.srd_ptr(24, 4, S * S * 2)
    k.srd_ws(28, 18, "AB")
    srd_ws_s(k, 32, 18, 70, XC_SZ)
    srd_ws_s(k, 36, 18, 71, XC_SZ)
    srd_ws_s(k, 40, 18, 72, ST_SZ)
    VD = 1
    t = 248
    k.e(f"v_lshrrev_b32 v{t}, 3, v2")
    k.e(f"v_and_b32 v{t+1}, 7, v2")
    k.e(f"v_lshrrev_b32 v{t+2}, 1, v{t}")
    k.e(f"v_xor_b32 v{t+2}, v{t+2}, v{t+1}")
    k.e(f"v_lshlrev_b32 v{t+2}, 4, v{t+2}")
    k.e(f"v_lshrrev_b32 v{t+3}, 2, v{t}")
    k.e(f"v_and_b32 v{t+4}, 3, v{t}")
    k.e(f"v_lshl_add_u32 v{t+3}, v{t+3}, 3, v{t+4}")
    k.e(f"v_lshlrev_b32 v{t+3}, 12, v{t+3}")
    k.e(f"v_add_u32 v{t+5}, v{t+3}, v{t+2}")
    k.e(f"v_xor_b32 v{t+4}, 64, v{t+2}")
    k.e(f"v_add_u32 v{t+6}, v{t+3}, v{t+4}")
    k.e(f"v_and_b32 v{t}, 15, v2")
    k.e(f"v_lshrrev_b32 v{t+1}, 4, v2")
    k.e(f"v_mul_u32_u24 v{t+2}, 1152, v{t+1}")
    k.e(f"v_lshl_add_u32 v9, v{t}, 4, v{t+2}")
    k.e(f"v_and_b32 v{t+3}, 7, v{t}")
    k.e(f"v_lshl_add_u32 v10, v{t+3}, 4, v{t+2}")
    k.e("v_add_u32 v10, 1024, v10")
    k.e("v_add_u32 v11, 4608, v9")
    k.e("v_add_u32 v12, 4608, v10")
    k.e(f"s_mul_i32 s46, s20, {REG}")
    k.e(f"v_lshrrev_b32 v{t+2}, 1, v{t}")
    k.e(f"v_xor_b32 v{t+2}, v{t+2}, v{t+1}")
    k.e(f"v_lshlrev_b32 v{t+2}, 4, v{t+2}")
    k.e(f"v_lshl_add_u32 v{t+2}, v{t}, 7, v{t+2}")
    k.e(f"v_add_u32 v13, s46, v{t+2}")
    k.e(f"v_xor_b32 v{t+2}, 64, v{t+2}")
    k.e(f"v_add_u32 v14, s46, v{t+2}")
    for q in range(8):
        c = (32 * (q >> 2) + 16 * (q & 1) + 4 * ((q >> 1) & 1)) * 4096
        k.e(f"v_add_u32 v{VD+q}, {c}, v{t + 5 + (q & 1)}")
    k.e("s_lshl_b32 s47, s21, 18")
    k.e(f"s_mul_i32 s49, s45, {128*KS_W}")
    k.e("s_add_u32 s47, s47, s49")
    k.e("s_lshl_b32 s48, s22, 3")
    k.e("s_add_u32 s48, s48, s23")
    k.e("s_lshl_b32 s48, s48, 8")
    k.e(f"s_mul_i32 s49, s45, {8*KS_W}")
    k.e("s_add_u32 s48, s48, s49")
    k.e("s_mul_i32 s48, s48, 1152")
    NST = 8
    AFB, CFB, ACC = 16, 136, 168

    def dma(st):
        slot = st % 2
        for q in range(8 if not EXP_NOHC else 0):
            k.e(f"s_add_u32 m0, s46, {slot*8192 + q*1024}")
            k.e("s_nop 0")
            k.vm(f"buffer_load_dwordx4 v{VD+q}, s[24:27], s47 offen lds", ("d", st))
        k.e(f"s_add_u32 s47, s47, {128*KS_S}")

    def aload(st):
        slot = st % 3
        for h in range(2 if not EXP_NOWD else 0):
            for T in range(5):
                rg = AFB + slot * 40 + (h * 5 + T) * 4
                if T < 4:
                    k.vm(f"buffer_load_dwordx4 v[{rg}:{rg+3}], v{9+2*h}, s[28:31], s48 offen offset:{256*T}", ("a", st))
                else:
                    k.vm(f"buffer_load_dwordx4 v[{rg}:{rg+3}], v{10+2*h}, s[28:31], s48 offen", ("a", st))
        k.e(f"s_add_u32 s48, s48, {9216*KS_S}")

    if CPF:
        k.e("v_and_b32 v248, 31, v0")
        k.e("v_bfe_u32 v249, v0, 5, 1")
        k.e("v_lshlrev_b32 v248, 7, v248")
        k.e("v_lshl_add_u32 v248, v249, 12, v248")
        k.e("s_and_b32 s50, s23, 3")
        k.e("s_lshl_b32 s50, s50, 4")
        k.e("s_lshl_b32 s51, s45, 2")
        k.e("s_add_u32 s50, s50, s51")
        k.e("s_lshl_b32 s51, s21, 6")
        k.e("s_add_u32 s50, s50, s51")
        k.e("s_lshl_b32 s50, s50, 12")
        if CPF == 2:
            dma(0); aload(0)
        k.vm("buffer_load_dword v15, v248, s[24:27], s50 offen", "pf")
        k.e("s_add_u32 s50, s50, 8192")
        k.vm("buffer_load_dword v15, v248, s[24:27], s50 offen", "pf")
    t1_pre(k, 32)
    if CPF != 2:
        dma(0); aload(0)
    dma(1); aload(1)
    for a in range(80):
        k.e(f"v_mov_b32 v{ACC+a}, 0")
    aload(2)
    for st in range(NST):
        k.wait_vm(("d", st))
        if st == 0:
            k.stamp(2)
        for h in range(2):
            for u in range(4):
                rg = CFB + (h * 4 + u) * 4
                k.ds(f"ds_read_b128 v[{rg}:{rg+3}], v{13+h} offset:{(st%2)*8192 + u*2048}", ("c", st, h))
        k.wait_ds(("c", st, 1))
        if st + 2 < NST:
            dma(st + 2)
        k.wait_vm(("a", st))
        if BAR:
            k.e("s_barrier")
        for h in range(2 if not EXP_NOMFMA else 0):
            for T in range(5):
                af = AFB + (st % 3) * 40 + (h * 5 + T) * 4
                for u in range(4):
                    cf = CFB + (h * 4 + u) * 4
                    acc = ACC + (T * 4 + u) * 4
                    k.e(f"v_mfma_f32_16x16x32_bf16 v[{acc}:{acc+3}], v[{af}:{af+3}], v[{cf}:{cf+3}], v[{acc}:{acc+3}]")
        if st + 3 < NST:
            aload(st + 3)
    k.stamp(3)
    t1_epilogue(k, name, "S", ACC, 32, 36, 40, None)
    k.stamp(4)
    if PROF:
        k.wait_vm_all()
    k.stamp(5)
    k.stamp_store(2, 18, 20)
    k.label(Lend)
    return k, 256, 512, 8 * REG


def gen_kd():
    name = "kd"
    k = Kern(name, 256, 0, 80)
    Lend = name + "_end"
    k.e("s_cmp_ge_u32 s2, 256")
    k.e(f"s_cbranch_scc1 {Lend}")
    k.e("s_load_dwordx2 s[8:9], s[0:1], 72")
    k.e("s_load_dwordx2 s[18:19], s[0:1], 88")
    t1_decode(k, MAPD)
    k.e("s_waitcnt lgkmcnt(0)")
    k.stamp(0)
    k.srd_ws(24, 18, "HC")
    k.srd_ws(28, 18, "WD")
    srd_ws_s(k, 32, 18, 70, XC_SZ)
    srd_ws_s(k, 36, 18, 71, XC_SZ)
    srd_ws_s(k, 40, 18, 72, ST_SZ)
    k.e("s_cmp_lg_u32 s73, 0")
    k.e("s_cselect_b32 s36, s8, s36")
    k.e("s_cselect_b32 s37, s9, s37")
    k.e("s_and_b32 s37, s37, 0xffff")
    k.e("v_and_b32 v11, 15, v2")
    k.e("v_lshrrev_b32 v12, 4, v2")
    k.e("v_mul_u32_u24 v3, 1152, v12")
    k.e("v_lshl_add_u32 v4, v11, 4, v3")
    k.e("v_and_b32 v8, 7, v11")
    k.e("v_lshl_add_u32 v5, v8, 4, v3")
    k.e("v_add_u32 v5, 1024, v5")
    k.e("v_lshlrev_b32 v3, 9, v12")
    k.e("v_lshl_add_u32 v6, v11, 4, v3")
    k.e(f"v_add_u32 v7, {294912-EXP_PAD}, v6")
    k.e(f"s_mul_i32 s47, s21, {589824-2*EXP_PAD}")
    k.e(f"s_mul_i32 s49, s20, {KD_W*2048}")
    k.e("s_add_u32 s47, s47, s49")
    k.e("s_mul_i32 s48, s23, 576")
    k.e(f"s_mul_i32 s49, s20, {KD_W*4}")
    k.e("s_add_u32 s48, s48, s49")
    k.e("s_mul_i32 s48, s48, 1152")
    if EXP_PAD:
        k.e(f"s_mul_i32 s49, s23, {EXP_PAD}")
        k.e("s_sub_u32 s48, s48, s49")
    NST, RING = 18, 4
    FB, ACC = 16, 160

    def issue(st):
        base = FB + (st % RING) * 36
        for T in range(5 if not EXP_NOWD else 0):
            rg = base + T * 4
            if T < 4:
                k.vm(f"buffer_load_dwordx4 v[{rg}:{rg+3}], v4, s[28:31], s48 offen offset:{256*T}", st)
            else:
                k.vm(f"buffer_load_dwordx4 v[{rg}:{rg+3}], v5, s[28:31], s48 offen", st)
        for u in range(4 if not EXP_NOHC else 0):
            rg = base + (5 + u) * 4
            k.vm(f"buffer_load_dwordx4 v[{rg}:{rg+3}], v{6+(u>>1)}, s[24:27], s47 offen offset:{256*(u&1)}", st)
        k.e(f"s_add_u32 s47, s47, {2048*KD_S}")
        k.e(f"s_add_u32 s48, s48, {4608*KD_S}")

    t1_pre(k, 32)
    issue(0); issue(1)
    for a in range(80):
        k.e(f"v_mov_b32 v{ACC+a}, 0")
    issue(2)
    for st in range(NST):
        if st + RING - 1 < NST:
            issue(st + RING - 1)
        k.wait_vm(st)
        if BAR and st % BAR == BAR - 1:
            k.e("s_barrier")
        if st == 0:
            k.stamp(2)
        base = FB + (st % RING) * 36
        for T in range(5 if not EXP_NOMFMA else 0):
            ra = base + T * 4
            for u in range(4):
                rb = base + (5 + u) * 4
                acc = ACC + (T * 4 + u) * 4
                k.e(f"v_mfma_f32_16x16x32_bf16 v[{acc}:{acc+3}], v[{ra}:{ra+3}], v[{rb}:{rb+3}], v[{acc}:{acc+3}]")
    k.stamp(3)
    t1_epilogue(k, name, "D", ACC, 32, 36, 40, 73)
    k.stamp(4)
    if PROF:
        k.wait_vm_all()
    k.stamp(5)
    k.stamp_store(4, 18, 20)
    k.label(Lend)
    return k, 256, 512, 8 * REG


def gen_kg():
    name = "kg"
    k = Kern(name, 256, 0, 80)
    Lend = name + "_end"
    STG = 36864
    EXT = 4 * STG
    k.e("s_cmp_ge_u32 s2, 256")
    k.e(f"s_cbranch_scc1 {Lend}")
    k.e("s_load_dwordx2 s[18:19], s[0:1], 88")
    k.e("v_lshrrev_b32 v1, 6, v0")
    k.e("v_and_b32 v2, 63, v0")
    k.e("v_readfirstlane_b32 s20, v1")
    k.e("s_and_b32 s22, s2, 7")
    k.e("s_lshr_b32 s23, s2, 3")
    if MAPG == 0:
        k.e("s_and_b32 s21, s23, 7")
        k.e("s_lshr_b32 s23, s23, 3")
        k.e("s_lshl_b32 s22, s22, 2")
        k.e("s_add_u32 s23, s23, s22")
    elif MAPG == 1:
        k.e("s_mov_b32 s21, s22")
    else:
        k.e("s_and_b32 s21, s22, 6")
        k.e("s_and_b32 s44, s23, 1")
        k.e("s_add_u32 s21, s21, s44")
        k.e("s_and_b32 s22, s22, 1")
        k.e("s_lshl_b32 s22, s22, 4")
        k.e("s_lshr_b32 s23, s23, 1")
        k.e("s_add_u32 s23, s23, s22")
    k.e("s_lshl_b32 s21, s21, 3")
    k.e("s_add_u32 s21, s21, s20")
    k.e("s_waitcnt lgkmcnt(0)")
    k.stamp(0)
    k.srd_ws(24, 18, "WGU")
    srd_ws_s(k, 28, 18, 70, XC_SZ)
    srd_ws_s(k, 32, 18, 71, ST_SZ)
    k.srd_ws(40, 18, "HC")
    k.e("v_lshlrev_b32 v3, 4, v2")
    k.e(f"s_mul_i32 s44, s23, {WGU_CB}")
    k.e("s_mul_i32 s45, s20, 4608")
    k.e("s_add_u32 s43+1, s44, s45".replace("s43+1", "s50"))
    k.e("s_mul_i32 s46, s21, 36864")
    k.e("s_mul_i32 s52, s20, 1152")
    k.e(f"s_add_u32 s51, s44, {36*9216}")
    k.e("s_add_u32 s51, s51, s52")
    NST = 9
    ACC = 112
    BFB = 16
    AFB = 80
    XB = 104
    NF, DEP = 6, 4
    for s_ in range(5):
        if s_ == 0:
            k.e("v_mov_b32 v4, v3")
        else:
            k.e(f"v_add_u32 v{4+s_}, {s_*STG}, v3")

    pend = []

    def dma_ops(st_):
        slot = st_ % 4
        ops = []
        for e_ in range(4):
            def f(e_=e_):
                k.e(f"s_add_u32 m0, s45, {slot*STG}")
                k.e(f"s_add_u32 s47, s50, {st_*STG}")
                k.vm(f"buffer_load_dwordx4 v3, s[24:27], s47 offen offset:{e_*1024} lds", ("d", st_))
            ops.append(f)
        def f5():
            k.e(f"s_add_u32 m0, s45, {slot*STG + 4096}")
            k.e(f"s_add_u32 s47, s50, {st_*STG + 4096}")
            k.e("s_mov_b32 exec_hi, 0")
            k.vm("buffer_load_dwordx4 v3, s[24:27], s47 offen lds", ("d", st_))
            k.e("s_mov_b64 exec, -1")
        ops.append(f5)
        return ops

    def ext_ops():
        def f1():
            k.e(f"s_add_u32 m0, s52, {EXT}")
            k.e("s_nop 0")
            k.vm("buffer_load_dwordx4 v3, s[24:27], s51 offen lds", ("d", "x"))
        def f2():
            k.e(f"s_add_u32 m0, s52, {EXT}")
            k.e("s_mov_b64 exec, 0xff")
            k.vm("buffer_load_dwordx4 v3, s[24:27], s51 offen offset:1024 lds", ("d", "x"))
            k.e("s_mov_b64 exec, -1")
        return [f1, f2]

    def b_ops(st_):
        ops = []
        for j in range(4):
            def f(j=j):
                rg = BFB + (st_ % 4) * 16 + j * 4
                k.e(f"s_add_u32 s47, s46, {st_*4096}")
                k.vm(f"buffer_load_dwordx4 v[{rg}:{rg+3}], v3, s[28:31], s47 offen offset:{j*1024}", ("b", st_))
            ops.append(f)
        return ops

    STB = 64

    for f in dma_ops(0) + b_ops(0) + dma_ops(1):
        f()
    k.e("v_and_b32 v9, 31, v2")
    k.e("v_lshrrev_b32 v10, 5, v2")
    k.e("v_lshlrev_b32 v10, 17, v10")
    k.e("v_lshl_add_u32 v9, v9, 3, v10")
    k.e("s_lshl_b32 s53, s21, 8")
    for a in range(144):
        k.e(f"v_mov_b32 v{ACC+a}, 0")

    def st_ops():
        ops = []
        for i in range(8):
            def f(i=i):
                k.e(f"s_add_u32 s57, s53, {i*16384}")
                k.vm(f"buffer_load_dwordx2 v[{STB+2*i}:{STB+2*i+1}], v9, s[32:35], s57 offen", "st")
            ops.append(f)
        return ops

    def st_finish():
        k.wait_vm("st")
        stats_finish(k, STB, 12, 10, 13, 14, 15)
        k.e("v_rcp_f32 v11, v10")
        k.e("v_xor_b32 v12, 0x80000000, v12")
        k.e("v_mul_f32 v11, 0xbfb8aa3b, v11")
        k.e("v_lshrrev_b32 v13, 16, v12")
        k.e("v_or_b32 v14, v12, v13")
        k.e(f"v_mov_b32 v{XB}, v14")
        k.e(f"v_mov_b32 v{XB+1}, v13")
        k.e(f"v_mov_b32 v{XB+2}, v14")
        k.e(f"v_mov_b32 v{XB+3}, v13")
    k.stamp(1)
    k.wait_vm(("d", 0))
    k.e("s_barrier")
    k.stamp(2)
    pend += b_ops(1) + dma_ops(2) + st_ops() + b_ops(2) + dma_ops(3) + ext_ops()

    seq = []
    for st_ in range(7):
        for kk in range(4):
            for ft in range(9):
                seq.append((st_, kk, ft))
    NMAIN = len(seq)
    for ft in range(9):
        for st_ in (7, 8):
            for kk in range(4):
                seq.append((st_, kk, ft))
        seq.append(("x", 0, ft))
    total = len(seq)

    def aread(m):
        st_, kk, ft = seq[m]
        rg = AFB + (m % NF) * 4
        if st_ == "x":
            k.ds(f"ds_read_b128 v[{rg}:{rg+3}], v8 offset:{ft*1024}", m)
        else:
            k.ds(f"ds_read_b128 v[{rg}:{rg+3}], v{4 + st_ % 4} offset:{(kk*9+ft)*1024}", m)

    def stage_sync(st_):
        while pend:
            pend.pop(0)()
        if st_ == 7:
            k.wait_vm([("d", 7), ("d", 8), ("d", "x")])
        else:
            k.wait_vm(("d", st_))
        k.e("s_barrier")
        if st_ == 1:
            st_finish()
        if st_ >= 2 and st_ + 2 < NST:
            pend.extend(dma_ops(st_ + 2))
        if st_ >= 1 and st_ + 2 < NST:
            pend.extend(b_ops(st_ + 2))

    k.e("s_mul_i32 s48, s21, 294912")
    k.e("s_mul_i32 s49, s23, 9216")
    k.e("s_add_u32 s48, s48, s49")

    def epi(ft):
        a = ACC + ft * 16
        t = 32 + (ft % 2) * 12
        ins = []
        for j in range(8):
            ins.append(f"v_mul_f32 v{t+j}, v{a+j}, v11")
        for j in range(8):
            ins.append(f"v_exp_f32 v{t+j}, v{t+j}")
        for j in range(8):
            ins.append(f"v_fma_f32 v{t+j}, v{t+j}, v10, v10")
        for j in range(8):
            ins.append(f"v_rcp_f32 v{t+j}, v{t+j}")
        for j in range(8):
            ins.append(f"v_mul_f32 v{t+j}, v{t+j}, v{a+8+j}")
        for j in range(4):
            ins.append(f"v_cvt_pk_bf16_f32 v{t+8+j}, v{t+2*j}, v{t+2*j+1}")
        ins.append(("store", t + 8, ft))
        return ins

    def emit_epi(ins):
        if isinstance(ins, tuple):
            _, rg, ft = ins
            k.vm(f"buffer_store_dwordx4 v[{rg}:{rg+3}], v3, s[40:43], s48 offen {STPG}", ("o", ft))
            k.e("s_add_u32 s48, s48, 1024")
        else:
            k.e(ins)

    for m in range(DEP):
        aread(m)
    epq = []
    for m in range(total):
        nxt = m + DEP
        if nxt < total:
            if nxt < NMAIN and nxt % 36 == 0:
                stage_sync(nxt // 36)
            if nxt == NMAIN:
                stage_sync(7)
            aread(nxt)
        st_, kk, ft = seq[m]
        if m < NMAIN:
            if m % 36 == 0:
                k.wait_vm(("b", st_))
        elif m == NMAIN:
            k.wait_vm([("b", 7), ("b", 8)])
            k.stamp(3)
        k.wait_ds(m)
        af = AFB + (m % NF) * 4
        bf = XB if st_ == "x" else BFB + (st_ % 4) * 16 + kk * 4
        acc = ACC + ft * 16
        k.e(f"v_mfma_f32_32x32x16_bf16 v[{acc}:{acc+15}], v[{af}:{af+3}], v[{bf}:{bf+3}], v[{acc}:{acc+15}]")
        if pend and (m % 3 == 2 or m < 36):
            pend.pop(0)()
        if m >= NMAIN:
            r = (m - NMAIN) % 9
            if r == 8:
                while epq:
                    emit_epi(epq.pop(0))
                epq = epi(ft)
            elif r >= 3:
                for _ in range(9):
                    if epq:
                        emit_epi(epq.pop(0))
    k.e("s_nop 15")
    while epq:
        emit_epi(epq.pop(0))
    k.stamp(4)
    if PROF:
        k.wait_vm_all()
    k.stamp(5)
    k.stamp_store(3, 18, 20)
    k.label(Lend)
    return k, 256, 512, 4 * STG + 9216


def build():
    def mv(*pairs):
        return [f"s_mov_b32 s{r}, {v}" for r, v in pairs]
    X = lambda i: WS[f"XC{i}"][0]
    T = lambda i: WS[f"ST{i}"][0]
    kh1 = gen_kh_full(True)
    kh = gen_kh_full(False); ks = gen_ks(); kg = gen_kg(); kd = gen_kd()
    ent = {
        "kh1": [("kh1_kernel", [])],
        "kh": [("kh2_kernel", mv((70, X(2)), (71, T(2))))],
        "ks": [("ks1_kernel", mv((70, X(0)), (71, X(1)), (72, T(1)))), ("ks2_kernel", mv((70, X(2)), (71, X(3)), (72, T(3))))],
        "kg": [("kg1_kernel", mv((70, X(1)), (71, T(1)))), ("kg2_kernel", mv((70, X(3)), (71, T(3))))],
        "kd": [("kd1_kernel", mv((70, X(1)), (71, X(2)), (72, T(2)), (73, 0))), ("kd2_kernel", mv((70, X(3)), (71, X(2)), (72, T(2)), (73, 1)))],
    }
    if PROF:
        idx = {"kh1_kernel": 0, "ks1_kernel": 1, "kg1_kernel": 2, "kd1_kernel": 3, "kh2_kernel": 4, "ks2_kernel": 5, "kg2_kernel": 6, "kd2_kernel": 7}
        for kk_, lst in ent.items():
            for nm, ins in lst:
                ins.append(f"s_mov_b32 s74, {idx[nm]*512*256}")
    order = [("kh1_kernel", kh1), ("ks1_kernel", ks), ("kg1_kernel", kg), ("kd1_kernel", kd),
             ("kh2_kernel", kh), ("ks2_kernel", ks), ("kg2_kernel", kg), ("kd2_kernel", kd)]
    head = ["; generated by dev/gen3.py -- FNet/GLU interleaved layers, launch list"]
    for nm, (k, grid, block, lds) in order:
        head.append(f"; @launch kernel={nm} grid=({grid},1,1) block=({block},1,1) lds={lds}")
    out = head + ['.amdgcn_target "amdgcn-amd-amdhsa--gfx950"', ".text"]
    descs = []
    for kk_ in (kh1, kh, ks, kg, kd):
        t, ds_ = ktext(kk_[0], ent[kk_[0].name])
        out.append(t); descs += ds_
    out.append('.section .rodata,"a"')
    for d in descs:
        out.append(".p2align 6")
        out.append(d)
    return "\n".join(out) + "\n"


if __name__ == "__main__":
    path = sys.argv[1] if len(sys.argv) > 1 else "interleave_layers__spectral_fnet__glu_gated_glu__prompt.s"
    open(path, "w").write(build())
    print("wrote", path, "ws bytes", WS_TOTAL)
```

```python
import sys

S, D, F = 2048, 576, 4608
import os
PROF = bool(int(os.environ.get("PROF", "0")))
NW_T1 = 8

XC_SZ = S * D * 2
ST_SZ = S * 16 * 2 * 4
AB_SZ = 2 * 8 * 256 * 72 * 16
HC_SZ = 64 * 576 * 32 * 16
WGU_SZ = 32 * 37 * 9 * 1024
WGU_CB = 37 * 9216
WD_SZ = 8 * 576 * 72 * 16
CS_SZ = 288 * 2 * 2 * 8 * 4
RS_SZ = 2 * 8 * 80 * 4


def _al(x, a=4096):
    return (x + a - 1) // a * a


_off = 0
WS = {}
for name, sz in [("XC0", XC_SZ), ("XC1", XC_SZ), ("XC2", XC_SZ), ("XC3", XC_SZ),
                 ("ST0", ST_SZ), ("ST1", ST_SZ), ("ST2", ST_SZ), ("ST3", ST_SZ),
                 ("AB", AB_SZ), ("HC", HC_SZ), ("WGU", WGU_SZ), ("WD", WD_SZ),
                 ("CS", CS_SZ), ("RS", RS_SZ), ("DBG", 16*512*256)]:
    WS[name] = (_off, sz)
    _off += _al(sz + 4096)
WS_TOTAL = _off

KA = dict(x=0, seq_re=8, seq_im=16, hid_re=24, hid_im=32, bx=40, wg=48, wu=56, wd=64, out=72, dbg=80, ws=88)


class Kern:
    def __init__(self, name, nvgpr, nagpr=0, nsgpr=100):
        self.name = name
        self.L = []
        self.vq = []
        self.lq = []
        self.nvgpr = nvgpr
        self.nagpr = nagpr
        self.nsgpr = nsgpr
        self.lab = 0

    def e(self, s):
        self.L.append("    " + s)

    def c(self, s):
        self.L.append("    ; " + s)

    def label(self, s):
        self.L.append(s + ":")

    def newlabel(self, p="L"):
        self.lab += 1
        return f"{self.name}_{p}{self.lab}"

    def vm(self, s, tag):
        self.e(s)
        self.vq.append(tag)
        assert len(self.vq) <= 63, f"too many vmem outstanding in {self.name}"

    def wait_vm(self, tags):
        if not isinstance(tags, (list, set)):
            tags = [tags]
        idx = -1
        for i, t in enumerate(self.vq):
            if t in tags:
                idx = i
        if idx < 0:
            return
        n = len(self.vq) - 1 - idx
        self.e(f"s_waitcnt vmcnt({n})")
        self.vq = self.vq[idx + 1:]

    def wait_vm_all(self):
        self.e("s_waitcnt vmcnt(0)")
        self.vq = []

    def ds(self, s, tag):
        self.e(s)
        self.lq.append(tag)

    def wait_ds(self, tags):
        if not isinstance(tags, (list, set)):
            tags = [tags]
        idx = -1
        for i, t in enumerate(self.lq):
            if t in tags:
                idx = i
        if idx < 0:
            return
        n = len(self.lq) - 1 - idx
        assert n <= 15
        self.e(f"s_waitcnt lgkmcnt({n})")
        self.lq = self.lq[idx + 1:]

    def wait_ds_all(self):
        self.e("s_waitcnt lgkmcnt(0)")
        self.lq = []

    def stamp(self, i):
        if not PROF:
            return
        self.e("s_waitcnt lgkmcnt(0)")
        self.lq = []
        self.e(f"s_memtime s[{80+2*i}:{81+2*i}]")
        if i == 0:
            self.e("s_memrealtime s[94:95]")
        self.e("s_waitcnt lgkmcnt(0)")
        self.nst = max(getattr(self, "nst", 0), i + 1)

    def stamp_store(self, kidx, wsbase, swave):
        if not PROF:
            return
        self.e("s_mov_b64 exec, -1")
        self.e("s_memrealtime s[96:97]")
        self.srd_ws(76, wsbase, "DBG")
        self.e("s_waitcnt lgkmcnt(0)")
        self.e(f"s_lshl_b32 s98, s2, 8")
        self.e(f"s_lshl_b32 s99, s{swave}, 5")
        self.e("s_add_u32 s98, s98, s99")
        self.e("s_add_u32 s98, s98, s74")
        self.e("v_mov_b32 v1, 0")
        for i in range(self.nst):
            self.e(f"v_mov_b32 v0, s{80+2*i}")
            self.e(f"buffer_store_dword v0, v1, s[76:79], s98 offen offset:{4*i}")
        self.e("v_mov_b32 v0, s96")
        self.e(f"buffer_store_dword v0, v1, s[76:79], s98 offen offset:28")
        self.e("v_mov_b32 v0, s94")
        self.e(f"buffer_store_dword v0, v1, s[76:79], s98 offen offset:24")

    def srd_ptr(self, d, base, nbytes):
        self.e(f"s_mov_b32 s{d}, s{base}")
        self.e(f"s_and_b32 s{d+1}, s{base+1}, 0xffff")
        self.e(f"s_mov_b32 s{d+2}, {nbytes}")
        self.e(f"s_mov_b32 s{d+3}, 0x00020000")

    def srd_ws(self, d, wsbase, region):
        off, sz = WS[region]
        self.e(f"s_add_u32 s{d}, s{wsbase}, {off}")
        self.e(f"s_addc_u32 s{d+1}, s{wsbase+1}, 0")
        self.e(f"s_and_b32 s{d+1}, s{d+1}, 0xffff")
        self.e(f"s_mov_b32 s{d+2}, {sz}")
        self.e(f"s_mov_b32 s{d+3}, 0x00020000")

    def text(self):
        tot = self.nvgpr if self.nagpr == 0 else (self.nvgpr + 3) // 4 * 4 + self.nagpr
        acc = (self.nvgpr + 3) // 4 * 4
        out = [f".globl {self.name}", ".p2align 8", f".type {self.name},@function", f"{self.name}:"]
        out += self.L
        out += ["    s_endpgm"]
        desc = [f".amdhsa_kernel {self.name}",
                f"  .amdhsa_next_free_vgpr {tot}",
                f"  .amdhsa_next_free_sgpr {100 if PROF else self.nsgpr}",
                f"  .amdhsa_accum_offset {acc}",
                "  .amdhsa_group_segment_fixed_size 0",
                "  .amdhsa_kernarg_size 96",
                "  .amdhsa_user_sgpr_count 2",
                "  .amdhsa_user_sgpr_kernarg_segment_ptr 1",
                "  .amdhsa_system_sgpr_workgroup_id_x 1",
                ".end_amdhsa_kernel"]
        return "\n".join(out), "\n".join(desc)


def R(kind, i, n=1):
    if n == 1:
        return f"{kind}{i}"
    return f"{kind}[{i}:{i+n-1}]"


def unpack_sum(k, src, lo, hi, sacc, qacc):
    k.e(f"v_lshlrev_b32 v{lo}, 16, v{src}")
    k.e(f"v_and_b32 v{hi}, 0xffff0000, v{src}")
    k.e(f"v_add_f32 v{sacc}, v{sacc}, v{lo}")
    if qacc is not None:
        k.e(f"v_fmac_f32 v{qacc}, v{lo}, v{lo}")
    k.e(f"v_add_f32 v{sacc}, v{sacc}, v{hi}")
    if qacc is not None:
        k.e(f"v_fmac_f32 v{qacc}, v{hi}, v{hi}")


def xlane_add(k, val, tmp, addr, lane, mask):
    k.e(f"v_xor_b32 v{addr}, {mask}, v{lane}")
    k.e(f"v_lshlrev_b32 v{addr}, 2, v{addr}")
    k.e(f"ds_bpermute_b32 v{tmp}, v{addr}, v{val}")
    k.e("s_waitcnt lgkmcnt(0)")
    k.e(f"v_add_f32 v{val}, v{val}, v{tmp}")


def slotmap_v(k, dd, out, t0, t1):
    k.e(f"v_and_b32 v{out}, 0x23, v{dd}")
    k.e(f"v_bfe_u32 v{t0}, v{dd}, 2, 1")
    k.e(f"v_lshl_or_b32 v{out}, v{t0}, 4, v{out}")
    k.e(f"v_bfe_u32 v{t0}, v{dd}, 3, 2")
    k.e(f"v_lshl_or_b32 v{out}, v{t0}, 2, v{out}")
    k.e(f"v_cmp_gt_u32 vcc, 64, v{dd}")
    k.e("s_nop 1")
    k.e(f"v_cndmask_b32 v{out}, v{dd}, v{out}, vcc")


NA_, NB_, NC_, ND_ = 64, 36, 144, 144


def gen_k0():
    k = Kern("k0_kernel", 64, 0, 64)
    total = NA_ + NB_ + NC_ + ND_
    Lend = "k0_end"
    k.e(f"s_cmp_ge_u32 s2, {total}")
    k.e(f"s_cbranch_scc1 {Lend}")
    k.e("s_load_dwordx2 s[4:5], s[0:1], 0")
    k.e("s_load_dwordx4 s[8:11], s[0:1], 24")
    k.e("s_load_dwordx4 s[12:15], s[0:1], 48")
    k.e("s_load_dwordx2 s[16:17], s[0:1], 64")
    k.e("s_load_dwordx2 s[18:19], s[0:1], 88")
    k.e("v_lshrrev_b32 v1, 6, v0")
    k.e("v_and_b32 v2, 63, v0")
    k.e("v_readfirstlane_b32 s20, v1")
    k.e("s_waitcnt lgkmcnt(0)")
    k.e(f"s_cmp_lt_u32 s2, {NC_}")
    k.e("s_cbranch_scc1 k0_roleC")
    k.e(f"s_cmp_lt_u32 s2, {NC_ + ND_}")
    k.e("s_cbranch_scc1 k0_roleD")
    k.e(f"s_cmp_lt_u32 s2, {NC_ + ND_ + NA_}")
    k.e("s_cbranch_scc1 k0_roleA")
    k.e("s_branch k0_roleB")

    k.label("k0_roleA")
    k.e(f"s_sub_u32 s21, s2, {NC_ + ND_}")
    k.srd_ptr(24, 4, XC_SZ)
    k.srd_ws(28, 18, "XC0")
    k.srd_ws(32, 18, "ST0")
    k.e("v_and_b32 v3, 31, v0")
    k.e("v_lshrrev_b32 v4, 5, v0")
    k.e("v_and_b32 v5, 3, v3")
    k.e("v_bfe_u32 v6, v3, 2, 2")
    k.e("v_lshl_or_b32 v5, v6, 3, v5")
    k.e("v_bfe_u32 v6, v3, 4, 1")
    k.e("v_lshl_or_b32 v5, v6, 2, v5")
    k.e("s_movk_i32 s22, 1152")
    k.e("v_mul_lo_u32 v5, v5, s22")
    k.e("v_mul_u32_u24 v6, 144, v4")
    k.e("v_add_u32 v5, v5, v6")
    k.e("s_mul_i32 s23, s21, 36864")
    for it in range(9):
        k.e(f"buffer_load_dwordx4 v[{16+4*it}:{19+4*it}], v5, s[24:27], s23 offen offset:{16*it}")
    k.e("v_mul_u32_u24 v6, 4608, v4")
    k.e("v_lshl_add_u32 v6, v3, 4, v6")
    k.e("v_add_u32 v7, 2048, v6")
    k.e("v_mov_b32 v8, 0")
    k.e("v_mov_b32 v9, 0")
    k.e("s_waitcnt vmcnt(0)")
    for it in range(9):
        vo, im = (6, it * 512) if it < 4 else (7, (it - 4) * 512)
        k.e(f"buffer_store_dwordx4 v[{16+4*it}:{19+4*it}], v{vo}, s[28:31], s23 offen offset:{im}")
    for r in range(36):
        unpack_sum(k, 16 + r, 10, 11, 8, 9)
    k.e("v_lshlrev_b32 v12, 3, v3")
    k.e("v_lshl_add_u32 v12, v4, 15, v12")
    k.e("s_lshl_b32 s23, s21, 8")
    k.e("v_mov_b32 v10, 0")
    k.e("v_mov_b32 v11, 0")
    k.e("buffer_store_dwordx2 v[8:9], v12, s[32:35], s23 offen")
    k.e("v_add_u32 v12, 16384, v12")
    k.e("buffer_store_dwordx2 v[10:11], v12, s[32:35], s23 offen")
    k.e(f"s_branch {Lend}")

    k.label("k0_roleB")
    k.e(f"s_sub_u32 s21, s2, {NC_ + ND_ + NA_}")
    k.e("s_cmp_ge_u32 s21, 18")
    k.e("s_cselect_b32 s22, 1, 0")
    k.e("s_cselect_b32 s4, s10, s8")
    k.e("s_cselect_b32 s5, s11, s9")
    k.e("s_mul_i32 s23, s22, 18")
    k.e("s_sub_u32 s21, s21, s23")
    k.srd_ptr(24, 4, D * D * 2)
    k.srd_ws(28, 18, "RS")
    k.e("s_lshl_b32 s23, s21, 5")
    k.e("s_lshl_b32 s36, s20, 3")
    k.e("s_add_u32 s23, s23, s36")
    k.e("v_lshrrev_b32 v3, 3, v2")
    k.e("v_add_u32 v3, s23, v3")
    k.e("v_and_b32 v4, 7, v2")
    k.e("s_movk_i32 s36, 1152")
    k.e("v_mul_lo_u32 v5, v3, s36")
    k.e("v_lshl_add_u32 v5, v4, 4, v5")
    for it in range(9):
        k.e(f"buffer_load_dwordx4 v[{16+4*it}:{19+4*it}], v5, s[24:27], 0 offen offset:{128*it}")
    k.e("v_mov_b32 v8, 0")
    k.e("s_waitcnt vmcnt(0)")
    for r in range(36):
        unpack_sum(k, 16 + r, 10, 11, 8, None)
    for m in (1, 2, 4):
        xlane_add(k, 8, 10, 11, 2, m)
    k.e("v_mul_u32_u24 v6, 911, v3")
    k.e("v_lshrrev_b32 v6, 16, v6")
    k.e("v_mul_u32_u24 v7, 72, v6")
    k.e("v_sub_u32 v7, v3, v7")
    slotmap_v(k, 7, 12, 13, 14)
    k.e("v_mul_u32_u24 v6, 80, v6")
    k.e("v_add_u32 v6, v6, v12")
    k.e("v_lshlrev_b32 v6, 2, v6")
    k.e("s_mul_i32 s23, s22, 2560")
    k.e("v_cmp_eq_u32 vcc, 0, v4")
    k.e("s_and_saveexec_b64 s[38:39], vcc")
    k.e("buffer_store_dword v8, v6, s[28:31], s23 offen")
    k.e(f"s_branch {Lend}")

    k.label("k0_roleC")
    k.e("s_cmp_ge_u32 s2, 72")
    k.e("s_cselect_b32 s22, 1, 0")
    k.e("s_cselect_b32 s4, s14, s12")
    k.e("s_cselect_b32 s5, s15, s13")
    k.e("s_mul_i32 s23, s22, 72")
    k.e("s_sub_u32 s21, s2, s23")
    k.srd_ptr(24, 4, D * F * 2)
    k.srd_ws(28, 18, "WGU")
    k.srd_ws(32, 18, "CS")
    k.e("v_lshrrev_b32 v3, 3, v2")
    k.e("v_and_b32 v4, 7, v2")
    k.e("v_mul_u32_u24 v5, 9216, v3")
    k.e("v_lshl_add_u32 v5, v4, 4, v5")
    k.e("s_mul_i32 s36, s20, 73728")
    k.e("s_lshl_b32 s37, s21, 7")
    k.e("s_add_u32 s36, s36, s37")
    k.e("s_lshl_b32 s37, s20, 10")
    for i in range(18):
        k.e(f"s_add_u32 m0, s37, {4096*i}")
        k.e("s_nop 0")
        k.e("buffer_load_dwordx4 v5, s[24:27], s36 offen lds")
        k.e(f"s_add_u32 s36, s36, {4*73728}")
    k.e("v_lshrrev_b32 v3, 4, v2")
    k.e("v_and_b32 v4, 15, v2")
    k.e("v_bfe_u32 v6, v2, 2, 2")
    k.e("v_lshlrev_b32 v7, 10, v3")
    k.e("v_lshl_add_u32 v7, v6, 7, v7")
    k.e("v_and_b32 v6, 1, v2")
    k.e("v_lshl_add_u32 v7, v6, 4, v7")
    k.e("v_bfe_u32 v6, v2, 1, 1")
    k.e("v_lshl_add_u32 v7, v6, 3, v7")
    k.e("s_lshl_b32 s36, s20, 5")
    k.e("v_add_u32 v7, s36, v7")
    k.e("v_add_u32 v8, 0x8000, v7")
    k.e("s_lshl_b32 s36, s21, 2")
    k.e("s_add_u32 s36, s36, s20")
    k.e("s_mul_i32 s37, s36, 7282")
    k.e("s_lshr_b32 s37, s37, 16")
    k.e("s_mul_i32 s38, s37, 9")
    k.e("s_sub_u32 s38, s36, s38")
    k.e(f"s_mul_i32 s39, s37, {WGU_CB}")
    k.e("s_lshl_b32 s38, s38, 10")
    k.e("s_add_u32 s39, s39, s38")
    k.e("s_lshl_b32 s38, s22, 8")
    k.e("s_add_u32 s39, s39, s38")
    k.e("v_lshrrev_b32 v9, 1, v3")
    k.e("v_mul_u32_u24 v9, 9216, v9")
    k.e("v_and_b32 v6, 1, v3")
    k.e("v_lshl_add_u32 v9, v6, 9, v9")
    k.e("v_lshl_add_u32 v9, v4, 4, v9")
    k.e("v_mov_b32 v10, 0")
    k.e("s_waitcnt vmcnt(0)")
    k.e("s_barrier")
    for it in range(18):
        base, im = (7, it * 4096) if it < 8 else (8, (it - 8) * 4096)
        rg = 16 + 4 * (it % 8)
        k.e(f"ds_read_b64_tr_b16 v[{rg}:{rg+1}], v{base} offset:{im}")
        k.e(f"ds_read_b64_tr_b16 v[{rg+2}:{rg+3}], v{base} offset:{im+512}")
        k.e("s_waitcnt lgkmcnt(0)")
        k.e(f"buffer_store_dwordx4 v[{rg}:{rg+3}], v9, s[28:31], s39 offen")
        k.e(f"s_add_u32 s39, s39, 18432")
        for r in range(4):
            unpack_sum(k, rg + r, 11, 12, 10, None)
        if it % 8 == 7:
            k.e("s_waitcnt vmcnt(0)")
    xlane_add(k, 10, 11, 12, 2, 16)
    xlane_add(k, 10, 11, 12, 2, 32)
    k.e("v_cvt_pk_bf16_f32 v11, v10, v10")
    k.e("v_lshlrev_b32 v12, 16, v11")
    k.e("v_sub_f32 v13, v10, v12")
    k.e("v_cvt_pk_bf16_f32 v14, v13, v13")
    k.e("v_lshlrev_b32 v15, 16, v14")
    k.e("v_sub_f32 v13, v13, v15")
    k.e("v_cvt_pk_bf16_f32 v17, v13, v13")
    k.e("v_and_b32 v17, 0xffff, v17")
    k.e("v_and_b32 v16, 0xffff, v11")
    k.e("v_or_b32 v16, v16, v15")
    k.e("v_mov_b32 v18, 0")
    k.e("v_mov_b32 v19, 0")
    k.e("v_cmp_gt_u32 vcc, 16, v2")
    k.e("s_nop 1")
    k.e("v_cndmask_b32 v16, 0, v16, vcc")
    k.e("v_cndmask_b32 v17, 0, v17, vcc")
    k.e("v_lshlrev_b32 v11, 4, v4")
    k.e("v_lshl_add_u32 v11, v3, 9, v11")
    k.e("v_cmp_gt_u32 vcc, 32, v2")
    k.e("s_and_saveexec_b64 s[40:41], vcc")
    k.e("buffer_store_dwordx4 v[16:19], v11, s[28:31], s39 offen")
    k.e(f"s_branch {Lend}")

    k.label("k0_roleD")
    k.e(f"s_sub_u32 s21, s2, {NC_}")
    k.e("s_mul_i32 s22, s21, 7282")
    k.e("s_lshr_b32 s22, s22, 16")
    k.e("s_mul_i32 s23, s22, 9")
    k.e("s_sub_u32 s21, s21, s23")
    k.srd_ptr(24, 16, D * F * 2)
    k.srd_ws(28, 18, "WD")
    k.e("v_lshrrev_b32 v3, 3, v2")
    k.e("v_and_b32 v4, 7, v2")
    k.e("v_mul_u32_u24 v5, 1152, v3")
    k.e("v_lshl_add_u32 v5, v4, 4, v5")
    k.e(f"s_mul_i32 s36, s22, {288*1152}")
    k.e("s_mul_i32 s37, s20, 9216")
    k.e("s_add_u32 s36, s36, s37")
    k.e("s_lshl_b32 s37, s21, 7")
    k.e("s_add_u32 s36, s36, s37")
    k.e("s_lshl_b32 s37, s20, 10")
    for i in range(9):
        k.e(f"s_add_u32 m0, s37, {4096*i}")
        k.e("s_nop 0")
        k.e("buffer_load_dwordx4 v5, s[24:27], s36 offen lds")
        k.e(f"s_add_u32 s36, s36, {4*9216}")
    k.e("v_lshrrev_b32 v3, 4, v2")
    k.e("v_and_b32 v4, 15, v2")
    k.e("v_bfe_u32 v6, v2, 2, 2")
    k.e("v_lshlrev_b32 v7, 10, v3")
    k.e("v_lshl_add_u32 v7, v6, 7, v7")
    k.e("v_and_b32 v6, 3, v2")
    k.e("v_lshl_add_u32 v7, v6, 3, v7")
    k.e("s_lshl_b32 s36, s20, 5")
    k.e("v_add_u32 v7, s36, v7")
    k.e("s_lshl_b32 s36, s21, 6")
    k.e("s_lshl_b32 s37, s20, 4")
    k.e("s_add_u32 s36, s36, s37")
    k.e("v_add_u32 v8, s36, v4")
    k.e("v_mul_u32_u24 v9, 911, v8")
    k.e("v_lshrrev_b32 v9, 16, v9")
    k.e("v_mul_u32_u24 v10, 72, v9")
    k.e("v_sub_u32 v10, v8, v10")
    slotmap_v(k, 10, 11, 12, 13)
    k.e("s_mov_b32 s36, 663552")
    k.e("v_mul_lo_u32 v9, v9, s36")
    k.e("v_lshl_add_u32 v9, v11, 4, v9")
    k.e("v_mul_u32_u24 v12, 1152, v3")
    k.e("v_add_u32 v9, v9, v12")
    k.e(f"s_mul_i32 s39, s22, {36*1152}")
    k.e("s_waitcnt vmcnt(0)")
    k.e("s_barrier")
    for it in range(9):
        rg = 16 + 4 * it
        k.e(f"ds_read_b64_tr_b16 v[{rg}:{rg+1}], v7 offset:{it*4096}")
        k.e(f"ds_read_b64_tr_b16 v[{rg+2}:{rg+3}], v7 offset:{it*4096+512}")
    for it in range(9):
        rg = 16 + 4 * it
        k.e(f"s_waitcnt lgkmcnt({min(15, 2*(8-it))})")
        k.e(f"buffer_store_dwordx4 v[{rg}:{rg+3}], v9, s[28:31], s39 offen")
        k.e(f"s_add_u32 s39, s39, 4608")
    k.label(Lend)
    return k, total, 256, 73728


def srd_ws_s(k, d, wsbase, sreg, size):
    k.e(f"s_add_u32 s{d}, s{wsbase}, s{sreg}")
    k.e(f"s_addc_u32 s{d+1}, s{wsbase+1}, 0")
    k.e(f"s_and_b32 s{d+1}, s{d+1}, 0xffff")
    k.e(f"s_mov_b32 s{d+2}, {size}")
    k.e(f"s_mov_b32 s{d+3}, 0x00020000")


def ktext(k, entries):
    tot = k.nvgpr if k.nagpr == 0 else (k.nvgpr + 3) // 4 * 4 + k.nagpr
    acc = (k.nvgpr + 3) // 4 * 4
    out, descs = [], []
    for name, ins in entries:
        out += [f".globl {name}", ".p2align 8", f".type {name},@function", f"{name}:"]
        out += [" " + x for x in ins]
        out += [f" s_branch {k.name}_body"]
        descs.append("\n".join([f".amdhsa_kernel {name}",
                f"  .amdhsa_next_free_vgpr {tot}",
                f"  .amdhsa_next_free_sgpr {100 if PROF else k.nsgpr}",
                f"  .amdhsa_accum_offset {acc}",
                "  .amdhsa_group_segment_fixed_size 0",
                "  .amdhsa_kernarg_size 96",
                "  .amdhsa_user_sgpr_count 2",
                "  .amdhsa_user_sgpr_kernarg_segment_ptr 1",
                "  .amdhsa_system_sgpr_workgroup_id_x 1",
                ".end_amdhsa_kernel"]))
    out += [".p2align 6", f"{k.name}_body:"]
    out += [x.replace("    ", " ", 1) for x in k.L]
    out += [" s_endpgm"]
    return "\n".join(out), descs


def stats_load(k, base, vaddr, srd, soff, tag=None):
    for i in range(8):
        k.e(f"s_add_u32 s57, s{soff}, {i*16384}")
        ins = f"buffer_load_dwordx2 v[{base+2*i}:{base+2*i+1}], v{vaddr}, s[{srd}:{srd+3}], s57 offen"
        if tag is None:
            k.e(ins)
        else:
            k.vm(ins, tag)


def stats_finish(k, base, vm_, vsd, t0, t1, t2):
    for j in range(1, 8):
        k.e(f"v_add_f32 v{base}, v{base}, v{base+2*j}")
        k.e(f"v_add_f32 v{base+1}, v{base+1}, v{base+2*j+1}")
    k.e(f"v_mov_b32 v{base+2}, v{base}")
    k.e(f"v_mov_b32 v{base+3}, v{base+1}")
    k.e("s_nop 1")
    k.e(f"v_permlane32_swap_b32 v{base}, v{base+2}")
    k.e(f"v_permlane32_swap_b32 v{base+1}, v{base+3}")
    k.e("s_nop 1")
    k.e(f"v_add_f32 v{base}, v{base}, v{base+2}")
    k.e(f"v_add_f32 v{base+1}, v{base+1}, v{base+3}")
    stats_core(k, base, vm_, vsd, t0, t1, t2)


def stats_core(k, base, vm_, vsd, t0, t1, t2):
    k.e(f"v_mov_b32 v{t0}, 0x3ae38e39")
    k.e(f"v_mul_f32 v{t1}, v{base}, v{t0}")
    k.e(f"v_mul_f32 v{t2}, v{base+1}, v{t0}")
    k.e(f"v_fma_f32 v{t2}, -v{t1}, v{t1}, v{t2}")
    k.e(f"v_max_f32 v{t2}, 0, v{t2}")
    k.e(f"v_cvt_pk_bf16_f32 v{t0}, v{t1}, v{t2}")
    k.e(f"v_lshlrev_b32 v{vm_}, 16, v{t0}")
    k.e(f"v_and_b32 v{t2}, 0xffff0000, v{t0}")
    k.e(f"v_add_f32 v{t2}, 0x3727c5ac, v{t2}")
    k.e(f"v_cvt_pk_bf16_f32 v{t0}, v{t2}, v{t2}")
    k.e(f"v_lshlrev_b32 v{t2}, 16, v{t0}")
    k.e(f"v_sqrt_f32 v{t2}, v{t2}")
    k.e("s_nop 0")
    k.e(f"v_cvt_pk_bf16_f32 v{t0}, v{t2}, v{t2}")
    k.e(f"v_lshlrev_b32 v{vsd}, 16, v{t0}")


NPF = int(os.environ.get('NPF', '0'))
STP = os.environ.get("STP", "sc1")


def gen_kh_full(first):
    name = "kh1" if first else "kh"
    k = Kern(name, 256, 0, 92)
    Lend = name + "_end"
    LDS_W = 8 * 9216
    SCR = LDS_W + 1024
    total = 256
    RPK = 77824
    k.e(f"s_cmp_ge_u32 s2, {total}")
    k.e(f"s_cbranch_scc1 {Lend}")
    k.e("s_load_dwordx4 s[8:11], s[0:1], 24")
    k.e("s_load_dwordx2 s[18:19], s[0:1], 88")
    if first:
        k.e("s_load_dwordx2 s[6:7], s[0:1], 0")
        k.e("s_load_dwordx4 s[12:15], s[0:1], 48")
        k.e("s_load_dwordx2 s[16:17], s[0:1], 64")
        k.e("s_load_dwordx4 s[60:63], s[0:1], 8")
    k.e("v_lshrrev_b32 v1, 6, v0")
    k.e("v_and_b32 v2, 63, v0")
    k.e("v_readfirstlane_b32 s20, v1")
    k.e("s_and_b32 s21, s2, 7")
    k.e("s_lshr_b32 s22, s2, 3")
    k.e("s_lshl_b32 s21, s21, 1")
    k.e("s_and_b32 s23, s22, 1")
    k.e("s_add_u32 s21, s21, s23")
    k.e("s_mov_b32 s55, s21")
    k.e("s_lshr_b32 s22, s22, 1")
    k.e("s_mov_b32 s54, s22")
    k.e("s_and_b32 s23, s22, 7")
    k.e("s_lshr_b32 s22, s22, 3")
    k.e("s_lshl_b32 s21, s21, 2")
    k.e("s_add_u32 s21, s21, s20")
    k.e("s_waitcnt lgkmcnt(0)")
    k.stamp(0)
    if first:
        k.e("s_cmp_ge_u32 s20, 4")
        k.e(f"s_cbranch_scc1 {name}_rep")
    k.e("s_cmp_eq_u32 s22, 1")
    k.e("s_cselect_b32 s4, s10, s8")
    k.e("s_cselect_b32 s5, s11, s9")
    k.srd_ptr(24, 4, D * D * 2)
    if first:
        k.srd_ptr(28, 6, XC_SZ)
        k.srd_ws(32, 18, "XC0")
    else:
        srd_ws_s(k, 28, 18, 70, XC_SZ)
        srd_ws_s(k, 32, 18, 71, ST_SZ)
    k.srd_ws(36, 18, "RS")
    k.srd_ws(40, 18, "AB")
    k.e("v_lshrrev_b32 v3, 3, v2")
    k.e("v_and_b32 v4, 7, v2")
    k.e("v_lshrrev_b32 v5, 1, v3")
    k.e("v_xor_b32 v5, v5, v4")
    k.e("v_lshlrev_b32 v5, 4, v5")
    k.e("v_lshrrev_b32 v6, 2, v3")
    k.e("v_and_b32 v7, 3, v3")
    k.e("v_lshl_add_u32 v6, v6, 3, v7")
    k.e("v_mul_u32_u24 v6, 1152, v6")
    k.e("v_add_u32 v8, v6, v5")
    k.e("v_xor_b32 v7, 64, v5")
    k.e("v_add_u32 v9, v6, v7")
    k.e("v_mul_u32_u24 v6, 1152, v3")
    k.e("v_add_u32 v10, v6, v5")
    k.e("v_and_b32 v11, 15, v2")
    k.e("v_lshrrev_b32 v12, 4, v2")
    k.e("v_lshlrev_b32 v13, 9, v12")
    k.e("v_lshl_add_u32 v13, v11, 4, v13")
    k.e(f"s_mul_i32 s48, s23, {72*1152}")
    k.e("s_lshl_b32 s49, s20, 7")
    k.e("s_add_u32 s48, s48, s49")
    k.e("s_mul_i32 s49, s20, 9216")
    qc = lambda q: (32 * (q >> 2) + 16 * (q & 1) + 4 * ((q >> 1) & 1)) * 1152 if q < 8 else 64 * 1152

    def dma_kq(tag, track=True):
        for q in range(9):
            v = 8 + (q & 1) if q < 8 else 10
            k.e(f"s_add_u32 m0, s49, {1024*q}")
            k.e(f"s_add_u32 s50, s48, {qc(q)}")
            ins = f"buffer_load_dwordx4 v{v}, s[24:27], s50 offen lds"
            if track:
                k.vm(ins, tag)
            else:
                k.e(ins)
        k.e("s_add_u32 s48, s48, 512")
        k.e(f"s_add_u32 s49, s49, {4*9216}")

    AFR = 12
    AF = 16
    if first:
        k.e("v_lshrrev_b32 v14, 2, v11")
        k.e("v_and_b32 v15, 3, v11")
        k.e("v_lshl_add_u32 v14, v14, 3, v15")
        k.e("v_mul_u32_u24 v14, 1152, v14")
        k.e("v_lshl_add_u32 v14, v12, 4, v14")
        k.e("v_add_u32 v15, 4608, v14")
    k.e("s_mul_i32 s44, s21, 36864")
    k.e("s_mov_b32 s45, s44")
    k.e("s_mov_b32 s46, s44")

    def aload(kb):
        for u in range(2):
            rg = AF + ((kb % AFR) * 2 + u) * 4
            if first:
                k.vm(f"buffer_load_dwordx4 v[{rg}:{rg+3}], v{14+u}, s[28:31], s44 offen offset:{64*kb}", ("a", kb))
            else:
                if kb % 2 == 0 and kb > 0 and u == 0:
                    k.e("s_add_u32 s45, s45, 4096")
                k.vm(f"buffer_load_dwordx4 v[{rg}:{rg+3}], v13, s[28:31], s45 offen offset:{(kb%2)*2048 + u*256}", ("a", kb))

    dma_kq("w0")
    aload(0); aload(1)
    dma_kq("w1")
    APRE = 11 if first else 6
    for kb_ in range(2, APRE):
        aload(kb_)
    ACC = 152
    for a in range(60 if first else 40):
        k.e(f"v_mov_b32 v{ACC+a}, 0")
    ONE = 212
    if first:
        for a in range(4):
            k.e(f"v_mov_b32 v{ONE+a}, 0x3f803f80")
        for a in list(range(220, 228)) + list(range(248, 256)):
            k.e(f"v_mov_b32 v{a}, 0")
    k.e("v_lshrrev_b32 v1, 1, v11")
    k.e("v_xor_b32 v1, v1, v12")
    k.e("v_lshlrev_b32 v1, 4, v1")
    k.e("v_lshl_add_u32 v216, v11, 7, v1")
    k.e("v_xor_b32 v217, 64, v216")
    k.e(f"v_add_u32 v218, {5*9216}, v216")
    k.e(f"v_add_u32 v219, {5*9216}, v217")
    if not first:
        k.e("v_and_b32 v224, 31, v2")
        k.e("v_lshrrev_b32 v225, 5, v2")
        k.e("v_lshlrev_b32 v225, 17, v225")
        k.e("v_lshl_add_u32 v225, v224, 3, v225")
        k.e("s_lshl_b32 s53, s21, 8")
        k.e("s_mul_i32 s47, s54, 320")
        k.e("v_lshlrev_b32 v226, 2, v11")
    k.stamp(1)
    k.wait_vm("w0")
    k.e("s_barrier")
    k.stamp(2)
    sets = [112, 132]

    def bread(kb):
        kq, half = (kb >> 1) % 8, kb & 1
        base = 216 + half + (2 if kq >= 5 else 0)
        kq_ = kq - 5 if kq >= 5 else kq
        sb = sets[kb & 1]
        for T in range(5):
            k.ds(f"ds_read_b128 v[{sb+4*T}:{sb+4*T+3}], v{base} offset:{kq_*9216 + T*2048}", ("b", kb))
    bread(0)
    for kb in range(18):
        if kb == 7:
            k.wait_vm("w1")
            k.e("s_barrier")
            k.e("s_and_b32 s50, s20, 1")
            k.e("s_cmp_eq_u32 s50, 1")
            k.e("s_cselect_b64 vcc, -1, 0")
            k.e("v_cndmask_b32 v1, v8, v9, vcc")
            k.e("s_lshl_b32 s50, s50, 4")
            k.e("s_lshr_b32 s51, s20, 1")
            k.e("s_lshl_b32 s51, s51, 2")
            k.e("s_add_u32 s50, s50, s51")
            k.e("s_mul_i32 s50, s50, 1152")
            k.e(f"s_mul_i32 s48, s23, {72*1152}")
            k.e("s_add_u32 s48, s48, 1024")
            k.e("s_add_u32 s50, s50, s48")
            k.e("s_lshl_b32 s51, s20, 10")
            k.e("s_mov_b32 m0, s51")
            k.e("s_nop 0")
            k.vm("buffer_load_dwordx4 v1, s[24:27], s50 offen lds", "w2")
            k.e("s_add_u32 m0, s51, 4096")
            k.e(f"s_add_u32 s50, s50, {32*1152}")
            k.vm("buffer_load_dwordx4 v1, s[24:27], s50 offen lds", "w2")
            k.e("s_mov_b32 m0, 8192")
            k.e(f"s_add_u32 s50, s48, {64*1152}")
            k.e("s_lshl_b32 s51, s20, 4")
            k.e("s_mov_b64 exec, 0xffff")
            k.e("s_lshl_b64 exec, exec, s51")
            k.vm("buffer_load_dwordx4 v10, s[24:27], s50 offen lds", "w2")
            k.e("s_mov_b64 exec, -1")
        if kb == 15:
            k.wait_vm("w2")
            k.e("s_barrier")
        if kb + 1 < 18:
            bread(kb + 1)
        if kb + APRE < 18:
            aload(kb + APRE)
        if not first and kb == 14:
            stats_load(k, 16, 225, 32, 53, "st")
            for T in range(5):
                k.vm(f"buffer_load_dword v{192+4*T}, v226, s[36:39], s47 offen offset:{64*T}", "st")
        k.wait_vm(("a", kb))
        k.wait_ds(("b", kb))
        sb = sets[kb & 1]
        for u in range(2):
            af = AF + ((kb % AFR) * 2 + u) * 4
            for T in range(5):
                acc = ACC + (u * 5 + T) * 4
                k.e(f"v_mfma_f32_16x16x32_bf16 v[{acc}:{acc+3}], v[{af}:{af+3}], v[{sb+4*T}:{sb+4*T+3}], v[{acc}:{acc+3}]")
            if first:
                k.e(f"v_mfma_f32_16x16x32_bf16 v[{248+4*u}:{251+4*u}], v[{af}:{af+3}], v[{ONE}:{ONE+3}], v[{248+4*u}:{251+4*u}]")
                k.e(f"v_mfma_f32_16x16x32_bf16 v[{220+4*u}:{223+4*u}], v[{af}:{af+3}], v[{af}:{af+3}], v[{220+4*u}:{223+4*u}]")
        if first:
            lab = k.newlabel("r")
            k.e(f"s_cmp_lg_u32 s20, {kb % 4}")
            k.e(f"s_cbranch_scc1 {lab}")
            for T in range(5):
                acc = ACC + 40 + T * 4
                k.e(f"v_mfma_f32_16x16x32_bf16 v[{acc}:{acc+3}], v[{ONE}:{ONE+3}], v[{sb+4*T}:{sb+4*T+3}], v[{acc}:{acc+3}]")
            k.label(lab)
            lab = k.newlabel("x")
            k.e(f"s_cmp_lg_u32 s54, {kb % 16}")
            k.e(f"s_cbranch_scc1 {lab}")
            k.e(f"s_add_u32 s46, s44, {(kb // 2) * 4096}")
            for u in range(2):
                af = AF + ((kb % AFR) * 2 + u) * 4
                k.e(f"buffer_store_dwordx4 v[{af}:{af+3}], v13, s[32:35], s46 offen offset:{(kb%2)*2048 + u*256}")
            k.label(lab)
    k.stamp(3)
    k.e("s_lshl_b32 s50, s20, 8")
    k.e(f"s_add_u32 s50, s50, {SCR}")
    if first:
        k.e("s_nop 7")
        k.e("v_and_b32 v228, 3, v11")
        for u in range(2):
            for base, dst in ((248 + 4 * u, 232 + 2 * u), (220 + 4 * u, 233 + 2 * u)):
                k.e(f"v_mov_b32 v{dst}, v{base}")
                for r in range(1, 4):
                    k.e(f"v_cmp_eq_u32 vcc, {r}, v228")
                    k.e("s_nop 1")
                    k.e(f"v_cndmask_b32 v{dst}, v{dst}, v{base+r}, vcc")
        k.e("v_lshrrev_b32 v229, 2, v11")
        k.e("v_lshl_add_u32 v230, v11, 3, s50")
        k.e("v_cmp_eq_u32 vcc, v229, v12")
        k.e("s_and_saveexec_b64 s[52:53], vcc")
        k.e("ds_write_b64 v230, v[232:233]")
        k.e("ds_write_b64 v230, v[234:235] offset:128")
        k.e("s_mov_b64 exec, -1")
        k.e("v_and_b32 v224, 31, v2")
        k.e("v_lshl_add_u32 v230, v224, 3, s50")
        k.e("s_waitcnt lgkmcnt(0)")
        k.e("ds_read_b64 v[228:229], v230")
        k.e("s_waitcnt lgkmcnt(0)")
        stats_core(k, 228, 232, 233, 234, 235, 236)
        k.e("s_mul_i32 s51, s20, 320")
        k.e(f"s_add_u32 s51, s51, {SCR + 1024}")
        k.e("v_lshl_add_u32 v227, v11, 2, s51")
        for T in range(5):
            k.e(f"ds_write_b32 v227, v{ACC+40+4*T} offset:{64*T}")
    else:
        k.wait_vm("st")
        stats_finish(k, 16, 232, 233, 234, 235, 236)
    k.e("v_rcp_f32 v233, v233")
    k.e("s_nop 0")
    k.e("v_mul_f32 v232, v232, v233")
    k.e("v_lshl_add_u32 v226, v224, 3, s50")
    k.e("ds_write_b64 v226, v[232:233]")
    k.e("v_lshl_add_u32 v226, v12, 5, s50")
    k.e("s_waitcnt lgkmcnt(0)")
    k.lq = []
    if first:
        k.e("s_barrier")
        k.e(f"v_lshlrev_b32 v227, 2, v11")
        k.e(f"v_add_u32 v227, {SCR + 1024}, v227")
        for w_ in range(4):
            for T in range(5):
                k.e(f"ds_read_b32 v{112 + w_*5 + T}, v227 offset:{w_*320 + 64*T}")
    k.e("ds_read_b128 v[232:235], v226")
    k.e("ds_read_b128 v[236:239], v226 offset:16")
    k.e("ds_read_b128 v[240:243], v226 offset:128")
    k.e("ds_read_b128 v[244:247], v226 offset:144")
    k.e("v_mul_u32_u24 v15, 1152, v12")
    k.e("v_lshl_add_u32 v15, v11, 4, v15")
    k.e("s_lshl_b32 s46, s54, 8")
    k.e("s_lshl_b32 s47, s21, 2")
    k.e("s_add_u32 s46, s46, s47")
    k.e("s_mul_i32 s46, s46, 1152")
    k.e("s_waitcnt lgkmcnt(0)")
    if first:
        for T in range(5):
            rr = ACC + 40 + 4 * T
            k.e(f"v_add_f32 v{112+T}, v{112+T}, v{117+T}")
            k.e(f"v_add_f32 v{122+T}, v{122+T}, v{127+T}")
            k.e(f"v_add_f32 v{rr}, v{112+T}, v{122+T}")
        k.e("s_add_u32 s47, s55, s20")
        k.e("s_cmp_lg_u32 s47, 0")
        k.e(f"s_cbranch_scc1 {name}_nors")
        k.e("s_mul_i32 s47, s54, 320")
        k.e("v_lshlrev_b32 v227, 2, v11")
        for T in range(5):
            k.e(f"buffer_store_dword v{ACC+40+4*T}, v227, s[36:39], s47 offen offset:{64*T}")
        k.label(f"{name}_nors")
    for T in range(5):
        a0, a1, rr = ACC + T * 4, ACC + 20 + T * 4, ACC + 40 + T * 4
        for u, a in ((0, a0), (1, a1)):
            for r in range(4):
                sr = 232 + 8 * u + 2 * r
                k.e(f"v_mul_f32 v{a+r}, v{a+r}, v{sr+1}")
                k.e(f"v_fma_f32 v{a+r}, -v{sr}, v{rr}, v{a+r}")
        o = 48 + 4 * T
        k.e(f"v_cvt_pk_bf16_f32 v{o}, v{a0}, v{a0+1}")
        k.e(f"v_cvt_pk_bf16_f32 v{o+1}, v{a0+2}, v{a0+3}")
        k.e(f"v_cvt_pk_bf16_f32 v{o+2}, v{a1}, v{a1+1}")
        k.e(f"v_cvt_pk_bf16_f32 v{o+3}, v{a1+2}, v{a1+3}")
        if T == 4:
            k.e("v_cmp_gt_u32 vcc, 8, v11")
            k.e("s_and_saveexec_b64 s[50:51], vcc")
        k.e(f"buffer_store_dwordx4 v[{o}:{o+3}], v15, s[40:43], s46 offen offset:{256*T} {STP}")
    k.stamp(4)
    if first:
        k.e(f"s_branch {name}_rdone")
        k.label(f"{name}_rep")
        k.e("s_sub_u32 s20, s20, 4")
        k.e("s_cmp_lt_u32 s2, 72")
        k.e("s_cselect_b32 s4, s12, s14")
        k.e("s_cselect_b32 s5, s13, s15")
        k.e("s_cselect_b32 s64, 0, 1")
        k.e("s_cmp_lt_u32 s2, 144")
        k.e("s_cselect_b32 s4, s4, s16")
        k.e("s_cselect_b32 s5, s5, s17")
        k.e("s_movk_i32 s65, 1152")
        k.e("s_cselect_b32 s65, 9216, s65")
        k.e("s_cselect_b32 s66, 1, 0")
        k.srd_ptr(24, 4, D * F * 2)
        k.e("s_mul_i32 s67, s64, 72")
        k.e("s_sub_u32 s67, s2, s67")
        k.e("s_sub_u32 s68, s2, 144")
        k.e("s_mul_i32 s69, s68, 7282")
        k.e("s_lshr_b32 s69, s69, 16")
        k.e("s_mul_i32 s75, s69, 9")
        k.e("s_sub_u32 s68, s68, s75")
        k.e(f"s_mul_i32 s75, s69, {384*1152}")
        k.e("s_lshl_b32 s58, s68, 7")
        k.e("s_add_u32 s75, s75, s58")
        k.e("s_lshl_b32 s58, s67, 7")
        k.e("s_cmp_eq_u32 s66, 1")
        k.e("s_cselect_b32 s75, s58, s75")
        k.e("s_cselect_b32 s58, 18, 12")
        k.e("s_lshl_b32 s59, s65, 3")
        k.e("s_mul_i32 s56, s20, s59")
        k.e("s_mul_i32 s56, s56, s58")
        k.e("s_add_u32 s75, s75, s56")
        k.e("s_cmp_ge_u32 s2, 252")
        k.e("s_cselect_b32 s58, 0, s58")
        k.e("v_lshrrev_b32 v3, 3, v2")
        k.e("v_and_b32 v4, 7, v2")
        k.e("v_mul_lo_u32 v6, v3, s65")
        k.e("v_lshl_add_u32 v6, v4, 4, v6")
        k.e("s_mul_i32 s56, s20, 18432")
        k.e(f"s_add_u32 s56, s56, {RPK}")
        for i in range(18):
            k.e(f"s_cmp_gt_u32 s58, {i}")
            k.e("s_cselect_b32 s51, s75, 0x7f000000")
            k.e(f"s_add_u32 m0, s56, {1024*i}")
            k.e("s_add_u32 s75, s75, s59")
            k.e("buffer_load_dwordx4 v6, s[24:27], s51 offen lds")
            if i % 6 == 5:
                k.e("s_barrier")
        k.e("s_barrier")
        k.e("s_cmp_ge_u32 s2, 252")
        k.e(f"s_cbranch_scc1 {name}_rdone")
        k.e("v_lshrrev_b32 v3, 4, v2")
        k.e("v_and_b32 v4, 15, v2")
        k.e("v_bfe_u32 v6, v2, 2, 2")
        k.e("v_lshlrev_b32 v7, 7, v6")
        k.e("v_lshl_add_u32 v7, v3, 5, v7")
        k.e("v_add_u32 v7, s56, v7")
        k.e("s_cmp_eq_u32 s66, 0")
        k.e(f"s_cbranch_scc1 {name}_roleD")
        k.srd_ws(28, 18, "WGU")
        k.e("v_and_b32 v6, 1, v2")
        k.e("v_lshl_add_u32 v7, v6, 4, v7")
        k.e("v_bfe_u32 v6, v2, 1, 1")
        k.e("v_lshl_add_u32 v7, v6, 3, v7")
        k.e("s_lshl_b32 s36, s67, 2")
        k.e("v_add_u32 v8, s36, v3")
        k.e("v_mul_u32_u24 v9, 7282, v8")
        k.e("v_lshrrev_b32 v9, 16, v9")
        k.e("v_mul_u32_u24 v10, 9, v9")
        k.e("v_sub_u32 v10, v8, v10")
        k.e(f"s_mov_b32 s36, {WGU_CB}")
        k.e("v_mul_lo_u32 v9, v9, s36")
        k.e("v_lshl_add_u32 v9, v10, 10, v9")
        k.e("v_lshl_add_u32 v9, v4, 4, v9")
        k.e("s_lshl_b32 s38, s64, 8")
        k.e(f"s_mul_i32 s39, s20, {9*9216}")
        k.e("s_add_u32 s39, s39, s38")
        k.e("v_mov_b32 v10, 0")
        k.e("v_mov_b32 v11, 0")
        k.e("v_mov_b32 v12, 0x3f803f80")
        k.e("s_waitcnt vmcnt(0)")
        for half in range(3):
            for it in range(6 * half, 6 * half + 6):
                rg = 72 + 4 * it
                k.e(f"ds_read_b64_tr_b16 v[{rg}:{rg+1}], v7 offset:{it*1024}")
                k.e(f"ds_read_b64_tr_b16 v[{rg+2}:{rg+3}], v7 offset:{it*1024+512}")
            for it in range(6 * half, 6 * half + 6):
                rg = 72 + 4 * it
                k.e(f"s_waitcnt lgkmcnt({2*(6*half+5-it)})")
                k.e(f"buffer_store_dwordx4 v[{rg}:{rg+3}], v9, s[28:31], s39 offen offset:{(it&1)*512} {STP}")
                if it & 1:
                    k.e("s_add_u32 s39, s39, 9216")
                for r in range(4):
                    k.e(f"v_dot2_f32_bf16 v{10 + (r & 1)}, v{rg+r}, v12, v{10 + (r & 1)}")
        k.e("s_nop 3")
        k.e("v_add_f32 v10, v10, v11")
        k.e("v_cvt_pk_bf16_f32 v11, v10, v10")
        k.e("v_lshlrev_b32 v12, 16, v11")
        k.e("v_sub_f32 v13, v10, v12")
        k.e("v_cvt_pk_bf16_f32 v14, v13, v13")
        k.e("v_lshlrev_b32 v15, 16, v14")
        k.e("v_sub_f32 v13, v13, v15")
        k.e("v_cvt_pk_bf16_f32 v201, v13, v13")
        k.e("v_and_b32 v201, 0xffff, v201")
        k.e("v_and_b32 v200, 0xffff, v11")
        k.e("v_or_b32 v200, v200, v15")
        k.e("s_lshr_b32 s39, s20, 1")
        k.e("s_lshl_b32 s39, s39, 9")
        k.e("s_and_b32 s37, s20, 1")
        k.e("s_lshl_b32 s37, s37, 3")
        k.e("s_add_u32 s39, s39, s37")
        k.e("s_add_u32 s39, s39, s38")
        k.e(f"s_add_u32 s39, s39, {36*9216}")
        k.e("buffer_store_dwordx2 v[200:201], v9, s[28:31], s39 offen")
        k.e(f"s_branch {name}_rdone")
        k.label(f"{name}_roleD")
        k.srd_ws(28, 18, "WD")
        k.e("v_and_b32 v6, 3, v2")
        k.e("v_lshl_add_u32 v7, v6, 3, v7")
        k.e("s_lshl_b32 s36, s68, 6")
        k.e("v_and_b32 v8, 63, v2")
        k.e("v_add_u32 v8, s36, v8")
        k.e("v_mul_u32_u24 v9, 911, v8")
        k.e("v_lshrrev_b32 v9, 16, v9")
        k.e("v_mul_u32_u24 v10, 72, v9")
        k.e("v_sub_u32 v10, v8, v10")
        slotmap_v(k, 10, 11, 12, 13)
        k.e("s_mov_b32 s36, 663552")
        k.e("v_mul_lo_u32 v9, v9, s36")
        k.e("v_lshl_add_u32 v9, v11, 4, v9")
        k.e(f"s_mul_i32 s39, s69, {48*1152}")
        k.e(f"s_mul_i32 s38, s20, {12*1152}")
        k.e("s_add_u32 s39, s39, s38")
        k.e("s_waitcnt vmcnt(0)")
        for half in range(2):
            for it in range(6 * half, 6 * half + 6):
                rg = 72 + 4 * it
                k.e(f"ds_read_b64_tr_b16 v[{rg}:{rg+1}], v7 offset:{it*1024}")
                k.e(f"ds_read_b64_tr_b16 v[{rg+2}:{rg+3}], v7 offset:{it*1024+512}")
            for it in range(6 * half, 6 * half + 6):
                rg = 72 + 4 * it
                k.e(f"s_waitcnt lgkmcnt({2*(6*half+5-it)})")
                k.e(f"buffer_store_dwordx4 v[{rg}:{rg+3}], v9, s[28:31], s39 offen {STP}")
                k.e("s_add_u32 s39, s39, 1152")
        k.label(f"{name}_rdone")
        if PROF:
            k.e("v_lshrrev_b32 v1, 6, v0")
            k.e("s_nop 0")
            k.e("v_readfirstlane_b32 s20, v1")
    if PROF:
        k.e("s_mov_b64 exec, -1")
        k.wait_vm_all()
    k.stamp(5)
    k.stamp_store(0, 18, 20)
    k.label(Lend)
    return k, total, 512 if first else 256, (RPK + 73728) if first else RPK


REG = 20480
EXP_NOMFMA = int(os.environ.get("EXP_NOMFMA", "0"))
EXP_PAD = int(os.environ.get("EXP_PAD", "0"))
BAR = int(os.environ.get("BAR", "0"))
EXP_NOWD = int(os.environ.get("EXP_NOWD", "0"))
EXP_NOHC = int(os.environ.get("EXP_NOHC", "0"))
ILV = int(os.environ.get("ILV", "1"))
KD_W, KD_S = (1, 8) if ILV else (18, 1)
KS_W, KS_S = (1, 4) if ILV else (8, 1)


def t1_decode(k):
    k.e("v_lshrrev_b32 v1, 6, v0")
    k.e("v_and_b32 v2, 63, v0")
    k.e("v_readfirstlane_b32 s20, v1")
    k.e("s_and_b32 s22, s2, 7")
    k.e("s_lshr_b32 s23, s2, 3")
    k.e("s_lshr_b32 s21, s22, 1")
    k.e("s_lshl_b32 s21, s21, 3")
    k.e("s_and_b32 s44, s23, 7")
    k.e("s_add_u32 s21, s21, s44")
    k.e("s_and_b32 s22, s22, 1")
    k.e("s_lshl_b32 s22, s22, 2")
    k.e("s_lshr_b32 s23, s23, 3")
    k.e("s_add_u32 s23, s23, s22")


def t1_pre(k, xin_srd):
    sW, sTB, sJ = 20, 21, 23
    k.e(f"s_and_b32 s61, s{sW}, 3")
    k.e(f"s_lshr_b32 s59, s{sW}, 2")
    k.e("s_lshr_b32 s62, s61, 1")
    k.e(f"s_lshl_b32 s63, s{sTB}, 1")
    k.e("s_add_u32 s58, s62, s63")
    k.e("s_and_b32 s62, s61, 1")
    k.e("s_mul_i32 s63, s58, 36864")
    k.e(f"s_mul_i32 s64, s{sJ}, 4608")
    k.e("s_add_u32 s63, s63, s64")
    k.e("s_lshl_b32 s64, s62, 8")
    k.e("s_add_u32 s63, s63, s64")
    k.e("s_add_u32 s64, s63, 4096")
    k.e("s_lshl_b32 s65, s59, 11")
    k.e("s_add_u32 s63, s63, s65")
    k.e("v_and_b32 v248, 15, v0")
    k.e("v_bfe_u32 v249, v0, 4, 2")
    k.e("v_lshlrev_b32 v254, 9, v249")
    k.e("v_lshl_add_u32 v254, v248, 4, v254")
    k.e("v_lshlrev_b32 v255, 3, v249")
    k.e("v_lshl_add_u32 v255, v248, 4, v255")
    k.vm(f"buffer_load_dwordx4 v[248:251], v254, s[{xin_srd}:{xin_srd+3}], s63 offen", "res")
    k.vm(f"buffer_load_dwordx2 v[252:253], v255, s[{xin_srd}:{xin_srd+3}], s64 offen", "res")


def t1_epilogue(k, name, mode, ACC, xin_srd, xout_srd, st_srd, sfinal):
    sW, sTB, sJ = 20, 21, 23
    k.e("v_and_b32 v2, 63, v0")
    k.e(f"s_mul_i32 s60, s{sW}, {REG}")
    k.e("v_lshl_add_u32 v3, v2, 4, s60")
    k.e("v_and_b32 v11, 15, v2")
    k.e("v_lshrrev_b32 v12, 4, v2")
    k.e("v_mov_b32 v4, v254")
    k.e("v_mov_b32 v5, v255")
    k.e("s_nop 2")
    for b in range(4):
        for a in range(5):
            acc = ACC + (a * 4 + b) * 4
            k.e(f"ds_write_b128 v3, v[{acc}:{acc+3}] offset:{(b*5+a)*1024}")
    k.e("s_mul_i32 s60, s61, 5120")
    k.e("v_lshl_add_u32 v6, v2, 4, s60")
    k.e("v_add_u32 v7, s65, v6")
    for j in range(1, 3):
        k.e(f"v_add_u32 v{7+j}, {3*REG*j}, v7")
        k.e(f"v_add_u32 v{12+j}, {3*REG*j}, v6")
    k.e("s_waitcnt lgkmcnt(0)")
    k.e("s_barrier")
    T0 = 24
    for v in range(8):
        base = 7 + v // 3
        for t in range(2):
            rg = T0 + (v * 2 + t) * 4
            k.e(f"ds_read_b128 v[{rg}:{rg+3}], v{base} offset:{(v%3)*REG + t*1024}")
    k.e("s_cmp_lg_u32 s59, 0")
    k.e(f"s_cbranch_scc1 {name}_no4a")
    for v in range(8):
        base = 6 if v < 3 else 12 + v // 3
        rg = 88 + v * 4
        k.e(f"ds_read_b128 v[{rg}:{rg+3}], v{base} offset:{(v%3)*REG + 4096}")
    k.label(f"{name}_no4a")
    k.e("s_waitcnt lgkmcnt(0)")

    def combine(regs_of_wave, n):
        for j in range(n):
            r = [regs_of_wave(v) + j for v in range(8)]
            k.e(f"v_add_f32 v{r[0]}, v{r[0]}, v{r[1]}")
            k.e(f"v_add_f32 v{r[2]}, v{r[2]}, v{r[3]}")
            k.e(f"v_add_f32 v{r[4]}, v{r[4]}, v{r[5]}")
            k.e(f"v_add_f32 v{r[6]}, v{r[6]}, v{r[7]}")
            k.e(f"v_add_f32 v{r[0]}, v{r[0]}, v{r[2]}")
            k.e(f"v_add_f32 v{r[4]}, v{r[4]}, v{r[6]}")
            if mode == "D":
                k.e(f"v_add_f32 v{r[0]}, v{r[0]}, v{r[4]}")
        if mode == "S":
            for j in range(0, n, 2):
                p0 = regs_of_wave(0) + j
                q0 = regs_of_wave(4) + j
                k.e(f"v_cvt_pk_bf16_f32 v22, v{p0}, v{p0+1}")
                k.e(f"v_cvt_pk_bf16_f32 v23, v{q0}, v{q0+1}")
                k.e(f"v_lshlrev_b32 v{p0}, 16, v22")
                k.e(f"v_and_b32 v{p0+1}, 0xffff0000, v22")
                k.e(f"v_lshlrev_b32 v{q0}, 16, v23")
                k.e(f"v_and_b32 v{q0+1}, 0xffff0000, v23")
                k.e(f"v_sub_f32 v{p0}, v{p0}, v{q0}")
                k.e(f"v_sub_f32 v{p0+1}, v{p0+1}, v{q0+1}")

    def resid(ybase, xbase, n):
        for j in range(0, n, 2):
            y0 = ybase + j
            xr = xbase + j // 2
            k.e(f"v_cvt_pk_bf16_f32 v22, v{y0}, v{y0+1}")
            k.e(f"v_lshlrev_b32 v{y0}, 16, v22")
            k.e(f"v_and_b32 v{y0+1}, 0xffff0000, v22")
            k.e(f"v_lshlrev_b32 v22, 16, v{xr}")
            k.e(f"v_and_b32 v23, 0xffff0000, v{xr}")
            k.e(f"v_add_f32 v{y0}, v{y0}, v22")
            k.e(f"v_add_f32 v{y0+1}, v{y0+1}, v23")
            k.e(f"v_cvt_pk_bf16_f32 v{xr}, v{y0}, v{y0+1}")
            unpack_sum(k, xr, 22, 23, 120, 121)

    combine(lambda v: T0 + v * 8, 8)
    k.e("v_mov_b32 v120, 0")
    k.e("v_mov_b32 v121, 0")
    resid(T0, 248, 8)
    k.e("s_cmp_lg_u32 s59, 0")
    k.e(f"s_cbranch_scc1 {name}_no4b")
    k.e("v_cmp_gt_u32 vcc, 2, v12")
    k.e("s_and_saveexec_b64 s[66:67], vcc")
    combine(lambda v: 88 + v * 4, 4)
    resid(88, 252, 4)
    k.e("s_mov_b64 exec, s[66:67]")
    k.label(f"{name}_no4b")
    if sfinal is not None:
        k.e(f"s_cmp_lg_u32 s{sfinal}, 0")
        k.e(f"s_cbranch_scc1 {name}_fin")
    for sw in ("16", "32"):
        k.e("v_mov_b32 v22, v120")
        k.e("v_mov_b32 v23, v121")
        k.e("s_nop 1")
        k.e(f"v_permlane{sw}_swap_b32 v120, v22")
        k.e(f"v_permlane{sw}_swap_b32 v121, v23")
        k.e("s_nop 1")
        k.e("v_add_f32 v120, v120, v22")
        k.e("v_add_f32 v121, v121, v23")
    k.e(f"buffer_store_dwordx4 v[248:251], v4, s[{xout_srd}:{xout_srd+3}], s63 offen")
    k.e("s_lshl_b32 s65, s58, 8")
    k.e("s_lshl_b32 s62, s62, 7")
    k.e("s_add_u32 s65, s65, s62")
    k.e(f"s_lshl_b32 s62, s{sJ}, 15")
    k.e("s_add_u32 s65, s65, s62")
    k.e("s_lshl_b32 s62, s59, 14")
    k.e("s_add_u32 s65, s65, s62")
    k.e("v_lshlrev_b32 v22, 3, v11")
    k.e("v_cmp_gt_u32 vcc, 1, v12")
    k.e("s_and_saveexec_b64 s[68:69], vcc")
    k.e(f"buffer_store_dwordx2 v[120:121], v22, s[{st_srd}:{st_srd+3}], s65 offen")
    k.e("s_mov_b64 exec, s[68:69]")
    k.e("s_cmp_lg_u32 s59, 0")
    k.e(f"s_cbranch_scc1 {name}_done")
    k.e("v_cmp_gt_u32 vcc, 2, v12")
    k.e("s_and_saveexec_b64 s[66:67], vcc")
    k.e(f"buffer_store_dwordx2 v[252:253], v5, s[{xout_srd}:{xout_srd+3}], s64 offen")
    if sfinal is not None:
        k.e(f"s_branch {name}_done")
        k.label(f"{name}_fin")
        k.e("v_lshrrev_b32 v22, 2, v11")
        k.e("v_and_b32 v23, 3, v11")
        k.e("v_lshl_add_u32 v22, v22, 3, v23")
        k.e("v_mul_u32_u24 v22, 1152, v22")
        k.e("v_lshl_add_u32 v23, v12, 4, v22")
        k.e("v_lshl_add_u32 v22, v12, 3, v22")
        k.e("s_lshl_b32 s65, s58, 5")
        k.e("s_lshl_b32 s62, s62, 2")
        k.e("s_add_u32 s65, s65, s62")
        k.e("s_mul_i32 s65, s65, 1152")
        k.e(f"s_mul_i32 s62, s{sJ}, 144")
        k.e("s_add_u32 s65, s65, s62")
        k.e("s_lshl_b32 s62, s59, 6")
        k.e("s_add_u32 s62, s62, s65")
        k.e(f"buffer_store_dwordx4 v[248:251], v23, s[{xout_srd}:{xout_srd+3}], s62 offen")
        k.e("s_cmp_lg_u32 s59, 0")
        k.e(f"s_cbranch_scc1 {name}_done")
        k.e("v_cmp_gt_u32 vcc, 2, v12")
        k.e("s_and_saveexec_b64 s[66:67], vcc")
        k.e(f"buffer_store_dwordx2 v[252:253], v22, s[{xout_srd}:{xout_srd+3}], s65 offen offset:128")
    k.label(f"{name}_done")


def gen_ks():
    name = "ks"
    k = Kern(name, 256, 0, 80)
    Lend = name + "_end"
    k.e("s_cmp_ge_u32 s2, 256")
    k.e(f"s_cbranch_scc1 {Lend}")
    k.e("s_load_dwordx4 s[8:11], s[0:1], 8")
    k.e("s_load_dwordx2 s[18:19], s[0:1], 88")
    t1_decode(k)
    k.e("s_lshr_b32 s22, s20, 2")
    k.e("s_and_b32 s45, s20, 3")
    k.e("s_waitcnt lgkmcnt(0)")
    k.stamp(0)
    k.e("s_cmp_eq_u32 s22, 1")
    k.e("s_cselect_b32 s4, s10, s8")
    k.e("s_cselect_b32 s5, s11, s9")
    k.srd_ptr(24, 4, S * S * 2)
    k.srd_ws(28, 18, "AB")
    srd_ws_s(k, 32, 18, 70, XC_SZ)
    srd_ws_s(k, 36, 18, 71, XC_SZ)
    srd_ws_s(k, 40, 18, 72, ST_SZ)
    VD = 1
    t = 248
    k.e(f"v_lshrrev_b32 v{t}, 3, v2")
    k.e(f"v_and_b32 v{t+1}, 7, v2")
    k.e(f"v_lshrrev_b32 v{t+2}, 1, v{t}")
    k.e(f"v_xor_b32 v{t+2}, v{t+2}, v{t+1}")
    k.e(f"v_lshlrev_b32 v{t+2}, 4, v{t+2}")
    k.e(f"v_lshrrev_b32 v{t+3}, 2, v{t}")
    k.e(f"v_and_b32 v{t+4}, 3, v{t}")
    k.e(f"v_lshl_add_u32 v{t+3}, v{t+3}, 3, v{t+4}")
    k.e(f"v_lshlrev_b32 v{t+3}, 12, v{t+3}")
    k.e(f"v_add_u32 v{t+5}, v{t+3}, v{t+2}")
    k.e(f"v_xor_b32 v{t+4}, 64, v{t+2}")
    k.e(f"v_add_u32 v{t+6}, v{t+3}, v{t+4}")
    k.e(f"v_and_b32 v{t}, 15, v2")
    k.e(f"v_lshrrev_b32 v{t+1}, 4, v2")
    k.e(f"v_mul_u32_u24 v{t+2}, 1152, v{t+1}")
    k.e(f"v_lshl_add_u32 v9, v{t}, 4, v{t+2}")
    k.e(f"v_and_b32 v{t+3}, 7, v{t}")
    k.e(f"v_lshl_add_u32 v10, v{t+3}, 4, v{t+2}")
    k.e("v_add_u32 v10, 1024, v10")
    k.e("v_add_u32 v11, 4608, v9")
    k.e("v_add_u32 v12, 4608, v10")
    k.e(f"s_mul_i32 s46, s20, {REG}")
    k.e(f"v_lshrrev_b32 v{t+2}, 1, v{t}")
    k.e(f"v_xor_b32 v{t+2}, v{t+2}, v{t+1}")
    k.e(f"v_lshlrev_b32 v{t+2}, 4, v{t+2}")
    k.e(f"v_lshl_add_u32 v{t+2}, v{t}, 7, v{t+2}")
    k.e(f"v_add_u32 v13, s46, v{t+2}")
    k.e(f"v_xor_b32 v{t+2}, 64, v{t+2}")
    k.e(f"v_add_u32 v14, s46, v{t+2}")
    for q in range(8):
        c = (32 * (q >> 2) + 16 * (q & 1) + 4 * ((q >> 1) & 1)) * 4096
        k.e(f"v_add_u32 v{VD+q}, {c}, v{t + 5 + (q & 1)}")
    k.e("s_lshl_b32 s47, s21, 18")
    k.e(f"s_mul_i32 s49, s45, {128*KS_W}")
    k.e("s_add_u32 s47, s47, s49")
    k.e("s_lshl_b32 s48, s22, 3")
    k.e("s_add_u32 s48, s48, s23")
    k.e("s_lshl_b32 s48, s48, 8")
    k.e(f"s_mul_i32 s49, s45, {8*KS_W}")
    k.e("s_add_u32 s48, s48, s49")
    k.e("s_mul_i32 s48, s48, 1152")
    NST = 8
    AFB, CFB, ACC = 16, 136, 168

    def dma(st):
        slot = st % 2
        for q in range(8 if not EXP_NOHC else 0):
            k.e(f"s_add_u32 m0, s46, {slot*8192 + q*1024}")
            k.e("s_nop 0")
            k.vm(f"buffer_load_dwordx4 v{VD+q}, s[24:27], s47 offen lds", ("d", st))
        k.e(f"s_add_u32 s47, s47, {128*KS_S}")

    def aload(st):
        slot = st % 3
        for h in range(2 if not EXP_NOWD else 0):
            for T in range(5):
                rg = AFB + slot * 40 + (h * 5 + T) * 4
                if T < 4:
                    k.vm(f"buffer_load_dwordx4 v[{rg}:{rg+3}], v{9+2*h}, s[28:31], s48 offen offset:{256*T}", ("a", st))
                else:
                    k.vm(f"buffer_load_dwordx4 v[{rg}:{rg+3}], v{10+2*h}, s[28:31], s48 offen", ("a", st))
        k.e(f"s_add_u32 s48, s48, {9216*KS_S}")

    t1_pre(k, 32)
    dma(0); aload(0); dma(1); aload(1)
    for a in range(80):
        k.e(f"v_mov_b32 v{ACC+a}, 0")
    aload(2)
    for st in range(NST):
        k.wait_vm(("d", st))
        if st == 0:
            k.stamp(2)
        for h in range(2):
            for u in range(4):
                rg = CFB + (h * 4 + u) * 4
                k.ds(f"ds_read_b128 v[{rg}:{rg+3}], v{13+h} offset:{(st%2)*8192 + u*2048}", ("c", st, h))
        k.wait_ds(("c", st, 1))
        if st + 2 < NST:
            dma(st + 2)
        k.wait_vm(("a", st))
        if BAR:
            k.e("s_barrier")
        for h in range(2 if not EXP_NOMFMA else 0):
            for T in range(5):
                af = AFB + (st % 3) * 40 + (h * 5 + T) * 4
                for u in range(4):
                    cf = CFB + (h * 4 + u) * 4
                    acc = ACC + (T * 4 + u) * 4
                    k.e(f"v_mfma_f32_16x16x32_bf16 v[{acc}:{acc+3}], v[{af}:{af+3}], v[{cf}:{cf+3}], v[{acc}:{acc+3}]")
        if st + 3 < NST:
            aload(st + 3)
    k.stamp(3)
    t1_epilogue(k, name, "S", ACC, 32, 36, 40, None)
    k.stamp(4)
    if PROF:
        k.wait_vm_all()
    k.stamp(5)
    k.stamp_store(2, 18, 20)
    k.label(Lend)
    return k, 256, 512, 8 * REG


def gen_kd():
    name = "kd"
    k = Kern(name, 256, 0, 80)
    Lend = name + "_end"
    k.e("s_cmp_ge_u32 s2, 256")
    k.e(f"s_cbranch_scc1 {Lend}")
    k.e("s_load_dwordx2 s[8:9], s[0:1], 72")
    k.e("s_load_dwordx2 s[18:19], s[0:1], 88")
    t1_decode(k)
    k.e("s_waitcnt lgkmcnt(0)")
    k.stamp(0)
    k.srd_ws(24, 18, "HC")
    k.srd_ws(28, 18, "WD")
    srd_ws_s(k, 32, 18, 70, XC_SZ)
    srd_ws_s(k, 36, 18, 71, XC_SZ)
    srd_ws_s(k, 40, 18, 72, ST_SZ)
    k.e("s_cmp_lg_u32 s73, 0")
    k.e("s_cselect_b32 s36, s8, s36")
    k.e("s_cselect_b32 s37, s9, s37")
    k.e("s_and_b32 s37, s37, 0xffff")
    k.e("v_and_b32 v11, 15, v2")
    k.e("v_lshrrev_b32 v12, 4, v2")
    k.e("v_mul_u32_u24 v3, 1152, v12")
    k.e("v_lshl_add_u32 v4, v11, 4, v3")
    k.e("v_and_b32 v8, 7, v11")
    k.e("v_lshl_add_u32 v5, v8, 4, v3")
    k.e("v_add_u32 v5, 1024, v5")
    k.e("v_lshlrev_b32 v3, 9, v12")
    k.e("v_lshl_add_u32 v6, v11, 4, v3")
    k.e(f"v_add_u32 v7, {294912-EXP_PAD}, v6")
    k.e(f"s_mul_i32 s47, s21, {589824-2*EXP_PAD}")
    k.e(f"s_mul_i32 s49, s20, {KD_W*2048}")
    k.e("s_add_u32 s47, s47, s49")
    k.e("s_mul_i32 s48, s23, 576")
    k.e(f"s_mul_i32 s49, s20, {KD_W*4}")
    k.e("s_add_u32 s48, s48, s49")
    k.e("s_mul_i32 s48, s48, 1152")
    if EXP_PAD:
        k.e(f"s_mul_i32 s49, s23, {EXP_PAD}")
        k.e("s_sub_u32 s48, s48, s49")
    NST, RING = 18, 4
    FB, ACC = 16, 160

    def issue(st):
        base = FB + (st % RING) * 36
        for T in range(5 if not EXP_NOWD else 0):
            rg = base + T * 4
            if T < 4:
                k.vm(f"buffer_load_dwordx4 v[{rg}:{rg+3}], v4, s[28:31], s48 offen offset:{256*T}", st)
            else:
                k.vm(f"buffer_load_dwordx4 v[{rg}:{rg+3}], v5, s[28:31], s48 offen", st)
        for u in range(4 if not EXP_NOHC else 0):
            rg = base + (5 + u) * 4
            k.vm(f"buffer_load_dwordx4 v[{rg}:{rg+3}], v{6+(u>>1)}, s[24:27], s47 offen offset:{256*(u&1)}", st)
        k.e(f"s_add_u32 s47, s47, {2048*KD_S}")
        k.e(f"s_add_u32 s48, s48, {4608*KD_S}")

    t1_pre(k, 32)
    issue(0); issue(1)
    for a in range(80):
        k.e(f"v_mov_b32 v{ACC+a}, 0")
    issue(2)
    for st in range(NST):
        if st + RING - 1 < NST:
            issue(st + RING - 1)
        k.wait_vm(st)
        if BAR and st % BAR == BAR - 1:
            k.e("s_barrier")
        if st == 0:
            k.stamp(2)
        base = FB + (st % RING) * 36
        for T in range(5 if not EXP_NOMFMA else 0):
            ra = base + T * 4
            for u in range(4):
                rb = base + (5 + u) * 4
                acc = ACC + (T * 4 + u) * 4
                k.e(f"v_mfma_f32_16x16x32_bf16 v[{acc}:{acc+3}], v[{ra}:{ra+3}], v[{rb}:{rb+3}], v[{acc}:{acc+3}]")
    k.stamp(3)
    t1_epilogue(k, name, "D", ACC, 32, 36, 40, 73)
    k.stamp(4)
    if PROF:
        k.wait_vm_all()
    k.stamp(5)
    k.stamp_store(4, 18, 20)
    k.label(Lend)
    return k, 256, 512, 8 * REG


def gen_kg():
    name = "kg"
    k = Kern(name, 256, 0, 80)
    Lend = name + "_end"
    STG = 36864
    EXT = 4 * STG
    k.e("s_cmp_ge_u32 s2, 256")
    k.e(f"s_cbranch_scc1 {Lend}")
    k.e("s_load_dwordx2 s[18:19], s[0:1], 88")
    k.e("v_lshrrev_b32 v1, 6, v0")
    k.e("v_and_b32 v2, 63, v0")
    k.e("v_readfirstlane_b32 s20, v1")
    k.e("s_and_b32 s22, s2, 7")
    k.e("s_lshr_b32 s23, s2, 3")
    k.e("s_and_b32 s21, s23, 7")
    k.e("s_lshr_b32 s23, s23, 3")
    k.e("s_lshl_b32 s22, s22, 2")
    k.e("s_add_u32 s23, s23, s22")
    k.e("s_lshl_b32 s21, s21, 3")
    k.e("s_add_u32 s21, s21, s20")
    k.e("s_waitcnt lgkmcnt(0)")
    k.stamp(0)
    k.srd_ws(24, 18, "WGU")
    srd_ws_s(k, 28, 18, 70, XC_SZ)
    srd_ws_s(k, 32, 18, 71, ST_SZ)
    k.srd_ws(40, 18, "HC")
    k.e("v_lshlrev_b32 v3, 4, v2")
    k.e(f"s_mul_i32 s44, s23, {WGU_CB}")
    k.e("s_mul_i32 s45, s20, 4608")
    k.e("s_add_u32 s43+1, s44, s45".replace("s43+1", "s50"))
    k.e("s_mul_i32 s46, s21, 36864")
    k.e("s_mul_i32 s52, s20, 1152")
    k.e(f"s_add_u32 s51, s44, {36*9216}")
    k.e("s_add_u32 s51, s51, s52")
    NST = 9
    ACC = 112
    BFB = 16
    AFB = 80
    XB = 104
    NF, DEP = 6, 4
    for s_ in range(5):
        if s_ == 0:
            k.e("v_mov_b32 v4, v3")
        else:
            k.e(f"v_add_u32 v{4+s_}, {s_*STG}, v3")

    pend = []

    def dma_ops(st_):
        slot = st_ % 4
        ops = []
        for e_ in range(4):
            def f(e_=e_):
                k.e(f"s_add_u32 m0, s45, {slot*STG}")
                k.e(f"s_add_u32 s47, s50, {st_*STG}")
                k.vm(f"buffer_load_dwordx4 v3, s[24:27], s47 offen offset:{e_*1024} lds", ("d", st_))
            ops.append(f)
        def f5():
            k.e(f"s_add_u32 m0, s45, {slot*STG + 4096}")
            k.e(f"s_add_u32 s47, s50, {st_*STG + 4096}")
            k.e("s_mov_b32 exec_hi, 0")
            k.vm("buffer_load_dwordx4 v3, s[24:27], s47 offen lds", ("d", st_))
            k.e("s_mov_b64 exec, -1")
        ops.append(f5)
        return ops

    def ext_ops():
        def f1():
            k.e(f"s_add_u32 m0, s52, {EXT}")
            k.e("s_nop 0")
            k.vm("buffer_load_dwordx4 v3, s[24:27], s51 offen lds", ("d", "x"))
        def f2():
            k.e(f"s_add_u32 m0, s52, {EXT}")
            k.e("s_mov_b64 exec, 0xff")
            k.vm("buffer_load_dwordx4 v3, s[24:27], s51 offen offset:1024 lds", ("d", "x"))
            k.e("s_mov_b64 exec, -1")
        return [f1, f2]

    def b_ops(st_):
        ops = []
        for j in range(4):
            def f(j=j):
                rg = BFB + (st_ % 4) * 16 + j * 4
                k.e(f"s_add_u32 s47, s46, {st_*4096}")
                k.vm(f"buffer_load_dwordx4 v[{rg}:{rg+3}], v3, s[28:31], s47 offen offset:{j*1024}", ("b", st_))
            ops.append(f)
        return ops

    STB = 64

    for f in dma_ops(0) + b_ops(0) + dma_ops(1):
        f()
    k.e("v_and_b32 v9, 31, v2")
    k.e("v_lshrrev_b32 v10, 5, v2")
    k.e("v_lshlrev_b32 v10, 17, v10")
    k.e("v_lshl_add_u32 v9, v9, 3, v10")
    k.e("s_lshl_b32 s53, s21, 8")
    for a in range(144):
        k.e(f"v_mov_b32 v{ACC+a}, 0")

    def st_ops():
        ops = []
        for i in range(8):
            def f(i=i):
                k.e(f"s_add_u32 s57, s53, {i*16384}")
                k.vm(f"buffer_load_dwordx2 v[{STB+2*i}:{STB+2*i+1}], v9, s[32:35], s57 offen", "st")
            ops.append(f)
        return ops

    def st_finish():
        k.wait_vm("st")
        stats_finish(k, STB, 12, 10, 13, 14, 15)
        k.e("v_rcp_f32 v11, v10")
        k.e("v_xor_b32 v12, 0x80000000, v12")
        k.e("v_mul_f32 v11, 0xbfb8aa3b, v11")
        k.e("v_lshrrev_b32 v13, 16, v12")
        k.e("v_or_b32 v14, v12, v13")
        k.e(f"v_mov_b32 v{XB}, v14")
        k.e(f"v_mov_b32 v{XB+1}, v13")
        k.e(f"v_mov_b32 v{XB+2}, v14")
        k.e(f"v_mov_b32 v{XB+3}, v13")
    k.stamp(1)
    k.wait_vm(("d", 0))
    k.e("s_barrier")
    k.stamp(2)
    pend += b_ops(1) + dma_ops(2) + st_ops() + b_ops(2) + dma_ops(3) + ext_ops()

    seq = []
    for st_ in range(7):
        for kk in range(4):
            for ft in range(9):
                seq.append((st_, kk, ft))
    NMAIN = len(seq)
    for ft in range(9):
        for st_ in (7, 8):
            for kk in range(4):
                seq.append((st_, kk, ft))
        seq.append(("x", 0, ft))
    total = len(seq)

    def aread(m):
        st_, kk, ft = seq[m]
        rg = AFB + (m % NF) * 4
        if st_ == "x":
            k.ds(f"ds_read_b128 v[{rg}:{rg+3}], v8 offset:{ft*1024}", m)
        else:
            k.ds(f"ds_read_b128 v[{rg}:{rg+3}], v{4 + st_ % 4} offset:{(kk*9+ft)*1024}", m)

    def stage_sync(st_):
        while pend:
            pend.pop(0)()
        if st_ == 7:
            k.wait_vm([("d", 7), ("d", 8), ("d", "x")])
        else:
            k.wait_vm(("d", st_))
        k.e("s_barrier")
        if st_ == 1:
            st_finish()
        if st_ >= 2 and st_ + 2 < NST:
            pend.extend(dma_ops(st_ + 2))
        if st_ >= 1 and st_ + 2 < NST:
            pend.extend(b_ops(st_ + 2))

    k.e("s_mul_i32 s48, s21, 294912")
    k.e("s_mul_i32 s49, s23, 9216")
    k.e("s_add_u32 s48, s48, s49")

    def epi(ft):
        a = ACC + ft * 16
        t = 32 + (ft % 2) * 12
        ins = []
        for j in range(8):
            ins.append(f"v_mul_f32 v{t+j}, v{a+j}, v11")
        for j in range(8):
            ins.append(f"v_exp_f32 v{t+j}, v{t+j}")
        for j in range(8):
            ins.append(f"v_fma_f32 v{t+j}, v{t+j}, v10, v10")
        for j in range(8):
            ins.append(f"v_rcp_f32 v{t+j}, v{t+j}")
        for j in range(8):
            ins.append(f"v_mul_f32 v{t+j}, v{t+j}, v{a+8+j}")
        for j in range(4):
            ins.append(f"v_cvt_pk_bf16_f32 v{t+8+j}, v{t+2*j}, v{t+2*j+1}")
        ins.append(("store", t + 8, ft))
        return ins

    def emit_epi(ins):
        if isinstance(ins, tuple):
            _, rg, ft = ins
            k.vm(f"buffer_store_dwordx4 v[{rg}:{rg+3}], v3, s[40:43], s48 offen {STP}", ("o", ft))
            k.e("s_add_u32 s48, s48, 1024")
        else:
            k.e(ins)

    for m in range(DEP):
        aread(m)
    epq = []
    for m in range(total):
        nxt = m + DEP
        if nxt < total:
            if nxt < NMAIN and nxt % 36 == 0:
                stage_sync(nxt // 36)
            if nxt == NMAIN:
                stage_sync(7)
            aread(nxt)
        st_, kk, ft = seq[m]
        if m < NMAIN:
            if m % 36 == 0:
                k.wait_vm(("b", st_))
        elif m == NMAIN:
            k.wait_vm([("b", 7), ("b", 8)])
            k.stamp(3)
        k.wait_ds(m)
        af = AFB + (m % NF) * 4
        bf = XB if st_ == "x" else BFB + (st_ % 4) * 16 + kk * 4
        acc = ACC + ft * 16
        k.e(f"v_mfma_f32_32x32x16_bf16 v[{acc}:{acc+15}], v[{af}:{af+3}], v[{bf}:{bf+3}], v[{acc}:{acc+15}]")
        if pend and (m % 3 == 2 or m < 36):
            pend.pop(0)()
        if m >= NMAIN:
            r = (m - NMAIN) % 9
            if r == 8:
                while epq:
                    emit_epi(epq.pop(0))
                epq = epi(ft)
            elif r >= 3:
                for _ in range(9):
                    if epq:
                        emit_epi(epq.pop(0))
    k.e("s_nop 15")
    while epq:
        emit_epi(epq.pop(0))
    k.stamp(4)
    if PROF:
        k.wait_vm_all()
    k.stamp(5)
    k.stamp_store(3, 18, 20)
    k.label(Lend)
    return k, 256, 512, 4 * STG + 9216


def build():
    def mv(*pairs):
        return [f"s_mov_b32 s{r}, {v}" for r, v in pairs]
    X = lambda i: WS[f"XC{i}"][0]
    T = lambda i: WS[f"ST{i}"][0]
    kh1 = gen_kh_full(True)
    kh = gen_kh_full(False); ks = gen_ks(); kg = gen_kg(); kd = gen_kd()
    ent = {
        "kh1": [("kh1_kernel", [])],
        "kh": [("kh2_kernel", mv((70, X(2)), (71, T(2))))],
        "ks": [("ks1_kernel", mv((70, X(0)), (71, X(1)), (72, T(1)))), ("ks2_kernel", mv((70, X(2)), (71, X(3)), (72, T(3))))],
        "kg": [("kg1_kernel", mv((70, X(1)), (71, T(1)))), ("kg2_kernel", mv((70, X(3)), (71, T(3))))],
        "kd": [("kd1_kernel", mv((70, X(1)), (71, X(2)), (72, T(2)), (73, 0))), ("kd2_kernel", mv((70, X(3)), (71, X(2)), (72, T(2)), (73, 1)))],
    }
    if PROF:
        idx = {"kh1_kernel": 0, "ks1_kernel": 1, "kg1_kernel": 2, "kd1_kernel": 3, "kh2_kernel": 4, "ks2_kernel": 5, "kg2_kernel": 6, "kd2_kernel": 7}
        for kk_, lst in ent.items():
            for nm, ins in lst:
                ins.append(f"s_mov_b32 s74, {idx[nm]*512*256}")
    order = [("kh1_kernel", kh1), ("ks1_kernel", ks), ("kg1_kernel", kg), ("kd1_kernel", kd),
             ("kh2_kernel", kh), ("ks2_kernel", ks), ("kg2_kernel", kg), ("kd2_kernel", kd)]
    head = ["; generated by dev/gen3.py -- FNet/GLU interleaved layers, launch list"]
    for nm, (k, grid, block, lds) in order:
        head.append(f"; @launch kernel={nm} grid=({grid},1,1) block=({block},1,1) lds={lds}")
    out = head + ['.amdgcn_target "amdgcn-amd-amdhsa--gfx950"', ".text"]
    descs = []
    for kk_ in (kh1, kh, ks, kg, kd):
        t, ds_ = ktext(kk_[0], ent[kk_[0].name])
        out.append(t); descs += ds_
    out.append('.section .rodata,"a"')
    for d in descs:
        out.append(".p2align 6")
        out.append(d)
    return "\n".join(out) + "\n"


if __name__ == "__main__":
    path = sys.argv[1] if len(sys.argv) > 1 else "interleave_layers__spectral_fnet__glu_gated_glu__prompt.s"
    open(path, "w").write(build())
    print("wrote", path, "ws bytes", WS_TOTAL)
```

```python
import sys

S, D, F = 2048, 576, 4608
import os
PROF = bool(int(os.environ.get("PROF", "0")))
NW_T1 = 8

XC_SZ = S * D * 2
ST_SZ = S * 16 * 2 * 4
PADH = int(os.environ.get("PADH", "0")); PADW = int(os.environ.get("PADW", "0")); PADA = int(os.environ.get("PADA", "0"))
ABJ = 256 * 1152 + PADA
HCB = 576 * 512 + PADH
WDJ = 576 * 1152 + PADW
AB_SZ = 16 * ABJ
HC_SZ = 64 * HCB
WGU_SZ = 32 * 37 * 9 * 1024
WGU_CB = 37 * 9216
WD_SZ = 8 * WDJ
CS_SZ = 288 * 2 * 2 * 8 * 4
RS_SZ = 2 * 8 * 80 * 4


def _al(x, a=4096):
    return (x + a - 1) // a * a


_off = 0
WS = {}
for name, sz in [("XC0", XC_SZ), ("XC1", XC_SZ), ("XC2", XC_SZ), ("XC3", XC_SZ),
                 ("ST0", ST_SZ), ("ST1", ST_SZ), ("ST2", ST_SZ), ("ST3", ST_SZ),
                 ("AB", AB_SZ), ("HC", HC_SZ), ("WGU", WGU_SZ), ("WD", WD_SZ),
                 ("CS", CS_SZ), ("RS", RS_SZ), ("PART", 4*128*4*9216*2), ("LC", XC_SZ), ("FLG", 4*512*128), ("AB2", AB_SZ), ("HC2", HC_SZ), ("DBG", 16*512*256)]:
    WS[name] = (_off, sz)
    _off += _al(sz + 4096)
WS_TOTAL = _off

KA = dict(x=0, seq_re=8, seq_im=16, hid_re=24, hid_im=32, bx=40, wg=48, wu=56, wd=64, out=72, dbg=80, ws=88)


class Kern:
    def __init__(self, name, nvgpr, nagpr=0, nsgpr=100):
        self.name = name
        self.L = []
        self.vq = []
        self.lq = []
        self.nvgpr = nvgpr
        self.nagpr = nagpr
        self.nsgpr = nsgpr
        self.lab = 0

    def e(self, s):
        self.L.append("    " + s)

    def c(self, s):
        self.L.append("    ; " + s)

    def label(self, s):
        self.L.append(s + ":")

    def newlabel(self, p="L"):
        self.lab += 1
        return f"{self.name}_{p}{self.lab}"

    def vm(self, s, tag):
        self.e(s)
        self.vq.append(tag)
        assert len(self.vq) <= 63, f"too many vmem outstanding in {self.name}"

    def wait_vm(self, tags):
        if not isinstance(tags, (list, set)):
            tags = [tags]
        idx = -1
        for i, t in enumerate(self.vq):
            if t in tags:
                idx = i
        if idx < 0:
            return
        n = len(self.vq) - 1 - idx
        self.e(f"s_waitcnt vmcnt({n})")
        self.vq = self.vq[idx + 1:]

    def wait_vm_all(self):
        self.e("s_waitcnt vmcnt(0)")
        self.vq = []

    def ds(self, s, tag):
        self.e(s)
        self.lq.append(tag)

    def wait_ds(self, tags):
        if not isinstance(tags, (list, set)):
            tags = [tags]
        idx = -1
        for i, t in enumerate(self.lq):
            if t in tags:
                idx = i
        if idx < 0:
            return
        n = len(self.lq) - 1 - idx
        assert n <= 15
        self.e(f"s_waitcnt lgkmcnt({n})")
        self.lq = self.lq[idx + 1:]

    def wait_ds_all(self):
        self.e("s_waitcnt lgkmcnt(0)")
        self.lq = []

    def stamp(self, i):
        if not PROF:
            return
        self.e("s_waitcnt lgkmcnt(0)")
        self.lq = []
        self.e(f"s_memtime s[{80+2*i}:{81+2*i}]")
        if i == 0:
            self.e("s_memrealtime s[94:95]")
        self.e("s_waitcnt lgkmcnt(0)")
        self.nst = max(getattr(self, "nst", 0), i + 1)

    def stamp_store(self, kidx, wsbase, swave):
        if not PROF:
            return
        self.e("s_mov_b64 exec, -1")
        self.e("s_memrealtime s[96:97]")
        self.srd_ws(76, wsbase, "DBG")
        self.e("s_waitcnt lgkmcnt(0)")
        self.e(f"s_lshl_b32 s98, s2, 8")
        self.e(f"s_lshl_b32 s99, s{swave}, 5")
        self.e("s_add_u32 s98, s98, s99")
        self.e("s_add_u32 s98, s98, s74")
        self.e("v_mov_b32 v1, 0")
        for i in range(self.nst):
            self.e(f"v_mov_b32 v0, s{80+2*i}")
            self.e(f"buffer_store_dword v0, v1, s[76:79], s98 offen offset:{4*i}")
        self.e("v_mov_b32 v0, s96")
        self.e(f"buffer_store_dword v0, v1, s[76:79], s98 offen offset:28")
        self.e("v_mov_b32 v0, s94")
        self.e(f"buffer_store_dword v0, v1, s[76:79], s98 offen offset:24")

    def srd_ptr(self, d, base, nbytes):
        self.e(f"s_mov_b32 s{d}, s{base}")
        self.e(f"s_and_b32 s{d+1}, s{base+1}, 0xffff")
        self.e(f"s_mov_b32 s{d+2}, {nbytes}")
        self.e(f"s_mov_b32 s{d+3}, 0x00020000")

    def srd_ws(self, d, wsbase, region):
        off, sz = WS[region]
        self.e(f"s_add_u32 s{d}, s{wsbase}, {off}")
        self.e(f"s_addc_u32 s{d+1}, s{wsbase+1}, 0")
        self.e(f"s_and_b32 s{d+1}, s{d+1}, 0xffff")
        self.e(f"s_mov_b32 s{d+2}, {sz}")
        self.e(f"s_mov_b32 s{d+3}, 0x00020000")

    def text(self):
        tot = self.nvgpr if self.nagpr == 0 else (self.nvgpr + 3) // 4 * 4 + self.nagpr
        acc = (self.nvgpr + 3) // 4 * 4
        out = [f".globl {self.name}", ".p2align 8", f".type {self.name},@function", f"{self.name}:"]
        out += self.L
        out += ["    s_endpgm"]
        desc = [f".amdhsa_kernel {self.name}",
                f"  .amdhsa_next_free_vgpr {tot}",
                f"  .amdhsa_next_free_sgpr {100 if PROF else self.nsgpr}",
                f"  .amdhsa_accum_offset {acc}",
                "  .amdhsa_group_segment_fixed_size 0",
                "  .amdhsa_kernarg_size 96",
                "  .amdhsa_user_sgpr_count 2",
                "  .amdhsa_user_sgpr_kernarg_segment_ptr 1",
                "  .amdhsa_system_sgpr_workgroup_id_x 1",
                ".end_amdhsa_kernel"]
        return "\n".join(out), "\n".join(desc)


def R(kind, i, n=1):
    if n == 1:
        return f"{kind}{i}"
    return f"{kind}[{i}:{i+n-1}]"


def unpack_sum(k, src, lo, hi, sacc, qacc):
    k.e(f"v_lshlrev_b32 v{lo}, 16, v{src}")
    k.e(f"v_and_b32 v{hi}, 0xffff0000, v{src}")
    k.e(f"v_add_f32 v{sacc}, v{sacc}, v{lo}")
    if qacc is not None:
        k.e(f"v_fmac_f32 v{qacc}, v{lo}, v{lo}")
    k.e(f"v_add_f32 v{sacc}, v{sacc}, v{hi}")
    if qacc is not None:
        k.e(f"v_fmac_f32 v{qacc}, v{hi}, v{hi}")


def xlane_add(k, val, tmp, addr, lane, mask):
    k.e(f"v_xor_b32 v{addr}, {mask}, v{lane}")
    k.e(f"v_lshlrev_b32 v{addr}, 2, v{addr}")
    k.e(f"ds_bpermute_b32 v{tmp}, v{addr}, v{val}")
    k.e("s_waitcnt lgkmcnt(0)")
    k.e(f"v_add_f32 v{val}, v{val}, v{tmp}")


def slotmap_v(k, dd, out, t0, t1):
    k.e(f"v_and_b32 v{out}, 0x23, v{dd}")
    k.e(f"v_bfe_u32 v{t0}, v{dd}, 2, 1")
    k.e(f"v_lshl_or_b32 v{out}, v{t0}, 4, v{out}")
    k.e(f"v_bfe_u32 v{t0}, v{dd}, 3, 2")
    k.e(f"v_lshl_or_b32 v{out}, v{t0}, 2, v{out}")
    k.e(f"v_cmp_gt_u32 vcc, 64, v{dd}")
    k.e("s_nop 1")
    k.e(f"v_cndmask_b32 v{out}, v{dd}, v{out}, vcc")


NA_, NB_, NC_, ND_ = 64, 36, 144, 144


def gen_k0():
    k = Kern("k0_kernel", 64, 0, 64)
    total = NA_ + NB_ + NC_ + ND_
    Lend = "k0_end"
    k.e(f"s_cmp_ge_u32 s2, {total}")
    k.e(f"s_cbranch_scc1 {Lend}")
    k.e("s_load_dwordx2 s[4:5], s[0:1], 0")
    k.e("s_load_dwordx4 s[8:11], s[0:1], 24")
    k.e("s_load_dwordx4 s[12:15], s[0:1], 48")
    k.e("s_load_dwordx2 s[16:17], s[0:1], 64")
    k.e("s_load_dwordx2 s[18:19], s[0:1], 88")
    k.e("v_lshrrev_b32 v1, 6, v0")
    k.e("v_and_b32 v2, 63, v0")
    k.e("v_readfirstlane_b32 s20, v1")
    k.e("s_waitcnt lgkmcnt(0)")
    k.e(f"s_cmp_lt_u32 s2, {NC_}")
    k.e("s_cbranch_scc1 k0_roleC")
    k.e(f"s_cmp_lt_u32 s2, {NC_ + ND_}")
    k.e("s_cbranch_scc1 k0_roleD")
    k.e(f"s_cmp_lt_u32 s2, {NC_ + ND_ + NA_}")
    k.e("s_cbranch_scc1 k0_roleA")
    k.e("s_branch k0_roleB")

    k.label("k0_roleA")
    k.e(f"s_sub_u32 s21, s2, {NC_ + ND_}")
    k.srd_ptr(24, 4, XC_SZ)
    k.srd_ws(28, 18, "XC0")
    k.srd_ws(32, 18, "ST0")
    k.e("v_and_b32 v3, 31, v0")
    k.e("v_lshrrev_b32 v4, 5, v0")
    k.e("v_and_b32 v5, 3, v3")
    k.e("v_bfe_u32 v6, v3, 2, 2")
    k.e("v_lshl_or_b32 v5, v6, 3, v5")
    k.e("v_bfe_u32 v6, v3, 4, 1")
    k.e("v_lshl_or_b32 v5, v6, 2, v5")
    k.e("s_movk_i32 s22, 1152")
    k.e("v_mul_lo_u32 v5, v5, s22")
    k.e("v_mul_u32_u24 v6, 144, v4")
    k.e("v_add_u32 v5, v5, v6")
    k.e("s_mul_i32 s23, s21, 36864")
    for it in range(9):
        k.e(f"buffer_load_dwordx4 v[{16+4*it}:{19+4*it}], v5, s[24:27], s23 offen offset:{16*it}")
    k.e("v_mul_u32_u24 v6, 4608, v4")
    k.e("v_lshl_add_u32 v6, v3, 4, v6")
    k.e("v_add_u32 v7, 2048, v6")
    k.e("v_mov_b32 v8, 0")
    k.e("v_mov_b32 v9, 0")
    k.e("s_waitcnt vmcnt(0)")
    for it in range(9):
        vo, im = (6, it * 512) if it < 4 else (7, (it - 4) * 512)
        k.e(f"buffer_store_dwordx4 v[{16+4*it}:{19+4*it}], v{vo}, s[28:31], s23 offen offset:{im}")
    for r in range(36):
        unpack_sum(k, 16 + r, 10, 11, 8, 9)
    k.e("v_lshlrev_b32 v12, 3, v3")
    k.e("v_lshl_add_u32 v12, v4, 15, v12")
    k.e("s_lshl_b32 s23, s21, 8")
    k.e("v_mov_b32 v10, 0")
    k.e("v_mov_b32 v11, 0")
    k.e("buffer_store_dwordx2 v[8:9], v12, s[32:35], s23 offen")
    k.e("v_add_u32 v12, 16384, v12")
    k.e("buffer_store_dwordx2 v[10:11], v12, s[32:35], s23 offen")
    k.e(f"s_branch {Lend}")

    k.label("k0_roleB")
    k.e(f"s_sub_u32 s21, s2, {NC_ + ND_ + NA_}")
    k.e("s_cmp_ge_u32 s21, 18")
    k.e("s_cselect_b32 s22, 1, 0")
    k.e("s_cselect_b32 s4, s10, s8")
    k.e("s_cselect_b32 s5, s11, s9")
    k.e("s_mul_i32 s23, s22, 18")
    k.e("s_sub_u32 s21, s21, s23")
    k.srd_ptr(24, 4, D * D * 2)
    k.srd_ws(28, 18, "RS")
    k.e("s_lshl_b32 s23, s21, 5")
    k.e("s_lshl_b32 s36, s20, 3")
    k.e("s_add_u32 s23, s23, s36")
    k.e("v_lshrrev_b32 v3, 3, v2")
    k.e("v_add_u32 v3, s23, v3")
    k.e("v_and_b32 v4, 7, v2")
    k.e("s_movk_i32 s36, 1152")
    k.e("v_mul_lo_u32 v5, v3, s36")
    k.e("v_lshl_add_u32 v5, v4, 4, v5")
    for it in range(9):
        k.e(f"buffer_load_dwordx4 v[{16+4*it}:{19+4*it}], v5, s[24:27], 0 offen offset:{128*it}")
    k.e("v_mov_b32 v8, 0")
    k.e("s_waitcnt vmcnt(0)")
    for r in range(36):
        unpack_sum(k, 16 + r, 10, 11, 8, None)
    for m in (1, 2, 4):
        xlane_add(k, 8, 10, 11, 2, m)
    k.e("v_mul_u32_u24 v6, 911, v3")
    k.e("v_lshrrev_b32 v6, 16, v6")
    k.e("v_mul_u32_u24 v7, 72, v6")
    k.e("v_sub_u32 v7, v3, v7")
    slotmap_v(k, 7, 12, 13, 14)
    k.e("v_mul_u32_u24 v6, 80, v6")
    k.e("v_add_u32 v6, v6, v12")
    k.e("v_lshlrev_b32 v6, 2, v6")
    k.e("s_mul_i32 s23, s22, 2560")
    k.e("v_cmp_eq_u32 vcc, 0, v4")
    k.e("s_and_saveexec_b64 s[38:39], vcc")
    k.e("buffer_store_dword v8, v6, s[28:31], s23 offen")
    k.e(f"s_branch {Lend}")

    k.label("k0_roleC")
    k.e("s_cmp_ge_u32 s2, 72")
    k.e("s_cselect_b32 s22, 1, 0")
    k.e("s_cselect_b32 s4, s14, s12")
    k.e("s_cselect_b32 s5, s15, s13")
    k.e("s_mul_i32 s23, s22, 72")
    k.e("s_sub_u32 s21, s2, s23")
    k.srd_ptr(24, 4, D * F * 2)
    k.srd_ws(28, 18, "WGU")
    k.srd_ws(32, 18, "CS")
    k.e("v_lshrrev_b32 v3, 3, v2")
    k.e("v_and_b32 v4, 7, v2")
    k.e("v_mul_u32_u24 v5, 9216, v3")
    k.e("v_lshl_add_u32 v5, v4, 4, v5")
    k.e("s_mul_i32 s36, s20, 73728")
    k.e("s_lshl_b32 s37, s21, 7")
    k.e("s_add_u32 s36, s36, s37")
    k.e("s_lshl_b32 s37, s20, 10")
    for i in range(18):
        k.e(f"s_add_u32 m0, s37, {4096*i}")
        k.e("s_nop 0")
        k.e("buffer_load_dwordx4 v5, s[24:27], s36 offen lds")
        k.e(f"s_add_u32 s36, s36, {4*73728}")
    k.e("v_lshrrev_b32 v3, 4, v2")
    k.e("v_and_b32 v4, 15, v2")
    k.e("v_bfe_u32 v6, v2, 2, 2")
    k.e("v_lshlrev_b32 v7, 10, v3")
    k.e("v_lshl_add_u32 v7, v6, 7, v7")
    k.e("v_and_b32 v6, 1, v2")
    k.e("v_lshl_add_u32 v7, v6, 4, v7")
    k.e("v_bfe_u32 v6, v2, 1, 1")
    k.e("v_lshl_add_u32 v7, v6, 3, v7")
    k.e("s_lshl_b32 s36, s20, 5")
    k.e("v_add_u32 v7, s36, v7")
    k.e("v_add_u32 v8, 0x8000, v7")
    k.e("s_lshl_b32 s36, s21, 2")
    k.e("s_add_u32 s36, s36, s20")
    k.e("s_mul_i32 s37, s36, 7282")
    k.e("s_lshr_b32 s37, s37, 16")
    k.e("s_mul_i32 s38, s37, 9")
    k.e("s_sub_u32 s38, s36, s38")
    k.e(f"s_mul_i32 s39, s37, {WGU_CB}")
    k.e("s_lshl_b32 s38, s38, 10")
    k.e("s_add_u32 s39, s39, s38")
    k.e("s_lshl_b32 s38, s22, 8")
    k.e("s_add_u32 s39, s39, s38")
    k.e("v_lshrrev_b32 v9, 1, v3")
    k.e("v_mul_u32_u24 v9, 9216, v9")
    k.e("v_and_b32 v6, 1, v3")
    k.e("v_lshl_add_u32 v9, v6, 9, v9")
    k.e("v_lshl_add_u32 v9, v4, 4, v9")
    k.e("v_mov_b32 v10, 0")
    k.e("s_waitcnt vmcnt(0)")
    k.e("s_barrier")
    for it in range(18):
        base, im = (7, it * 4096) if it < 8 else (8, (it - 8) * 4096)
        rg = 16 + 4 * (it % 8)
        k.e(f"ds_read_b64_tr_b16 v[{rg}:{rg+1}], v{base} offset:{im}")
        k.e(f"ds_read_b64_tr_b16 v[{rg+2}:{rg+3}], v{base} offset:{im+512}")
        k.e("s_waitcnt lgkmcnt(0)")
        k.e(f"buffer_store_dwordx4 v[{rg}:{rg+3}], v9, s[28:31], s39 offen")
        k.e(f"s_add_u32 s39, s39, 18432")
        for r in range(4):
            unpack_sum(k, rg + r, 11, 12, 10, None)
        if it % 8 == 7:
            k.e("s_waitcnt vmcnt(0)")
    xlane_add(k, 10, 11, 12, 2, 16)
    xlane_add(k, 10, 11, 12, 2, 32)
    k.e("v_cvt_pk_bf16_f32 v11, v10, v10")
    k.e("v_lshlrev_b32 v12, 16, v11")
    k.e("v_sub_f32 v13, v10, v12")
    k.e("v_cvt_pk_bf16_f32 v14, v13, v13")
    k.e("v_lshlrev_b32 v15, 16, v14")
    k.e("v_sub_f32 v13, v13, v15")
    k.e("v_cvt_pk_bf16_f32 v17, v13, v13")
    k.e("v_and_b32 v17, 0xffff, v17")
    k.e("v_and_b32 v16, 0xffff, v11")
    k.e("v_or_b32 v16, v16, v15")
    k.e("v_mov_b32 v18, 0")
    k.e("v_mov_b32 v19, 0")
    k.e("v_cmp_gt_u32 vcc, 16, v2")
    k.e("s_nop 1")
    k.e("v_cndmask_b32 v16, 0, v16, vcc")
    k.e("v_cndmask_b32 v17, 0, v17, vcc")
    k.e("v_lshlrev_b32 v11, 4, v4")
    k.e("v_lshl_add_u32 v11, v3, 9, v11")
    k.e("v_cmp_gt_u32 vcc, 32, v2")
    k.e("s_and_saveexec_b64 s[40:41], vcc")
    k.e("buffer_store_dwordx4 v[16:19], v11, s[28:31], s39 offen")
    k.e(f"s_branch {Lend}")

    k.label("k0_roleD")
    k.e(f"s_sub_u32 s21, s2, {NC_}")
    k.e("s_mul_i32 s22, s21, 7282")
    k.e("s_lshr_b32 s22, s22, 16")
    k.e("s_mul_i32 s23, s22, 9")
    k.e("s_sub_u32 s21, s21, s23")
    k.srd_ptr(24, 16, D * F * 2)
    k.srd_ws(28, 18, "WD")
    k.e("v_lshrrev_b32 v3, 3, v2")
    k.e("v_and_b32 v4, 7, v2")
    k.e("v_mul_u32_u24 v5, 1152, v3")
    k.e("v_lshl_add_u32 v5, v4, 4, v5")
    k.e(f"s_mul_i32 s36, s22, {288*1152}")
    k.e("s_mul_i32 s37, s20, 9216")
    k.e("s_add_u32 s36, s36, s37")
    k.e("s_lshl_b32 s37, s21, 7")
    k.e("s_add_u32 s36, s36, s37")
    k.e("s_lshl_b32 s37, s20, 10")
    for i in range(9):
        k.e(f"s_add_u32 m0, s37, {4096*i}")
        k.e("s_nop 0")
        k.e("buffer_load_dwordx4 v5, s[24:27], s36 offen lds")
        k.e(f"s_add_u32 s36, s36, {4*9216}")
    k.e("v_lshrrev_b32 v3, 4, v2")
    k.e("v_and_b32 v4, 15, v2")
    k.e("v_bfe_u32 v6, v2, 2, 2")
    k.e("v_lshlrev_b32 v7, 10, v3")
    k.e("v_lshl_add_u32 v7, v6, 7, v7")
    k.e("v_and_b32 v6, 3, v2")
    k.e("v_lshl_add_u32 v7, v6, 3, v7")
    k.e("s_lshl_b32 s36, s20, 5")
    k.e("v_add_u32 v7, s36, v7")
    k.e("s_lshl_b32 s36, s21, 6")
    k.e("s_lshl_b32 s37, s20, 4")
    k.e("s_add_u32 s36, s36, s37")
    k.e("v_add_u32 v8, s36, v4")
    k.e("v_mul_u32_u24 v9, 911, v8")
    k.e("v_lshrrev_b32 v9, 16, v9")
    k.e("v_mul_u32_u24 v10, 72, v9")
    k.e("v_sub_u32 v10, v8, v10")
    slotmap_v(k, 10, 11, 12, 13)
    k.e("s_mov_b32 s36, 663552")
    k.e("v_mul_lo_u32 v9, v9, s36")
    k.e("v_lshl_add_u32 v9, v11, 4, v9")
    k.e("v_mul_u32_u24 v12, 1152, v3")
    k.e("v_add_u32 v9, v9, v12")
    k.e(f"s_mul_i32 s39, s22, {36*1152}")
    k.e("s_waitcnt vmcnt(0)")
    k.e("s_barrier")
    for it in range(9):
        rg = 16 + 4 * it
        k.e(f"ds_read_b64_tr_b16 v[{rg}:{rg+1}], v7 offset:{it*4096}")
        k.e(f"ds_read_b64_tr_b16 v[{rg+2}:{rg+3}], v7 offset:{it*4096+512}")
    for it in range(9):
        rg = 16 + 4 * it
        k.e(f"s_waitcnt lgkmcnt({min(15, 2*(8-it))})")
        k.e(f"buffer_store_dwordx4 v[{rg}:{rg+3}], v9, s[28:31], s39 offen")
        k.e(f"s_add_u32 s39, s39, 4608")
    k.label(Lend)
    return k, total, 256, 73728


def srd_ws_s(k, d, wsbase, sreg, size):
    k.e(f"s_add_u32 s{d}, s{wsbase}, s{sreg}")
    k.e(f"s_addc_u32 s{d+1}, s{wsbase+1}, 0")
    k.e(f"s_and_b32 s{d+1}, s{d+1}, 0xffff")
    k.e(f"s_mov_b32 s{d+2}, {size}")
    k.e(f"s_mov_b32 s{d+3}, 0x00020000")


def ktext(k, entries):
    tot = k.nvgpr if k.nagpr == 0 else (k.nvgpr + 3) // 4 * 4 + k.nagpr
    acc = (k.nvgpr + 3) // 4 * 4
    out, descs = [], []
    for name, ins in entries:
        out += [f".globl {name}", ".p2align 8", f".type {name},@function", f"{name}:"]
        out += [" " + x for x in ins]
        out += [f" s_branch {k.name}_body"]
        descs.append("\n".join([f".amdhsa_kernel {name}",
                f"  .amdhsa_next_free_vgpr {tot}",
                f"  .amdhsa_next_free_sgpr {100 if PROF else k.nsgpr}",
                f"  .amdhsa_accum_offset {acc}",
                "  .amdhsa_group_segment_fixed_size 0",
                "  .amdhsa_kernarg_size 96",
                "  .amdhsa_user_sgpr_count 2",
                "  .amdhsa_user_sgpr_kernarg_segment_ptr 1",
                "  .amdhsa_system_sgpr_workgroup_id_x 1",
                ".end_amdhsa_kernel"]))
    out += [".p2align 6", f"{k.name}_body:"]
    out += [x.replace("    ", " ", 1) for x in k.L]
    out += [" s_endpgm"]
    return "\n".join(out), descs


CPRE = int(os.environ.get("CPRE", "0"))


def code_prefetch(k, name, dummy, srd, vtmp, nwaves, swave, track=True):
    if not CPRE:
        return
    lab = k.newlabel("pc")
    k.e(f"s_getpc_b64 s[{srd}:{srd+1}]")
    k.label(lab)
    k.e(f"s_sub_u32 s{srd}, s{srd}, {lab}-{name}_body")
    k.e(f"s_subb_u32 s{srd+1}, s{srd+1}, 0")
    k.e(f"s_and_b32 s{srd+1}, s{srd+1}, 0xffff")
    k.e(f"s_mov_b32 s{srd+2}, {name}_end-{name}_body")
    k.e(f"s_mov_b32 s{srd+3}, 0x00020000")
    k.e(f"v_lshlrev_b32 v{vtmp}, 4, v0")
    k.e("s_bfe_u32 s3, s2, 0x20003")
    k.e(f"s_mul_i32 s3, s3, {nwaves*1024}")
    for j in range(CPRE):
        ins = f"buffer_load_dwordx4 v[{dummy}:{dummy+3}], v{vtmp}, s[{srd}:{srd+3}], s3 offen"
        if track:
            k.vm(ins, "cp")
        else:
            k.e(ins)
        if j + 1 < CPRE:
            k.e(f"s_add_u32 s3, s3, {4*nwaves*1024}")

def stats_load(k, base, vaddr, srd, soff, tag=None):
    for i in range(8):
        k.e(f"s_add_u32 s57, s{soff}, {i*16384}")
        ins = f"buffer_load_dwordx2 v[{base+2*i}:{base+2*i+1}], v{vaddr}, s[{srd}:{srd+3}], s57 offen"
        if tag is None:
            k.e(ins)
        else:
            k.vm(ins, tag)


def stats_finish(k, base, vm_, vsd, t0, t1, t2):
    for j in range(1, 8):
        k.e(f"v_add_f32 v{base}, v{base}, v{base+2*j}")
        k.e(f"v_add_f32 v{base+1}, v{base+1}, v{base+2*j+1}")
    k.e(f"v_mov_b32 v{base+2}, v{base}")
    k.e(f"v_mov_b32 v{base+3}, v{base+1}")
    k.e("s_nop 1")
    k.e(f"v_permlane32_swap_b32 v{base}, v{base+2}")
    k.e(f"v_permlane32_swap_b32 v{base+1}, v{base+3}")
    k.e("s_nop 1")
    k.e(f"v_add_f32 v{base}, v{base}, v{base+2}")
    k.e(f"v_add_f32 v{base+1}, v{base+1}, v{base+3}")
    stats_core(k, base, vm_, vsd, t0, t1, t2)


def stats_core(k, base, vm_, vsd, t0, t1, t2):
    k.e(f"v_mov_b32 v{t0}, 0x3ae38e39")
    k.e(f"v_mul_f32 v{t1}, v{base}, v{t0}")
    k.e(f"v_mul_f32 v{t2}, v{base+1}, v{t0}")
    k.e(f"v_fma_f32 v{t2}, -v{t1}, v{t1}, v{t2}")
    k.e(f"v_max_f32 v{t2}, 0, v{t2}")
    k.e(f"v_cvt_pk_bf16_f32 v{t0}, v{t1}, v{t2}")
    k.e(f"v_lshlrev_b32 v{vm_}, 16, v{t0}")
    k.e(f"v_and_b32 v{t2}, 0xffff0000, v{t0}")
    k.e(f"v_add_f32 v{t2}, 0x3727c5ac, v{t2}")
    k.e(f"v_cvt_pk_bf16_f32 v{t0}, v{t2}, v{t2}")
    k.e(f"v_lshlrev_b32 v{t2}, 16, v{t0}")
    k.e(f"v_sqrt_f32 v{t2}, v{t2}")
    k.e("s_nop 0")
    k.e(f"v_cvt_pk_bf16_f32 v{t0}, v{t2}, v{t2}")
    k.e(f"v_lshlrev_b32 v{vsd}, 16, v{t0}")


NPF = int(os.environ.get('NPF', '0'))
STP = os.environ.get("STP", "sc1")


def gen_kh_full(first):
    name = "kh1" if first else "kh"
    k = Kern(name, 256, 0, 92)
    Lend = name + "_end"
    LDS_W = 8 * 9216
    SCR = LDS_W + 1024
    total = 256
    RPK = 77824
    k.e(f"s_cmp_ge_u32 s2, {total}")
    k.e(f"s_cbranch_scc1 {Lend}")
    k.e("s_load_dwordx4 s[8:11], s[0:1], 24")
    k.e("s_load_dwordx2 s[18:19], s[0:1], 88")
    if first:
        k.e("s_load_dwordx2 s[6:7], s[0:1], 0")
        k.e("s_load_dwordx4 s[12:15], s[0:1], 48")
        k.e("s_load_dwordx2 s[16:17], s[0:1], 64")
        k.e("s_load_dwordx4 s[60:63], s[0:1], 8")
    k.e("v_lshrrev_b32 v1, 6, v0")
    k.e("v_and_b32 v2, 63, v0")
    k.e("v_readfirstlane_b32 s20, v1")
    k.e("s_and_b32 s21, s2, 7")
    k.e("s_lshr_b32 s22, s2, 3")
    k.e("s_lshl_b32 s21, s21, 1")
    k.e("s_and_b32 s23, s22, 1")
    k.e("s_add_u32 s21, s21, s23")
    k.e("s_mov_b32 s55, s21")
    k.e("s_lshr_b32 s22, s22, 1")
    k.e("s_mov_b32 s54, s22")
    k.e("s_and_b32 s23, s22, 7")
    k.e("s_lshr_b32 s22, s22, 3")
    k.e("s_lshl_b32 s21, s21, 2")
    k.e("s_add_u32 s21, s21, s20")
    k.e("s_waitcnt lgkmcnt(0)")
    k.stamp(0)
    srd_ws_s(k, 76, 18, 73, 512*128)
    k.e("s_lshl_b32 s3, s2, 8")
    k.e("v_lshlrev_b32 v1, 2, v0")
    k.e("v_mov_b32 v3, 0")
    k.e("v_cmp_gt_u32 vcc, 64, v0")
    k.e("s_and_b64 exec, exec, vcc")
    k.e("buffer_store_dword v3, v1, s[76:79], s3 offen sc1")
    k.e("s_mov_b64 exec, -1")
    if first:
        k.e("s_cmp_ge_u32 s20, 4")
        k.e(f"s_cbranch_scc1 {name}_rep")
    k.e("s_cmp_eq_u32 s22, 1")
    k.e("s_cselect_b32 s4, s10, s8")
    k.e("s_cselect_b32 s5, s11, s9")
    k.srd_ptr(24, 4, D * D * 2)
    if first:
        k.srd_ptr(28, 6, XC_SZ)
        k.srd_ws(32, 18, "XC0")
    else:
        srd_ws_s(k, 28, 18, 70, XC_SZ)
        srd_ws_s(k, 32, 18, 71, ST_SZ)
    k.srd_ws(36, 18, "RS")
    srd_ws_s(k, 40, 18, 72, AB_SZ)
    k.e("v_lshrrev_b32 v3, 3, v2")
    k.e("v_and_b32 v4, 7, v2")
    k.e("v_lshrrev_b32 v5, 1, v3")
    k.e("v_xor_b32 v5, v5, v4")
    k.e("v_lshlrev_b32 v5, 4, v5")
    k.e("v_lshrrev_b32 v6, 2, v3")
    k.e("v_and_b32 v7, 3, v3")
    k.e("v_lshl_add_u32 v6, v6, 3, v7")
    k.e("v_mul_u32_u24 v6, 1152, v6")
    k.e("v_add_u32 v8, v6, v5")
    k.e("v_xor_b32 v7, 64, v5")
    k.e("v_add_u32 v9, v6, v7")
    k.e("v_mul_u32_u24 v6, 1152, v3")
    k.e("v_add_u32 v10, v6, v5")
    k.e("v_and_b32 v11, 15, v2")
    k.e("v_lshrrev_b32 v12, 4, v2")
    k.e("v_lshlrev_b32 v13, 9, v12")
    k.e("v_lshl_add_u32 v13, v11, 4, v13")
    k.e(f"s_mul_i32 s48, s23, {72*1152}")
    k.e("s_lshl_b32 s49, s20, 7")
    k.e("s_add_u32 s48, s48, s49")
    k.e("s_mul_i32 s49, s20, 9216")
    qc = lambda q: (32 * (q >> 2) + 16 * (q & 1) + 4 * ((q >> 1) & 1)) * 1152 if q < 8 else 64 * 1152

    def dma_kq(tag, track=True):
        for q in range(9):
            v = 8 + (q & 1) if q < 8 else 10
            k.e(f"s_add_u32 m0, s49, {1024*q}")
            k.e(f"s_add_u32 s50, s48, {qc(q)}")
            ins = f"buffer_load_dwordx4 v{v}, s[24:27], s50 offen lds"
            if track:
                k.vm(ins, tag)
            else:
                k.e(ins)
        k.e("s_add_u32 s48, s48, 512")
        k.e(f"s_add_u32 s49, s49, {4*9216}")

    AFR = 12
    AF = 16
    if first:
        k.e("v_lshrrev_b32 v14, 4, v2")
        k.e("v_bfe_u32 v15, v2, 2, 2")
        k.e("v_lshl_add_u32 v14, v14, 3, v15")
        k.e("v_mul_u32_u24 v14, 1152, v14")
        k.e("v_and_b32 v15, 3, v2")
        k.e("v_lshl_add_u32 v14, v15, 4, v14")
        k.e("v_add_u32 v15, 4608, v14")
        k.e("v_lshl_add_u32 v7, v11, 2, v12")
        k.e("s_lshl_b32 s50, s20, 11")
        k.e(f"s_add_u32 s50, s50, {RPK + 73728}")
        k.e("v_lshl_add_u32 v7, v7, 4, s50")
        k.e("v_lshl_add_u32 v5, v2, 4, s50")
    k.e("s_mul_i32 s44, s21, 36864")
    k.e("s_mov_b32 s45, s44")
    k.e("s_mov_b32 s46, s44")

    def aload(kb):
        for u in range(2):
            rg = AF + ((kb % AFR) * 2 + u) * 4
            if first:
                k.vm(f"buffer_load_dwordx4 v[{rg}:{rg+3}], v{14+u}, s[28:31], s44 offen offset:{64*kb}", ("a", kb))
            else:
                if kb % 2 == 0 and kb > 0 and u == 0:
                    k.e("s_add_u32 s45, s45, 4096")
                k.vm(f"buffer_load_dwordx4 v[{rg}:{rg+3}], v13, s[28:31], s45 offen offset:{(kb%2)*2048 + u*256}", ("a", kb))

    dma_kq("w0")
    aload(0); aload(1)
    dma_kq("w1")
    APRE = 11 if first else 6
    for kb_ in range(2, APRE):
        aload(kb_)
    ACC = 152
    for a in range(60 if first else 40):
        k.e(f"v_mov_b32 v{ACC+a}, 0")
    ONE = 212
    if first:
        for a in range(4):
            k.e(f"v_mov_b32 v{ONE+a}, 0x3f803f80")
        for a in list(range(220, 228)) + list(range(248, 256)):
            k.e(f"v_mov_b32 v{a}, 0")
    k.e("v_lshrrev_b32 v1, 1, v11")
    k.e("v_xor_b32 v1, v1, v12")
    k.e("v_lshlrev_b32 v1, 4, v1")
    k.e("v_lshl_add_u32 v216, v11, 7, v1")
    k.e("v_xor_b32 v217, 64, v216")
    k.e(f"v_add_u32 v218, {5*9216}, v216")
    k.e(f"v_add_u32 v219, {5*9216}, v217")
    if not first:
        k.e("v_and_b32 v224, 31, v2")
        k.e("v_lshrrev_b32 v225, 5, v2")
        k.e("v_lshlrev_b32 v225, 17, v225")
        k.e("v_lshl_add_u32 v225, v224, 3, v225")
        k.e("s_lshl_b32 s53, s21, 8")
        k.e("s_mul_i32 s47, s54, 320")
        k.e("v_lshlrev_b32 v226, 2, v11")
    k.stamp(1)
    k.wait_vm("w0")
    k.e("s_barrier")
    k.stamp(2)
    sets = [112, 132]

    def bread(kb):
        kq, half = (kb >> 1) % 8, kb & 1
        base = 216 + half + (2 if kq >= 5 else 0)
        kq_ = kq - 5 if kq >= 5 else kq
        sb = sets[kb & 1]
        for T in range(5):
            k.ds(f"ds_read_b128 v[{sb+4*T}:{sb+4*T+3}], v{base} offset:{kq_*9216 + T*2048}", ("b", kb))
    def aperm(kb):
        k.wait_vm(("a", kb))
        for u in range(2):
            rg = AF + ((kb % AFR) * 2 + u) * 4
            k.ds(f"ds_write_b128 v5, v[{rg}:{rg+3}] offset:{u*1024}", ("pw", kb))
        for u in range(2):
            rg = AF + ((kb % AFR) * 2 + u) * 4
            k.ds(f"ds_read_b128 v[{rg}:{rg+3}], v7 offset:{u*1024}", ("p", kb))
    if first:
        aperm(0)
    bread(0)
    for kb in range(18):
        if kb == 7:
            k.wait_vm("w1")
            k.e("s_barrier")
            k.e("s_and_b32 s50, s20, 1")
            k.e("s_cmp_eq_u32 s50, 1")
            k.e("s_cselect_b64 vcc, -1, 0")
            k.e("v_cndmask_b32 v1, v8, v9, vcc")
            k.e("s_lshl_b32 s50, s50, 4")
            k.e("s_lshr_b32 s51, s20, 1")
            k.e("s_lshl_b32 s51, s51, 2")
            k.e("s_add_u32 s50, s50, s51")
            k.e("s_mul_i32 s50, s50, 1152")
            k.e(f"s_mul_i32 s48, s23, {72*1152}")
            k.e("s_add_u32 s48, s48, 1024")
            k.e("s_add_u32 s50, s50, s48")
            k.e("s_lshl_b32 s51, s20, 10")
            k.e("s_mov_b32 m0, s51")
            k.e("s_nop 0")
            k.vm("buffer_load_dwordx4 v1, s[24:27], s50 offen lds", "w2")
            k.e("s_add_u32 m0, s51, 4096")
            k.e(f"s_add_u32 s50, s50, {32*1152}")
            k.vm("buffer_load_dwordx4 v1, s[24:27], s50 offen lds", "w2")
            k.e("s_mov_b32 m0, 8192")
            k.e(f"s_add_u32 s50, s48, {64*1152}")
            k.e("s_lshl_b32 s51, s20, 4")
            k.e("s_mov_b64 exec, 0xffff")
            k.e("s_lshl_b64 exec, exec, s51")
            k.vm("buffer_load_dwordx4 v10, s[24:27], s50 offen lds", "w2")
            k.e("s_mov_b64 exec, -1")
        if kb == 15:
            k.wait_vm("w2")
            k.e("s_barrier")
        if kb + APRE < 18:
            aload(kb + APRE)
        k.wait_ds(("b", kb))
        if kb + 1 < 18:
            if first:
                aperm(kb + 1)
            bread(kb + 1)
        if not first and kb == 14:
            stats_load(k, 16, 225, 32, 53, "st")
            for T in range(5):
                k.vm(f"buffer_load_dword v{192+4*T}, v226, s[36:39], s47 offen offset:{64*T}", "st")
        k.wait_vm(("a", kb))
        k.wait_ds(("b", kb))
        sb = sets[kb & 1]
        for u in range(2):
            af = AF + ((kb % AFR) * 2 + u) * 4
            for T in range(5):
                acc = ACC + (u * 5 + T) * 4
                k.e(f"v_mfma_f32_16x16x32_bf16 v[{acc}:{acc+3}], v[{af}:{af+3}], v[{sb+4*T}:{sb+4*T+3}], v[{acc}:{acc+3}]")
            if first and not os.environ.get("EXP_NOGRAM"):
                k.e(f"v_mfma_f32_16x16x32_bf16 v[{248+4*u}:{251+4*u}], v[{af}:{af+3}], v[{ONE}:{ONE+3}], v[{248+4*u}:{251+4*u}]")
                k.e(f"v_mfma_f32_16x16x32_bf16 v[{220+4*u}:{223+4*u}], v[{af}:{af+3}], v[{af}:{af+3}], v[{220+4*u}:{223+4*u}]")
    k.stamp(3)
    k.e("s_lshl_b32 s50, s20, 8")
    k.e(f"s_add_u32 s50, s50, {SCR}")
    if first:
        k.e("s_nop 7")
        k.e("v_and_b32 v228, 3, v11")
        for u in range(2):
            for base, dst in ((248 + 4 * u, 232 + 2 * u), (220 + 4 * u, 233 + 2 * u)):
                k.e(f"v_mov_b32 v{dst}, v{base}")
                for r in range(1, 4):
                    k.e(f"v_cmp_eq_u32 vcc, {r}, v228")
                    k.e("s_nop 1")
                    k.e(f"v_cndmask_b32 v{dst}, v{dst}, v{base+r}, vcc")
        k.e("v_lshrrev_b32 v229, 2, v11")
        k.e("v_lshl_add_u32 v230, v11, 3, s50")
        k.e("v_cmp_eq_u32 vcc, v229, v12")
        k.e("s_and_saveexec_b64 s[52:53], vcc")
        k.e("ds_write_b64 v230, v[232:233]")
        k.e("ds_write_b64 v230, v[234:235] offset:128")
        k.e("s_mov_b64 exec, -1")
        k.e("v_and_b32 v224, 31, v2")
        k.e("v_lshl_add_u32 v230, v224, 3, s50")
        k.e("s_waitcnt lgkmcnt(0)")
        k.e("ds_read_b64 v[228:229], v230")
        k.e("s_waitcnt lgkmcnt(0)")
        stats_core(k, 228, 232, 233, 234, 235, 236)
    else:
        k.wait_vm("st")
        stats_finish(k, 16, 232, 233, 234, 235, 236)
    k.e("v_rcp_f32 v233, v233")
    k.e("s_nop 0")
    k.e("v_mul_f32 v232, v232, v233")
    k.e("v_lshl_add_u32 v226, v224, 3, s50")
    k.e("ds_write_b64 v226, v[232:233]")
    k.e("v_lshl_add_u32 v226, v12, 5, s50")
    k.e("s_waitcnt lgkmcnt(0)")
    k.lq = []
    if first:
        k.e("s_barrier")
        k.e("v_lshlrev_b32 v227, 2, v11")
        k.e(f"v_add_u32 v227, {SCR + 1024}, v227")
        for T in range(5):
            k.e(f"ds_read_b32 v{ACC+40+4*T}, v227 offset:{64*T}")
    k.e("ds_read_b128 v[232:235], v226")
    k.e("ds_read_b128 v[236:239], v226 offset:16")
    k.e("ds_read_b128 v[240:243], v226 offset:128")
    k.e("ds_read_b128 v[244:247], v226 offset:144")
    k.e("v_mul_u32_u24 v15, 1152, v12")
    k.e("v_lshl_add_u32 v15, v11, 4, v15")
    k.e(f"s_mul_i32 s46, s54, {ABJ}")
    k.e("s_mul_i32 s47, s21, 4608")
    k.e("s_add_u32 s46, s46, s47")
    k.e("s_waitcnt lgkmcnt(0)")
    if first:
        k.e("s_add_u32 s51, s55, s20")
        k.e("s_mul_i32 s47, s54, 320")
        k.e("s_cmp_eq_u32 s51, 0")
        k.e("s_cselect_b32 s47, s47, 0x7f000000")
        k.e("v_lshlrev_b32 v227, 2, v11")
        for T in range(5):
            k.e(f"buffer_store_dword v{ACC+40+4*T}, v227, s[36:39], s47 offen offset:{64*T}")
    for T in range(5):
        a0, a1, rr = ACC + T * 4, ACC + 20 + T * 4, ACC + 40 + T * 4
        for u, a in ((0, a0), (1, a1)):
            for r in range(4):
                sr = 232 + 8 * u + 2 * r
                k.e(f"v_mul_f32 v{a+r}, v{a+r}, v{sr+1}")
                k.e(f"v_fma_f32 v{a+r}, -v{sr}, v{rr}, v{a+r}")
        o = 48 + 4 * T
        k.e(f"v_cvt_pk_bf16_f32 v{o}, v{a0}, v{a0+1}")
        k.e(f"v_cvt_pk_bf16_f32 v{o+1}, v{a0+2}, v{a0+3}")
        k.e(f"v_cvt_pk_bf16_f32 v{o+2}, v{a1}, v{a1+1}")
        k.e(f"v_cvt_pk_bf16_f32 v{o+3}, v{a1+2}, v{a1+3}")
        if T == 4:
            k.e("v_cmp_gt_u32 vcc, 8, v11")
            k.e("s_and_saveexec_b64 s[50:51], vcc")
        k.e(f"buffer_store_dwordx4 v[{o}:{o+3}], v15, s[40:43], s46 offen offset:{256*T} {STP}")
    k.stamp(4)
    if first:
        k.e(f"s_branch {name}_rdone")
        k.label(f"{name}_rep")
        k.e("s_sub_u32 s20, s20, 4")
        k.e("s_cmp_lt_u32 s2, 72")
        k.e("s_cselect_b32 s4, s12, s14")
        k.e("s_cselect_b32 s5, s13, s15")
        k.e("s_cselect_b32 s64, 0, 1")
        k.e("s_cmp_lt_u32 s2, 144")
        k.e("s_cselect_b32 s4, s4, s16")
        k.e("s_cselect_b32 s5, s5, s17")
        k.e("s_movk_i32 s65, 1152")
        k.e("s_cselect_b32 s65, 9216, s65")
        k.e("s_cselect_b32 s66, 1, 0")
        k.srd_ptr(24, 4, D * F * 2)
        k.e("s_mul_i32 s67, s64, 72")
        k.e("s_sub_u32 s67, s2, s67")
        k.e("s_sub_u32 s68, s2, 144")
        k.e("s_mul_i32 s69, s68, 7282")
        k.e("s_lshr_b32 s69, s69, 16")
        k.e("s_mul_i32 s75, s69, 9")
        k.e("s_sub_u32 s68, s68, s75")
        k.e(f"s_mul_i32 s75, s69, {384*1152}")
        k.e("s_lshl_b32 s58, s68, 7")
        k.e("s_add_u32 s75, s75, s58")
        k.e("s_lshl_b32 s58, s67, 7")
        k.e("s_cmp_eq_u32 s66, 1")
        k.e("s_cselect_b32 s75, s58, s75")
        k.e("s_cselect_b32 s58, 18, 12")
        k.e("s_lshl_b32 s59, s65, 3")
        k.e("s_mul_i32 s56, s20, s59")
        k.e("s_mul_i32 s56, s56, s58")
        k.e("s_add_u32 s75, s75, s56")
        k.e("s_cmp_ge_u32 s2, 252")
        k.e("s_cselect_b32 s58, 0, s58")
        if os.environ.get("EXP_NOC"):
            k.e(f"s_cmp_lt_u32 s2, {os.environ['EXP_NOC']}")
            k.e("s_cselect_b32 s58, 0, s58")
        k.e("v_lshrrev_b32 v3, 3, v2")
        k.e("v_and_b32 v4, 7, v2")
        k.e("v_mul_lo_u32 v6, v3, s65")
        k.e("v_lshl_add_u32 v6, v4, 4, v6")
        k.e("s_mul_i32 s56, s20, 18432")
        k.e(f"s_add_u32 s56, s56, {RPK}")
        def rdma(i):
            k.e(f"s_cmp_gt_u32 s58, {i}")
            k.e("s_cselect_b32 s51, s75, 0x7f000000")
            k.e(f"s_add_u32 m0, s56, {1024*i}")
            k.e("s_add_u32 s75, s75, s59")
            k.e("buffer_load_dwordx4 v6, s[24:27], s51 offen lds")
        k.srd_ptr(28, 6, XC_SZ)
        k.srd_ws(32, 18, "XC0")
        k.e("v_and_b32 v8, 31, v2")
        k.e("v_and_b32 v9, 3, v8")
        k.e("v_bfe_u32 v10, v8, 2, 2")
        k.e("v_lshl_or_b32 v9, v10, 3, v9")
        k.e("v_bfe_u32 v10, v8, 4, 1")
        k.e("v_lshl_or_b32 v9, v10, 2, v9")
        k.e("v_mul_u32_u24 v9, 1152, v9")
        k.e("v_lshrrev_b32 v10, 5, v2")
        k.e("v_lshl_add_u32 v9, v10, 4, v9")
        k.e("v_lshlrev_b32 v8, 4, v8")
        k.e("v_lshl_add_u32 v8, v10, 9, v8")
        k.e("s_lshr_b32 s36, s2, 2")
        k.e("s_mul_i32 s36, s36, 36864")
        k.e("s_and_b32 s37, s2, 3")
        k.e("s_mul_i32 s37, s37, 18")
        k.e("s_lshl_b32 s38, s20, 1")
        k.e("s_add_u32 s37, s37, s38")
        k.e("s_lshl_b32 s38, s37, 4")
        k.e("s_add_u32 s38, s38, s36")
        k.e("s_lshl_b32 s39, s37, 9")
        k.e("s_add_u32 s39, s39, s36")
        k.e("s_add_u32 s40, s38, 256")
        k.e("s_add_u32 s41, s39, 8192")
        k.e("s_cmp_eq_u32 s20, 0")
        k.e("s_cselect_b32 s40, s40, 0x7f000000")
        k.e("s_cselect_b32 s41, s41, 0x7f000000")
        k.e("buffer_load_dwordx4 v[16:19], v9, s[28:31], s38 offen")
        k.e("buffer_load_dwordx4 v[20:23], v9, s[28:31], s38 offen offset:128")
        k.e("buffer_load_dwordx4 v[24:27], v9, s[28:31], s40 offen")
        for i in range(6):
            rdma(i)
        k.e("v_lshrrev_b32 v3, 4, v2")
        k.e("v_and_b32 v4, 15, v2")
        k.e("v_bfe_u32 v10, v2, 2, 2")
        k.e("v_lshlrev_b32 v7, 7, v10")
        k.e("v_lshl_add_u32 v7, v3, 5, v7")
        k.e("v_add_u32 v7, s56, v7")
        k.e("v_and_b32 v10, 1, v2")
        k.e("v_lshlrev_b32 v10, 4, v10")
        k.e("v_bfe_u32 v11, v2, 1, 1")
        k.e("v_lshl_add_u32 v10, v11, 3, v10")
        k.e("v_and_b32 v11, 3, v2")
        k.e("v_lshlrev_b32 v11, 3, v11")
        k.e("s_cmp_eq_u32 s66, 1")
        k.e("s_cselect_b64 s[42:43], -1, 0")
        k.e("s_nop 1")
        k.e("v_cndmask_b32 v10, v11, v10, s[42:43]")
        k.e("v_add_u32 v7, v7, v10")
        k.e("s_lshl_b32 s36, s67, 2")
        k.e("v_add_u32 v12, s36, v3")
        k.e("v_mul_u32_u24 v13, 7282, v12")
        k.e("v_lshrrev_b32 v13, 16, v13")
        k.e("v_mul_u32_u24 v14, 9, v13")
        k.e("v_sub_u32 v14, v12, v14")
        k.e(f"s_mov_b32 s36, {WGU_CB}")
        k.e("v_mul_lo_u32 v13, v13, s36")
        k.e("v_lshl_add_u32 v13, v14, 10, v13")
        k.e("v_lshl_add_u32 v13, v4, 4, v13")
        k.e("s_lshl_b32 s36, s68, 6")
        k.e("v_add_u32 v12, s36, v2")
        k.e("v_mul_u32_u24 v14, 911, v12")
        k.e("v_lshrrev_b32 v14, 16, v14")
        k.e("v_mul_u32_u24 v15, 72, v14")
        k.e("v_sub_u32 v15, v12, v15")
        slotmap_v(k, 15, 12, 10, 11)
        k.e(f"s_mov_b32 s36, {WDJ}")
        k.e("v_mul_lo_u32 v14, v14, s36")
        k.e("v_lshl_add_u32 v14, v12, 4, v14")
        k.e("v_cndmask_b32 v5, v14, v13, s[42:43]")
        k.e(f"s_mov_b32 s36, {WS['WD'][0]}")
        k.e(f"s_mov_b32 s37, {WD_SZ}")
        k.e("s_cmp_eq_u32 s66, 1")
        k.e(f"s_cselect_b32 s36, {WS['WGU'][0]}, s36")
        k.e(f"s_cselect_b32 s46, {WGU_SZ}, s37")
        k.e("s_add_u32 s44, s18, s36")
        k.e("s_addc_u32 s45, s19, 0")
        k.e("s_and_b32 s45, s45, 0xffff")
        k.e("s_mov_b32 s47, 0x00020000")
        k.e("s_lshl_b32 s48, s64, 8")
        k.e(f"s_mul_i32 s49, s20, {9*9216}")
        k.e("s_add_u32 s49, s49, s48")
        k.e(f"s_mul_i32 s36, s69, {48*1152}")
        k.e(f"s_mul_i32 s37, s20, {12*1152}")
        k.e("s_add_u32 s36, s36, s37")
        k.e("s_cmp_eq_u32 s66, 1")
        k.e("s_cselect_b32 s49, s49, s36")
        k.e("s_movk_i32 s52, 1152")
        k.e("s_cselect_b32 s52, 512, s52")
        k.e("s_movk_i32 s53, 1152")
        k.e(f"s_cselect_b32 s53, {9216-512}, s53")
        k.e("v_mov_b32 v14, 0")
        k.e("v_mov_b32 v15, 0")

        def tchunk(c):
            for it in range(6 * c, 6 * c + 6):
                rg = 112 + 4 * it
                k.e(f"ds_read_b64_tr_b16 v[{rg}:{rg+1}], v7 offset:{it*1024}")
                k.e(f"ds_read_b64_tr_b16 v[{rg+2}:{rg+3}], v7 offset:{it*1024+512}")
            for it in range(6 * c, 6 * c + 6):
                rg = 112 + 4 * it
                k.e(f"s_cmp_gt_u32 s58, {it}")
                k.e("s_cselect_b32 s51, s49, 0x7f000000")
                k.e(f"s_waitcnt lgkmcnt({2*(6*c+5-it)})")
                k.e(f"buffer_store_dwordx4 v[{rg}:{rg+3}], v5, s[44:47], s51 offen {STP}")
                k.e(f"s_add_u32 s49, s49, s{52 + (it & 1)}")
                for r in range(4):
                    k.e(f"v_dot2_f32_bf16 v{14 + (r & 1)}, v{rg+r}, v32, v{14 + (r & 1)}")
        k.e("v_and_b32 v11, 15, v2")
        k.e("v_lshrrev_b32 v12, 4, v2")
        k.e("v_lshrrev_b32 v1, 1, v11")
        k.e("v_xor_b32 v1, v1, v12")
        k.e("v_lshlrev_b32 v1, 4, v1")
        k.e("v_lshl_add_u32 v28, v11, 7, v1")
        k.e("v_xor_b32 v29, 64, v28")
        k.e("s_lshl_b32 s36, s20, 11")
        k.e("v_add_u32 v30, s36, v28")
        k.e("v_add_u32 v31, s36, v29")
        for a_ in range(4):
            k.e(f"v_mov_b32 v{32+a_}, 0x3f803f80")
        for a_ in range(8):
            k.e(f"v_mov_b32 v{36+a_}, 0")

        def rpart(kbs):
            for n_, kb in enumerate(kbs):
                kq, half = (kb >> 1) % 8, kb & 1
                rg = 44 + n_ * 8
                off = kq * 9216
                if off + 8192 > 65000:
                    k.e(f"v_add_u32 v1, {off}, v{30+half}")
                    k.e(f"ds_read_b128 v[{rg}:{rg+3}], v1")
                    k.e(f"v_add_u32 v1, {off + 8192}, v{28+half}")
                    k.e(f"ds_read_b128 v[{rg+4}:{rg+7}], v1")
                else:
                    k.e(f"ds_read_b128 v[{rg}:{rg+3}], v{30+half} offset:{off}")
                    k.e(f"ds_read_b128 v[{rg+4}:{rg+7}], v{28+half} offset:{off + 8192}")
            k.e("s_waitcnt lgkmcnt(0)")
            for n_, kb in enumerate(kbs):
                rg = 44 + n_ * 8
                k.e(f"v_mfma_f32_16x16x32_bf16 v[36:39], v[32:35], v[{rg}:{rg+3}], v[36:39]")
                k.e(f"v_mfma_f32_16x16x32_bf16 v[40:43], v[32:35], v[{rg+4}:{rg+7}], v[40:43]")
        k.e("s_barrier")
        rpart(range(0, 8))
        for i in range(6, 12):
            rdma(i)
        k.e("s_waitcnt vmcnt(12)")
        k.e("buffer_store_dwordx4 v[16:19], v8, s[32:35], s39 offen")
        k.e("s_add_u32 s39, s39, 4096")
        k.e("buffer_store_dwordx4 v[20:23], v8, s[32:35], s39 offen")
        k.e("buffer_store_dwordx4 v[24:27], v8, s[32:35], s41 offen")
        k.e("s_barrier")
        rpart(range(8, 16))
        for i in range(12, 18):
            rdma(i)
        k.e("s_waitcnt vmcnt(15)")
        tchunk(0)
        k.e("s_barrier")
        rpart(range(16, 18))
        k.e("s_lshl_b32 s36, s20, 6")
        k.e(f"s_add_u32 s36, s36, {SCR + 1024}")
        k.e("v_lshl_add_u32 v1, v11, 2, s36")
        k.e("v_lshlrev_b32 v28, 2, v11")
        k.e(f"v_add_u32 v28, {SCR + 1024 + 256}, v28")
        k.e("s_nop 7")
        k.e("ds_write_b32 v1, v36")
        k.e("ds_write_b32 v28, v40")
        k.e("s_waitcnt lgkmcnt(0)")
        k.e("s_barrier")
        k.e("s_waitcnt vmcnt(15)")
        tchunk(1)
        k.e("s_waitcnt vmcnt(12)")
        tchunk(2)
        k.e("s_nop 3")
        k.e("v_add_f32 v10, v14, v15")
        k.e("v_cvt_pk_bf16_f32 v11, v10, v10")
        k.e("v_lshlrev_b32 v12, 16, v11")
        k.e("v_sub_f32 v13, v10, v12")
        k.e("v_cvt_pk_bf16_f32 v14, v13, v13")
        k.e("v_lshlrev_b32 v15, 16, v14")
        k.e("v_sub_f32 v13, v13, v15")
        k.e("v_cvt_pk_bf16_f32 v201, v13, v13")
        k.e("v_and_b32 v201, 0xffff, v201")
        k.e("v_and_b32 v200, 0xffff, v11")
        k.e("v_or_b32 v200, v200, v15")
        k.e("s_lshr_b32 s39, s20, 1")
        k.e("s_lshl_b32 s39, s39, 9")
        k.e("s_and_b32 s37, s20, 1")
        k.e("s_lshl_b32 s37, s37, 3")
        k.e("s_add_u32 s39, s39, s37")
        k.e("s_add_u32 s39, s39, s48")
        k.e(f"s_add_u32 s39, s39, {36*9216}")
        k.e("s_cmp_eq_u32 s66, 1")
        k.e("s_cselect_b32 s39, s39, 0x7f000000")
        k.e("buffer_store_dwordx2 v[200:201], v5, s[44:47], s39 offen")
        k.label(f"{name}_rdone")
        if PROF:
            k.e("v_lshrrev_b32 v1, 6, v0")
            k.e("s_nop 0")
            k.e("v_readfirstlane_b32 s20, v1")
    if PROF:
        k.e("s_mov_b64 exec, -1")
        k.wait_vm_all()
    k.stamp(5)
    k.stamp_store(0, 18, 20)
    k.label(Lend)
    return k, total, 512 if first else 256, (RPK + 73728 + 8192) if first else RPK


REG = 20480
EXSEP = int(os.environ.get("EXSEP", "1"))
SLP = int(os.environ.get("SLP", "4"))
PUB = os.environ.get("PUB", "sc1")
ROT = int(os.environ.get("ROT", "0"))
CPF = int(os.environ.get("CPF", "0"))
MAPG = int(os.environ.get("MAPG", "0"))
MAPD = int(os.environ.get("MAPD", "0"))
STPG = os.environ.get("STPG", "sc1")
EXP_NOMFMA = int(os.environ.get("EXP_NOMFMA", "0"))
EXP_PAD = int(os.environ.get("EXP_PAD", "0"))
BAR = int(os.environ.get("BAR", "0"))
EXP_NOWD = int(os.environ.get("EXP_NOWD", "0"))
EXP_NOHC = int(os.environ.get("EXP_NOHC", "0"))
ILV = int(os.environ.get("ILV", "1"))
KD_W, KD_S = (1, 8) if ILV else (18, 1)
KS_W, KS_S = (1, 4) if ILV else (8, 1)


def t1_decode(k, mp=0):
    k.e("v_lshrrev_b32 v1, 6, v0")
    k.e("v_and_b32 v2, 63, v0")
    k.e("v_readfirstlane_b32 s20, v1")
    k.e("s_and_b32 s22, s2, 7")
    k.e("s_lshr_b32 s23, s2, 3")
    if mp == 0:
        k.e("s_lshr_b32 s21, s22, 1")
        k.e("s_lshl_b32 s21, s21, 3")
        k.e("s_and_b32 s44, s23, 7")
        k.e("s_add_u32 s21, s21, s44")
        k.e("s_and_b32 s22, s22, 1")
        k.e("s_lshl_b32 s22, s22, 2")
        k.e("s_lshr_b32 s23, s23, 3")
        k.e("s_add_u32 s23, s23, s22")
    else:
        k.e("s_lshl_b32 s21, s22, 2")
        k.e("s_and_b32 s44, s23, 3")
        k.e("s_add_u32 s21, s21, s44")
        k.e("s_lshr_b32 s23, s23, 2")


def t1_pre(k, xin_srd):
    sW, sTB, sJ = 20, 21, 23
    k.e(f"s_and_b32 s61, s{sW}, 3")
    k.e(f"s_lshr_b32 s59, s{sW}, 2")
    k.e("s_lshr_b32 s62, s61, 1")
    k.e(f"s_lshl_b32 s63, s{sTB}, 1")
    k.e("s_add_u32 s58, s62, s63")
    k.e("s_and_b32 s62, s61, 1")
    k.e("s_mul_i32 s63, s58, 36864")
    k.e(f"s_mul_i32 s64, s{sJ}, 4608")
    k.e("s_add_u32 s63, s63, s64")
    k.e("s_lshl_b32 s64, s62, 8")
    k.e("s_add_u32 s63, s63, s64")
    k.e("s_add_u32 s64, s63, 4096")
    k.e("s_lshl_b32 s65, s59, 11")
    k.e("s_add_u32 s63, s63, s65")
    k.e("v_and_b32 v20, 15, v0")
    k.e("v_bfe_u32 v21, v0, 4, 2")
    k.e("v_lshlrev_b32 v22, 9, v21")
    k.e("v_lshl_add_u32 v22, v20, 4, v22")
    k.e("v_lshlrev_b32 v23, 3, v21")
    k.e("v_lshl_add_u32 v23, v20, 4, v23")
    k.vm(f"buffer_load_dwordx4 v[250:253], v22, s[{xin_srd}:{xin_srd+3}], s63 offen", "res")
    k.vm(f"buffer_load_dwordx2 v[254:255], v23, s[{xin_srd}:{xin_srd+3}], s64 offen", "res")


def t1_epilogue(k, name, mode, ACC, xin_srd, xout_srd, st_srd, sfinal):
    sW, sTB, sJ = 20, 21, 23
    k.e("v_and_b32 v2, 63, v0")
    k.e(f"s_mul_i32 s60, s{sW}, {REG}")
    k.e("v_lshl_add_u32 v3, v2, 4, s60")
    k.e("v_and_b32 v11, 15, v2")
    k.e("v_lshrrev_b32 v12, 4, v2")
    k.e("v_lshlrev_b32 v4, 9, v12")
    k.e("v_lshl_add_u32 v4, v11, 4, v4")
    k.e("v_lshlrev_b32 v5, 3, v12")
    k.e("v_lshl_add_u32 v5, v11, 4, v5")
    for j in range(16):
        k.e(f"v_permlane32_swap_b32 v{ACC+80+j}, v{24+j}")
    k.e("s_nop 1")
    for j in range(16):
        k.e(f"v_add_f32 v{ACC+64+j}, v{ACC+64+j}, v{24+j}")
    for b in range(4):
        for a in range(5):
            acc = ACC + (a * 4 + b) * 4
            k.e(f"ds_write_b128 v3, v[{acc}:{acc+3}] offset:{(b*5+a)*1024}")
    k.e("s_mul_i32 s60, s61, 5120")
    k.e("v_lshl_add_u32 v6, v2, 4, s60")
    k.e("v_add_u32 v7, s65, v6")
    for j in range(1, 3):
        k.e(f"v_add_u32 v{7+j}, {3*REG*j}, v7")
        k.e(f"v_add_u32 v{12+j}, {3*REG*j}, v6")
    k.e("s_waitcnt lgkmcnt(0)")
    k.e("s_barrier")
    T0 = 24
    for v in range(8):
        base = 7 + v // 3
        for t in range(2):
            rg = T0 + (v * 2 + t) * 4
            k.e(f"ds_read_b128 v[{rg}:{rg+3}], v{base} offset:{(v%3)*REG + t*1024}")
    k.e("s_cmp_lg_u32 s59, 0")
    k.e(f"s_cbranch_scc1 {name}_no4a")
    for v in range(8):
        base = 6 if v < 3 else 12 + v // 3
        rg = 88 + v * 4
        k.e(f"ds_read_b128 v[{rg}:{rg+3}], v{base} offset:{(v%3)*REG + 4096}")
    k.label(f"{name}_no4a")
    k.e("s_waitcnt lgkmcnt(0)")

    def combine(regs_of_wave, n):
        for j in range(n):
            r = [regs_of_wave(v) + j for v in range(8)]
            k.e(f"v_add_f32 v{r[0]}, v{r[0]}, v{r[1]}")
            k.e(f"v_add_f32 v{r[2]}, v{r[2]}, v{r[3]}")
            k.e(f"v_add_f32 v{r[4]}, v{r[4]}, v{r[5]}")
            k.e(f"v_add_f32 v{r[6]}, v{r[6]}, v{r[7]}")
            k.e(f"v_add_f32 v{r[0]}, v{r[0]}, v{r[2]}")
            k.e(f"v_add_f32 v{r[4]}, v{r[4]}, v{r[6]}")
            if mode == "D":
                k.e(f"v_add_f32 v{r[0]}, v{r[0]}, v{r[4]}")
        if mode == "S":
            for j in range(0, n, 2):
                p0 = regs_of_wave(0) + j
                q0 = regs_of_wave(4) + j
                k.e(f"v_cvt_pk_bf16_f32 v22, v{p0}, v{p0+1}")
                k.e(f"v_cvt_pk_bf16_f32 v23, v{q0}, v{q0+1}")
                k.e(f"v_lshlrev_b32 v{p0}, 16, v22")
                k.e(f"v_and_b32 v{p0+1}, 0xffff0000, v22")
                k.e(f"v_lshlrev_b32 v{q0}, 16, v23")
                k.e(f"v_and_b32 v{q0+1}, 0xffff0000, v23")
                k.e(f"v_sub_f32 v{p0}, v{p0}, v{q0}")
                k.e(f"v_sub_f32 v{p0+1}, v{p0+1}, v{q0+1}")

    def resid(ybase, xbase, n):
        for j in range(0, n, 2):
            y0 = ybase + j
            xr = xbase + j // 2
            k.e(f"v_cvt_pk_bf16_f32 v22, v{y0}, v{y0+1}")
            k.e(f"v_lshlrev_b32 v{y0}, 16, v22")
            k.e(f"v_and_b32 v{y0+1}, 0xffff0000, v22")
            k.e(f"v_lshlrev_b32 v22, 16, v{xr}")
            k.e(f"v_and_b32 v23, 0xffff0000, v{xr}")
            k.e(f"v_add_f32 v{y0}, v{y0}, v22")
            k.e(f"v_add_f32 v{y0+1}, v{y0+1}, v23")
            k.e(f"v_cvt_pk_bf16_f32 v{xr}, v{y0}, v{y0+1}")
            unpack_sum(k, xr, 22, 23, 120, 121)

    combine(lambda v: T0 + v * 8, 8)
    k.e("v_mov_b32 v120, 0")
    k.e("v_mov_b32 v121, 0")
    resid(T0, 250, 8)
    k.e("s_cmp_lg_u32 s59, 0")
    k.e(f"s_cbranch_scc1 {name}_no4b")
    k.e("v_cmp_gt_u32 vcc, 2, v12")
    k.e("s_and_saveexec_b64 s[66:67], vcc")
    combine(lambda v: 88 + v * 4, 4)
    resid(88, 254, 4)
    k.e("s_mov_b64 exec, s[66:67]")
    k.label(f"{name}_no4b")
    if sfinal is not None:
        k.e(f"s_cmp_lg_u32 s{sfinal}, 0")
        k.e(f"s_cbranch_scc1 {name}_fin")
    for sw in ("16", "32"):
        k.e("v_mov_b32 v22, v120")
        k.e("v_mov_b32 v23, v121")
        k.e("s_nop 1")
        k.e(f"v_permlane{sw}_swap_b32 v120, v22")
        k.e(f"v_permlane{sw}_swap_b32 v121, v23")
        k.e("s_nop 1")
        k.e("v_add_f32 v120, v120, v22")
        k.e("v_add_f32 v121, v121, v23")
    k.e(f"buffer_store_dwordx4 v[250:253], v4, s[{xout_srd}:{xout_srd+3}], s63 offen")
    k.e("s_lshl_b32 s65, s58, 8")
    k.e("s_lshl_b32 s62, s62, 7")
    k.e("s_add_u32 s65, s65, s62")
    k.e(f"s_lshl_b32 s62, s{sJ}, 15")
    k.e("s_add_u32 s65, s65, s62")
    k.e("s_lshl_b32 s62, s59, 14")
    k.e("s_add_u32 s65, s65, s62")
    k.e("v_lshlrev_b32 v22, 3, v11")
    k.e("v_cmp_gt_u32 vcc, 1, v12")
    k.e("s_and_saveexec_b64 s[68:69], vcc")
    k.e(f"buffer_store_dwordx2 v[120:121], v22, s[{st_srd}:{st_srd+3}], s65 offen")
    k.e("s_mov_b64 exec, s[68:69]")
    k.e("s_cmp_lg_u32 s59, 0")
    k.e(f"s_cbranch_scc1 {name}_done")
    k.e("v_cmp_gt_u32 vcc, 2, v12")
    k.e("s_and_saveexec_b64 s[66:67], vcc")
    k.e(f"buffer_store_dwordx2 v[254:255], v5, s[{xout_srd}:{xout_srd+3}], s64 offen")
    if sfinal is not None:
        k.e(f"s_branch {name}_done")
        k.label(f"{name}_fin")
        k.e("v_lshrrev_b32 v22, 2, v11")
        k.e("v_and_b32 v23, 3, v11")
        k.e("v_lshl_add_u32 v22, v22, 3, v23")
        k.e("v_mul_u32_u24 v22, 1152, v22")
        k.e("v_lshl_add_u32 v23, v12, 4, v22")
        k.e("v_lshl_add_u32 v22, v12, 3, v22")
        k.e("s_lshl_b32 s65, s58, 5")
        k.e("s_lshl_b32 s62, s62, 2")
        k.e("s_add_u32 s65, s65, s62")
        k.e("s_mul_i32 s65, s65, 1152")
        k.e(f"s_mul_i32 s62, s{sJ}, 144")
        k.e("s_add_u32 s65, s65, s62")
        k.e("s_lshl_b32 s62, s59, 6")
        k.e("s_add_u32 s62, s62, s65")
        k.e(f"buffer_store_dwordx4 v[250:253], v23, s[{xout_srd}:{xout_srd+3}], s62 offen")
        k.e("s_cmp_lg_u32 s59, 0")
        k.e(f"s_cbranch_scc1 {name}_done")
        k.e("v_cmp_gt_u32 vcc, 2, v12")
        k.e("s_and_saveexec_b64 s[66:67], vcc")
        k.e(f"buffer_store_dwordx2 v[254:255], v22, s[{xout_srd}:{xout_srd+3}], s65 offen offset:128")
    k.label(f"{name}_done")


def gen_t2(mode):
    name = "ks" if mode == "S" else "kd"
    k = Kern(name, 256, 0, 80)
    Lend = name + "_end"
    NST = 8 if mode == "S" else 9
    RA = 3 if mode == "S" else 4
    ASTG = 36864
    CBASE = RA * ASTG
    AJ = ABJ if mode == "S" else WDJ
    k.e("s_cmp_ge_u32 s2, 256")
    k.e(f"s_cbranch_scc1 {Lend}")
    if mode == "S":
        k.e("s_load_dwordx4 s[8:11], s[0:1], 8")
    k.e("s_load_dwordx2 s[18:19], s[0:1], 88")
    k.e("s_load_dwordx4 s[12:15], s[0:1], 72")
    k.e("v_lshrrev_b32 v1, 6, v0")
    k.e("v_and_b32 v2, 63, v0")
    k.e("v_readfirstlane_b32 s20, v1")
    k.e("s_and_b32 s22, s2, 7")
    k.e("s_lshr_b32 s23, s2, 3")
    k.e("s_lshr_b32 s44, s22, 1")
    k.e("s_and_b32 s21, s22, 1")
    k.e("s_lshl_b32 s21, s21, 3")
    k.e("s_and_b32 s45, s23, 7")
    k.e("s_add_u32 s21, s21, s45")
    k.e("s_lshr_b32 s23, s23, 3")
    k.e("s_and_b32 s45, s20, 3")
    k.e("s_lshr_b32 s46, s20, 2")
    k.e("s_waitcnt lgkmcnt(0)")
    k.stamp(0)
    if mode == "S":
        k.e("s_cmp_ge_u32 s44, 2")
        k.e("s_cselect_b32 s4, s10, s8")
        k.e("s_cselect_b32 s5, s11, s9")
        k.srd_ptr(24, 4, S * S * 2)
        srd_ws_s(k, 28, 18, 68, AB_SZ)
    else:
        srd_ws_s(k, 24, 18, 68, HC_SZ)
        k.srd_ws(28, 18, "WD")
    srd_ws_s(k, 32, 18, 75, 64*4*8*4608)
    srd_ws_s(k, 64, 18, 69, 512*128)
    k.e("v_and_b32 v11, 15, v2")
    k.e("v_lshrrev_b32 v12, 4, v2")
    VA = 3
    k.e("v_mul_u32_u24 v13, 1152, v12")
    k.e("v_lshl_add_u32 v14, v11, 4, v13")
    k.e("v_and_b32 v15, 7, v11")
    k.e("v_lshl_add_u32 v15, v15, 4, v13")
    k.e("v_add_u32 v15, 1024, v15")
    k.e("v_lshrrev_b32 v16, 3, v11")
    k.e(f"s_mov_b32 s47, {AJ}")
    k.e("v_mul_lo_u32 v16, v16, s47")
    k.e("v_add_u32 v15, v15, v16")
    k.e("s_lshl_b32 s47, s45, 8")
    k.e("v_add_u32 v3, s47, v14")
    k.e("s_mul_i32 s47, s45, 4608")
    k.e("v_add_u32 v4, s47, v15")
    if mode == "S":
        k.e("s_lshr_b32 s47, s44, 1")
        k.e("s_lshl_b32 s47, s47, 3")
        k.e("s_lshl_b32 s48, s23, 1")
        k.e("s_add_u32 s47, s47, s48")
        k.e(f"s_mul_i32 s48, s47, {AJ}")
        k.e("s_and_b32 s47, s44, 1")
        k.e("s_lshl_b32 s47, s47, 4")
    else:
        k.e("s_lshl_b32 s48, s23, 1")
        k.e(f"s_mul_i32 s48, s48, {AJ}")
        k.e("s_mul_i32 s47, s44, 18")
    k.e("s_add_u32 s47, s47, s46")
    k.e("s_mul_i32 s49, s47, 9216")
    k.e("s_add_u32 s48, s48, s49")
    k.e("s_mul_i32 s50, s46, 18432")
    k.e("s_lshl_b32 s51, s45, 10")
    k.e("s_add_u32 s50, s50, s51")
    k.e("s_lshl_b32 s51, s45, 13")
    k.e("s_add_u32 s5, s50, s51")
    k.e("s_add_u32 s5, s5, 8192")
    k.e("s_cmp_lt_u32 s45, 2")
    k.e("s_cselect_b64 s[52:53], -1, 0")
    k.e("s_mul_i32 s51, s46, 18432")
    k.e("v_lshl_add_u32 v8, v2, 4, s51")
    if RA > 2:
        k.e(f"v_add_u32 v9, {2*ASTG}, v8")
    k.e("s_mov_b32 s4, s47")

    def bsetup():
        if mode == "D":
            k.e("v_lshlrev_b32 v13, 9, v12")
            k.e("v_lshl_add_u32 v10, v11, 4, v13")
            k.e("s_lshl_b32 s51, s21, 2")
            k.e("s_add_u32 s51, s51, s45")
            k.e(f"s_mul_i32 s49, s51, {HCB}")
            k.e("s_lshl_b32 s51, s4, 12")
            k.e("s_add_u32 s49, s49, s51")
        else:
            t = 248
            k.e(f"v_lshrrev_b32 v{t}, 3, v2")
            k.e(f"v_and_b32 v{t+1}, 7, v2")
            k.e(f"v_lshrrev_b32 v{t+2}, 1, v{t}")
            k.e(f"v_xor_b32 v{t+2}, v{t+2}, v{t+1}")
            k.e(f"v_lshlrev_b32 v{t+2}, 4, v{t+2}")
            k.e(f"v_lshrrev_b32 v{t+3}, 2, v{t}")
            k.e(f"v_and_b32 v{t+4}, 3, v{t}")
            k.e(f"v_lshl_add_u32 v{t+3}, v{t+3}, 3, v{t+4}")
            k.e(f"v_lshlrev_b32 v{t+3}, 12, v{t+3}")
            k.e(f"v_add_u32 v{t+5}, v{t+3}, v{t+2}")
            k.e(f"v_xor_b32 v{t+4}, 64, v{t+2}")
            k.e(f"v_add_u32 v{t+6}, v{t+3}, v{t+4}")
            for q in range(4):
                c = (16 * (q & 1) + 4 * ((q >> 1) & 1)) * 4096
                k.e(f"v_add_u32 v{240+q}, {c}, v{t + 5 + (q & 1)}")
            k.e("s_mul_i32 s54, s20, 6144")
            k.e(f"s_add_u32 s54, s54, {CBASE}")
            k.e(f"v_lshrrev_b32 v{t+2}, 1, v11")
            k.e(f"v_xor_b32 v{t+2}, v{t+2}, v12")
            k.e(f"v_lshlrev_b32 v{t+2}, 4, v{t+2}")
            k.e(f"v_lshl_add_u32 v{t+2}, v11, 7, v{t+2}")
            k.e(f"v_add_u32 v244, s54, v{t+2}")
            k.e(f"v_xor_b32 v{t+2}, 64, v{t+2}")
            k.e(f"v_add_u32 v245, s54, v{t+2}")
            k.e("s_lshl_b32 s51, s21, 2")
            k.e("s_add_u32 s51, s51, s45")
            k.e("s_lshl_b32 s49, s51, 17")
            k.e("s_lshl_b32 s51, s4, 7")
            k.e("s_add_u32 s49, s49, s51")

    ACC = 160
    AFB = 16
    BFB = 88

    NF, DEP = 12, 8
    pend = []
    issued_c = {}

    def dma_ops(st):
        slot = st % RA
        ops = []
        for j in range(5):
            def f(j=j):
                if j < 4:
                    lo = (0, 4096, 9216, 13312)[j]
                    go = (0, AJ, 4608, AJ + 4608)[j]
                    k.e(f"s_add_u32 m0, s50, {slot*ASTG + lo}")
                    k.e(f"s_add_u32 s47, s48, {st*18432 + go}")
                    k.vm("buffer_load_dwordx4 v3, s[28:31], s47 offen lds", ("d", st))
                else:
                    k.e(f"s_add_u32 m0, s5, {slot*ASTG}")
                    k.e(f"s_add_u32 s47, s48, {st*18432}")
                    k.e("s_mov_b64 exec, s[52:53]")
                    k.vm("buffer_load_dwordx4 v4, s[28:31], s47 offen lds", ("d", st))
                    k.e("s_mov_b64 exec, -1")
            ops.append(f)
        return ops

    def b_ops(st):
        ops = []
        for h in range(2):
            for u in range(2):
                def f(h=h, u=u):
                    rg = BFB + (st % 4) * 16 + (h * 2 + u) * 4
                    k.e(f"s_add_u32 s47, s49, {st*8192}")
                    k.vm(f"buffer_load_dwordx4 v[{rg}:{rg+3}], v10, s[24:27], s47 offen offset:{h*2048 + u*256}", ("b", st))
                ops.append(f)
        return ops

    def c_ops(c):
        st, u = divmod(c, 2)
        ops = []
        for q in range(2):
            def f(q=q):
                k.e(f"s_add_u32 m0, s54, {(c%3)*2048 + q*1024}")
                k.e(f"s_add_u32 s47, s49, {st*256}")
                k.vm(f"buffer_load_dwordx4 v{240+2*u+q}, s[24:27], s47 offen lds", ("c", c))
                issued_c[c] = issued_c.get(c, 0) + 1
            ops.append(f)
        return ops

    def cread(c):
        st, u = divmod(c, 2)
        k.wait_vm(("c", c))
        for h in range(2):
            rg = BFB + (st % 2) * 16 + (h * 2 + u) * 4
            k.ds(f"ds_read_b128 v[{rg}:{rg+3}], v{244+h} offset:{(c%3)*2048}", ("cr", c))

    total = NST * 18

    def aread(f):
        st, r = divmod(f, 18)
        slot = st % RA
        base = 8 if slot < 2 else 9
        rg = AFB + (f % NF) * 4
        k.ds(f"ds_read_b128 v[{rg}:{rg+3}], v{base} offset:{(slot % 2) * ASTG + r*1024}", ("a", f))

    def sync(st):
        while pend:
            pend.pop(0)()
        k.wait_vm(("d", st))
        k.e("s_barrier")
        if st == 0:
            for s2 in range(2, RA):
                pend.extend(dma_ops(s2))
        elif st >= 2 and st + RA - 2 < NST:
            pend.extend(dma_ops(st + RA - 2))
        if mode == "D" and st + 2 < NST:
            pend.extend(b_ops(st + 2))

    for f in dma_ops(0):
        f()
    bsetup()
    if mode == "D":
        for f in b_ops(0) + dma_ops(1) + b_ops(1):
            f()
    else:
        for f in c_ops(0) + c_ops(1) + dma_ops(1) + c_ops(2):
            f()
    code_prefetch(k, name, 152, 76, 156, 8, 20)
    for a in range(72):
        k.e(f"v_mov_b32 v{ACC+a}, 0")
    XOFF = ASTG if mode == "D" else 0
    k.e("s_mul_i32 s51, s20, 9216")
    k.e(f"s_add_u32 s51, s51, {XOFF}")
    k.e("v_lshl_add_u32 v232, v2, 4, s51")
    k.e("s_xor_b32 s51, s20, 4")
    k.e("s_mul_i32 s51, s51, 9216")
    k.e(f"s_add_u32 s51, s51, {XOFF}")
    k.e("v_lshl_add_u32 v233, v2, 4, s51")
    k.e("s_lshl_b32 s55, s21, 2")
    k.e("s_add_u32 s55, s55, s23")
    k.e("s_lshl_b32 s51, s55, 2")
    k.e("s_add_u32 s51, s51, s44")
    k.e("s_lshl_b32 s51, s51, 3")
    k.e("s_lshl_b32 s3, s45, 1")
    k.e("s_add_u32 s51, s51, s3")
    k.e("s_add_u32 s51, s51, s46")
    k.e("s_mul_i32 s75, s51, 4608")
    k.e("v_lshlrev_b32 v234, 4, v2")
    k.e("v_lshlrev_b32 v235, 3, v2")
    k.e("v_add_u32 v235, 4096, v235")
    srd_ws_s(k, 36, 18, 70, XC_SZ)
    srd_ws_s(k, 40, 18, 71, XC_SZ)
    srd_ws_s(k, 60, 18, 72, ST_SZ)
    k.e("s_cmp_lg_u32 s73, 0")
    k.e("s_cselect_b32 s40, s12, s40")
    k.e("s_cselect_b32 s41, s13, s41")
    k.e("s_and_b32 s41, s41, 0xffff")
    k.e("s_and_b32 s56, s20, 1")
    k.e("s_lshr_b32 s57, s20, 1")
    k.e("s_lshl_b32 s58, s21, 2")
    k.e("s_add_u32 s58, s58, s44")
    k.e("s_mul_i32 s59, s58, 36864")
    k.e("s_mul_i32 s3, s23, 9216")
    k.e("s_add_u32 s59, s59, s3")
    k.e("s_lshl_b32 s3, s56, 8")
    k.e("s_add_u32 s59, s59, s3")
    k.e("s_lshr_b32 s3, s57, 1")
    k.e("s_mul_i32 s3, s3, 4608")
    k.e("s_and_b32 s51, s57, 1")
    k.e("s_lshl_b32 s51, s51, 11")
    k.e("s_add_u32 s3, s3, s51")
    k.e("s_add_u32 s68, s59, s3")
    k.e("v_lshlrev_b32 v236, 9, v12")
    k.e("v_lshl_add_u32 v236, v11, 4, v236")
    k.e("v_lshrrev_b32 v237, 1, v12")
    k.e("v_mul_u32_u24 v237, 4608, v237")
    k.e("v_and_b32 v238, 1, v12")
    k.e("v_lshl_add_u32 v237, v238, 3, v237")
    k.e("v_lshl_add_u32 v237, v11, 4, v237")
    k.e("v_add_u32 v237, 4096, v237")
    k.e("s_cmp_eq_u32 s57, 0")
    k.e("s_cselect_b32 s69, s59, 0x7f000000")
    k.vm("buffer_load_dwordx4 v[248:251], v236, s[36:39], s68 offen", "res")
    k.vm("buffer_load_dwordx2 v[252:253], v237, s[36:39], s69 offen", "res")
    k.e("s_lshl_b32 s51, s55, 5")
    k.e("s_lshl_b32 s3, s44, 1")
    k.e("s_add_u32 s51, s51, s3")
    k.e("s_add_u32 s51, s51, s56")
    k.e("s_mul_i32 s51, s51, 4608")
    k.e("s_lshl_b32 s3, s57, 10")
    k.e("s_add_u32 s6, s3, s51")
    k.e("s_cmp_eq_u32 s57, 0")
    k.e("s_cselect_b32 s7, s51, 0x7f000000")
    k.e("v_lshrrev_b32 v238, 2, v11")
    k.e("v_and_b32 v239, 3, v11")
    k.e("v_lshl_add_u32 v238, v238, 3, v239")
    k.e("v_mul_u32_u24 v238, 1152, v238")
    k.e("v_lshl_add_u32 v239, v12, 4, v238")
    k.e("v_lshrrev_b32 v246, 1, v12")
    k.e("v_mul_u32_u24 v246, 144, v246")
    k.e("v_add_u32 v238, v238, v246")
    k.e("v_and_b32 v246, 1, v12")
    k.e("v_lshl_add_u32 v238, v246, 3, v238")
    k.e("v_add_u32 v238, 128, v238")
    k.e("s_lshl_b32 s51, s58, 5")
    k.e("s_lshl_b32 s3, s56, 2")
    k.e("s_add_u32 s51, s51, s3")
    k.e("s_mul_i32 s51, s51, 1152")
    k.e("s_mul_i32 s3, s23, 288")
    k.e("s_add_u32 s51, s51, s3")
    k.e("s_lshr_b32 s3, s57, 1")
    k.e("s_mul_i32 s3, s3, 144")
    k.e("s_and_b32 s16, s57, 1")
    k.e("s_lshl_b32 s16, s16, 6")
    k.e("s_add_u32 s3, s3, s16")
    k.e("s_add_u32 s3, s3, s51")
    k.e("s_cmp_eq_u32 s57, 0")
    k.e("s_cselect_b32 s51, s51, 0x7f000000")
    k.e("s_cmp_lg_u32 s73, 0")
    k.e("s_cselect_b32 s16, s3, s68")
    k.e("s_cselect_b32 s17, s51, s69")
    k.e("s_cselect_b64 vcc, -1, 0")
    k.e("v_cndmask_b32 v246, v236, v239, vcc")
    k.e("v_cndmask_b32 v247, v237, v238, vcc")
    k.e("s_lshl_b32 s51, s23, 2")
    k.e("s_add_u32 s51, s51, s57")
    k.e("s_lshl_b32 s51, s51, 14")
    k.e("s_lshl_b32 s3, s58, 8")
    k.e("s_add_u32 s51, s51, s3")
    k.e("s_lshl_b32 s3, s56, 7")
    k.e("s_add_u32 s51, s51, s3")
    k.e("s_cmp_lg_u32 s73, 0")
    k.e("s_cselect_b32 s59, 0x7f000000, s51")
    k.e("v_lshlrev_b32 v238, 3, v11")
    k.e("s_lshl_b32 s3, s55, 3")
    k.e("s_lshl_b32 s51, s44, 1")
    k.e("s_add_u32 s51, s51, s3")
    k.e("s_add_u32 s51, s51, s56")
    k.e("s_lshl_b32 s56, s51, 7")
    k.e("s_lshl_b32 s51, s45, 1")
    k.e("s_add_u32 s51, s51, s3")
    k.e("s_add_u32 s51, s51, s46")
    k.e("s_lshl_b32 s51, s51, 7")
    k.e("s_lshl_b32 s57, s44, 2")
    k.e("s_add_u32 s57, s57, s51")
    k.e("s_mov_b32 s58, 0xffff0000")
    done_c = set()
    if mode == "S":
        cread(0); cread(1)
        k.wait_ds(("cr", 1))
        pend.extend(c_ops(3) + c_ops(4))
    sync(0)
    k.stamp(2)
    for f in range(DEP):
        aread(f)
    mi = 0
    for f in range(total):
        nxt = f + DEP
        if nxt < total:
            if nxt % 18 == 0:
                sync(nxt // 18)
            aread(nxt)
        st, r = divmod(f, 18)
        h, T = divmod(r, 9)
        if mode == "D" and r == 0:
            k.wait_vm(("b", st))
        if mode == "S" and st + 1 < NST:
            for rr_, u_ in ((3, 0), (7, 1)):
                c = 2 * (st + 1) + u_
                if r == rr_:
                    while issued_c.get(c, 0) < 2:
                        pend.pop(0)()
                    cread(c)
                    done_c.add(("c", c))
                if r == rr_ + 2 and c + 3 < 2 * NST:
                    k.wait_ds(("cr", c))
                    pend.extend(c_ops(c + 3))
        k.wait_ds(("a", f))
        af = AFB + (f % NF) * 4
        for u in range(2):
            bf = BFB + ((st % 4) if mode == "D" else (st % 2)) * 16 + (h * 2 + u) * 4
            acc = ACC + (u * 9 + T) * 4
            k.e(f"v_mfma_f32_16x16x32_bf16 v[{acc}:{acc+3}], v[{af}:{af+3}], v[{bf}:{bf+3}], v[{acc}:{acc+3}]")
            mi += 1
            if pend and (mi % 3 == 0 or st == 0):
                pend.pop(0)()
    k.stamp(3)
    if mode == "S":
        k.e("s_barrier")
    k.e("s_nop 5")
    k.e("s_cmp_eq_u32 s46, 0")
    k.e(f"s_cbranch_scc1 {name}_x0")

    def xch(send, keep, lab_after):
        for T in range(9):
            k.e(f"ds_write_b128 v232, v[{send+4*T}:{send+4*T+3}] offset:{T*1024}")
        k.e("s_waitcnt lgkmcnt(0)")
        k.e("s_barrier")
        for T in range(9):
            k.e(f"ds_read_b128 v[{88+4*T}:{91+4*T}], v233 offset:{T*1024}")
        for T in range(9):
            k.e(f"s_waitcnt lgkmcnt({8-T})")
            for r in range(4):
                k.e(f"v_add_f32 v{keep+4*T+r}, v{keep+4*T+r}, v{88+4*T+r}")
            k.e(f"v_cvt_pk_bf16_f32 v{16+2*T}, v{keep+4*T}, v{keep+4*T+1}")
            k.e(f"v_cvt_pk_bf16_f32 v{17+2*T}, v{keep+4*T+2}, v{keep+4*T+3}")
            if T % 2 == 1:
                k.e(f"buffer_store_dwordx4 v[{14+2*T}:{17+2*T}], v234, s[32:35], s75 offen offset:{(T//2)*1024} {PUB}")
    xch(ACC, ACC + 36, None)
    k.e(f"s_branch {name}_x1")
    k.label(f"{name}_x0")
    xch(ACC + 36, ACC, None)
    k.label(f"{name}_x1")
    k.e(f"buffer_store_dwordx2 v[32:33], v235, s[32:35], s75 offen {PUB}")
    k.e("v_mov_b32 v9, 1")
    k.e("v_mov_b32 v10, 0")
    k.e("s_mov_b32 s53, 0")
    k.e("s_waitcnt vmcnt(0)")
    k.stamp(4)
    k.e("s_mov_b64 exec, 1")
    k.e("buffer_store_dword v9, v10, s[64:67], s57 offen sc1")
    k.label(f"{name}_poll")
    k.e("buffer_load_dwordx4 v[108:111], v10, s[64:67], s56 offen sc1")
    k.e("s_add_u32 s53, s53, 1")
    k.e("s_waitcnt vmcnt(0)")
    k.e("v_and_b32 v108, v108, v109")
    k.e("v_and_b32 v110, v110, v111")
    k.e("v_and_b32 v108, v108, v110")
    k.e("s_nop 0")
    k.e("v_readfirstlane_b32 s54, v108")
    k.e("s_cmp_ge_u32 s53, 0x40000")
    k.e(f"s_cbranch_scc1 {name}_pollx")
    k.e("s_cmp_eq_u32 s54, 1")
    k.e(f"s_cbranch_scc1 {name}_pollx")
    if SLP:
        k.e(f"s_sleep {SLP}")
    k.e(f"s_branch {name}_poll")
    k.label(f"{name}_pollx")
    k.e("s_mov_b64 exec, -1")
    k.stamp(1)
    for q in range(4):
        k.e(f"buffer_load_dwordx4 v[{16+6*q}:{19+6*q}], v234, s[32:35], s6 offen sc1")
        k.e(f"buffer_load_dwordx2 v[{20+6*q}:{21+6*q}], v235, s[32:35], s7 offen sc1")
        if q < 3:
            k.e(f"s_add_u32 s6, s6, {8*4608}")
            k.e(f"s_add_u32 s7, s7, {8*4608}")
    k.e("v_mov_b32 v120, 0")
    k.e("v_mov_b32 v121, 0")
    for j in range(6):
        k.e(f"v_lshlrev_b32 v{60+2*j}, 16, v{248+j}")
        k.e(f"v_and_b32 v{61+2*j}, s58, v{248+j}")
    k.e("s_waitcnt vmcnt(0)")
    for j in range(6):
        r = [16 + 6 * q + j for q in range(4)]
        for q in range(4):
            k.e(f"v_lshlrev_b32 v{40+2*q}, 16, v{r[q]}")
            k.e(f"v_and_b32 v{41+2*q}, s58, v{r[q]}")
        k.e("v_add_f32 v40, v40, v42")
        k.e("v_add_f32 v41, v41, v43")
        k.e("v_add_f32 v44, v44, v46")
        k.e("v_add_f32 v45, v45, v47")
        if mode == "S":
            k.e("v_cvt_pk_bf16_f32 v48, v40, v41")
            k.e("v_cvt_pk_bf16_f32 v49, v44, v45")
            k.e("v_lshlrev_b32 v40, 16, v48")
            k.e("v_and_b32 v41, s58, v48")
            k.e("v_lshlrev_b32 v44, 16, v49")
            k.e("v_and_b32 v45, s58, v49")
            k.e("v_sub_f32 v40, v40, v44")
            k.e("v_sub_f32 v41, v41, v45")
        else:
            k.e("v_add_f32 v40, v40, v44")
            k.e("v_add_f32 v41, v41, v45")
        k.e("v_cvt_pk_bf16_f32 v48, v40, v41")
        k.e("v_lshlrev_b32 v40, 16, v48")
        k.e("v_and_b32 v41, s58, v48")
        k.e(f"v_add_f32 v40, v40, v{60+2*j}")
        k.e(f"v_add_f32 v41, v41, v{61+2*j}")
        k.e(f"v_cvt_pk_bf16_f32 v{248+j}, v40, v41")
        k.e(f"v_lshlrev_b32 v40, 16, v{248+j}")
        k.e(f"v_and_b32 v41, s58, v{248+j}")
        k.e("v_add_f32 v120, v120, v40")
        k.e("v_fmac_f32 v121, v40, v40")
        k.e("v_add_f32 v120, v120, v41")
        k.e("v_fmac_f32 v121, v41, v41")
        if j == 3:
            k.e("buffer_store_dwordx4 v[248:251], v246, s[40:43], s16 offen")
    k.e("buffer_store_dwordx2 v[252:253], v247, s[40:43], s17 offen")
    for sw in ("16", "32"):
        k.e("v_mov_b32 v44, v120")
        k.e("v_mov_b32 v45, v121")
        k.e("s_nop 1")
        k.e(f"v_permlane{sw}_swap_b32 v120, v44")
        k.e(f"v_permlane{sw}_swap_b32 v121, v45")
        k.e("s_nop 1")
        k.e("v_add_f32 v120, v120, v44")
        k.e("v_add_f32 v121, v121, v45")
    k.e("s_mov_b64 exec, 0xffff")
    k.e("buffer_store_dwordx2 v[120:121], v238, s[60:63], s59 offen")
    if PROF:
        k.wait_vm_all()
    k.stamp(5)
    k.stamp_store(2, 18, 20)
    k.label(Lend)
    return k, 256, 512, CBASE + (49152 if mode == "S" else 0)


def gen_kg():
    name = "kg"
    k = Kern(name, 256, 0, 80)
    Lend = name + "_end"
    STG = 36864
    EXT = 4 * STG
    k.e("s_cmp_ge_u32 s2, 256")
    k.e(f"s_cbranch_scc1 {Lend}")
    k.e("s_load_dwordx2 s[18:19], s[0:1], 88")
    k.e("v_lshrrev_b32 v1, 6, v0")
    k.e("v_and_b32 v2, 63, v0")
    k.e("v_readfirstlane_b32 s20, v1")
    k.e("s_and_b32 s22, s2, 7")
    k.e("s_lshr_b32 s23, s2, 3")
    if MAPG == 0:
        k.e("s_and_b32 s21, s23, 7")
        k.e("s_lshr_b32 s23, s23, 3")
        k.e("s_lshl_b32 s22, s22, 2")
        k.e("s_add_u32 s23, s23, s22")
    elif MAPG == 1:
        k.e("s_mov_b32 s21, s22")
    else:
        k.e("s_and_b32 s21, s22, 6")
        k.e("s_and_b32 s44, s23, 1")
        k.e("s_add_u32 s21, s21, s44")
        k.e("s_and_b32 s22, s22, 1")
        k.e("s_lshl_b32 s22, s22, 4")
        k.e("s_lshr_b32 s23, s23, 1")
        k.e("s_add_u32 s23, s23, s22")
    k.e("s_lshl_b32 s21, s21, 3")
    k.e("s_add_u32 s21, s21, s20")
    k.e("s_waitcnt lgkmcnt(0)")
    k.stamp(0)
    srd_ws_s(k, 76, 18, 73, 512*128)
    k.e("s_lshl_b32 s3, s2, 8")
    k.e("v_lshlrev_b32 v1, 2, v0")
    k.e("v_mov_b32 v3, 0")
    k.e("v_cmp_gt_u32 vcc, 64, v0")
    k.e("s_and_b64 exec, exec, vcc")
    k.e("buffer_store_dword v3, v1, s[76:79], s3 offen sc1")
    k.e("s_mov_b64 exec, -1")
    k.srd_ws(24, 18, "WGU")
    srd_ws_s(k, 28, 18, 70, XC_SZ)
    srd_ws_s(k, 32, 18, 71, ST_SZ)
    srd_ws_s(k, 40, 18, 72, HC_SZ)
    k.e("v_lshlrev_b32 v3, 4, v2")
    k.e(f"s_mul_i32 s44, s23, {WGU_CB}")
    k.e("s_mul_i32 s45, s20, 4608")
    k.e("s_add_u32 s43+1, s44, s45".replace("s43+1", "s50"))
    k.e("s_mul_i32 s46, s21, 36864")
    k.e("s_mul_i32 s52, s20, 1152")
    k.e(f"s_add_u32 s51, s44, {36*9216}")
    k.e("s_add_u32 s51, s51, s52")
    NST = 9
    ACC = 112
    BFB = 16
    AFB = 80
    XB = 104
    NF, DEP = 6, int(os.environ.get('KG_DEP', '4'))
    PRIO = int(os.environ.get('PRIO', '0'))
    VSP = int(os.environ.get('VSP', '3'))
    for s_ in range(5):
        if s_ == 0:
            k.e("v_mov_b32 v4, v3")
        else:
            k.e(f"v_add_u32 v{4+s_}, {s_*STG}, v3")

    pend = []

    def dma_ops(st_):
        slot = st_ % 4
        ops = []
        for e_ in range(4):
            def f(e_=e_):
                k.e(f"s_add_u32 m0, s45, {slot*STG}")
                k.e(f"s_add_u32 s47, s50, {st_*STG}")
                k.vm(f"buffer_load_dwordx4 v3, s[24:27], s47 offen offset:{e_*1024} lds", ("d", st_))
            ops.append(f)
        def f5():
            k.e(f"s_add_u32 m0, s45, {slot*STG + 4096}")
            k.e(f"s_add_u32 s47, s50, {st_*STG + 4096}")
            k.e("s_mov_b32 exec_hi, 0")
            k.vm("buffer_load_dwordx4 v3, s[24:27], s47 offen lds", ("d", st_))
            k.e("s_mov_b64 exec, -1")
        ops.append(f5)
        return ops

    def ext_ops():
        def f1():
            k.e(f"s_add_u32 m0, s52, {EXT}")
            k.e("s_nop 0")
            k.vm("buffer_load_dwordx4 v3, s[24:27], s51 offen lds", ("d", "x"))
        def f2():
            k.e(f"s_add_u32 m0, s52, {EXT}")
            k.e("s_mov_b64 exec, 0xff")
            k.vm("buffer_load_dwordx4 v3, s[24:27], s51 offen offset:1024 lds", ("d", "x"))
            k.e("s_mov_b64 exec, -1")
        return [f1, f2]

    def b_ops(st_):
        ops = []
        for j in range(4):
            def f(j=j):
                rg = BFB + (st_ % 4) * 16 + j * 4
                k.e(f"s_add_u32 s47, s46, {st_*4096}")
                k.vm(f"buffer_load_dwordx4 v[{rg}:{rg+3}], v3, s[28:31], s47 offen offset:{j*1024}", ("b", st_))
            ops.append(f)
        return ops

    STB = 64

    for f in dma_ops(0) + b_ops(0) + dma_ops(1):
        f()
    k.e("v_and_b32 v9, 31, v2")
    k.e("v_lshrrev_b32 v10, 5, v2")
    k.e("v_lshlrev_b32 v10, 17, v10")
    k.e("v_lshl_add_u32 v9, v9, 3, v10")
    k.e("s_lshl_b32 s53, s21, 8")
    for a in range(144):
        k.e(f"v_mov_b32 v{ACC+a}, 0")

    def st_ops():
        ops = []
        for i in range(8):
            def f(i=i):
                k.e(f"s_add_u32 s57, s53, {i*16384}")
                k.vm(f"buffer_load_dwordx2 v[{STB+2*i}:{STB+2*i+1}], v9, s[32:35], s57 offen", "st")
            ops.append(f)
        return ops

    def st_finish():
        k.wait_vm("st")
        stats_finish(k, STB, 12, 10, 13, 14, 15)
        k.e("v_rcp_f32 v11, v10")
        k.e("v_xor_b32 v12, 0x80000000, v12")
        k.e("v_mul_f32 v11, 0xbfb8aa3b, v11")
        k.e("v_lshrrev_b32 v13, 16, v12")
        k.e("v_or_b32 v14, v12, v13")
        k.e(f"v_mov_b32 v{XB}, v14")
        k.e(f"v_mov_b32 v{XB+1}, v13")
        k.e(f"v_mov_b32 v{XB+2}, v14")
        k.e(f"v_mov_b32 v{XB+3}, v13")
    if PRIO == 1:
        k.e("s_cmp_ge_u32 s20, 4")
        k.e(f"s_cbranch_scc0 {name}_np")
        k.e("s_setprio 1")
        k.label(f"{name}_np")
    elif PRIO == 2:
        k.e("s_cmp_lt_u32 s20, 4")
        k.e(f"s_cbranch_scc0 {name}_np")
        k.e("s_setprio 1")
        k.label(f"{name}_np")
    k.stamp(1)
    k.wait_vm(("d", 0))
    k.e("s_barrier")
    k.stamp(2)
    pend += b_ops(1) + dma_ops(2) + st_ops() + b_ops(2) + dma_ops(3) + ext_ops()

    seq = []
    for st_ in range(7):
        for kk in range(4):
            for ft in range(9):
                seq.append((st_, kk, ft))
    NMAIN = len(seq)
    for ft in range(9):
        for st_ in (7, 8):
            for kk in range(4):
                seq.append((st_, kk, ft))
        seq.append(("x", 0, ft))
    total = len(seq)

    def aread(m):
        if os.environ.get("EXP_NODS"):
            return
        if os.environ.get("EXP_HALFDS") and m % 2 == 1:
            return
        st_, kk, ft = seq[m]
        rg = AFB + (m % NF) * 4
        if st_ == "x":
            k.ds(f"ds_read_b128 v[{rg}:{rg+3}], v8 offset:{ft*1024}", m)
        else:
            k.ds(f"ds_read_b128 v[{rg}:{rg+3}], v{4 + st_ % 4} offset:{(kk*9+ft)*1024}", m)

    def stage_sync(st_):
        while pend:
            pend.pop(0)()
        if st_ == 7:
            k.wait_vm([("d", 7), ("d", 8), ("d", "x")])
        else:
            k.wait_vm(("d", st_))
        if not os.environ.get("EXP_NOBAR"):
            k.e("s_barrier")
        if st_ == 1:
            st_finish()
        if st_ >= 2 and st_ + 2 < NST and not os.environ.get("EXP_NOVM"):
            pend.extend(dma_ops(st_ + 2))
        if st_ >= 1 and st_ + 2 < NST and not os.environ.get("EXP_NOVM"):
            pend.extend(b_ops(st_ + 2))

    k.e(f"s_mul_i32 s48, s21, {HCB}")
    k.e("s_mul_i32 s49, s23, 9216")
    k.e("s_add_u32 s48, s48, s49")

    def epi(ft):
        a = ACC + ft * 16
        t = 32 + (ft % 2) * 12
        ins = []
        for j in range(8):
            ins.append(f"v_mul_f32 v{t+j}, v{a+j}, v11")
        for j in range(8):
            ins.append(f"v_exp_f32 v{t+j}, v{t+j}")
        for j in range(8):
            ins.append(f"v_fma_f32 v{t+j}, v{t+j}, v10, v10")
        for j in range(8):
            ins.append(f"v_rcp_f32 v{t+j}, v{t+j}")
        for j in range(8):
            ins.append(f"v_mul_f32 v{t+j}, v{t+j}, v{a+8+j}")
        for j in range(4):
            ins.append(f"v_cvt_pk_bf16_f32 v{t+8+j}, v{t+2*j}, v{t+2*j+1}")
        ins.append(("store", t + 8, ft))
        return ins

    def emit_epi(ins):
        if isinstance(ins, tuple):
            _, rg, ft = ins
            k.vm(f"buffer_store_dwordx4 v[{rg}:{rg+3}], v3, s[40:43], s48 offen {STPG}", ("o", ft))
            k.e("s_add_u32 s48, s48, 1024")
        else:
            k.e(ins)

    for m in range(DEP):
        aread(m)
    epq = []
    for m in range(total):
        nxt = m + DEP
        if nxt < total:
            if nxt < NMAIN and nxt % 36 == 0:
                stage_sync(nxt // 36)
            if nxt == NMAIN:
                stage_sync(7)
            aread(nxt)
        st_, kk, ft = seq[m]
        if m < NMAIN:
            if m % 36 == 0:
                k.wait_vm(("b", st_))
        elif m == NMAIN:
            k.wait_vm([("b", 7), ("b", 8)])
            k.stamp(3)
        k.wait_ds(m)
        af = AFB + ((m - (m % 2 if os.environ.get("EXP_HALFDS") else 0)) % NF) * 4
        bf = XB if st_ == "x" else BFB + (st_ % 4) * 16 + kk * 4
        acc = ACC + ft * 16
        k.e(f"v_mfma_f32_32x32x16_bf16 v[{acc}:{acc+15}], v[{af}:{af+3}], v[{bf}:{bf+3}], v[{acc}:{acc+15}]")
        if pend and (m % VSP == VSP - 1 or m < 36):
            pend.pop(0)()
        if m >= NMAIN:
            r = (m - NMAIN) % 9
            if r == 8:
                while epq:
                    emit_epi(epq.pop(0))
                epq = epi(ft)
            elif r >= 3:
                for _ in range(9):
                    if epq:
                        emit_epi(epq.pop(0))
    k.e("s_nop 15")
    while epq:
        emit_epi(epq.pop(0))
    k.stamp(4)
    if PROF:
        k.wait_vm_all()
    k.stamp(5)
    k.stamp_store(3, 18, 20)
    k.label(Lend)
    return k, 256, 512, 4 * STG + 9216


def build():
    def mv(*pairs):
        return [f"s_mov_b32 s{r}, {v}" for r, v in pairs]
    X = lambda i: WS[f"XC{i}"][0]
    T = lambda i: WS[f"ST{i}"][0]
    kh1 = gen_kh_full(True)
    kh = gen_kh_full(False); ks = gen_t2("S"); kg = gen_kg(); kd = gen_t2("D")
    SEP = int(os.environ.get("SEP", "1"))
    FL = lambda i: WS["FLG"][0] + i * 65536
    EX = lambda i: WS["PART"][0] + i * 9437184
    AB = [WS["AB2" if SEP else "AB"][0], WS["AB"][0]]
    HC = [WS["HC2" if SEP else "HC"][0], WS["HC"][0]]
    ent = {
        "kh1": [("kh1_kernel", mv((72, AB[0]), (73, FL(0))))],
        "kh": [("kh2_kernel", mv((70, X(2)), (71, T(2)), (72, AB[1]), (73, FL(2))))],
        "ks": [("ks1_kernel", mv((70, X(0)), (71, X(1)), (72, T(1)), (73, 0), (75, EX(0)), (68, AB[0]), (69, FL(0)))),
               ("ks2_kernel", mv((70, X(2)), (71, X(3)), (72, T(3)), (73, 0), (75, EX(2)), (68, AB[1]), (69, FL(2))))],
        "kg": [("kg1_kernel", mv((70, X(1)), (71, T(1)), (72, HC[0]), (73, FL(1)))), ("kg2_kernel", mv((70, X(3)), (71, T(3)), (72, HC[1]), (73, FL(3))))],
        "kd": [("kd1_kernel", mv((70, X(1)), (71, X(2)), (72, T(2)), (73, 0), (75, EX(1)), (68, HC[0]), (69, FL(1)))),
               ("kd2_kernel", mv((70, X(3)), (71, X(2)), (72, T(2)), (73, 1), (75, EX(3)), (68, HC[1]), (69, FL(3))))],
    }
    if PROF:
        idx = {"kh1_kernel": 0, "ks1_kernel": 1, "kg1_kernel": 2, "kd1_kernel": 3, "kh2_kernel": 4, "ks2_kernel": 5, "kg2_kernel": 6, "kd2_kernel": 7}
        for kk_, lst in ent.items():
            for nm, ins in lst:
                ins.append(f"s_mov_b32 s74, {idx[nm]*512*256}")
    order = [("kh1_kernel", kh1), ("ks1_kernel", ks), ("kg1_kernel", kg), ("kd1_kernel", kd),
             ("kh2_kernel", kh), ("ks2_kernel", ks), ("kg2_kernel", kg), ("kd2_kernel", kd)]
    head = ["; generated by dev/gen3.py -- FNet/GLU interleaved layers, launch list"]
    for nm, (k, grid, block, lds) in order:
        head.append(f"; @launch kernel={nm} grid=({grid},1,1) block=({block},1,1) lds={lds}")
    out = head + ['.amdgcn_target "amdgcn-amd-amdhsa--gfx950"', ".text"]
    descs = []
    for kk_ in (kh1, kh, ks, kg, kd):
        t, ds_ = ktext(kk_[0], ent[kk_[0].name])
        out.append(t); descs += ds_
    out.append('.section .rodata,"a"')
    for d in descs:
        out.append(".p2align 6")
        out.append(d)
    return "\n".join(out) + "\n"


if __name__ == "__main__":
    path = sys.argv[1] if len(sys.argv) > 1 else "interleave_layers__spectral_fnet__glu_gated_glu__prompt.s"
    open(path, "w").write(build())
    print("wrote", path, "ws bytes", WS_TOTAL)
```

```python
import sys

S, D, F = 2048, 576, 4608
import os
PROF = bool(int(os.environ.get("PROF", "0")))
NW_T1 = 8

XC_SZ = S * D * 2
ST_SZ = S * 16 * 2 * 4
PADH = int(os.environ.get("PADH", "0")); PADW = int(os.environ.get("PADW", "0")); PADA = int(os.environ.get("PADA", "0"))
ABJ = 256 * 1152 + PADA
HCB = 576 * 512 + PADH
WDJ = 576 * 1152 + PADW
AB_SZ = 16 * ABJ
HC_SZ = 64 * HCB
WGU_SZ = 32 * 37 * 9 * 1024
WGU_CB = 37 * 9216
WD_SZ = 8 * WDJ
CS_SZ = 288 * 2 * 2 * 8 * 4
RS_SZ = 2 * 8 * 80 * 4


def _al(x, a=4096):
    return (x + a - 1) // a * a


_off = 0
WS = {}
for name, sz in [("XC0", XC_SZ), ("XC1", XC_SZ), ("XC2", XC_SZ), ("XC3", XC_SZ),
                 ("ST0", ST_SZ), ("ST1", ST_SZ), ("ST2", ST_SZ), ("ST3", ST_SZ),
                 ("AB", AB_SZ), ("HC", HC_SZ), ("WGU", WGU_SZ), ("WD", WD_SZ),
                 ("CS", CS_SZ), ("RS", RS_SZ), ("PART", 4*128*4*9216*2), ("LC", XC_SZ), ("FLG", 4*512*128), ("AB2", AB_SZ), ("HC2", HC_SZ), ("DBG", 16*512*256)]:
    WS[name] = (_off, sz)
    _off += _al(sz + 4096)
WS_TOTAL = _off

KA = dict(x=0, seq_re=8, seq_im=16, hid_re=24, hid_im=32, bx=40, wg=48, wu=56, wd=64, out=72, dbg=80, ws=88)


class Kern:
    def __init__(self, name, nvgpr, nagpr=0, nsgpr=100):
        self.name = name
        self.L = []
        self.vq = []
        self.lq = []
        self.nvgpr = nvgpr
        self.nagpr = nagpr
        self.nsgpr = nsgpr
        self.lab = 0

    def e(self, s):
        self.L.append("    " + s)

    def c(self, s):
        self.L.append("    ; " + s)

    def label(self, s):
        self.L.append(s + ":")

    def newlabel(self, p="L"):
        self.lab += 1
        return f"{self.name}_{p}{self.lab}"

    def vm(self, s, tag):
        self.e(s)
        self.vq.append(tag)
        assert len(self.vq) <= 63, f"too many vmem outstanding in {self.name}"

    def wait_vm(self, tags):
        if not isinstance(tags, (list, set)):
            tags = [tags]
        idx = -1
        for i, t in enumerate(self.vq):
            if t in tags:
                idx = i
        if idx < 0:
            return
        n = len(self.vq) - 1 - idx
        self.e(f"s_waitcnt vmcnt({n})")
        self.vq = self.vq[idx + 1:]

    def wait_vm_all(self):
        self.e("s_waitcnt vmcnt(0)")
        self.vq = []

    def ds(self, s, tag):
        self.e(s)
        self.lq.append(tag)

    def wait_ds(self, tags):
        if not isinstance(tags, (list, set)):
            tags = [tags]
        idx = -1
        for i, t in enumerate(self.lq):
            if t in tags:
                idx = i
        if idx < 0:
            return
        n = len(self.lq) - 1 - idx
        assert n <= 15
        self.e(f"s_waitcnt lgkmcnt({n})")
        self.lq = self.lq[idx + 1:]

    def wait_ds_all(self):
        self.e("s_waitcnt lgkmcnt(0)")
        self.lq = []

    def stamp(self, i):
        if not PROF:
            return
        self.e("s_waitcnt lgkmcnt(0)")
        self.lq = []
        self.e(f"s_memtime s[{80+2*i}:{81+2*i}]")
        if i == 0:
            self.e("s_memrealtime s[94:95]")
        self.e("s_waitcnt lgkmcnt(0)")
        self.nst = max(getattr(self, "nst", 0), i + 1)

    def stamp_store(self, kidx, wsbase, swave):
        if not PROF:
            return
        self.e("s_mov_b64 exec, -1")
        self.e("s_memrealtime s[96:97]")
        self.srd_ws(76, wsbase, "DBG")
        self.e("s_waitcnt lgkmcnt(0)")
        self.e(f"s_lshl_b32 s98, s2, 8")
        self.e(f"s_lshl_b32 s99, s{swave}, 5")
        self.e("s_add_u32 s98, s98, s99")
        self.e("s_add_u32 s98, s98, s74")
        self.e("v_mov_b32 v1, 0")
        for i in range(self.nst):
            self.e(f"v_mov_b32 v0, s{80+2*i}")
            self.e(f"buffer_store_dword v0, v1, s[76:79], s98 offen offset:{4*i}")
        self.e("v_mov_b32 v0, s96")
        self.e(f"buffer_store_dword v0, v1, s[76:79], s98 offen offset:28")
        self.e("v_mov_b32 v0, s94")
        self.e(f"buffer_store_dword v0, v1, s[76:79], s98 offen offset:24")

    def srd_ptr(self, d, base, nbytes):
        self.e(f"s_mov_b32 s{d}, s{base}")
        self.e(f"s_and_b32 s{d+1}, s{base+1}, 0xffff")
        self.e(f"s_mov_b32 s{d+2}, {nbytes}")
        self.e(f"s_mov_b32 s{d+3}, 0x00020000")

    def srd_ws(self, d, wsbase, region):
        off, sz = WS[region]
        self.e(f"s_add_u32 s{d}, s{wsbase}, {off}")
        self.e(f"s_addc_u32 s{d+1}, s{wsbase+1}, 0")
        self.e(f"s_and_b32 s{d+1}, s{d+1}, 0xffff")
        self.e(f"s_mov_b32 s{d+2}, {sz}")
        self.e(f"s_mov_b32 s{d+3}, 0x00020000")

    def text(self):
        tot = self.nvgpr if self.nagpr == 0 else (self.nvgpr + 3) // 4 * 4 + self.nagpr
        acc = (self.nvgpr + 3) // 4 * 4
        out = [f".globl {self.name}", ".p2align 8", f".type {self.name},@function", f"{self.name}:"]
        out += self.L
        out += ["    s_endpgm"]
        desc = [f".amdhsa_kernel {self.name}",
                f"  .amdhsa_next_free_vgpr {tot}",
                f"  .amdhsa_next_free_sgpr {100 if PROF else self.nsgpr}",
                f"  .amdhsa_accum_offset {acc}",
                "  .amdhsa_group_segment_fixed_size 0",
                "  .amdhsa_kernarg_size 96",
                "  .amdhsa_user_sgpr_count 2",
                "  .amdhsa_user_sgpr_kernarg_segment_ptr 1",
                "  .amdhsa_system_sgpr_workgroup_id_x 1",
                ".end_amdhsa_kernel"]
        return "\n".join(out), "\n".join(desc)


def R(kind, i, n=1):
    if n == 1:
        return f"{kind}{i}"
    return f"{kind}[{i}:{i+n-1}]"


def unpack_sum(k, src, lo, hi, sacc, qacc):
    k.e(f"v_lshlrev_b32 v{lo}, 16, v{src}")
    k.e(f"v_and_b32 v{hi}, 0xffff0000, v{src}")
    k.e(f"v_add_f32 v{sacc}, v{sacc}, v{lo}")
    if qacc is not None:
        k.e(f"v_fmac_f32 v{qacc}, v{lo}, v{lo}")
    k.e(f"v_add_f32 v{sacc}, v{sacc}, v{hi}")
    if qacc is not None:
        k.e(f"v_fmac_f32 v{qacc}, v{hi}, v{hi}")


def xlane_add(k, val, tmp, addr, lane, mask):
    k.e(f"v_xor_b32 v{addr}, {mask}, v{lane}")
    k.e(f"v_lshlrev_b32 v{addr}, 2, v{addr}")
    k.e(f"ds_bpermute_b32 v{tmp}, v{addr}, v{val}")
    k.e("s_waitcnt lgkmcnt(0)")
    k.e(f"v_add_f32 v{val}, v{val}, v{tmp}")


def slotmap_v(k, dd, out, t0, t1):
    k.e(f"v_and_b32 v{out}, 0x23, v{dd}")
    k.e(f"v_bfe_u32 v{t0}, v{dd}, 2, 1")
    k.e(f"v_lshl_or_b32 v{out}, v{t0}, 4, v{out}")
    k.e(f"v_bfe_u32 v{t0}, v{dd}, 3, 2")
    k.e(f"v_lshl_or_b32 v{out}, v{t0}, 2, v{out}")
    k.e(f"v_cmp_gt_u32 vcc, 64, v{dd}")
    k.e("s_nop 1")
    k.e(f"v_cndmask_b32 v{out}, v{dd}, v{out}, vcc")


NA_, NB_, NC_, ND_ = 64, 36, 144, 144


def gen_k0():
    k = Kern("k0_kernel", 64, 0, 64)
    total = NA_ + NB_ + NC_ + ND_
    Lend = "k0_end"
    k.e(f"s_cmp_ge_u32 s2, {total}")
    k.e(f"s_cbranch_scc1 {Lend}")
    k.e("s_load_dwordx2 s[4:5], s[0:1], 0")
    k.e("s_load_dwordx4 s[8:11], s[0:1], 24")
    k.e("s_load_dwordx4 s[12:15], s[0:1], 48")
    k.e("s_load_dwordx2 s[16:17], s[0:1], 64")
    k.e("s_load_dwordx2 s[18:19], s[0:1], 88")
    k.e("v_lshrrev_b32 v1, 6, v0")
    k.e("v_and_b32 v2, 63, v0")
    k.e("v_readfirstlane_b32 s20, v1")
    k.e("s_waitcnt lgkmcnt(0)")
    k.e(f"s_cmp_lt_u32 s2, {NC_}")
    k.e("s_cbranch_scc1 k0_roleC")
    k.e(f"s_cmp_lt_u32 s2, {NC_ + ND_}")
    k.e("s_cbranch_scc1 k0_roleD")
    k.e(f"s_cmp_lt_u32 s2, {NC_ + ND_ + NA_}")
    k.e("s_cbranch_scc1 k0_roleA")
    k.e("s_branch k0_roleB")

    k.label("k0_roleA")
    k.e(f"s_sub_u32 s21, s2, {NC_ + ND_}")
    k.srd_ptr(24, 4, XC_SZ)
    k.srd_ws(28, 18, "XC0")
    k.srd_ws(32, 18, "ST0")
    k.e("v_and_b32 v3, 31, v0")
    k.e("v_lshrrev_b32 v4, 5, v0")
    k.e("v_and_b32 v5, 3, v3")
    k.e("v_bfe_u32 v6, v3, 2, 2")
    k.e("v_lshl_or_b32 v5, v6, 3, v5")
    k.e("v_bfe_u32 v6, v3, 4, 1")
    k.e("v_lshl_or_b32 v5, v6, 2, v5")
    k.e("s_movk_i32 s22, 1152")
    k.e("v_mul_lo_u32 v5, v5, s22")
    k.e("v_mul_u32_u24 v6, 144, v4")
    k.e("v_add_u32 v5, v5, v6")
    k.e("s_mul_i32 s23, s21, 36864")
    for it in range(9):
        k.e(f"buffer_load_dwordx4 v[{16+4*it}:{19+4*it}], v5, s[24:27], s23 offen offset:{16*it}")
    k.e("v_mul_u32_u24 v6, 4608, v4")
    k.e("v_lshl_add_u32 v6, v3, 4, v6")
    k.e("v_add_u32 v7, 2048, v6")
    k.e("v_mov_b32 v8, 0")
    k.e("v_mov_b32 v9, 0")
    k.e("s_waitcnt vmcnt(0)")
    for it in range(9):
        vo, im = (6, it * 512) if it < 4 else (7, (it - 4) * 512)
        k.e(f"buffer_store_dwordx4 v[{16+4*it}:{19+4*it}], v{vo}, s[28:31], s23 offen offset:{im}")
    for r in range(36):
        unpack_sum(k, 16 + r, 10, 11, 8, 9)
    k.e("v_lshlrev_b32 v12, 3, v3")
    k.e("v_lshl_add_u32 v12, v4, 15, v12")
    k.e("s_lshl_b32 s23, s21, 8")
    k.e("v_mov_b32 v10, 0")
    k.e("v_mov_b32 v11, 0")
    k.e("buffer_store_dwordx2 v[8:9], v12, s[32:35], s23 offen")
    k.e("v_add_u32 v12, 16384, v12")
    k.e("buffer_store_dwordx2 v[10:11], v12, s[32:35], s23 offen")
    k.e(f"s_branch {Lend}")

    k.label("k0_roleB")
    k.e(f"s_sub_u32 s21, s2, {NC_ + ND_ + NA_}")
    k.e("s_cmp_ge_u32 s21, 18")
    k.e("s_cselect_b32 s22, 1, 0")
    k.e("s_cselect_b32 s4, s10, s8")
    k.e("s_cselect_b32 s5, s11, s9")
    k.e("s_mul_i32 s23, s22, 18")
    k.e("s_sub_u32 s21, s21, s23")
    k.srd_ptr(24, 4, D * D * 2)
    k.srd_ws(28, 18, "RS")
    k.e("s_lshl_b32 s23, s21, 5")
    k.e("s_lshl_b32 s36, s20, 3")
    k.e("s_add_u32 s23, s23, s36")
    k.e("v_lshrrev_b32 v3, 3, v2")
    k.e("v_add_u32 v3, s23, v3")
    k.e("v_and_b32 v4, 7, v2")
    k.e("s_movk_i32 s36, 1152")
    k.e("v_mul_lo_u32 v5, v3, s36")
    k.e("v_lshl_add_u32 v5, v4, 4, v5")
    for it in range(9):
        k.e(f"buffer_load_dwordx4 v[{16+4*it}:{19+4*it}], v5, s[24:27], 0 offen offset:{128*it}")
    k.e("v_mov_b32 v8, 0")
    k.e("s_waitcnt vmcnt(0)")
    for r in range(36):
        unpack_sum(k, 16 + r, 10, 11, 8, None)
    for m in (1, 2, 4):
        xlane_add(k, 8, 10, 11, 2, m)
    k.e("v_mul_u32_u24 v6, 911, v3")
    k.e("v_lshrrev_b32 v6, 16, v6")
    k.e("v_mul_u32_u24 v7, 72, v6")
    k.e("v_sub_u32 v7, v3, v7")
    slotmap_v(k, 7, 12, 13, 14)
    k.e("v_mul_u32_u24 v6, 80, v6")
    k.e("v_add_u32 v6, v6, v12")
    k.e("v_lshlrev_b32 v6, 2, v6")
    k.e("s_mul_i32 s23, s22, 2560")
    k.e("v_cmp_eq_u32 vcc, 0, v4")
    k.e("s_and_saveexec_b64 s[38:39], vcc")
    k.e("buffer_store_dword v8, v6, s[28:31], s23 offen")
    k.e(f"s_branch {Lend}")

    k.label("k0_roleC")
    k.e("s_cmp_ge_u32 s2, 72")
    k.e("s_cselect_b32 s22, 1, 0")
    k.e("s_cselect_b32 s4, s14, s12")
    k.e("s_cselect_b32 s5, s15, s13")
    k.e("s_mul_i32 s23, s22, 72")
    k.e("s_sub_u32 s21, s2, s23")
    k.srd_ptr(24, 4, D * F * 2)
    k.srd_ws(28, 18, "WGU")
    k.srd_ws(32, 18, "CS")
    k.e("v_lshrrev_b32 v3, 3, v2")
    k.e("v_and_b32 v4, 7, v2")
    k.e("v_mul_u32_u24 v5, 9216, v3")
    k.e("v_lshl_add_u32 v5, v4, 4, v5")
    k.e("s_mul_i32 s36, s20, 73728")
    k.e("s_lshl_b32 s37, s21, 7")
    k.e("s_add_u32 s36, s36, s37")
    k.e("s_lshl_b32 s37, s20, 10")
    for i in range(18):
        k.e(f"s_add_u32 m0, s37, {4096*i}")
        k.e("s_nop 0")
        k.e("buffer_load_dwordx4 v5, s[24:27], s36 offen lds")
        k.e(f"s_add_u32 s36, s36, {4*73728}")
    k.e("v_lshrrev_b32 v3, 4, v2")
    k.e("v_and_b32 v4, 15, v2")
    k.e("v_bfe_u32 v6, v2, 2, 2")
    k.e("v_lshlrev_b32 v7, 10, v3")
    k.e("v_lshl_add_u32 v7, v6, 7, v7")
    k.e("v_and_b32 v6, 1, v2")
    k.e("v_lshl_add_u32 v7, v6, 4, v7")
    k.e("v_bfe_u32 v6, v2, 1, 1")
    k.e("v_lshl_add_u32 v7, v6, 3, v7")
    k.e("s_lshl_b32 s36, s20, 5")
    k.e("v_add_u32 v7, s36, v7")
    k.e("v_add_u32 v8, 0x8000, v7")
    k.e("s_lshl_b32 s36, s21, 2")
    k.e("s_add_u32 s36, s36, s20")
    k.e("s_mul_i32 s37, s36, 7282")
    k.e("s_lshr_b32 s37, s37, 16")
    k.e("s_mul_i32 s38, s37, 9")
    k.e("s_sub_u32 s38, s36, s38")
    k.e(f"s_mul_i32 s39, s37, {WGU_CB}")
    k.e("s_lshl_b32 s38, s38, 10")
    k.e("s_add_u32 s39, s39, s38")
    k.e("s_lshl_b32 s38, s22, 8")
    k.e("s_add_u32 s39, s39, s38")
    k.e("v_lshrrev_b32 v9, 1, v3")
    k.e("v_mul_u32_u24 v9, 9216, v9")
    k.e("v_and_b32 v6, 1, v3")
    k.e("v_lshl_add_u32 v9, v6, 9, v9")
    k.e("v_lshl_add_u32 v9, v4, 4, v9")
    k.e("v_mov_b32 v10, 0")
    k.e("s_waitcnt vmcnt(0)")
    k.e("s_barrier")
    for it in range(18):
        base, im = (7, it * 4096) if it < 8 else (8, (it - 8) * 4096)
        rg = 16 + 4 * (it % 8)
        k.e(f"ds_read_b64_tr_b16 v[{rg}:{rg+1}], v{base} offset:{im}")
        k.e(f"ds_read_b64_tr_b16 v[{rg+2}:{rg+3}], v{base} offset:{im+512}")
        k.e("s_waitcnt lgkmcnt(0)")
        k.e(f"buffer_store_dwordx4 v[{rg}:{rg+3}], v9, s[28:31], s39 offen")
        k.e(f"s_add_u32 s39, s39, 18432")
        for r in range(4):
            unpack_sum(k, rg + r, 11, 12, 10, None)
        if it % 8 == 7:
            k.e("s_waitcnt vmcnt(0)")
    xlane_add(k, 10, 11, 12, 2, 16)
    xlane_add(k, 10, 11, 12, 2, 32)
    k.e("v_cvt_pk_bf16_f32 v11, v10, v10")
    k.e("v_lshlrev_b32 v12, 16, v11")
    k.e("v_sub_f32 v13, v10, v12")
    k.e("v_cvt_pk_bf16_f32 v14, v13, v13")
    k.e("v_lshlrev_b32 v15, 16, v14")
    k.e("v_sub_f32 v13, v13, v15")
    k.e("v_cvt_pk_bf16_f32 v17, v13, v13")
    k.e("v_and_b32 v17, 0xffff, v17")
    k.e("v_and_b32 v16, 0xffff, v11")
    k.e("v_or_b32 v16, v16, v15")
    k.e("v_mov_b32 v18, 0")
    k.e("v_mov_b32 v19, 0")
    k.e("v_cmp_gt_u32 vcc, 16, v2")
    k.e("s_nop 1")
    k.e("v_cndmask_b32 v16, 0, v16, vcc")
    k.e("v_cndmask_b32 v17, 0, v17, vcc")
    k.e("v_lshlrev_b32 v11, 4, v4")
    k.e("v_lshl_add_u32 v11, v3, 9, v11")
    k.e("v_cmp_gt_u32 vcc, 32, v2")
    k.e("s_and_saveexec_b64 s[40:41], vcc")
    k.e("buffer_store_dwordx4 v[16:19], v11, s[28:31], s39 offen")
    k.e(f"s_branch {Lend}")

    k.label("k0_roleD")
    k.e(f"s_sub_u32 s21, s2, {NC_}")
    k.e("s_mul_i32 s22, s21, 7282")
    k.e("s_lshr_b32 s22, s22, 16")
    k.e("s_mul_i32 s23, s22, 9")
    k.e("s_sub_u32 s21, s21, s23")
    k.srd_ptr(24, 16, D * F * 2)
    k.srd_ws(28, 18, "WD")
    k.e("v_lshrrev_b32 v3, 3, v2")
    k.e("v_and_b32 v4, 7, v2")
    k.e("v_mul_u32_u24 v5, 1152, v3")
    k.e("v_lshl_add_u32 v5, v4, 4, v5")
    k.e(f"s_mul_i32 s36, s22, {288*1152}")
    k.e("s_mul_i32 s37, s20, 9216")
    k.e("s_add_u32 s36, s36, s37")
    k.e("s_lshl_b32 s37, s21, 7")
    k.e("s_add_u32 s36, s36, s37")
    k.e("s_lshl_b32 s37, s20, 10")
    for i in range(9):
        k.e(f"s_add_u32 m0, s37, {4096*i}")
        k.e("s_nop 0")
        k.e("buffer_load_dwordx4 v5, s[24:27], s36 offen lds")
        k.e(f"s_add_u32 s36, s36, {4*9216}")
    k.e("v_lshrrev_b32 v3, 4, v2")
    k.e("v_and_b32 v4, 15, v2")
    k.e("v_bfe_u32 v6, v2, 2, 2")
    k.e("v_lshlrev_b32 v7, 10, v3")
    k.e("v_lshl_add_u32 v7, v6, 7, v7")
    k.e("v_and_b32 v6, 3, v2")
    k.e("v_lshl_add_u32 v7, v6, 3, v7")
    k.e("s_lshl_b32 s36, s20, 5")
    k.e("v_add_u32 v7, s36, v7")
    k.e("s_lshl_b32 s36, s21, 6")
    k.e("s_lshl_b32 s37, s20, 4")
    k.e("s_add_u32 s36, s36, s37")
    k.e("v_add_u32 v8, s36, v4")
    k.e("v_mul_u32_u24 v9, 911, v8")
    k.e("v_lshrrev_b32 v9, 16, v9")
    k.e("v_mul_u32_u24 v10, 72, v9")
    k.e("v_sub_u32 v10, v8, v10")
    slotmap_v(k, 10, 11, 12, 13)
    k.e("s_mov_b32 s36, 663552")
    k.e("v_mul_lo_u32 v9, v9, s36")
    k.e("v_lshl_add_u32 v9, v11, 4, v9")
    k.e("v_mul_u32_u24 v12, 1152, v3")
    k.e("v_add_u32 v9, v9, v12")
    k.e(f"s_mul_i32 s39, s22, {36*1152}")
    k.e("s_waitcnt vmcnt(0)")
    k.e("s_barrier")
    for it in range(9):
        rg = 16 + 4 * it
        k.e(f"ds_read_b64_tr_b16 v[{rg}:{rg+1}], v7 offset:{it*4096}")
        k.e(f"ds_read_b64_tr_b16 v[{rg+2}:{rg+3}], v7 offset:{it*4096+512}")
    for it in range(9):
        rg = 16 + 4 * it
        k.e(f"s_waitcnt lgkmcnt({min(15, 2*(8-it))})")
        k.e(f"buffer_store_dwordx4 v[{rg}:{rg+3}], v9, s[28:31], s39 offen")
        k.e(f"s_add_u32 s39, s39, 4608")
    k.label(Lend)
    return k, total, 256, 73728


def srd_ws_s(k, d, wsbase, sreg, size):
    k.e(f"s_add_u32 s{d}, s{wsbase}, s{sreg}")
    k.e(f"s_addc_u32 s{d+1}, s{wsbase+1}, 0")
    k.e(f"s_and_b32 s{d+1}, s{d+1}, 0xffff")
    k.e(f"s_mov_b32 s{d+2}, {size}")
    k.e(f"s_mov_b32 s{d+3}, 0x00020000")


def ktext(k, entries):
    tot = k.nvgpr if k.nagpr == 0 else (k.nvgpr + 3) // 4 * 4 + k.nagpr
    acc = (k.nvgpr + 3) // 4 * 4
    out, descs = [], []
    for name, ins in entries:
        out += [f".globl {name}", ".p2align 8", f".type {name},@function", f"{name}:"]
        out += [" " + x for x in ins]
        out += [f" s_branch {k.name}_body"]
        descs.append("\n".join([f".amdhsa_kernel {name}",
                f"  .amdhsa_next_free_vgpr {tot}",
                f"  .amdhsa_next_free_sgpr {100 if PROF else k.nsgpr}",
                f"  .amdhsa_accum_offset {acc}",
                "  .amdhsa_group_segment_fixed_size 0",
                "  .amdhsa_kernarg_size 96",
                "  .amdhsa_user_sgpr_count 2",
                "  .amdhsa_user_sgpr_kernarg_segment_ptr 1",
                "  .amdhsa_system_sgpr_workgroup_id_x 1",
                ".end_amdhsa_kernel"]))
    out += [".p2align 6", f"{k.name}_body:"]
    out += [x.replace("    ", " ", 1) for x in k.L]
    out += [" s_endpgm"]
    return "\n".join(out), descs


CPRE = int(os.environ.get("CPRE", "0"))


def code_prefetch(k, name, dummy, srd, vtmp, nwaves, swave, track=True):
    if not CPRE:
        return
    lab = k.newlabel("pc")
    k.e(f"s_getpc_b64 s[{srd}:{srd+1}]")
    k.label(lab)
    k.e(f"s_sub_u32 s{srd}, s{srd}, {lab}-{name}_body")
    k.e(f"s_subb_u32 s{srd+1}, s{srd+1}, 0")
    k.e(f"s_and_b32 s{srd+1}, s{srd+1}, 0xffff")
    k.e(f"s_mov_b32 s{srd+2}, {name}_end-{name}_body")
    k.e(f"s_mov_b32 s{srd+3}, 0x00020000")
    k.e(f"v_lshlrev_b32 v{vtmp}, 4, v0")
    k.e("s_bfe_u32 s3, s2, 0x20003")
    k.e(f"s_mul_i32 s3, s3, {nwaves*1024}")
    for j in range(CPRE):
        ins = f"buffer_load_dwordx4 v[{dummy}:{dummy+3}], v{vtmp}, s[{srd}:{srd+3}], s3 offen"
        if track:
            k.vm(ins, "cp")
        else:
            k.e(ins)
        if j + 1 < CPRE:
            k.e(f"s_add_u32 s3, s3, {4*nwaves*1024}")

def stats_load(k, base, vaddr, srd, soff, tag=None):
    for i in range(8):
        k.e(f"s_add_u32 s57, s{soff}, {i*16384}")
        ins = f"buffer_load_dwordx2 v[{base+2*i}:{base+2*i+1}], v{vaddr}, s[{srd}:{srd+3}], s57 offen"
        if tag is None:
            k.e(ins)
        else:
            k.vm(ins, tag)


def stats_finish(k, base, vm_, vsd, t0, t1, t2):
    for j in range(1, 8):
        k.e(f"v_add_f32 v{base}, v{base}, v{base+2*j}")
        k.e(f"v_add_f32 v{base+1}, v{base+1}, v{base+2*j+1}")
    k.e(f"v_mov_b32 v{base+2}, v{base}")
    k.e(f"v_mov_b32 v{base+3}, v{base+1}")
    k.e("s_nop 1")
    k.e(f"v_permlane32_swap_b32 v{base}, v{base+2}")
    k.e(f"v_permlane32_swap_b32 v{base+1}, v{base+3}")
    k.e("s_nop 1")
    k.e(f"v_add_f32 v{base}, v{base}, v{base+2}")
    k.e(f"v_add_f32 v{base+1}, v{base+1}, v{base+3}")
    stats_core(k, base, vm_, vsd, t0, t1, t2)


def stats_core(k, base, vm_, vsd, t0, t1, t2):
    k.e(f"v_mov_b32 v{t0}, 0x3ae38e39")
    k.e(f"v_mul_f32 v{t1}, v{base}, v{t0}")
    k.e(f"v_mul_f32 v{t2}, v{base+1}, v{t0}")
    k.e(f"v_fma_f32 v{t2}, -v{t1}, v{t1}, v{t2}")
    k.e(f"v_max_f32 v{t2}, 0, v{t2}")
    k.e(f"v_cvt_pk_bf16_f32 v{t0}, v{t1}, v{t2}")
    k.e(f"v_lshlrev_b32 v{vm_}, 16, v{t0}")
    k.e(f"v_and_b32 v{t2}, 0xffff0000, v{t0}")
    k.e(f"v_add_f32 v{t2}, 0x3727c5ac, v{t2}")
    k.e(f"v_cvt_pk_bf16_f32 v{t0}, v{t2}, v{t2}")
    k.e(f"v_lshlrev_b32 v{t2}, 16, v{t0}")
    k.e(f"v_sqrt_f32 v{t2}, v{t2}")
    k.e("s_nop 0")
    k.e(f"v_cvt_pk_bf16_f32 v{t0}, v{t2}, v{t2}")
    k.e(f"v_lshlrev_b32 v{vsd}, 16, v{t0}")


NPF = int(os.environ.get('NPF', '0'))
STP = os.environ.get("STP", "sc1")


def gen_kh_full(first):
    name = "kh1" if first else "kh"
    k = Kern(name, 256, 0, 92)
    Lend = name + "_end"
    LDS_W = 8 * 9216
    SCR = LDS_W + 1024
    total = 256
    RPK = 77824
    k.e(f"s_cmp_ge_u32 s2, {total}")
    k.e(f"s_cbranch_scc1 {Lend}")
    k.e("s_load_dwordx4 s[8:11], s[0:1], 24")
    k.e("s_load_dwordx2 s[18:19], s[0:1], 88")
    if first:
        k.e("s_load_dwordx2 s[6:7], s[0:1], 0")
        k.e("s_load_dwordx4 s[12:15], s[0:1], 48")
        k.e("s_load_dwordx2 s[16:17], s[0:1], 64")
        k.e("s_load_dwordx4 s[60:63], s[0:1], 8")
    k.e("v_lshrrev_b32 v1, 6, v0")
    k.e("v_and_b32 v2, 63, v0")
    k.e("v_readfirstlane_b32 s20, v1")
    k.e("s_and_b32 s21, s2, 7")
    k.e("s_lshr_b32 s22, s2, 3")
    k.e("s_lshl_b32 s21, s21, 1")
    k.e("s_and_b32 s23, s22, 1")
    k.e("s_add_u32 s21, s21, s23")
    k.e("s_mov_b32 s55, s21")
    k.e("s_lshr_b32 s22, s22, 1")
    k.e("s_mov_b32 s54, s22")
    k.e("s_and_b32 s23, s22, 7")
    k.e("s_lshr_b32 s22, s22, 3")
    k.e("s_lshl_b32 s21, s21, 2")
    k.e("s_add_u32 s21, s21, s20")
    k.e("s_waitcnt lgkmcnt(0)")
    k.stamp(0)
    srd_ws_s(k, 76, 18, 73, 512*128)
    k.e("s_lshl_b32 s3, s2, 8")
    k.e("v_lshlrev_b32 v1, 2, v0")
    k.e("v_mov_b32 v3, 0")
    k.e("v_cmp_gt_u32 vcc, 64, v0")
    k.e("s_and_b64 exec, exec, vcc")
    k.e("buffer_store_dword v3, v1, s[76:79], s3 offen sc1")
    k.e("s_mov_b64 exec, -1")
    if first:
        k.e("s_cmp_ge_u32 s20, 4")
        k.e(f"s_cbranch_scc1 {name}_rep")
    k.e("s_cmp_eq_u32 s22, 1")
    k.e("s_cselect_b32 s4, s10, s8")
    k.e("s_cselect_b32 s5, s11, s9")
    k.srd_ptr(24, 4, D * D * 2)
    if first:
        k.srd_ptr(28, 6, XC_SZ)
        k.srd_ws(32, 18, "XC0")
    else:
        srd_ws_s(k, 28, 18, 70, XC_SZ)
        srd_ws_s(k, 32, 18, 71, ST_SZ)
    k.srd_ws(36, 18, "RS")
    srd_ws_s(k, 40, 18, 72, AB_SZ)
    k.e("v_lshrrev_b32 v3, 3, v2")
    k.e("v_and_b32 v4, 7, v2")
    k.e("v_lshrrev_b32 v5, 1, v3")
    k.e("v_xor_b32 v5, v5, v4")
    k.e("v_lshlrev_b32 v5, 4, v5")
    k.e("v_lshrrev_b32 v6, 2, v3")
    k.e("v_and_b32 v7, 3, v3")
    k.e("v_lshl_add_u32 v6, v6, 3, v7")
    k.e("v_mul_u32_u24 v6, 1152, v6")
    k.e("v_add_u32 v8, v6, v5")
    k.e("v_xor_b32 v7, 64, v5")
    k.e("v_add_u32 v9, v6, v7")
    k.e("v_mul_u32_u24 v6, 1152, v3")
    k.e("v_add_u32 v10, v6, v5")
    k.e("v_and_b32 v11, 15, v2")
    k.e("v_lshrrev_b32 v12, 4, v2")
    k.e("v_lshlrev_b32 v13, 9, v12")
    k.e("v_lshl_add_u32 v13, v11, 4, v13")
    k.e(f"s_mul_i32 s48, s23, {72*1152}")
    k.e("s_lshl_b32 s49, s20, 7")
    k.e("s_add_u32 s48, s48, s49")
    k.e("s_mul_i32 s49, s20, 9216")
    qc = lambda q: (32 * (q >> 2) + 16 * (q & 1) + 4 * ((q >> 1) & 1)) * 1152 if q < 8 else 64 * 1152

    def dma_kq(tag, track=True):
        for q in range(9):
            v = 8 + (q & 1) if q < 8 else 10
            k.e(f"s_add_u32 m0, s49, {1024*q}")
            k.e(f"s_add_u32 s50, s48, {qc(q)}")
            ins = f"buffer_load_dwordx4 v{v}, s[24:27], s50 offen lds"
            if track:
                k.vm(ins, tag)
            else:
                k.e(ins)
        k.e("s_add_u32 s48, s48, 512")
        k.e(f"s_add_u32 s49, s49, {4*9216}")

    AFR = 12
    AF = 16
    if first:
        k.e("v_lshrrev_b32 v14, 4, v2")
        k.e("v_bfe_u32 v15, v2, 2, 2")
        k.e("v_lshl_add_u32 v14, v14, 3, v15")
        k.e("v_mul_u32_u24 v14, 1152, v14")
        k.e("v_and_b32 v15, 3, v2")
        k.e("v_lshl_add_u32 v14, v15, 4, v14")
        k.e("v_add_u32 v15, 4608, v14")
        k.e("v_lshl_add_u32 v7, v11, 2, v12")
        k.e("s_lshl_b32 s50, s20, 11")
        k.e(f"s_add_u32 s50, s50, {RPK + 73728}")
        k.e("v_lshl_add_u32 v7, v7, 4, s50")
        k.e("v_lshl_add_u32 v5, v2, 4, s50")
    k.e("s_mul_i32 s44, s21, 36864")
    k.e("s_mov_b32 s45, s44")
    k.e("s_mov_b32 s46, s44")

    def aload(kb):
        for u in range(2):
            rg = AF + ((kb % AFR) * 2 + u) * 4
            if first:
                k.vm(f"buffer_load_dwordx4 v[{rg}:{rg+3}], v{14+u}, s[28:31], s44 offen offset:{64*kb}", ("a", kb))
            else:
                if kb % 2 == 0 and kb > 0 and u == 0:
                    k.e("s_add_u32 s45, s45, 4096")
                k.vm(f"buffer_load_dwordx4 v[{rg}:{rg+3}], v13, s[28:31], s45 offen offset:{(kb%2)*2048 + u*256}", ("a", kb))

    dma_kq("w0")
    aload(0); aload(1)
    dma_kq("w1")
    APRE = 11 if first else 6
    for kb_ in range(2, APRE):
        aload(kb_)
    ACC = 152
    for a in range(60 if first else 40):
        k.e(f"v_mov_b32 v{ACC+a}, 0")
    ONE = 212
    if first:
        for a in range(4):
            k.e(f"v_mov_b32 v{ONE+a}, 0x3f803f80")
        for a in list(range(220, 228)) + list(range(248, 256)):
            k.e(f"v_mov_b32 v{a}, 0")
    k.e("v_lshrrev_b32 v1, 1, v11")
    k.e("v_xor_b32 v1, v1, v12")
    k.e("v_lshlrev_b32 v1, 4, v1")
    k.e("v_lshl_add_u32 v216, v11, 7, v1")
    k.e("v_xor_b32 v217, 64, v216")
    k.e(f"v_add_u32 v218, {5*9216}, v216")
    k.e(f"v_add_u32 v219, {5*9216}, v217")
    if not first:
        k.e("v_and_b32 v224, 31, v2")
        k.e("v_lshrrev_b32 v225, 5, v2")
        k.e("v_lshlrev_b32 v225, 17, v225")
        k.e("v_lshl_add_u32 v225, v224, 3, v225")
        k.e("s_lshl_b32 s53, s21, 8")
        k.e("s_mul_i32 s47, s54, 320")
        k.e("v_lshlrev_b32 v226, 2, v11")
    k.stamp(1)
    k.wait_vm("w0")
    k.e("s_barrier")
    k.stamp(2)
    sets = [112, 132]

    def bread(kb):
        kq, half = (kb >> 1) % 8, kb & 1
        base = 216 + half + (2 if kq >= 5 else 0)
        kq_ = kq - 5 if kq >= 5 else kq
        sb = sets[kb & 1]
        for T in range(5):
            k.ds(f"ds_read_b128 v[{sb+4*T}:{sb+4*T+3}], v{base} offset:{kq_*9216 + T*2048}", ("b", kb))
    def aperm(kb):
        k.wait_vm(("a", kb))
        for u in range(2):
            rg = AF + ((kb % AFR) * 2 + u) * 4
            k.ds(f"ds_write_b128 v5, v[{rg}:{rg+3}] offset:{u*1024}", ("pw", kb))
        for u in range(2):
            rg = AF + ((kb % AFR) * 2 + u) * 4
            k.ds(f"ds_read_b128 v[{rg}:{rg+3}], v7 offset:{u*1024}", ("p", kb))
    if first:
        aperm(0)
    bread(0)
    for kb in range(18):
        if kb == 7:
            k.wait_vm("w1")
            k.e("s_barrier")
            k.e("s_and_b32 s50, s20, 1")
            k.e("s_cmp_eq_u32 s50, 1")
            k.e("s_cselect_b64 vcc, -1, 0")
            k.e("v_cndmask_b32 v1, v8, v9, vcc")
            k.e("s_lshl_b32 s50, s50, 4")
            k.e("s_lshr_b32 s51, s20, 1")
            k.e("s_lshl_b32 s51, s51, 2")
            k.e("s_add_u32 s50, s50, s51")
            k.e("s_mul_i32 s50, s50, 1152")
            k.e(f"s_mul_i32 s48, s23, {72*1152}")
            k.e("s_add_u32 s48, s48, 1024")
            k.e("s_add_u32 s50, s50, s48")
            k.e("s_lshl_b32 s51, s20, 10")
            k.e("s_mov_b32 m0, s51")
            k.e("s_nop 0")
            k.vm("buffer_load_dwordx4 v1, s[24:27], s50 offen lds", "w2")
            k.e("s_add_u32 m0, s51, 4096")
            k.e(f"s_add_u32 s50, s50, {32*1152}")
            k.vm("buffer_load_dwordx4 v1, s[24:27], s50 offen lds", "w2")
            k.e("s_mov_b32 m0, 8192")
            k.e(f"s_add_u32 s50, s48, {64*1152}")
            k.e("s_lshl_b32 s51, s20, 4")
            k.e("s_mov_b64 exec, 0xffff")
            k.e("s_lshl_b64 exec, exec, s51")
            k.vm("buffer_load_dwordx4 v10, s[24:27], s50 offen lds", "w2")
            k.e("s_mov_b64 exec, -1")
        if kb == 15:
            k.wait_vm("w2")
            k.e("s_barrier")
        if kb + APRE < 18:
            aload(kb + APRE)
        k.wait_ds(("b", kb))
        if kb + 1 < 18:
            if first:
                aperm(kb + 1)
            bread(kb + 1)
        if not first and kb == 14:
            stats_load(k, 16, 225, 32, 53, "st")
            for T in range(5):
                k.vm(f"buffer_load_dword v{192+4*T}, v226, s[36:39], s47 offen offset:{64*T}", "st")
        k.wait_vm(("a", kb))
        k.wait_ds(("b", kb))
        sb = sets[kb & 1]
        for u in range(2):
            af = AF + ((kb % AFR) * 2 + u) * 4
            for T in range(5):
                acc = ACC + (u * 5 + T) * 4
                k.e(f"v_mfma_f32_16x16x32_bf16 v[{acc}:{acc+3}], v[{af}:{af+3}], v[{sb+4*T}:{sb+4*T+3}], v[{acc}:{acc+3}]")
            if first and not os.environ.get("EXP_NOGRAM"):
                k.e(f"v_mfma_f32_16x16x32_bf16 v[{248+4*u}:{251+4*u}], v[{af}:{af+3}], v[{ONE}:{ONE+3}], v[{248+4*u}:{251+4*u}]")
                k.e(f"v_mfma_f32_16x16x32_bf16 v[{220+4*u}:{223+4*u}], v[{af}:{af+3}], v[{af}:{af+3}], v[{220+4*u}:{223+4*u}]")
    k.stamp(3)
    k.e("s_lshl_b32 s50, s20, 8")
    k.e(f"s_add_u32 s50, s50, {SCR}")
    if first:
        k.e("s_nop 7")
        k.e("v_and_b32 v228, 3, v11")
        for u in range(2):
            for base, dst in ((248 + 4 * u, 232 + 2 * u), (220 + 4 * u, 233 + 2 * u)):
                k.e(f"v_mov_b32 v{dst}, v{base}")
                for r in range(1, 4):
                    k.e(f"v_cmp_eq_u32 vcc, {r}, v228")
                    k.e("s_nop 1")
                    k.e(f"v_cndmask_b32 v{dst}, v{dst}, v{base+r}, vcc")
        k.e("v_lshrrev_b32 v229, 2, v11")
        k.e("v_lshl_add_u32 v230, v11, 3, s50")
        k.e("v_cmp_eq_u32 vcc, v229, v12")
        k.e("s_and_saveexec_b64 s[52:53], vcc")
        k.e("ds_write_b64 v230, v[232:233]")
        k.e("ds_write_b64 v230, v[234:235] offset:128")
        k.e("s_mov_b64 exec, -1")
        k.e("v_and_b32 v224, 31, v2")
        k.e("v_lshl_add_u32 v230, v224, 3, s50")
        k.e("s_waitcnt lgkmcnt(0)")
        k.e("ds_read_b64 v[228:229], v230")
        k.e("s_waitcnt lgkmcnt(0)")
        stats_core(k, 228, 232, 233, 234, 235, 236)
    else:
        k.wait_vm("st")
        stats_finish(k, 16, 232, 233, 234, 235, 236)
    k.e("v_rcp_f32 v233, v233")
    k.e("s_nop 0")
    k.e("v_mul_f32 v232, v232, v233")
    k.e("v_lshl_add_u32 v226, v224, 3, s50")
    k.e("ds_write_b64 v226, v[232:233]")
    k.e("v_lshl_add_u32 v226, v12, 5, s50")
    k.e("s_waitcnt lgkmcnt(0)")
    k.lq = []
    if first:
        k.e("s_barrier")
        k.e("v_lshlrev_b32 v227, 2, v11")
        k.e(f"v_add_u32 v227, {SCR + 1024}, v227")
        for T in range(5):
            k.e(f"ds_read_b32 v{ACC+40+4*T}, v227 offset:{64*T}")
    k.e("ds_read_b128 v[232:235], v226")
    k.e("ds_read_b128 v[236:239], v226 offset:16")
    k.e("ds_read_b128 v[240:243], v226 offset:128")
    k.e("ds_read_b128 v[244:247], v226 offset:144")
    k.e("v_mul_u32_u24 v15, 1152, v12")
    k.e("v_lshl_add_u32 v15, v11, 4, v15")
    k.e(f"s_mul_i32 s46, s54, {ABJ}")
    k.e("s_mul_i32 s47, s21, 4608")
    k.e("s_add_u32 s46, s46, s47")
    k.e("s_waitcnt lgkmcnt(0)")
    if first:
        k.e("s_add_u32 s51, s55, s20")
        k.e("s_mul_i32 s47, s54, 320")
        k.e("s_cmp_eq_u32 s51, 0")
        k.e("s_cselect_b32 s47, s47, 0x7f000000")
        k.e("v_lshlrev_b32 v227, 2, v11")
        for T in range(5):
            k.e(f"buffer_store_dword v{ACC+40+4*T}, v227, s[36:39], s47 offen offset:{64*T}")
    for T in range(5):
        a0, a1, rr = ACC + T * 4, ACC + 20 + T * 4, ACC + 40 + T * 4
        for u, a in ((0, a0), (1, a1)):
            for r in range(4):
                sr = 232 + 8 * u + 2 * r
                k.e(f"v_mul_f32 v{a+r}, v{a+r}, v{sr+1}")
                k.e(f"v_fma_f32 v{a+r}, -v{sr}, v{rr}, v{a+r}")
        o = 48 + 4 * T
        k.e(f"v_cvt_pk_bf16_f32 v{o}, v{a0}, v{a0+1}")
        k.e(f"v_cvt_pk_bf16_f32 v{o+1}, v{a0+2}, v{a0+3}")
        k.e(f"v_cvt_pk_bf16_f32 v{o+2}, v{a1}, v{a1+1}")
        k.e(f"v_cvt_pk_bf16_f32 v{o+3}, v{a1+2}, v{a1+3}")
        if T == 4:
            k.e("v_cmp_gt_u32 vcc, 8, v11")
            k.e("s_and_saveexec_b64 s[50:51], vcc")
        k.e(f"buffer_store_dwordx4 v[{o}:{o+3}], v15, s[40:43], s46 offen offset:{256*T} {STP}")
    k.stamp(4)
    if first:
        k.e(f"s_branch {name}_rdone")
        k.label(f"{name}_rep")
        k.e("s_sub_u32 s20, s20, 4")
        k.e("s_cmp_lt_u32 s2, 72")
        k.e("s_cselect_b32 s4, s12, s14")
        k.e("s_cselect_b32 s5, s13, s15")
        k.e("s_cselect_b32 s64, 0, 1")
        k.e("s_cmp_lt_u32 s2, 144")
        k.e("s_cselect_b32 s4, s4, s16")
        k.e("s_cselect_b32 s5, s5, s17")
        k.e("s_movk_i32 s65, 1152")
        k.e("s_cselect_b32 s65, 9216, s65")
        k.e("s_cselect_b32 s66, 1, 0")
        k.srd_ptr(24, 4, D * F * 2)
        k.e("s_mul_i32 s67, s64, 72")
        k.e("s_sub_u32 s67, s2, s67")
        k.e("s_sub_u32 s68, s2, 144")
        k.e("s_mul_i32 s69, s68, 7282")
        k.e("s_lshr_b32 s69, s69, 16")
        k.e("s_mul_i32 s75, s69, 9")
        k.e("s_sub_u32 s68, s68, s75")
        k.e(f"s_mul_i32 s75, s69, {384*1152}")
        k.e("s_lshl_b32 s58, s68, 7")
        k.e("s_add_u32 s75, s75, s58")
        k.e("s_lshl_b32 s58, s67, 7")
        k.e("s_cmp_eq_u32 s66, 1")
        k.e("s_cselect_b32 s75, s58, s75")
        k.e("s_cselect_b32 s58, 18, 12")
        k.e("s_lshl_b32 s59, s65, 3")
        k.e("s_mul_i32 s56, s20, s59")
        k.e("s_mul_i32 s56, s56, s58")
        k.e("s_add_u32 s75, s75, s56")
        k.e("s_cmp_ge_u32 s2, 252")
        k.e("s_cselect_b32 s58, 0, s58")
        if os.environ.get("EXP_NOC"):
            k.e(f"s_cmp_lt_u32 s2, {os.environ['EXP_NOC']}")
            k.e("s_cselect_b32 s58, 0, s58")
        k.e("v_lshrrev_b32 v3, 3, v2")
        k.e("v_and_b32 v4, 7, v2")
        k.e("v_mul_lo_u32 v6, v3, s65")
        k.e("v_lshl_add_u32 v6, v4, 4, v6")
        k.e("s_mul_i32 s56, s20, 18432")
        k.e(f"s_add_u32 s56, s56, {RPK}")
        def rdma(i):
            k.e(f"s_cmp_gt_u32 s58, {i}")
            k.e("s_cselect_b32 s51, s75, 0x7f000000")
            k.e(f"s_add_u32 m0, s56, {1024*i}")
            k.e("s_add_u32 s75, s75, s59")
            k.e("buffer_load_dwordx4 v6, s[24:27], s51 offen lds")
        k.srd_ptr(28, 6, XC_SZ)
        k.srd_ws(32, 18, "XC0")
        k.e("v_and_b32 v8, 31, v2")
        k.e("v_and_b32 v9, 3, v8")
        k.e("v_bfe_u32 v10, v8, 2, 2")
        k.e("v_lshl_or_b32 v9, v10, 3, v9")
        k.e("v_bfe_u32 v10, v8, 4, 1")
        k.e("v_lshl_or_b32 v9, v10, 2, v9")
        k.e("v_mul_u32_u24 v9, 1152, v9")
        k.e("v_lshrrev_b32 v10, 5, v2")
        k.e("v_lshl_add_u32 v9, v10, 4, v9")
        k.e("v_lshlrev_b32 v8, 4, v8")
        k.e("v_lshl_add_u32 v8, v10, 9, v8")
        k.e("s_lshr_b32 s36, s2, 2")
        k.e("s_mul_i32 s36, s36, 36864")
        k.e("s_and_b32 s37, s2, 3")
        k.e("s_mul_i32 s37, s37, 18")
        k.e("s_lshl_b32 s38, s20, 1")
        k.e("s_add_u32 s37, s37, s38")
        k.e("s_lshl_b32 s38, s37, 4")
        k.e("s_add_u32 s38, s38, s36")
        k.e("s_lshl_b32 s39, s37, 9")
        k.e("s_add_u32 s39, s39, s36")
        k.e("s_add_u32 s40, s38, 256")
        k.e("s_add_u32 s41, s39, 8192")
        k.e("s_cmp_eq_u32 s20, 0")
        k.e("s_cselect_b32 s40, s40, 0x7f000000")
        k.e("s_cselect_b32 s41, s41, 0x7f000000")
        k.e("buffer_load_dwordx4 v[16:19], v9, s[28:31], s38 offen")
        k.e("buffer_load_dwordx4 v[20:23], v9, s[28:31], s38 offen offset:128")
        k.e("buffer_load_dwordx4 v[24:27], v9, s[28:31], s40 offen")
        for i in range(6):
            rdma(i)
        k.e("v_lshrrev_b32 v3, 4, v2")
        k.e("v_and_b32 v4, 15, v2")
        k.e("v_bfe_u32 v10, v2, 2, 2")
        k.e("v_lshlrev_b32 v7, 7, v10")
        k.e("v_lshl_add_u32 v7, v3, 5, v7")
        k.e("v_add_u32 v7, s56, v7")
        k.e("v_and_b32 v10, 1, v2")
        k.e("v_lshlrev_b32 v10, 4, v10")
        k.e("v_bfe_u32 v11, v2, 1, 1")
        k.e("v_lshl_add_u32 v10, v11, 3, v10")
        k.e("v_and_b32 v11, 3, v2")
        k.e("v_lshlrev_b32 v11, 3, v11")
        k.e("s_cmp_eq_u32 s66, 1")
        k.e("s_cselect_b64 s[42:43], -1, 0")
        k.e("s_nop 1")
        k.e("v_cndmask_b32 v10, v11, v10, s[42:43]")
        k.e("v_add_u32 v7, v7, v10")
        k.e("s_lshl_b32 s36, s67, 2")
        k.e("v_add_u32 v12, s36, v3")
        k.e("v_mul_u32_u24 v13, 7282, v12")
        k.e("v_lshrrev_b32 v13, 16, v13")
        k.e("v_mul_u32_u24 v14, 9, v13")
        k.e("v_sub_u32 v14, v12, v14")
        k.e(f"s_mov_b32 s36, {WGU_CB}")
        k.e("v_mul_lo_u32 v13, v13, s36")
        k.e("v_lshl_add_u32 v13, v14, 10, v13")
        k.e("v_lshl_add_u32 v13, v4, 4, v13")
        k.e("s_lshl_b32 s36, s68, 6")
        k.e("v_add_u32 v12, s36, v2")
        k.e("v_mul_u32_u24 v14, 911, v12")
        k.e("v_lshrrev_b32 v14, 16, v14")
        k.e("v_mul_u32_u24 v15, 72, v14")
        k.e("v_sub_u32 v15, v12, v15")
        slotmap_v(k, 15, 12, 10, 11)
        k.e(f"s_mov_b32 s36, {WDJ}")
        k.e("v_mul_lo_u32 v14, v14, s36")
        k.e("v_lshl_add_u32 v14, v12, 4, v14")
        k.e("v_cndmask_b32 v5, v14, v13, s[42:43]")
        k.e(f"s_mov_b32 s36, {WS['WD'][0]}")
        k.e(f"s_mov_b32 s37, {WD_SZ}")
        k.e("s_cmp_eq_u32 s66, 1")
        k.e(f"s_cselect_b32 s36, {WS['WGU'][0]}, s36")
        k.e(f"s_cselect_b32 s46, {WGU_SZ}, s37")
        k.e("s_add_u32 s44, s18, s36")
        k.e("s_addc_u32 s45, s19, 0")
        k.e("s_and_b32 s45, s45, 0xffff")
        k.e("s_mov_b32 s47, 0x00020000")
        k.e("s_lshl_b32 s48, s64, 8")
        k.e(f"s_mul_i32 s49, s20, {9*9216}")
        k.e("s_add_u32 s49, s49, s48")
        k.e(f"s_mul_i32 s36, s69, {48*1152}")
        k.e(f"s_mul_i32 s37, s20, {12*1152}")
        k.e("s_add_u32 s36, s36, s37")
        k.e("s_cmp_eq_u32 s66, 1")
        k.e("s_cselect_b32 s49, s49, s36")
        k.e("s_movk_i32 s52, 1152")
        k.e("s_cselect_b32 s52, 512, s52")
        k.e("s_movk_i32 s53, 1152")
        k.e(f"s_cselect_b32 s53, {9216-512}, s53")
        k.e("v_mov_b32 v14, 0")
        k.e("v_mov_b32 v15, 0")

        def tchunk(c):
            for it in range(6 * c, 6 * c + 6):
                rg = 112 + 4 * it
                k.e(f"ds_read_b64_tr_b16 v[{rg}:{rg+1}], v7 offset:{it*1024}")
                k.e(f"ds_read_b64_tr_b16 v[{rg+2}:{rg+3}], v7 offset:{it*1024+512}")
            for it in range(6 * c, 6 * c + 6):
                rg = 112 + 4 * it
                k.e(f"s_cmp_gt_u32 s58, {it}")
                k.e("s_cselect_b32 s51, s49, 0x7f000000")
                k.e(f"s_waitcnt lgkmcnt({2*(6*c+5-it)})")
                k.e(f"buffer_store_dwordx4 v[{rg}:{rg+3}], v5, s[44:47], s51 offen {STP}")
                k.e(f"s_add_u32 s49, s49, s{52 + (it & 1)}")
                for r in range(4):
                    k.e(f"v_dot2_f32_bf16 v{14 + (r & 1)}, v{rg+r}, v32, v{14 + (r & 1)}")
        k.e("v_and_b32 v11, 15, v2")
        k.e("v_lshrrev_b32 v12, 4, v2")
        k.e("v_lshrrev_b32 v1, 1, v11")
        k.e("v_xor_b32 v1, v1, v12")
        k.e("v_lshlrev_b32 v1, 4, v1")
        k.e("v_lshl_add_u32 v28, v11, 7, v1")
        k.e("v_xor_b32 v29, 64, v28")
        k.e("s_lshl_b32 s36, s20, 11")
        k.e("v_add_u32 v30, s36, v28")
        k.e("v_add_u32 v31, s36, v29")
        for a_ in range(4):
            k.e(f"v_mov_b32 v{32+a_}, 0x3f803f80")
        for a_ in range(8):
            k.e(f"v_mov_b32 v{36+a_}, 0")

        def rpart(kbs):
            for n_, kb in enumerate(kbs):
                kq, half = (kb >> 1) % 8, kb & 1
                rg = 44 + n_ * 8
                off = kq * 9216
                if off + 8192 > 65000:
                    k.e(f"v_add_u32 v1, {off}, v{30+half}")
                    k.e(f"ds_read_b128 v[{rg}:{rg+3}], v1")
                    k.e(f"v_add_u32 v1, {off + 8192}, v{28+half}")
                    k.e(f"ds_read_b128 v[{rg+4}:{rg+7}], v1")
                else:
                    k.e(f"ds_read_b128 v[{rg}:{rg+3}], v{30+half} offset:{off}")
                    k.e(f"ds_read_b128 v[{rg+4}:{rg+7}], v{28+half} offset:{off + 8192}")
            k.e("s_waitcnt lgkmcnt(0)")
            for n_, kb in enumerate(kbs):
                rg = 44 + n_ * 8
                k.e(f"v_mfma_f32_16x16x32_bf16 v[36:39], v[32:35], v[{rg}:{rg+3}], v[36:39]")
                k.e(f"v_mfma_f32_16x16x32_bf16 v[40:43], v[32:35], v[{rg+4}:{rg+7}], v[40:43]")
        k.e("s_barrier")
        rpart(range(0, 8))
        for i in range(6, 12):
            rdma(i)
        k.e("s_waitcnt vmcnt(12)")
        k.e("buffer_store_dwordx4 v[16:19], v8, s[32:35], s39 offen")
        k.e("s_add_u32 s39, s39, 4096")
        k.e("buffer_store_dwordx4 v[20:23], v8, s[32:35], s39 offen")
        k.e("buffer_store_dwordx4 v[24:27], v8, s[32:35], s41 offen")
        k.e("s_barrier")
        rpart(range(8, 16))
        for i in range(12, 18):
            rdma(i)
        k.e("s_waitcnt vmcnt(15)")
        tchunk(0)
        k.e("s_barrier")
        rpart(range(16, 18))
        k.e("s_lshl_b32 s36, s20, 6")
        k.e(f"s_add_u32 s36, s36, {SCR + 1024}")
        k.e("v_lshl_add_u32 v1, v11, 2, s36")
        k.e("v_lshlrev_b32 v28, 2, v11")
        k.e(f"v_add_u32 v28, {SCR + 1024 + 256}, v28")
        k.e("s_nop 7")
        k.e("ds_write_b32 v1, v36")
        k.e("ds_write_b32 v28, v40")
        k.e("s_waitcnt lgkmcnt(0)")
        k.e("s_barrier")
        k.e("s_waitcnt vmcnt(15)")
        tchunk(1)
        k.e("s_waitcnt vmcnt(12)")
        tchunk(2)
        k.e("s_nop 3")
        k.e("v_add_f32 v10, v14, v15")
        k.e("v_cvt_pk_bf16_f32 v11, v10, v10")
        k.e("v_lshlrev_b32 v12, 16, v11")
        k.e("v_sub_f32 v13, v10, v12")
        k.e("v_cvt_pk_bf16_f32 v14, v13, v13")
        k.e("v_lshlrev_b32 v15, 16, v14")
        k.e("v_sub_f32 v13, v13, v15")
        k.e("v_cvt_pk_bf16_f32 v201, v13, v13")
        k.e("v_and_b32 v201, 0xffff, v201")
        k.e("v_and_b32 v200, 0xffff, v11")
        k.e("v_or_b32 v200, v200, v15")
        k.e("s_lshr_b32 s39, s20, 1")
        k.e("s_lshl_b32 s39, s39, 9")
        k.e("s_and_b32 s37, s20, 1")
        k.e("s_lshl_b32 s37, s37, 3")
        k.e("s_add_u32 s39, s39, s37")
        k.e("s_add_u32 s39, s39, s48")
        k.e(f"s_add_u32 s39, s39, {36*9216}")
        k.e("s_cmp_eq_u32 s66, 1")
        k.e("s_cselect_b32 s39, s39, 0x7f000000")
        k.e("buffer_store_dwordx2 v[200:201], v5, s[44:47], s39 offen")
        k.label(f"{name}_rdone")
        if PROF:
            k.e("v_lshrrev_b32 v1, 6, v0")
            k.e("s_nop 0")
            k.e("v_readfirstlane_b32 s20, v1")
    if PROF:
        k.e("s_mov_b64 exec, -1")
        k.wait_vm_all()
    k.stamp(5)
    k.stamp_store(0, 18, 20)
    k.label(Lend)
    return k, total, 512 if first else 256, (RPK + 73728 + 8192) if first else RPK


REG = 20480
OWNP = int(os.environ.get("OWNP", "1"))
EXSEP = int(os.environ.get("EXSEP", "1"))
SLP = int(os.environ.get("SLP", "4"))
PUB = os.environ.get("PUB", "sc1")
ROT = int(os.environ.get("ROT", "0"))
CPF = int(os.environ.get("CPF", "0"))
MAPG = int(os.environ.get("MAPG", "0"))
MAPD = int(os.environ.get("MAPD", "0"))
STPG = os.environ.get("STPG", "sc1")
EXP_NOMFMA = int(os.environ.get("EXP_NOMFMA", "0"))
EXP_PAD = int(os.environ.get("EXP_PAD", "0"))
BAR = int(os.environ.get("BAR", "0"))
EXP_NOWD = int(os.environ.get("EXP_NOWD", "0"))
EXP_NOHC = int(os.environ.get("EXP_NOHC", "0"))
ILV = int(os.environ.get("ILV", "1"))
KD_W, KD_S = (1, 8) if ILV else (18, 1)
KS_W, KS_S = (1, 4) if ILV else (8, 1)


def t1_decode(k, mp=0):
    k.e("v_lshrrev_b32 v1, 6, v0")
    k.e("v_and_b32 v2, 63, v0")
    k.e("v_readfirstlane_b32 s20, v1")
    k.e("s_and_b32 s22, s2, 7")
    k.e("s_lshr_b32 s23, s2, 3")
    if mp == 0:
        k.e("s_lshr_b32 s21, s22, 1")
        k.e("s_lshl_b32 s21, s21, 3")
        k.e("s_and_b32 s44, s23, 7")
        k.e("s_add_u32 s21, s21, s44")
        k.e("s_and_b32 s22, s22, 1")
        k.e("s_lshl_b32 s22, s22, 2")
        k.e("s_lshr_b32 s23, s23, 3")
        k.e("s_add_u32 s23, s23, s22")
    else:
        k.e("s_lshl_b32 s21, s22, 2")
        k.e("s_and_b32 s44, s23, 3")
        k.e("s_add_u32 s21, s21, s44")
        k.e("s_lshr_b32 s23, s23, 2")


def t1_pre(k, xin_srd):
    sW, sTB, sJ = 20, 21, 23
    k.e(f"s_and_b32 s61, s{sW}, 3")
    k.e(f"s_lshr_b32 s59, s{sW}, 2")
    k.e("s_lshr_b32 s62, s61, 1")
    k.e(f"s_lshl_b32 s63, s{sTB}, 1")
    k.e("s_add_u32 s58, s62, s63")
    k.e("s_and_b32 s62, s61, 1")
    k.e("s_mul_i32 s63, s58, 36864")
    k.e(f"s_mul_i32 s64, s{sJ}, 4608")
    k.e("s_add_u32 s63, s63, s64")
    k.e("s_lshl_b32 s64, s62, 8")
    k.e("s_add_u32 s63, s63, s64")
    k.e("s_add_u32 s64, s63, 4096")
    k.e("s_lshl_b32 s65, s59, 11")
    k.e("s_add_u32 s63, s63, s65")
    k.e("v_and_b32 v20, 15, v0")
    k.e("v_bfe_u32 v21, v0, 4, 2")
    k.e("v_lshlrev_b32 v22, 9, v21")
    k.e("v_lshl_add_u32 v22, v20, 4, v22")
    k.e("v_lshlrev_b32 v23, 3, v21")
    k.e("v_lshl_add_u32 v23, v20, 4, v23")
    k.vm(f"buffer_load_dwordx4 v[250:253], v22, s[{xin_srd}:{xin_srd+3}], s63 offen", "res")
    k.vm(f"buffer_load_dwordx2 v[254:255], v23, s[{xin_srd}:{xin_srd+3}], s64 offen", "res")


def t1_epilogue(k, name, mode, ACC, xin_srd, xout_srd, st_srd, sfinal):
    sW, sTB, sJ = 20, 21, 23
    k.e("v_and_b32 v2, 63, v0")
    k.e(f"s_mul_i32 s60, s{sW}, {REG}")
    k.e("v_lshl_add_u32 v3, v2, 4, s60")
    k.e("v_and_b32 v11, 15, v2")
    k.e("v_lshrrev_b32 v12, 4, v2")
    k.e("v_lshlrev_b32 v4, 9, v12")
    k.e("v_lshl_add_u32 v4, v11, 4, v4")
    k.e("v_lshlrev_b32 v5, 3, v12")
    k.e("v_lshl_add_u32 v5, v11, 4, v5")
    for j in range(16):
        k.e(f"v_permlane32_swap_b32 v{ACC+80+j}, v{24+j}")
    k.e("s_nop 1")
    for j in range(16):
        k.e(f"v_add_f32 v{ACC+64+j}, v{ACC+64+j}, v{24+j}")
    for b in range(4):
        for a in range(5):
            acc = ACC + (a * 4 + b) * 4
            k.e(f"ds_write_b128 v3, v[{acc}:{acc+3}] offset:{(b*5+a)*1024}")
    k.e("s_mul_i32 s60, s61, 5120")
    k.e("v_lshl_add_u32 v6, v2, 4, s60")
    k.e("v_add_u32 v7, s65, v6")
    for j in range(1, 3):
        k.e(f"v_add_u32 v{7+j}, {3*REG*j}, v7")
        k.e(f"v_add_u32 v{12+j}, {3*REG*j}, v6")
    k.e("s_waitcnt lgkmcnt(0)")
    k.e("s_barrier")
    T0 = 24
    for v in range(8):
        base = 7 + v // 3
        for t in range(2):
            rg = T0 + (v * 2 + t) * 4
            k.e(f"ds_read_b128 v[{rg}:{rg+3}], v{base} offset:{(v%3)*REG + t*1024}")
    k.e("s_cmp_lg_u32 s59, 0")
    k.e(f"s_cbranch_scc1 {name}_no4a")
    for v in range(8):
        base = 6 if v < 3 else 12 + v // 3
        rg = 88 + v * 4
        k.e(f"ds_read_b128 v[{rg}:{rg+3}], v{base} offset:{(v%3)*REG + 4096}")
    k.label(f"{name}_no4a")
    k.e("s_waitcnt lgkmcnt(0)")

    def combine(regs_of_wave, n):
        for j in range(n):
            r = [regs_of_wave(v) + j for v in range(8)]
            k.e(f"v_add_f32 v{r[0]}, v{r[0]}, v{r[1]}")
            k.e(f"v_add_f32 v{r[2]}, v{r[2]}, v{r[3]}")
            k.e(f"v_add_f32 v{r[4]}, v{r[4]}, v{r[5]}")
            k.e(f"v_add_f32 v{r[6]}, v{r[6]}, v{r[7]}")
            k.e(f"v_add_f32 v{r[0]}, v{r[0]}, v{r[2]}")
            k.e(f"v_add_f32 v{r[4]}, v{r[4]}, v{r[6]}")
            if mode == "D":
                k.e(f"v_add_f32 v{r[0]}, v{r[0]}, v{r[4]}")
        if mode == "S":
            for j in range(0, n, 2):
                p0 = regs_of_wave(0) + j
                q0 = regs_of_wave(4) + j
                k.e(f"v_cvt_pk_bf16_f32 v22, v{p0}, v{p0+1}")
                k.e(f"v_cvt_pk_bf16_f32 v23, v{q0}, v{q0+1}")
                k.e(f"v_lshlrev_b32 v{p0}, 16, v22")
                k.e(f"v_and_b32 v{p0+1}, 0xffff0000, v22")
                k.e(f"v_lshlrev_b32 v{q0}, 16, v23")
                k.e(f"v_and_b32 v{q0+1}, 0xffff0000, v23")
                k.e(f"v_sub_f32 v{p0}, v{p0}, v{q0}")
                k.e(f"v_sub_f32 v{p0+1}, v{p0+1}, v{q0+1}")

    def resid(ybase, xbase, n):
        for j in range(0, n, 2):
            y0 = ybase + j
            xr = xbase + j // 2
            k.e(f"v_cvt_pk_bf16_f32 v22, v{y0}, v{y0+1}")
            k.e(f"v_lshlrev_b32 v{y0}, 16, v22")
            k.e(f"v_and_b32 v{y0+1}, 0xffff0000, v22")
            k.e(f"v_lshlrev_b32 v22, 16, v{xr}")
            k.e(f"v_and_b32 v23, 0xffff0000, v{xr}")
            k.e(f"v_add_f32 v{y0}, v{y0}, v22")
            k.e(f"v_add_f32 v{y0+1}, v{y0+1}, v23")
            k.e(f"v_cvt_pk_bf16_f32 v{xr}, v{y0}, v{y0+1}")
            unpack_sum(k, xr, 22, 23, 120, 121)

    combine(lambda v: T0 + v * 8, 8)
    k.e("v_mov_b32 v120, 0")
    k.e("v_mov_b32 v121, 0")
    resid(T0, 250, 8)
    k.e("s_cmp_lg_u32 s59, 0")
    k.e(f"s_cbranch_scc1 {name}_no4b")
    k.e("v_cmp_gt_u32 vcc, 2, v12")
    k.e("s_and_saveexec_b64 s[66:67], vcc")
    combine(lambda v: 88 + v * 4, 4)
    resid(88, 254, 4)
    k.e("s_mov_b64 exec, s[66:67]")
    k.label(f"{name}_no4b")
    if sfinal is not None:
        k.e(f"s_cmp_lg_u32 s{sfinal}, 0")
        k.e(f"s_cbranch_scc1 {name}_fin")
    for sw in ("16", "32"):
        k.e("v_mov_b32 v22, v120")
        k.e("v_mov_b32 v23, v121")
        k.e("s_nop 1")
        k.e(f"v_permlane{sw}_swap_b32 v120, v22")
        k.e(f"v_permlane{sw}_swap_b32 v121, v23")
        k.e("s_nop 1")
        k.e("v_add_f32 v120, v120, v22")
        k.e("v_add_f32 v121, v121, v23")
    k.e(f"buffer_store_dwordx4 v[250:253], v4, s[{xout_srd}:{xout_srd+3}], s63 offen")
    k.e("s_lshl_b32 s65, s58, 8")
    k.e("s_lshl_b32 s62, s62, 7")
    k.e("s_add_u32 s65, s65, s62")
    k.e(f"s_lshl_b32 s62, s{sJ}, 15")
    k.e("s_add_u32 s65, s65, s62")
    k.e("s_lshl_b32 s62, s59, 14")
    k.e("s_add_u32 s65, s65, s62")
    k.e("v_lshlrev_b32 v22, 3, v11")
    k.e("v_cmp_gt_u32 vcc, 1, v12")
    k.e("s_and_saveexec_b64 s[68:69], vcc")
    k.e(f"buffer_store_dwordx2 v[120:121], v22, s[{st_srd}:{st_srd+3}], s65 offen")
    k.e("s_mov_b64 exec, s[68:69]")
    k.e("s_cmp_lg_u32 s59, 0")
    k.e(f"s_cbranch_scc1 {name}_done")
    k.e("v_cmp_gt_u32 vcc, 2, v12")
    k.e("s_and_saveexec_b64 s[66:67], vcc")
    k.e(f"buffer_store_dwordx2 v[254:255], v5, s[{xout_srd}:{xout_srd+3}], s64 offen")
    if sfinal is not None:
        k.e(f"s_branch {name}_done")
        k.label(f"{name}_fin")
        k.e("v_lshrrev_b32 v22, 2, v11")
        k.e("v_and_b32 v23, 3, v11")
        k.e("v_lshl_add_u32 v22, v22, 3, v23")
        k.e("v_mul_u32_u24 v22, 1152, v22")
        k.e("v_lshl_add_u32 v23, v12, 4, v22")
        k.e("v_lshl_add_u32 v22, v12, 3, v22")
        k.e("s_lshl_b32 s65, s58, 5")
        k.e("s_lshl_b32 s62, s62, 2")
        k.e("s_add_u32 s65, s65, s62")
        k.e("s_mul_i32 s65, s65, 1152")
        k.e(f"s_mul_i32 s62, s{sJ}, 144")
        k.e("s_add_u32 s65, s65, s62")
        k.e("s_lshl_b32 s62, s59, 6")
        k.e("s_add_u32 s62, s62, s65")
        k.e(f"buffer_store_dwordx4 v[250:253], v23, s[{xout_srd}:{xout_srd+3}], s62 offen")
        k.e("s_cmp_lg_u32 s59, 0")
        k.e(f"s_cbranch_scc1 {name}_done")
        k.e("v_cmp_gt_u32 vcc, 2, v12")
        k.e("s_and_saveexec_b64 s[66:67], vcc")
        k.e(f"buffer_store_dwordx2 v[254:255], v22, s[{xout_srd}:{xout_srd+3}], s65 offen offset:128")
    k.label(f"{name}_done")


def gen_t2(mode):
    name = "ks" if mode == "S" else "kd"
    k = Kern(name, 256, 0, 80)
    Lend = name + "_end"
    NST = 8 if mode == "S" else 9
    RA = 3 if mode == "S" else 4
    ASTG = 36864
    CBASE = RA * ASTG
    AJ = ABJ if mode == "S" else WDJ
    k.e("s_cmp_ge_u32 s2, 256")
    k.e(f"s_cbranch_scc1 {Lend}")
    if mode == "S":
        k.e("s_load_dwordx4 s[8:11], s[0:1], 8")
    k.e("s_load_dwordx2 s[18:19], s[0:1], 88")
    k.e("s_load_dwordx4 s[12:15], s[0:1], 72")
    k.e("v_lshrrev_b32 v1, 6, v0")
    k.e("v_and_b32 v2, 63, v0")
    k.e("v_readfirstlane_b32 s20, v1")
    k.e("s_and_b32 s22, s2, 7")
    k.e("s_lshr_b32 s23, s2, 3")
    k.e("s_lshr_b32 s44, s22, 1")
    k.e("s_and_b32 s21, s22, 1")
    k.e("s_lshl_b32 s21, s21, 3")
    k.e("s_and_b32 s45, s23, 7")
    k.e("s_add_u32 s21, s21, s45")
    k.e("s_lshr_b32 s23, s23, 3")
    k.e("s_and_b32 s45, s20, 3")
    k.e("s_lshr_b32 s46, s20, 2")
    k.e("s_waitcnt lgkmcnt(0)")
    k.stamp(0)
    if mode == "S":
        k.e("s_cmp_ge_u32 s44, 2")
        k.e("s_cselect_b32 s4, s10, s8")
        k.e("s_cselect_b32 s5, s11, s9")
        k.srd_ptr(24, 4, S * S * 2)
        srd_ws_s(k, 28, 18, 68, AB_SZ)
    else:
        srd_ws_s(k, 24, 18, 68, HC_SZ)
        k.srd_ws(28, 18, "WD")
    srd_ws_s(k, 32, 18, 75, 64*4*8*4608)
    srd_ws_s(k, 64, 18, 69, 512*128)
    k.e("v_and_b32 v11, 15, v2")
    k.e("v_lshrrev_b32 v12, 4, v2")
    VA = 3
    k.e("v_mul_u32_u24 v13, 1152, v12")
    k.e("v_lshl_add_u32 v14, v11, 4, v13")
    k.e("v_and_b32 v15, 7, v11")
    k.e("v_lshl_add_u32 v15, v15, 4, v13")
    k.e("v_add_u32 v15, 1024, v15")
    k.e("v_lshrrev_b32 v16, 3, v11")
    k.e(f"s_mov_b32 s47, {AJ}")
    k.e("v_mul_lo_u32 v16, v16, s47")
    k.e("v_add_u32 v15, v15, v16")
    k.e("s_lshl_b32 s47, s45, 8")
    k.e("v_add_u32 v3, s47, v14")
    k.e("s_mul_i32 s47, s45, 4608")
    k.e("v_add_u32 v4, s47, v15")
    if mode == "S":
        k.e("s_lshr_b32 s47, s44, 1")
        k.e("s_lshl_b32 s47, s47, 3")
        k.e("s_lshl_b32 s48, s23, 1")
        k.e("s_add_u32 s47, s47, s48")
        k.e(f"s_mul_i32 s48, s47, {AJ}")
        k.e("s_and_b32 s47, s44, 1")
        k.e("s_lshl_b32 s47, s47, 4")
    else:
        k.e("s_lshl_b32 s48, s23, 1")
        k.e(f"s_mul_i32 s48, s48, {AJ}")
        k.e("s_mul_i32 s47, s44, 18")
    k.e("s_add_u32 s47, s47, s46")
    k.e("s_mul_i32 s49, s47, 9216")
    k.e("s_add_u32 s48, s48, s49")
    k.e("s_mul_i32 s50, s46, 18432")
    k.e("s_lshl_b32 s51, s45, 10")
    k.e("s_add_u32 s50, s50, s51")
    k.e("s_lshl_b32 s51, s45, 13")
    k.e("s_add_u32 s5, s50, s51")
    k.e("s_add_u32 s5, s5, 8192")
    k.e("s_cmp_lt_u32 s45, 2")
    k.e("s_cselect_b64 s[52:53], -1, 0")
    k.e("s_mul_i32 s51, s46, 18432")
    k.e("v_lshl_add_u32 v8, v2, 4, s51")
    if RA > 2:
        k.e(f"v_add_u32 v9, {2*ASTG}, v8")
    k.e("s_mov_b32 s4, s47")

    def bsetup():
        if mode == "D":
            k.e("v_lshlrev_b32 v13, 9, v12")
            k.e("v_lshl_add_u32 v10, v11, 4, v13")
            k.e("s_lshl_b32 s51, s21, 2")
            k.e("s_add_u32 s51, s51, s45")
            k.e(f"s_mul_i32 s49, s51, {HCB}")
            k.e("s_lshl_b32 s51, s4, 12")
            k.e("s_add_u32 s49, s49, s51")
        else:
            t = 248
            k.e(f"v_lshrrev_b32 v{t}, 3, v2")
            k.e(f"v_and_b32 v{t+1}, 7, v2")
            k.e(f"v_lshrrev_b32 v{t+2}, 1, v{t}")
            k.e(f"v_xor_b32 v{t+2}, v{t+2}, v{t+1}")
            k.e(f"v_lshlrev_b32 v{t+2}, 4, v{t+2}")
            k.e(f"v_lshrrev_b32 v{t+3}, 2, v{t}")
            k.e(f"v_and_b32 v{t+4}, 3, v{t}")
            k.e(f"v_lshl_add_u32 v{t+3}, v{t+3}, 3, v{t+4}")
            k.e(f"v_lshlrev_b32 v{t+3}, 12, v{t+3}")
            k.e(f"v_add_u32 v{t+5}, v{t+3}, v{t+2}")
            k.e(f"v_xor_b32 v{t+4}, 64, v{t+2}")
            k.e(f"v_add_u32 v{t+6}, v{t+3}, v{t+4}")
            for q in range(4):
                c = (16 * (q & 1) + 4 * ((q >> 1) & 1)) * 4096
                k.e(f"v_add_u32 v{240+q}, {c}, v{t + 5 + (q & 1)}")
            k.e("s_mul_i32 s54, s20, 6144")
            k.e(f"s_add_u32 s54, s54, {CBASE}")
            k.e(f"v_lshrrev_b32 v{t+2}, 1, v11")
            k.e(f"v_xor_b32 v{t+2}, v{t+2}, v12")
            k.e(f"v_lshlrev_b32 v{t+2}, 4, v{t+2}")
            k.e(f"v_lshl_add_u32 v{t+2}, v11, 7, v{t+2}")
            k.e(f"v_add_u32 v244, s54, v{t+2}")
            k.e(f"v_xor_b32 v{t+2}, 64, v{t+2}")
            k.e(f"v_add_u32 v245, s54, v{t+2}")
            k.e("s_lshl_b32 s51, s21, 2")
            k.e("s_add_u32 s51, s51, s45")
            k.e("s_lshl_b32 s49, s51, 17")
            k.e("s_lshl_b32 s51, s4, 7")
            k.e("s_add_u32 s49, s49, s51")

    ACC = 160
    AFB = 16
    BFB = 88

    NF, DEP = 12, 8
    pend = []
    issued_c = {}

    def dma_ops(st):
        slot = st % RA
        ops = []
        for j in range(5):
            def f(j=j):
                if j < 4:
                    lo = (0, 4096, 9216, 13312)[j]
                    go = (0, AJ, 4608, AJ + 4608)[j]
                    k.e(f"s_add_u32 m0, s50, {slot*ASTG + lo}")
                    k.e(f"s_add_u32 s47, s48, {st*18432 + go}")
                    k.vm("buffer_load_dwordx4 v3, s[28:31], s47 offen lds", ("d", st))
                else:
                    k.e(f"s_add_u32 m0, s5, {slot*ASTG}")
                    k.e(f"s_add_u32 s47, s48, {st*18432}")
                    k.e("s_mov_b64 exec, s[52:53]")
                    k.vm("buffer_load_dwordx4 v4, s[28:31], s47 offen lds", ("d", st))
                    k.e("s_mov_b64 exec, -1")
            ops.append(f)
        return ops

    def b_ops(st):
        ops = []
        for h in range(2):
            for u in range(2):
                def f(h=h, u=u):
                    rg = BFB + (st % 4) * 16 + (h * 2 + u) * 4
                    k.e(f"s_add_u32 s47, s49, {st*8192}")
                    k.vm(f"buffer_load_dwordx4 v[{rg}:{rg+3}], v10, s[24:27], s47 offen offset:{h*2048 + u*256}", ("b", st))
                ops.append(f)
        return ops

    def c_ops(c):
        st, u = divmod(c, 2)
        ops = []
        for q in range(2):
            def f(q=q):
                k.e(f"s_add_u32 m0, s54, {(c%3)*2048 + q*1024}")
                k.e(f"s_add_u32 s47, s49, {st*256}")
                k.vm(f"buffer_load_dwordx4 v{240+2*u+q}, s[24:27], s47 offen lds", ("c", c))
                issued_c[c] = issued_c.get(c, 0) + 1
            ops.append(f)
        return ops

    def cread(c):
        st, u = divmod(c, 2)
        k.wait_vm(("c", c))
        for h in range(2):
            rg = BFB + (st % 2) * 16 + (h * 2 + u) * 4
            k.ds(f"ds_read_b128 v[{rg}:{rg+3}], v{244+h} offset:{(c%3)*2048}", ("cr", c))

    total = NST * 18

    def aread(f):
        st, r = divmod(f, 18)
        slot = st % RA
        base = 8 if slot < 2 else 9
        rg = AFB + (f % NF) * 4
        k.ds(f"ds_read_b128 v[{rg}:{rg+3}], v{base} offset:{(slot % 2) * ASTG + r*1024}", ("a", f))

    def sync(st):
        while pend:
            pend.pop(0)()
        k.wait_vm(("d", st))
        k.e("s_barrier")
        if st == 0:
            for s2 in range(2, RA):
                pend.extend(dma_ops(s2))
        elif st >= 2 and st + RA - 2 < NST:
            pend.extend(dma_ops(st + RA - 2))
        if mode == "D" and st + 2 < NST:
            pend.extend(b_ops(st + 2))

    for f in dma_ops(0):
        f()
    bsetup()
    if mode == "D":
        for f in b_ops(0) + dma_ops(1) + b_ops(1):
            f()
    else:
        for f in c_ops(0) + c_ops(1) + dma_ops(1) + c_ops(2):
            f()
    code_prefetch(k, name, 152, 76, 156, 8, 20)
    for a in range(72):
        k.e(f"v_mov_b32 v{ACC+a}, 0")
    XOFF = ASTG if mode == "D" else 0
    k.e("s_mul_i32 s51, s20, 9216")
    k.e(f"s_add_u32 s51, s51, {XOFF}")
    k.e("v_lshl_add_u32 v232, v2, 4, s51")
    k.e("s_xor_b32 s51, s20, 4")
    k.e("s_mul_i32 s51, s51, 9216")
    k.e(f"s_add_u32 s51, s51, {XOFF}")
    k.e("v_lshl_add_u32 v233, v2, 4, s51")
    k.e("s_lshl_b32 s55, s21, 2")
    k.e("s_add_u32 s55, s55, s23")
    k.e("s_lshl_b32 s51, s55, 2")
    k.e("s_add_u32 s51, s51, s44")
    k.e("s_lshl_b32 s51, s51, 3")
    k.e("s_lshl_b32 s3, s45, 1")
    k.e("s_add_u32 s51, s51, s3")
    k.e("s_add_u32 s51, s51, s46")
    k.e("s_mul_i32 s75, s51, 4608")
    if OWNP:
        k.e("s_cmp_eq_u32 s45, s44")
        k.e("s_cselect_b32 s4, s75, 0x7f000000")
        k.e("s_cselect_b32 s75, 0x7f000000, s75")
    k.e("v_lshlrev_b32 v234, 4, v2")
    k.e("v_lshlrev_b32 v235, 3, v2")
    k.e("v_add_u32 v235, 4096, v235")
    srd_ws_s(k, 36, 18, 70, XC_SZ)
    srd_ws_s(k, 40, 18, 71, XC_SZ)
    srd_ws_s(k, 60, 18, 72, ST_SZ)
    k.e("s_cmp_lg_u32 s73, 0")
    k.e("s_cselect_b32 s40, s12, s40")
    k.e("s_cselect_b32 s41, s13, s41")
    k.e("s_and_b32 s41, s41, 0xffff")
    k.e("s_and_b32 s56, s20, 1")
    k.e("s_lshr_b32 s57, s20, 1")
    k.e("s_lshl_b32 s58, s21, 2")
    k.e("s_add_u32 s58, s58, s44")
    k.e("s_mul_i32 s59, s58, 36864")
    k.e("s_mul_i32 s3, s23, 9216")
    k.e("s_add_u32 s59, s59, s3")
    k.e("s_lshl_b32 s3, s56, 8")
    k.e("s_add_u32 s59, s59, s3")
    k.e("s_lshr_b32 s3, s57, 1")
    k.e("s_mul_i32 s3, s3, 4608")
    k.e("s_and_b32 s51, s57, 1")
    k.e("s_lshl_b32 s51, s51, 11")
    k.e("s_add_u32 s3, s3, s51")
    k.e("s_add_u32 s68, s59, s3")
    k.e("v_lshlrev_b32 v236, 9, v12")
    k.e("v_lshl_add_u32 v236, v11, 4, v236")
    k.e("v_lshrrev_b32 v237, 1, v12")
    k.e("v_mul_u32_u24 v237, 4608, v237")
    k.e("v_and_b32 v238, 1, v12")
    k.e("v_lshl_add_u32 v237, v238, 3, v237")
    k.e("v_lshl_add_u32 v237, v11, 4, v237")
    k.e("v_add_u32 v237, 4096, v237")
    k.e("s_cmp_eq_u32 s57, 0")
    k.e("s_cselect_b32 s69, s59, 0x7f000000")
    k.vm("buffer_load_dwordx4 v[248:251], v236, s[36:39], s68 offen", "res")
    k.vm("buffer_load_dwordx2 v[252:253], v237, s[36:39], s69 offen", "res")
    k.e("s_lshl_b32 s51, s55, 5")
    k.e("s_lshl_b32 s3, s44, 1")
    k.e("s_add_u32 s51, s51, s3")
    k.e("s_add_u32 s51, s51, s56")
    k.e("s_mul_i32 s51, s51, 4608")
    k.e("s_lshl_b32 s3, s57, 10")
    k.e("s_add_u32 s6, s3, s51")
    k.e("s_cmp_eq_u32 s57, 0")
    k.e("s_cselect_b32 s7, s51, 0x7f000000")
    k.e("v_lshrrev_b32 v238, 2, v11")
    k.e("v_and_b32 v239, 3, v11")
    k.e("v_lshl_add_u32 v238, v238, 3, v239")
    k.e("v_mul_u32_u24 v238, 1152, v238")
    k.e("v_lshl_add_u32 v239, v12, 4, v238")
    k.e("v_lshrrev_b32 v246, 1, v12")
    k.e("v_mul_u32_u24 v246, 144, v246")
    k.e("v_add_u32 v238, v238, v246")
    k.e("v_and_b32 v246, 1, v12")
    k.e("v_lshl_add_u32 v238, v246, 3, v238")
    k.e("v_add_u32 v238, 128, v238")
    k.e("s_lshl_b32 s51, s58, 5")
    k.e("s_lshl_b32 s3, s56, 2")
    k.e("s_add_u32 s51, s51, s3")
    k.e("s_mul_i32 s51, s51, 1152")
    k.e("s_mul_i32 s3, s23, 288")
    k.e("s_add_u32 s51, s51, s3")
    k.e("s_lshr_b32 s3, s57, 1")
    k.e("s_mul_i32 s3, s3, 144")
    k.e("s_and_b32 s16, s57, 1")
    k.e("s_lshl_b32 s16, s16, 6")
    k.e("s_add_u32 s3, s3, s16")
    k.e("s_add_u32 s3, s3, s51")
    k.e("s_cmp_eq_u32 s57, 0")
    k.e("s_cselect_b32 s51, s51, 0x7f000000")
    k.e("s_cmp_lg_u32 s73, 0")
    k.e("s_cselect_b32 s16, s3, s68")
    k.e("s_cselect_b32 s17, s51, s69")
    k.e("s_cselect_b64 vcc, -1, 0")
    k.e("v_cndmask_b32 v246, v236, v239, vcc")
    k.e("v_cndmask_b32 v247, v237, v238, vcc")
    k.e("s_lshl_b32 s51, s23, 2")
    k.e("s_add_u32 s51, s51, s57")
    k.e("s_lshl_b32 s51, s51, 14")
    k.e("s_lshl_b32 s3, s58, 8")
    k.e("s_add_u32 s51, s51, s3")
    k.e("s_lshl_b32 s3, s56, 7")
    k.e("s_add_u32 s51, s51, s3")
    k.e("s_cmp_lg_u32 s73, 0")
    k.e("s_cselect_b32 s59, 0x7f000000, s51")
    k.e("v_lshlrev_b32 v238, 3, v11")
    k.e("s_lshl_b32 s3, s55, 3")
    k.e("s_lshl_b32 s51, s44, 1")
    k.e("s_add_u32 s51, s51, s3")
    k.e("s_add_u32 s51, s51, s56")
    k.e("s_lshl_b32 s56, s51, 7")
    k.e("s_lshl_b32 s51, s45, 1")
    k.e("s_add_u32 s51, s51, s3")
    k.e("s_add_u32 s51, s51, s46")
    k.e("s_lshl_b32 s51, s51, 7")
    k.e("s_lshl_b32 s57, s44, 2")
    k.e("s_add_u32 s57, s57, s51")
    k.e("s_mov_b32 s58, 0xffff0000")
    done_c = set()
    if mode == "S":
        cread(0); cread(1)
        k.wait_ds(("cr", 1))
        pend.extend(c_ops(3) + c_ops(4))
    sync(0)
    k.stamp(2)
    for f in range(DEP):
        aread(f)
    mi = 0
    for f in range(total):
        nxt = f + DEP
        if nxt < total:
            if nxt % 18 == 0:
                sync(nxt // 18)
            aread(nxt)
        st, r = divmod(f, 18)
        h, T = divmod(r, 9)
        if mode == "D" and r == 0:
            k.wait_vm(("b", st))
        if mode == "S" and st + 1 < NST:
            for rr_, u_ in ((3, 0), (7, 1)):
                c = 2 * (st + 1) + u_
                if r == rr_:
                    while issued_c.get(c, 0) < 2:
                        pend.pop(0)()
                    cread(c)
                    done_c.add(("c", c))
                if r == rr_ + 2 and c + 3 < 2 * NST:
                    k.wait_ds(("cr", c))
                    pend.extend(c_ops(c + 3))
        k.wait_ds(("a", f))
        af = AFB + (f % NF) * 4
        for u in range(2):
            bf = BFB + ((st % 4) if mode == "D" else (st % 2)) * 16 + (h * 2 + u) * 4
            acc = ACC + (u * 9 + T) * 4
            k.e(f"v_mfma_f32_16x16x32_bf16 v[{acc}:{acc+3}], v[{af}:{af+3}], v[{bf}:{bf+3}], v[{acc}:{acc+3}]")
            mi += 1
            if pend and (mi % 3 == 0 or st == 0):
                pend.pop(0)()
    k.stamp(3)
    if mode == "S":
        k.e("s_barrier")
    k.e("s_nop 5")
    k.e("s_cmp_eq_u32 s46, 0")
    k.e(f"s_cbranch_scc1 {name}_x0")

    def xch(send, keep, lab_after):
        for T in range(9):
            k.e(f"ds_write_b128 v232, v[{send+4*T}:{send+4*T+3}] offset:{T*1024}")
        k.e("s_waitcnt lgkmcnt(0)")
        k.e("s_barrier")
        for T in range(9):
            k.e(f"ds_read_b128 v[{88+4*T}:{91+4*T}], v233 offset:{T*1024}")
        for T in range(9):
            k.e(f"s_waitcnt lgkmcnt({8-T})")
            for r in range(4):
                k.e(f"v_add_f32 v{keep+4*T+r}, v{keep+4*T+r}, v{88+4*T+r}")
            k.e(f"v_cvt_pk_bf16_f32 v{16+2*T}, v{keep+4*T}, v{keep+4*T+1}")
            k.e(f"v_cvt_pk_bf16_f32 v{17+2*T}, v{keep+4*T+2}, v{keep+4*T+3}")
            if T % 2 == 1:
                k.e(f"buffer_store_dwordx4 v[{14+2*T}:{17+2*T}], v234, s[32:35], s75 offen offset:{(T//2)*1024} {PUB}")
                if OWNP:
                    k.e(f"buffer_store_dwordx4 v[{14+2*T}:{17+2*T}], v234, s[32:35], s4 offen offset:{(T//2)*1024}")
    xch(ACC, ACC + 36, None)
    k.e(f"s_branch {name}_x1")
    k.label(f"{name}_x0")
    xch(ACC + 36, ACC, None)
    k.label(f"{name}_x1")
    k.e(f"buffer_store_dwordx2 v[32:33], v235, s[32:35], s75 offen {PUB}")
    if OWNP:
        k.e("buffer_store_dwordx2 v[32:33], v235, s[32:35], s4 offen")
    k.e("v_mov_b32 v9, 1")
    k.e("v_mov_b32 v10, 0")
    k.e("s_mov_b32 s53, 0")
    k.e("s_waitcnt vmcnt(0)")
    k.stamp(4)
    k.e("s_mov_b64 exec, 1")
    k.e("buffer_store_dword v9, v10, s[64:67], s57 offen sc1")
    k.label(f"{name}_poll")
    k.e("buffer_load_dwordx4 v[108:111], v10, s[64:67], s56 offen sc1")
    k.e("s_add_u32 s53, s53, 1")
    k.e("s_waitcnt vmcnt(0)")
    k.e("v_and_b32 v108, v108, v109")
    k.e("v_and_b32 v110, v110, v111")
    k.e("v_and_b32 v108, v108, v110")
    k.e("s_nop 0")
    k.e("v_readfirstlane_b32 s54, v108")
    k.e("s_cmp_ge_u32 s53, 0x40000")
    k.e(f"s_cbranch_scc1 {name}_pollx")
    k.e("s_cmp_eq_u32 s54, 1")
    k.e(f"s_cbranch_scc1 {name}_pollx")
    if SLP:
        k.e(f"s_sleep {SLP}")
    k.e(f"s_branch {name}_poll")
    k.label(f"{name}_pollx")
    k.e("s_mov_b64 exec, -1")
    k.stamp(1)
    for q in range(4):
        k.e(f"buffer_load_dwordx4 v[{16+6*q}:{19+6*q}], v234, s[32:35], s6 offen sc1")
        k.e(f"buffer_load_dwordx2 v[{20+6*q}:{21+6*q}], v235, s[32:35], s7 offen sc1")
        if q < 3:
            k.e(f"s_add_u32 s6, s6, {8*4608}")
            k.e(f"s_add_u32 s7, s7, {8*4608}")
    k.e("v_mov_b32 v120, 0")
    k.e("v_mov_b32 v121, 0")
    for j in range(6):
        k.e(f"v_lshlrev_b32 v{60+2*j}, 16, v{248+j}")
        k.e(f"v_and_b32 v{61+2*j}, s58, v{248+j}")
    k.e("s_waitcnt vmcnt(0)")
    for j in range(6):
        r = [16 + 6 * q + j for q in range(4)]
        for q in range(4):
            k.e(f"v_lshlrev_b32 v{40+2*q}, 16, v{r[q]}")
            k.e(f"v_and_b32 v{41+2*q}, s58, v{r[q]}")
        k.e("v_add_f32 v40, v40, v42")
        k.e("v_add_f32 v41, v41, v43")
        k.e("v_add_f32 v44, v44, v46")
        k.e("v_add_f32 v45, v45, v47")
        if mode == "S":
            k.e("v_cvt_pk_bf16_f32 v48, v40, v41")
            k.e("v_cvt_pk_bf16_f32 v49, v44, v45")
            k.e("v_lshlrev_b32 v40, 16, v48")
            k.e("v_and_b32 v41, s58, v48")
            k.e("v_lshlrev_b32 v44, 16, v49")
            k.e("v_and_b32 v45, s58, v49")
            k.e("v_sub_f32 v40, v40, v44")
            k.e("v_sub_f32 v41, v41, v45")
        else:
            k.e("v_add_f32 v40, v40, v44")
            k.e("v_add_f32 v41, v41, v45")
        k.e("v_cvt_pk_bf16_f32 v48, v40, v41")
        k.e("v_lshlrev_b32 v40, 16, v48")
        k.e("v_and_b32 v41, s58, v48")
        k.e(f"v_add_f32 v40, v40, v{60+2*j}")
        k.e(f"v_add_f32 v41, v41, v{61+2*j}")
        k.e(f"v_cvt_pk_bf16_f32 v{248+j}, v40, v41")
        k.e(f"v_lshlrev_b32 v40, 16, v{248+j}")
        k.e(f"v_and_b32 v41, s58, v{248+j}")
        k.e("v_add_f32 v120, v120, v40")
        k.e("v_fmac_f32 v121, v40, v40")
        k.e("v_add_f32 v120, v120, v41")
        k.e("v_fmac_f32 v121, v41, v41")
        if j == 3:
            k.e("buffer_store_dwordx4 v[248:251], v246, s[40:43], s16 offen")
    k.e("buffer_store_dwordx2 v[252:253], v247, s[40:43], s17 offen")
    for sw in ("16", "32"):
        k.e("v_mov_b32 v44, v120")
        k.e("v_mov_b32 v45, v121")
        k.e("s_nop 1")
        k.e(f"v_permlane{sw}_swap_b32 v120, v44")
        k.e(f"v_permlane{sw}_swap_b32 v121, v45")
        k.e("s_nop 1")
        k.e("v_add_f32 v120, v120, v44")
        k.e("v_add_f32 v121, v121, v45")
    k.e("s_mov_b64 exec, 0xffff")
    k.e("buffer_store_dwordx2 v[120:121], v238, s[60:63], s59 offen")
    if PROF:
        k.wait_vm_all()
    k.stamp(5)
    k.stamp_store(2, 18, 20)
    k.label(Lend)
    return k, 256, 512, CBASE + (49152 if mode == "S" else 0)


def gen_kg():
    name = "kg"
    k = Kern(name, 256, 0, 80)
    Lend = name + "_end"
    STG = 36864
    EXT = 4 * STG
    k.e("s_cmp_ge_u32 s2, 256")
    k.e(f"s_cbranch_scc1 {Lend}")
    k.e("s_load_dwordx2 s[18:19], s[0:1], 88")
    k.e("v_lshrrev_b32 v1, 6, v0")
    k.e("v_and_b32 v2, 63, v0")
    k.e("v_readfirstlane_b32 s20, v1")
    k.e("s_and_b32 s22, s2, 7")
    k.e("s_lshr_b32 s23, s2, 3")
    if MAPG == 0:
        k.e("s_and_b32 s21, s23, 7")
        k.e("s_lshr_b32 s23, s23, 3")
        k.e("s_lshl_b32 s22, s22, 2")
        k.e("s_add_u32 s23, s23, s22")
    elif MAPG == 1:
        k.e("s_mov_b32 s21, s22")
    else:
        k.e("s_and_b32 s21, s22, 6")
        k.e("s_and_b32 s44, s23, 1")
        k.e("s_add_u32 s21, s21, s44")
        k.e("s_and_b32 s22, s22, 1")
        k.e("s_lshl_b32 s22, s22, 4")
        k.e("s_lshr_b32 s23, s23, 1")
        k.e("s_add_u32 s23, s23, s22")
    k.e("s_lshl_b32 s21, s21, 3")
    k.e("s_add_u32 s21, s21, s20")
    k.e("s_waitcnt lgkmcnt(0)")
    k.stamp(0)
    srd_ws_s(k, 76, 18, 73, 512*128)
    k.e("s_lshl_b32 s3, s2, 8")
    k.e("v_lshlrev_b32 v1, 2, v0")
    k.e("v_mov_b32 v3, 0")
    k.e("v_cmp_gt_u32 vcc, 64, v0")
    k.e("s_and_b64 exec, exec, vcc")
    k.e("buffer_store_dword v3, v1, s[76:79], s3 offen sc1")
    k.e("s_mov_b64 exec, -1")
    k.srd_ws(24, 18, "WGU")
    srd_ws_s(k, 28, 18, 70, XC_SZ)
    srd_ws_s(k, 32, 18, 71, ST_SZ)
    srd_ws_s(k, 40, 18, 72, HC_SZ)
    k.e("v_lshlrev_b32 v3, 4, v2")
    k.e(f"s_mul_i32 s44, s23, {WGU_CB}")
    k.e("s_mul_i32 s45, s20, 4608")
    k.e("s_add_u32 s43+1, s44, s45".replace("s43+1", "s50"))
    k.e("s_mul_i32 s46, s21, 36864")
    k.e("s_mul_i32 s52, s20, 1152")
    k.e(f"s_add_u32 s51, s44, {36*9216}")
    k.e("s_add_u32 s51, s51, s52")
    NST = 9
    ACC = 112
    BFB = 16
    AFB = 80
    XB = 104
    NF, DEP = 6, int(os.environ.get('KG_DEP', '4'))
    PRIO = int(os.environ.get('PRIO', '0'))
    VSP = int(os.environ.get('VSP', '3'))
    for s_ in range(5):
        if s_ == 0:
            k.e("v_mov_b32 v4, v3")
        else:
            k.e(f"v_add_u32 v{4+s_}, {s_*STG}, v3")

    pend = []

    def dma_ops(st_):
        slot = st_ % 4
        ops = []
        for e_ in range(4):
            def f(e_=e_):
                k.e(f"s_add_u32 m0, s45, {slot*STG}")
                k.e(f"s_add_u32 s47, s50, {st_*STG}")
                k.vm(f"buffer_load_dwordx4 v3, s[24:27], s47 offen offset:{e_*1024} lds", ("d", st_))
            ops.append(f)
        def f5():
            k.e(f"s_add_u32 m0, s45, {slot*STG + 4096}")
            k.e(f"s_add_u32 s47, s50, {st_*STG + 4096}")
            k.e("s_mov_b32 exec_hi, 0")
            k.vm("buffer_load_dwordx4 v3, s[24:27], s47 offen lds", ("d", st_))
            k.e("s_mov_b64 exec, -1")
        ops.append(f5)
        return ops

    def ext_ops():
        def f1():
            k.e(f"s_add_u32 m0, s52, {EXT}")
            k.e("s_nop 0")
            k.vm("buffer_load_dwordx4 v3, s[24:27], s51 offen lds", ("d", "x"))
        def f2():
            k.e(f"s_add_u32 m0, s52, {EXT}")
            k.e("s_mov_b64 exec, 0xff")
            k.vm("buffer_load_dwordx4 v3, s[24:27], s51 offen offset:1024 lds", ("d", "x"))
            k.e("s_mov_b64 exec, -1")
        return [f1, f2]

    def b_ops(st_):
        ops = []
        for j in range(4):
            def f(j=j):
                rg = BFB + (st_ % 4) * 16 + j * 4
                k.e(f"s_add_u32 s47, s46, {st_*4096}")
                k.vm(f"buffer_load_dwordx4 v[{rg}:{rg+3}], v3, s[28:31], s47 offen offset:{j*1024}", ("b", st_))
            ops.append(f)
        return ops

    STB = 64

    for f in dma_ops(0) + b_ops(0) + dma_ops(1):
        f()
    k.e("v_and_b32 v9, 31, v2")
    k.e("v_lshrrev_b32 v10, 5, v2")
    k.e("v_lshlrev_b32 v10, 17, v10")
    k.e("v_lshl_add_u32 v9, v9, 3, v10")
    k.e("s_lshl_b32 s53, s21, 8")
    for a in range(144):
        k.e(f"v_mov_b32 v{ACC+a}, 0")

    def st_ops():
        ops = []
        for i in range(8):
            def f(i=i):
                k.e(f"s_add_u32 s57, s53, {i*16384}")
                k.vm(f"buffer_load_dwordx2 v[{STB+2*i}:{STB+2*i+1}], v9, s[32:35], s57 offen", "st")
            ops.append(f)
        return ops

    def st_finish():
        k.wait_vm("st")
        stats_finish(k, STB, 12, 10, 13, 14, 15)
        k.e("v_rcp_f32 v11, v10")
        k.e("v_xor_b32 v12, 0x80000000, v12")
        k.e("v_mul_f32 v11, 0xbfb8aa3b, v11")
        k.e("v_lshrrev_b32 v13, 16, v12")
        k.e("v_or_b32 v14, v12, v13")
        k.e(f"v_mov_b32 v{XB}, v14")
        k.e(f"v_mov_b32 v{XB+1}, v13")
        k.e(f"v_mov_b32 v{XB+2}, v14")
        k.e(f"v_mov_b32 v{XB+3}, v13")
    if PRIO == 1:
        k.e("s_cmp_ge_u32 s20, 4")
        k.e(f"s_cbranch_scc0 {name}_np")
        k.e("s_setprio 1")
        k.label(f"{name}_np")
    elif PRIO == 2:
        k.e("s_cmp_lt_u32 s20, 4")
        k.e(f"s_cbranch_scc0 {name}_np")
        k.e("s_setprio 1")
        k.label(f"{name}_np")
    k.stamp(1)
    k.wait_vm(("d", 0))
    k.e("s_barrier")
    k.stamp(2)
    pend += b_ops(1) + dma_ops(2) + st_ops() + b_ops(2) + dma_ops(3) + ext_ops()

    seq = []
    for st_ in range(7):
        for kk in range(4):
            for ft in range(9):
                seq.append((st_, kk, ft))
    NMAIN = len(seq)
    for ft in range(9):
        for st_ in (7, 8):
            for kk in range(4):
                seq.append((st_, kk, ft))
        seq.append(("x", 0, ft))
    total = len(seq)

    def aread(m):
        if os.environ.get("EXP_NODS"):
            return
        if os.environ.get("EXP_HALFDS") and m % 2 == 1:
            return
        st_, kk, ft = seq[m]
        rg = AFB + (m % NF) * 4
        if st_ == "x":
            k.ds(f"ds_read_b128 v[{rg}:{rg+3}], v8 offset:{ft*1024}", m)
        else:
            k.ds(f"ds_read_b128 v[{rg}:{rg+3}], v{4 + st_ % 4} offset:{(kk*9+ft)*1024}", m)

    def stage_sync(st_):
        while pend:
            pend.pop(0)()
        if st_ == 7:
            k.wait_vm([("d", 7), ("d", 8), ("d", "x")])
        else:
            k.wait_vm(("d", st_))
        if not os.environ.get("EXP_NOBAR"):
            k.e("s_barrier")
        if st_ == 1:
            st_finish()
        if st_ >= 2 and st_ + 2 < NST and not os.environ.get("EXP_NOVM"):
            pend.extend(dma_ops(st_ + 2))
        if st_ >= 1 and st_ + 2 < NST and not os.environ.get("EXP_NOVM"):
            pend.extend(b_ops(st_ + 2))

    k.e(f"s_mul_i32 s48, s21, {HCB}")
    k.e("s_mul_i32 s49, s23, 9216")
    k.e("s_add_u32 s48, s48, s49")

    def epi(ft):
        a = ACC + ft * 16
        t = 32 + (ft % 2) * 12
        ins = []
        for j in range(8):
            ins.append(f"v_mul_f32 v{t+j}, v{a+j}, v11")
        for j in range(8):
            ins.append(f"v_exp_f32 v{t+j}, v{t+j}")
        for j in range(8):
            ins.append(f"v_fma_f32 v{t+j}, v{t+j}, v10, v10")
        for j in range(8):
            ins.append(f"v_rcp_f32 v{t+j}, v{t+j}")
        for j in range(8):
            ins.append(f"v_mul_f32 v{t+j}, v{t+j}, v{a+8+j}")
        for j in range(4):
            ins.append(f"v_cvt_pk_bf16_f32 v{t+8+j}, v{t+2*j}, v{t+2*j+1}")
        ins.append(("store", t + 8, ft))
        return ins

    def emit_epi(ins):
        if isinstance(ins, tuple):
            _, rg, ft = ins
            k.vm(f"buffer_store_dwordx4 v[{rg}:{rg+3}], v3, s[40:43], s48 offen {STPG}", ("o", ft))
            k.e("s_add_u32 s48, s48, 1024")
        else:
            k.e(ins)

    for m in range(DEP):
        aread(m)
    epq = []
    for m in range(total):
        nxt = m + DEP
        if nxt < total:
            if nxt < NMAIN and nxt % 36 == 0:
                stage_sync(nxt // 36)
            if nxt == NMAIN:
                stage_sync(7)
            aread(nxt)
        st_, kk, ft = seq[m]
        if m < NMAIN:
            if m % 36 == 0:
                k.wait_vm(("b", st_))
        elif m == NMAIN:
            k.wait_vm([("b", 7), ("b", 8)])
            k.stamp(3)
        k.wait_ds(m)
        af = AFB + ((m - (m % 2 if os.environ.get("EXP_HALFDS") else 0)) % NF) * 4
        bf = XB if st_ == "x" else BFB + (st_ % 4) * 16 + kk * 4
        acc = ACC + ft * 16
        k.e(f"v_mfma_f32_32x32x16_bf16 v[{acc}:{acc+15}], v[{af}:{af+3}], v[{bf}:{bf+3}], v[{acc}:{acc+15}]")
        if pend and (m % VSP == VSP - 1 or m < 36):
            pend.pop(0)()
        if m >= NMAIN:
            r = (m - NMAIN) % 9
            if r == 8:
                while epq:
                    emit_epi(epq.pop(0))
                epq = epi(ft)
            elif r >= 3:
                for _ in range(9):
                    if epq:
                        emit_epi(epq.pop(0))
    k.e("s_nop 15")
    while epq:
        emit_epi(epq.pop(0))
    k.stamp(4)
    if PROF:
        k.wait_vm_all()
    k.stamp(5)
    k.stamp_store(3, 18, 20)
    k.label(Lend)
    return k, 256, 512, 4 * STG + 9216


def build():
    def mv(*pairs):
        return [f"s_mov_b32 s{r}, {v}" for r, v in pairs]
    X = lambda i: WS[f"XC{i}"][0]
    T = lambda i: WS[f"ST{i}"][0]
    kh1 = gen_kh_full(True)
    kh = gen_kh_full(False); ks = gen_t2("S"); kg = gen_kg(); kd = gen_t2("D")
    SEP = int(os.environ.get("SEP", "1"))
    FL = lambda i: WS["FLG"][0] + i * 65536
    EX = lambda i: WS["PART"][0] + i * 9437184
    AB = [WS["AB2" if SEP else "AB"][0], WS["AB"][0]]
    HC = [WS["HC2" if SEP else "HC"][0], WS["HC"][0]]
    ent = {
        "kh1": [("kh1_kernel", mv((72, AB[0]), (73, FL(0))))],
        "kh": [("kh2_kernel", mv((70, X(2)), (71, T(2)), (72, AB[1]), (73, FL(2))))],
        "ks": [("ks1_kernel", mv((70, X(0)), (71, X(1)), (72, T(1)), (73, 0), (75, EX(0)), (68, AB[0]), (69, FL(0)))),
               ("ks2_kernel", mv((70, X(2)), (71, X(3)), (72, T(3)), (73, 0), (75, EX(2)), (68, AB[1]), (69, FL(2))))],
        "kg": [("kg1_kernel", mv((70, X(1)), (71, T(1)), (72, HC[0]), (73, FL(1)))), ("kg2_kernel", mv((70, X(3)), (71, T(3)), (72, HC[1]), (73, FL(3))))],
        "kd": [("kd1_kernel", mv((70, X(1)), (71, X(2)), (72, T(2)), (73, 0), (75, EX(1)), (68, HC[0]), (69, FL(1)))),
               ("kd2_kernel", mv((70, X(3)), (71, X(2)), (72, T(2)), (73, 1), (75, EX(3)), (68, HC[1]), (69, FL(3))))],
    }
    if PROF:
        idx = {"kh1_kernel": 0, "ks1_kernel": 1, "kg1_kernel": 2, "kd1_kernel": 3, "kh2_kernel": 4, "ks2_kernel": 5, "kg2_kernel": 6, "kd2_kernel": 7}
        for kk_, lst in ent.items():
            for nm, ins in lst:
                ins.append(f"s_mov_b32 s74, {idx[nm]*512*256}")
    order = [("kh1_kernel", kh1), ("ks1_kernel", ks), ("kg1_kernel", kg), ("kd1_kernel", kd),
             ("kh2_kernel", kh), ("ks2_kernel", ks), ("kg2_kernel", kg), ("kd2_kernel", kd)]
    head = ["; generated by dev/gen3.py -- FNet/GLU interleaved layers, launch list"]
    for nm, (k, grid, block, lds) in order:
        head.append(f"; @launch kernel={nm} grid=({grid},1,1) block=({block},1,1) lds={lds}")
    out = head + ['.amdgcn_target "amdgcn-amd-amdhsa--gfx950"', ".text"]
    descs = []
    for kk_ in (kh1, kh, ks, kg, kd):
        t, ds_ = ktext(kk_[0], ent[kk_[0].name])
        out.append(t); descs += ds_
    out.append('.section .rodata,"a"')
    for d in descs:
        out.append(".p2align 6")
        out.append(d)
    return "\n".join(out) + "\n"


if __name__ == "__main__":
    path = sys.argv[1] if len(sys.argv) > 1 else "interleave_layers__spectral_fnet__glu_gated_glu__prompt.s"
    open(path, "w").write(build())
    print("wrote", path, "ws bytes", WS_TOTAL)
```

```python
import sys

S, D, F = 2048, 576, 4608
import os
PROF = bool(int(os.environ.get("PROF", "0")))
NW_T1 = 8

XC_SZ = S * D * 2
ST_SZ = S * 16 * 2 * 4
PADH = int(os.environ.get("PADH", "0")); PADW = int(os.environ.get("PADW", "0")); PADA = int(os.environ.get("PADA", "0"))
ABJ = 256 * 1152 + PADA
HCB = 576 * 512 + PADH
WDJ = 576 * 1152 + PADW
AB_SZ = 16 * ABJ
HC_SZ = 64 * HCB
WGU_SZ = 32 * 37 * 9 * 1024
WGU_CB = 37 * 9216
WD_SZ = 8 * WDJ
CS_SZ = 288 * 2 * 2 * 8 * 4
RS_SZ = 2 * 8 * 80 * 4


def _al(x, a=4096):
    return (x + a - 1) // a * a


_off = 0
WS = {}
for name, sz in [("XC0", XC_SZ), ("XC1", XC_SZ), ("XC2", XC_SZ), ("XC3", XC_SZ),
                 ("ST0", ST_SZ), ("ST1", ST_SZ), ("ST2", ST_SZ), ("ST3", ST_SZ),
                 ("AB", AB_SZ), ("HC", HC_SZ), ("WGU", WGU_SZ), ("WD", WD_SZ),
                 ("CS", CS_SZ), ("RS", RS_SZ), ("PART", 4*128*4*9216*2), ("LC", XC_SZ), ("FLG", 524288), ("AB2", AB_SZ), ("HC2", HC_SZ), ("DBG", 16*512*256)]:
    WS[name] = (_off, sz)
    _off += _al(sz + 4096)
WS_TOTAL = _off

KA = dict(x=0, seq_re=8, seq_im=16, hid_re=24, hid_im=32, bx=40, wg=48, wu=56, wd=64, out=72, dbg=80, ws=88)


class Kern:
    def __init__(self, name, nvgpr, nagpr=0, nsgpr=100):
        self.name = name
        self.L = []
        self.vq = []
        self.lq = []
        self.nvgpr = nvgpr
        self.nagpr = nagpr
        self.nsgpr = nsgpr
        self.lab = 0

    def e(self, s):
        self.L.append("    " + s)

    def c(self, s):
        self.L.append("    ; " + s)

    def label(self, s):
        self.L.append(s + ":")

    def newlabel(self, p="L"):
        self.lab += 1
        return f"{self.name}_{p}{self.lab}"

    def vm(self, s, tag):
        self.e(s)
        self.vq.append(tag)
        assert len(self.vq) <= 63, f"too many vmem outstanding in {self.name}"

    def wait_vm(self, tags):
        if not isinstance(tags, (list, set)):
            tags = [tags]
        idx = -1
        for i, t in enumerate(self.vq):
            if t in tags:
                idx = i
        if idx < 0:
            return
        n = len(self.vq) - 1 - idx
        self.e(f"s_waitcnt vmcnt({n})")
        self.vq = self.vq[idx + 1:]

    def wait_vm_all(self):
        self.e("s_waitcnt vmcnt(0)")
        self.vq = []

    def ds(self, s, tag):
        self.e(s)
        self.lq.append(tag)

    def wait_ds(self, tags):
        if not isinstance(tags, (list, set)):
            tags = [tags]
        idx = -1
        for i, t in enumerate(self.lq):
            if t in tags:
                idx = i
        if idx < 0:
            return
        n = len(self.lq) - 1 - idx
        assert n <= 15
        self.e(f"s_waitcnt lgkmcnt({n})")
        self.lq = self.lq[idx + 1:]

    def wait_ds_all(self):
        self.e("s_waitcnt lgkmcnt(0)")
        self.lq = []

    def stamp(self, i):
        if not PROF:
            return
        self.e("s_waitcnt lgkmcnt(0)")
        self.lq = []
        self.e(f"s_memtime s[{80+2*i}:{81+2*i}]")
        if i == 0:
            self.e("s_memrealtime s[94:95]")
        self.e("s_waitcnt lgkmcnt(0)")
        self.nst = max(getattr(self, "nst", 0), i + 1)

    def stamp_store(self, kidx, wsbase, swave):
        if not PROF:
            return
        self.e("s_mov_b64 exec, -1")
        self.e("s_memrealtime s[96:97]")
        self.srd_ws(76, wsbase, "DBG")
        self.e("s_waitcnt lgkmcnt(0)")
        self.e(f"s_lshl_b32 s98, s2, 8")
        self.e(f"s_lshl_b32 s99, s{swave}, 5")
        self.e("s_add_u32 s98, s98, s99")
        self.e("s_add_u32 s98, s98, s74")
        self.e("v_mov_b32 v1, 0")
        for i in range(self.nst):
            self.e(f"v_mov_b32 v2, s{80+2*i}")
            self.e(f"buffer_store_dword v2, v1, s[76:79], s98 offen offset:{4*i}")
        self.e("v_mov_b32 v2, s96")
        self.e(f"buffer_store_dword v2, v1, s[76:79], s98 offen offset:28")
        self.e("v_mov_b32 v2, s94")
        self.e(f"buffer_store_dword v2, v1, s[76:79], s98 offen offset:24")

    def srd_ptr(self, d, base, nbytes):
        self.e(f"s_mov_b32 s{d}, s{base}")
        self.e(f"s_and_b32 s{d+1}, s{base+1}, 0xffff")
        self.e(f"s_mov_b32 s{d+2}, {nbytes}")
        self.e(f"s_mov_b32 s{d+3}, 0x00020000")

    def srd_ws(self, d, wsbase, region):
        off, sz = WS[region]
        self.e(f"s_add_u32 s{d}, s{wsbase}, {off}")
        self.e(f"s_addc_u32 s{d+1}, s{wsbase+1}, 0")
        self.e(f"s_and_b32 s{d+1}, s{d+1}, 0xffff")
        self.e(f"s_mov_b32 s{d+2}, {sz}")
        self.e(f"s_mov_b32 s{d+3}, 0x00020000")

    def text(self):
        tot = self.nvgpr if self.nagpr == 0 else (self.nvgpr + 3) // 4 * 4 + self.nagpr
        acc = (self.nvgpr + 3) // 4 * 4
        out = [f".globl {self.name}", ".p2align 8", f".type {self.name},@function", f"{self.name}:"]
        out += self.L
        out += ["    s_endpgm"]
        desc = [f".amdhsa_kernel {self.name}",
                f"  .amdhsa_next_free_vgpr {tot}",
                f"  .amdhsa_next_free_sgpr {100 if PROF else self.nsgpr}",
                f"  .amdhsa_accum_offset {acc}",
                "  .amdhsa_group_segment_fixed_size 0",
                "  .amdhsa_kernarg_size 96",
                "  .amdhsa_user_sgpr_count 2",
                "  .amdhsa_user_sgpr_kernarg_segment_ptr 1",
                "  .amdhsa_system_sgpr_workgroup_id_x 1",
                ".end_amdhsa_kernel"]
        return "\n".join(out), "\n".join(desc)


def R(kind, i, n=1):
    if n == 1:
        return f"{kind}{i}"
    return f"{kind}[{i}:{i+n-1}]"


def unpack_sum(k, src, lo, hi, sacc, qacc):
    k.e(f"v_lshlrev_b32 v{lo}, 16, v{src}")
    k.e(f"v_and_b32 v{hi}, 0xffff0000, v{src}")
    k.e(f"v_add_f32 v{sacc}, v{sacc}, v{lo}")
    if qacc is not None:
        k.e(f"v_fmac_f32 v{qacc}, v{lo}, v{lo}")
    k.e(f"v_add_f32 v{sacc}, v{sacc}, v{hi}")
    if qacc is not None:
        k.e(f"v_fmac_f32 v{qacc}, v{hi}, v{hi}")


def xlane_add(k, val, tmp, addr, lane, mask):
    k.e(f"v_xor_b32 v{addr}, {mask}, v{lane}")
    k.e(f"v_lshlrev_b32 v{addr}, 2, v{addr}")
    k.e(f"ds_bpermute_b32 v{tmp}, v{addr}, v{val}")
    k.e("s_waitcnt lgkmcnt(0)")
    k.e(f"v_add_f32 v{val}, v{val}, v{tmp}")


def slotmap_v(k, dd, out, t0, t1):
    k.e(f"v_and_b32 v{out}, 0x23, v{dd}")
    k.e(f"v_bfe_u32 v{t0}, v{dd}, 2, 1")
    k.e(f"v_lshl_or_b32 v{out}, v{t0}, 4, v{out}")
    k.e(f"v_bfe_u32 v{t0}, v{dd}, 3, 2")
    k.e(f"v_lshl_or_b32 v{out}, v{t0}, 2, v{out}")
    k.e(f"v_cmp_gt_u32 vcc, 64, v{dd}")
    k.e("s_nop 1")
    k.e(f"v_cndmask_b32 v{out}, v{dd}, v{out}, vcc")


NA_, NB_, NC_, ND_ = 64, 36, 144, 144


def gen_k0():
    k = Kern("k0_kernel", 64, 0, 64)
    total = NA_ + NB_ + NC_ + ND_
    Lend = "k0_end"
    k.e(f"s_cmp_ge_u32 s2, {total}")
    k.e(f"s_cbranch_scc1 {Lend}")
    k.e("s_load_dwordx2 s[4:5], s[0:1], 0")
    k.e("s_load_dwordx4 s[8:11], s[0:1], 24")
    k.e("s_load_dwordx4 s[12:15], s[0:1], 48")
    k.e("s_load_dwordx2 s[16:17], s[0:1], 64")
    k.e("s_load_dwordx2 s[18:19], s[0:1], 88")
    k.e("v_lshrrev_b32 v1, 6, v0")
    k.e("v_and_b32 v2, 63, v0")
    k.e("v_readfirstlane_b32 s20, v1")
    k.e("s_waitcnt lgkmcnt(0)")
    k.e(f"s_cmp_lt_u32 s2, {NC_}")
    k.e("s_cbranch_scc1 k0_roleC")
    k.e(f"s_cmp_lt_u32 s2, {NC_ + ND_}")
    k.e("s_cbranch_scc1 k0_roleD")
    k.e(f"s_cmp_lt_u32 s2, {NC_ + ND_ + NA_}")
    k.e("s_cbranch_scc1 k0_roleA")
    k.e("s_branch k0_roleB")

    k.label("k0_roleA")
    k.e(f"s_sub_u32 s21, s2, {NC_ + ND_}")
    k.srd_ptr(24, 4, XC_SZ)
    k.srd_ws(28, 18, "XC0")
    k.srd_ws(32, 18, "ST0")
    k.e("v_and_b32 v3, 31, v0")
    k.e("v_lshrrev_b32 v4, 5, v0")
    k.e("v_and_b32 v5, 3, v3")
    k.e("v_bfe_u32 v6, v3, 2, 2")
    k.e("v_lshl_or_b32 v5, v6, 3, v5")
    k.e("v_bfe_u32 v6, v3, 4, 1")
    k.e("v_lshl_or_b32 v5, v6, 2, v5")
    k.e("s_movk_i32 s22, 1152")
    k.e("v_mul_lo_u32 v5, v5, s22")
    k.e("v_mul_u32_u24 v6, 144, v4")
    k.e("v_add_u32 v5, v5, v6")
    k.e("s_mul_i32 s23, s21, 36864")
    for it in range(9):
        k.e(f"buffer_load_dwordx4 v[{16+4*it}:{19+4*it}], v5, s[24:27], s23 offen offset:{16*it}")
    k.e("v_mul_u32_u24 v6, 4608, v4")
    k.e("v_lshl_add_u32 v6, v3, 4, v6")
    k.e("v_add_u32 v7, 2048, v6")
    k.e("v_mov_b32 v8, 0")
    k.e("v_mov_b32 v9, 0")
    k.e("s_waitcnt vmcnt(0)")
    for it in range(9):
        vo, im = (6, it * 512) if it < 4 else (7, (it - 4) * 512)
        k.e(f"buffer_store_dwordx4 v[{16+4*it}:{19+4*it}], v{vo}, s[28:31], s23 offen offset:{im}")
    for r in range(36):
        unpack_sum(k, 16 + r, 10, 11, 8, 9)
    k.e("v_lshlrev_b32 v12, 3, v3")
    k.e("v_lshl_add_u32 v12, v4, 15, v12")
    k.e("s_lshl_b32 s23, s21, 8")
    k.e("v_mov_b32 v10, 0")
    k.e("v_mov_b32 v11, 0")
    k.e("buffer_store_dwordx2 v[8:9], v12, s[32:35], s23 offen")
    k.e("v_add_u32 v12, 16384, v12")
    k.e("buffer_store_dwordx2 v[10:11], v12, s[32:35], s23 offen")
    k.e(f"s_branch {Lend}")

    k.label("k0_roleB")
    k.e(f"s_sub_u32 s21, s2, {NC_ + ND_ + NA_}")
    k.e("s_cmp_ge_u32 s21, 18")
    k.e("s_cselect_b32 s22, 1, 0")
    k.e("s_cselect_b32 s4, s10, s8")
    k.e("s_cselect_b32 s5, s11, s9")
    k.e("s_mul_i32 s23, s22, 18")
    k.e("s_sub_u32 s21, s21, s23")
    k.srd_ptr(24, 4, D * D * 2)
    k.srd_ws(28, 18, "RS")
    k.e("s_lshl_b32 s23, s21, 5")
    k.e("s_lshl_b32 s36, s20, 3")
    k.e("s_add_u32 s23, s23, s36")
    k.e("v_lshrrev_b32 v3, 3, v2")
    k.e("v_add_u32 v3, s23, v3")
    k.e("v_and_b32 v4, 7, v2")
    k.e("s_movk_i32 s36, 1152")
    k.e("v_mul_lo_u32 v5, v3, s36")
    k.e("v_lshl_add_u32 v5, v4, 4, v5")
    for it in range(9):
        k.e(f"buffer_load_dwordx4 v[{16+4*it}:{19+4*it}], v5, s[24:27], 0 offen offset:{128*it}")
    k.e("v_mov_b32 v8, 0")
    k.e("s_waitcnt vmcnt(0)")
    for r in range(36):
        unpack_sum(k, 16 + r, 10, 11, 8, None)
    for m in (1, 2, 4):
        xlane_add(k, 8, 10, 11, 2, m)
    k.e("v_mul_u32_u24 v6, 911, v3")
    k.e("v_lshrrev_b32 v6, 16, v6")
    k.e("v_mul_u32_u24 v7, 72, v6")
    k.e("v_sub_u32 v7, v3, v7")
    slotmap_v(k, 7, 12, 13, 14)
    k.e("v_mul_u32_u24 v6, 80, v6")
    k.e("v_add_u32 v6, v6, v12")
    k.e("v_lshlrev_b32 v6, 2, v6")
    k.e("s_mul_i32 s23, s22, 2560")
    k.e("v_cmp_eq_u32 vcc, 0, v4")
    k.e("s_and_saveexec_b64 s[38:39], vcc")
    k.e("buffer_store_dword v8, v6, s[28:31], s23 offen")
    k.e(f"s_branch {Lend}")

    k.label("k0_roleC")
    k.e("s_cmp_ge_u32 s2, 72")
    k.e("s_cselect_b32 s22, 1, 0")
    k.e("s_cselect_b32 s4, s14, s12")
    k.e("s_cselect_b32 s5, s15, s13")
    k.e("s_mul_i32 s23, s22, 72")
    k.e("s_sub_u32 s21, s2, s23")
    k.srd_ptr(24, 4, D * F * 2)
    k.srd_ws(28, 18, "WGU")
    k.srd_ws(32, 18, "CS")
    k.e("v_lshrrev_b32 v3, 3, v2")
    k.e("v_and_b32 v4, 7, v2")
    k.e("v_mul_u32_u24 v5, 9216, v3")
    k.e("v_lshl_add_u32 v5, v4, 4, v5")
    k.e("s_mul_i32 s36, s20, 73728")
    k.e("s_lshl_b32 s37, s21, 7")
    k.e("s_add_u32 s36, s36, s37")
    k.e("s_lshl_b32 s37, s20, 10")
    for i in range(18):
        k.e(f"s_add_u32 m0, s37, {4096*i}")
        k.e("s_nop 0")
        k.e("buffer_load_dwordx4 v5, s[24:27], s36 offen lds")
        k.e(f"s_add_u32 s36, s36, {4*73728}")
    k.e("v_lshrrev_b32 v3, 4, v2")
    k.e("v_and_b32 v4, 15, v2")
    k.e("v_bfe_u32 v6, v2, 2, 2")
    k.e("v_lshlrev_b32 v7, 10, v3")
    k.e("v_lshl_add_u32 v7, v6, 7, v7")
    k.e("v_and_b32 v6, 1, v2")
    k.e("v_lshl_add_u32 v7, v6, 4, v7")
    k.e("v_bfe_u32 v6, v2, 1, 1")
    k.e("v_lshl_add_u32 v7, v6, 3, v7")
    k.e("s_lshl_b32 s36, s20, 5")
    k.e("v_add_u32 v7, s36, v7")
    k.e("v_add_u32 v8, 0x8000, v7")
    k.e("s_lshl_b32 s36, s21, 2")
    k.e("s_add_u32 s36, s36, s20")
    k.e("s_mul_i32 s37, s36, 7282")
    k.e("s_lshr_b32 s37, s37, 16")
    k.e("s_mul_i32 s38, s37, 9")
    k.e("s_sub_u32 s38, s36, s38")
    k.e(f"s_mul_i32 s39, s37, {WGU_CB}")
    k.e("s_lshl_b32 s38, s38, 10")
    k.e("s_add_u32 s39, s39, s38")
    k.e("s_lshl_b32 s38, s22, 8")
    k.e("s_add_u32 s39, s39, s38")
    k.e("v_lshrrev_b32 v9, 1, v3")
    k.e("v_mul_u32_u24 v9, 9216, v9")
    k.e("v_and_b32 v6, 1, v3")
    k.e("v_lshl_add_u32 v9, v6, 9, v9")
    k.e("v_lshl_add_u32 v9, v4, 4, v9")
    k.e("v_mov_b32 v10, 0")
    k.e("s_waitcnt vmcnt(0)")
    k.e("s_barrier")
    for it in range(18):
        base, im = (7, it * 4096) if it < 8 else (8, (it - 8) * 4096)
        rg = 16 + 4 * (it % 8)
        k.e(f"ds_read_b64_tr_b16 v[{rg}:{rg+1}], v{base} offset:{im}")
        k.e(f"ds_read_b64_tr_b16 v[{rg+2}:{rg+3}], v{base} offset:{im+512}")
        k.e("s_waitcnt lgkmcnt(0)")
        k.e(f"buffer_store_dwordx4 v[{rg}:{rg+3}], v9, s[28:31], s39 offen")
        k.e(f"s_add_u32 s39, s39, 18432")
        for r in range(4):
            unpack_sum(k, rg + r, 11, 12, 10, None)
        if it % 8 == 7:
            k.e("s_waitcnt vmcnt(0)")
    xlane_add(k, 10, 11, 12, 2, 16)
    xlane_add(k, 10, 11, 12, 2, 32)
    k.e("v_cvt_pk_bf16_f32 v11, v10, v10")
    k.e("v_lshlrev_b32 v12, 16, v11")
    k.e("v_sub_f32 v13, v10, v12")
    k.e("v_cvt_pk_bf16_f32 v14, v13, v13")
    k.e("v_lshlrev_b32 v15, 16, v14")
    k.e("v_sub_f32 v13, v13, v15")
    k.e("v_cvt_pk_bf16_f32 v17, v13, v13")
    k.e("v_and_b32 v17, 0xffff, v17")
    k.e("v_and_b32 v16, 0xffff, v11")
    k.e("v_or_b32 v16, v16, v15")
    k.e("v_mov_b32 v18, 0")
    k.e("v_mov_b32 v19, 0")
    k.e("v_cmp_gt_u32 vcc, 16, v2")
    k.e("s_nop 1")
    k.e("v_cndmask_b32 v16, 0, v16, vcc")
    k.e("v_cndmask_b32 v17, 0, v17, vcc")
    k.e("v_lshlrev_b32 v11, 4, v4")
    k.e("v_lshl_add_u32 v11, v3, 9, v11")
    k.e("v_cmp_gt_u32 vcc, 32, v2")
    k.e("s_and_saveexec_b64 s[40:41], vcc")
    k.e("buffer_store_dwordx4 v[16:19], v11, s[28:31], s39 offen")
    k.e(f"s_branch {Lend}")

    k.label("k0_roleD")
    k.e(f"s_sub_u32 s21, s2, {NC_}")
    k.e("s_mul_i32 s22, s21, 7282")
    k.e("s_lshr_b32 s22, s22, 16")
    k.e("s_mul_i32 s23, s22, 9")
    k.e("s_sub_u32 s21, s21, s23")
    k.srd_ptr(24, 16, D * F * 2)
    k.srd_ws(28, 18, "WD")
    k.e("v_lshrrev_b32 v3, 3, v2")
    k.e("v_and_b32 v4, 7, v2")
    k.e("v_mul_u32_u24 v5, 1152, v3")
    k.e("v_lshl_add_u32 v5, v4, 4, v5")
    k.e(f"s_mul_i32 s36, s22, {288*1152}")
    k.e("s_mul_i32 s37, s20, 9216")
    k.e("s_add_u32 s36, s36, s37")
    k.e("s_lshl_b32 s37, s21, 7")
    k.e("s_add_u32 s36, s36, s37")
    k.e("s_lshl_b32 s37, s20, 10")
    for i in range(9):
        k.e(f"s_add_u32 m0, s37, {4096*i}")
        k.e("s_nop 0")
        k.e("buffer_load_dwordx4 v5, s[24:27], s36 offen lds")
        k.e(f"s_add_u32 s36, s36, {4*9216}")
    k.e("v_lshrrev_b32 v3, 4, v2")
    k.e("v_and_b32 v4, 15, v2")
    k.e("v_bfe_u32 v6, v2, 2, 2")
    k.e("v_lshlrev_b32 v7, 10, v3")
    k.e("v_lshl_add_u32 v7, v6, 7, v7")
    k.e("v_and_b32 v6, 3, v2")
    k.e("v_lshl_add_u32 v7, v6, 3, v7")
    k.e("s_lshl_b32 s36, s20, 5")
    k.e("v_add_u32 v7, s36, v7")
    k.e("s_lshl_b32 s36, s21, 6")
    k.e("s_lshl_b32 s37, s20, 4")
    k.e("s_add_u32 s36, s36, s37")
    k.e("v_add_u32 v8, s36, v4")
    k.e("v_mul_u32_u24 v9, 911, v8")
    k.e("v_lshrrev_b32 v9, 16, v9")
    k.e("v_mul_u32_u24 v10, 72, v9")
    k.e("v_sub_u32 v10, v8, v10")
    slotmap_v(k, 10, 11, 12, 13)
    k.e("s_mov_b32 s36, 663552")
    k.e("v_mul_lo_u32 v9, v9, s36")
    k.e("v_lshl_add_u32 v9, v11, 4, v9")
    k.e("v_mul_u32_u24 v12, 1152, v3")
    k.e("v_add_u32 v9, v9, v12")
    k.e(f"s_mul_i32 s39, s22, {36*1152}")
    k.e("s_waitcnt vmcnt(0)")
    k.e("s_barrier")
    for it in range(9):
        rg = 16 + 4 * it
        k.e(f"ds_read_b64_tr_b16 v[{rg}:{rg+1}], v7 offset:{it*4096}")
        k.e(f"ds_read_b64_tr_b16 v[{rg+2}:{rg+3}], v7 offset:{it*4096+512}")
    for it in range(9):
        rg = 16 + 4 * it
        k.e(f"s_waitcnt lgkmcnt({min(15, 2*(8-it))})")
        k.e(f"buffer_store_dwordx4 v[{rg}:{rg+3}], v9, s[28:31], s39 offen")
        k.e(f"s_add_u32 s39, s39, 4608")
    k.label(Lend)
    return k, total, 256, 73728


def srd_ws_s(k, d, wsbase, sreg, size):
    k.e(f"s_add_u32 s{d}, s{wsbase}, s{sreg}")
    k.e(f"s_addc_u32 s{d+1}, s{wsbase+1}, 0")
    k.e(f"s_and_b32 s{d+1}, s{d+1}, 0xffff")
    k.e(f"s_mov_b32 s{d+2}, {size}")
    k.e(f"s_mov_b32 s{d+3}, 0x00020000")


def ktext(k, entries):
    tot = k.nvgpr if k.nagpr == 0 else (k.nvgpr + 3) // 4 * 4 + k.nagpr
    acc = (k.nvgpr + 3) // 4 * 4
    out, descs = [], []
    for name, ins in entries:
        out += [f".globl {name}", ".p2align 8", f".type {name},@function", f"{name}:"]
        out += [" " + x for x in ins]
        out += [f" s_branch {k.name}_body"]
        descs.append("\n".join([f".amdhsa_kernel {name}",
                f"  .amdhsa_next_free_vgpr {tot}",
                f"  .amdhsa_next_free_sgpr {100 if PROF else k.nsgpr}",
                f"  .amdhsa_accum_offset {acc}",
                "  .amdhsa_group_segment_fixed_size 0",
                "  .amdhsa_kernarg_size 96",
                "  .amdhsa_user_sgpr_count 2",
                "  .amdhsa_user_sgpr_kernarg_segment_ptr 1",
                "  .amdhsa_system_sgpr_workgroup_id_x 1",
                ".end_amdhsa_kernel"]))
    out += [".p2align 6", f"{k.name}_body:"]
    out += [x.replace("    ", " ", 1) for x in k.L]
    out += [" s_endpgm"]
    return "\n".join(out), descs


CPRE = int(os.environ.get("CPRE", "0"))


def code_prefetch(k, name, dummy, srd, vtmp, nwaves, swave, track=True):
    if not CPRE:
        return
    lab = k.newlabel("pc")
    k.e(f"s_getpc_b64 s[{srd}:{srd+1}]")
    k.label(lab)
    k.e(f"s_sub_u32 s{srd}, s{srd}, {lab}-{name}_body")
    k.e(f"s_subb_u32 s{srd+1}, s{srd+1}, 0")
    k.e(f"s_and_b32 s{srd+1}, s{srd+1}, 0xffff")
    k.e(f"s_mov_b32 s{srd+2}, {name}_end-{name}_body")
    k.e(f"s_mov_b32 s{srd+3}, 0x00020000")
    k.e(f"v_lshlrev_b32 v{vtmp}, 4, v0")
    k.e("s_bfe_u32 s3, s2, 0x20003")
    k.e(f"s_mul_i32 s3, s3, {nwaves*1024}")
    for j in range(CPRE):
        ins = f"buffer_load_dwordx4 v[{dummy}:{dummy+3}], v{vtmp}, s[{srd}:{srd+3}], s3 offen"
        if track:
            k.vm(ins, "cp")
        else:
            k.e(ins)
        if j + 1 < CPRE:
            k.e(f"s_add_u32 s3, s3, {4*nwaves*1024}")


def flag_srd(k):
    k.srd_ws(76, 18, "FLG")


def poll(k, name, soff, nlanes, vaddr, vtmp, skip_if_neg=None):
    lab = k.newlabel("pl")
    if skip_if_neg is not None:
        k.e(f"s_cmp_lt_i32 s{skip_if_neg}, 0")
        k.e(f"s_cbranch_scc1 {lab}x")
    k.e("s_mov_b32 s3, 0")
    if nlanes < 64:
        k.e(f"s_mov_b64 exec, {(1 << nlanes) - 1 if nlanes < 32 else 0xffffffff}")
        if nlanes == 32:
            k.e("s_mov_b32 exec_hi, 0")
    k.label(lab)
    k.e(f"buffer_load_dword v{vtmp}, v{vaddr}, s[76:79], s{soff} offen sc1")
    k.e("s_add_u32 s3, s3, 1")
    k.e("s_waitcnt vmcnt(0)")
    k.e(f"v_cmp_ne_u32 vcc, 1, v{vtmp}")
    k.e("s_cmp_ge_u32 s3, 0x40000")
    k.e(f"s_cbranch_scc1 {lab}y")
    k.e("s_cmp_eq_u64 vcc, 0")
    k.e(f"s_cbranch_scc1 {lab}y")
    k.e("s_sleep 3")
    k.e(f"s_branch {lab}")
    k.label(lab + "y")
    k.e("s_mov_b64 exec, -1")
    k.label(lab + "x")


def publish(k, soff, v1_, v2_):
    k.e("s_mov_b64 exec, -1")
    k.e(f"v_mov_b32 v{v1_}, 1")
    k.e(f"v_mov_b32 v{v2_}, 0")
    k.e("s_waitcnt vmcnt(0)")
    k.vq = []
    k.e("s_mov_b64 exec, 1")
    k.e(f"buffer_store_dword v{v1_}, v{v2_}, s[76:79], s{soff} offen sc1")
    k.e("s_mov_b64 exec, -1")

def stats_load(k, base, vaddr, srd, soff, tag=None):
    for i in range(8):
        k.e(f"s_add_u32 s57, s{soff}, {i*16384}")
        ins = f"buffer_load_dwordx2 v[{base+2*i}:{base+2*i+1}], v{vaddr}, s[{srd}:{srd+3}], s57 offen sc1"
        if tag is None:
            k.e(ins)
        else:
            k.vm(ins, tag)


def stats_finish(k, base, vm_, vsd, t0, t1, t2):
    for j in range(1, 8):
        k.e(f"v_add_f32 v{base}, v{base}, v{base+2*j}")
        k.e(f"v_add_f32 v{base+1}, v{base+1}, v{base+2*j+1}")
    k.e(f"v_mov_b32 v{base+2}, v{base}")
    k.e(f"v_mov_b32 v{base+3}, v{base+1}")
    k.e("s_nop 1")
    k.e(f"v_permlane32_swap_b32 v{base}, v{base+2}")
    k.e(f"v_permlane32_swap_b32 v{base+1}, v{base+3}")
    k.e("s_nop 1")
    k.e(f"v_add_f32 v{base}, v{base}, v{base+2}")
    k.e(f"v_add_f32 v{base+1}, v{base+1}, v{base+3}")
    stats_core(k, base, vm_, vsd, t0, t1, t2)


def stats_core(k, base, vm_, vsd, t0, t1, t2):
    k.e(f"v_mov_b32 v{t0}, 0x3ae38e39")
    k.e(f"v_mul_f32 v{t1}, v{base}, v{t0}")
    k.e(f"v_mul_f32 v{t2}, v{base+1}, v{t0}")
    k.e(f"v_fma_f32 v{t2}, -v{t1}, v{t1}, v{t2}")
    k.e(f"v_max_f32 v{t2}, 0, v{t2}")
    k.e(f"v_cvt_pk_bf16_f32 v{t0}, v{t1}, v{t2}")
    k.e(f"v_lshlrev_b32 v{vm_}, 16, v{t0}")
    k.e(f"v_and_b32 v{t2}, 0xffff0000, v{t0}")
    k.e(f"v_add_f32 v{t2}, 0x3727c5ac, v{t2}")
    k.e(f"v_cvt_pk_bf16_f32 v{t0}, v{t2}, v{t2}")
    k.e(f"v_lshlrev_b32 v{t2}, 16, v{t0}")
    k.e(f"v_sqrt_f32 v{t2}, v{t2}")
    k.e("s_nop 0")
    k.e(f"v_cvt_pk_bf16_f32 v{t0}, v{t2}, v{t2}")
    k.e(f"v_lshlrev_b32 v{vsd}, 16, v{t0}")


NPF = int(os.environ.get('NPF', '0'))
STP = os.environ.get("STP", "sc1")


def gen_kh_full(first):
    name = "kh1" if first else "kh"
    k = Kern(name, 256, 0, 92)
    Lend = name + "_end"
    LDS_W = 8 * 9216
    SCR = LDS_W + 1024
    total = 256
    RPK = 77824
    if first:
        k.e(f"s_cmp_ge_u32 s2, {total}")
        k.e(f"s_cbranch_scc1 {Lend}")
    else:
        k.e("s_mov_b64 exec, -1")
        k.e("s_barrier")
    k.e("s_load_dwordx4 s[8:11], s[0:1], 24")
    k.e("s_load_dwordx2 s[18:19], s[0:1], 88")
    if first:
        k.e("s_load_dwordx2 s[6:7], s[0:1], 0")
        k.e("s_load_dwordx4 s[12:15], s[0:1], 48")
        k.e("s_load_dwordx2 s[16:17], s[0:1], 64")
        k.e("s_load_dwordx4 s[60:63], s[0:1], 8")
    k.e("v_lshrrev_b32 v1, 6, v0")
    k.e("v_and_b32 v2, 63, v0")
    k.e("v_readfirstlane_b32 s20, v1")
    k.e("s_and_b32 s21, s2, 7")
    k.e("s_lshr_b32 s22, s2, 3")
    k.e("s_lshl_b32 s21, s21, 1")
    k.e("s_and_b32 s23, s22, 1")
    k.e("s_add_u32 s21, s21, s23")
    k.e("s_mov_b32 s55, s21")
    k.e("s_lshr_b32 s22, s22, 1")
    k.e("s_mov_b32 s54, s22")
    k.e("s_and_b32 s23, s22, 7")
    k.e("s_lshr_b32 s22, s22, 3")
    k.e("s_lshl_b32 s21, s21, 2")
    k.e("s_add_u32 s21, s21, s20")
    k.e("s_waitcnt lgkmcnt(0)")
    k.stamp(0)
    flag_srd(k)
    if first:
        k.e("s_lshl_b32 s3, s2, 11")
        k.e("v_lshlrev_b32 v1, 2, v0")
        k.e("v_mov_b32 v3, 0")
        k.e("buffer_store_dword v3, v1, s[76:79], s3 offen sc1")
    else:
        k.e("s_cmp_ge_u32 s20, 4")
        k.e(f"s_cbranch_scc1 {name}_idle")
    if first:
        k.e("s_cmp_ge_u32 s20, 4")
        k.e(f"s_cbranch_scc1 {name}_rep")
    k.e("s_cmp_eq_u32 s22, 1")
    k.e("s_cselect_b32 s4, s10, s8")
    k.e("s_cselect_b32 s5, s11, s9")
    k.srd_ptr(24, 4, D * D * 2)
    if first:
        k.srd_ptr(28, 6, XC_SZ)
        k.srd_ws(32, 18, "XC0")
    else:
        srd_ws_s(k, 28, 18, 70, XC_SZ)
        srd_ws_s(k, 32, 18, 71, ST_SZ)
    k.srd_ws(36, 18, "RS")
    srd_ws_s(k, 40, 18, 72, AB_SZ)
    k.e("v_lshrrev_b32 v3, 3, v2")
    k.e("v_and_b32 v4, 7, v2")
    k.e("v_lshrrev_b32 v5, 1, v3")
    k.e("v_xor_b32 v5, v5, v4")
    k.e("v_lshlrev_b32 v5, 4, v5")
    k.e("v_lshrrev_b32 v6, 2, v3")
    k.e("v_and_b32 v7, 3, v3")
    k.e("v_lshl_add_u32 v6, v6, 3, v7")
    k.e("v_mul_u32_u24 v6, 1152, v6")
    k.e("v_add_u32 v8, v6, v5")
    k.e("v_xor_b32 v7, 64, v5")
    k.e("v_add_u32 v9, v6, v7")
    k.e("v_mul_u32_u24 v6, 1152, v3")
    k.e("v_add_u32 v10, v6, v5")
    k.e("v_and_b32 v11, 15, v2")
    k.e("v_lshrrev_b32 v12, 4, v2")
    k.e("v_lshlrev_b32 v13, 9, v12")
    k.e("v_lshl_add_u32 v13, v11, 4, v13")
    k.e(f"s_mul_i32 s48, s23, {72*1152}")
    k.e("s_lshl_b32 s49, s20, 7")
    k.e("s_add_u32 s48, s48, s49")
    k.e("s_mul_i32 s49, s20, 9216")
    qc = lambda q: (32 * (q >> 2) + 16 * (q & 1) + 4 * ((q >> 1) & 1)) * 1152 if q < 8 else 64 * 1152

    def dma_kq(tag, track=True):
        for q in range(9):
            v = 8 + (q & 1) if q < 8 else 10
            k.e(f"s_add_u32 m0, s49, {1024*q}")
            k.e(f"s_add_u32 s50, s48, {qc(q)}")
            ins = f"buffer_load_dwordx4 v{v}, s[24:27], s50 offen lds"
            if track:
                k.vm(ins, tag)
            else:
                k.e(ins)
        k.e("s_add_u32 s48, s48, 512")
        k.e(f"s_add_u32 s49, s49, {4*9216}")

    AFR = 12
    AF = 16
    if first:
        k.e("v_lshrrev_b32 v14, 4, v2")
        k.e("v_bfe_u32 v15, v2, 2, 2")
        k.e("v_lshl_add_u32 v14, v14, 3, v15")
        k.e("v_mul_u32_u24 v14, 1152, v14")
        k.e("v_and_b32 v15, 3, v2")
        k.e("v_lshl_add_u32 v14, v15, 4, v14")
        k.e("v_add_u32 v15, 4608, v14")
        k.e("v_lshl_add_u32 v7, v11, 2, v12")
        k.e("s_lshl_b32 s50, s20, 11")
        k.e(f"s_add_u32 s50, s50, {RPK + 73728}")
        k.e("v_lshl_add_u32 v7, v7, 4, s50")
        k.e("v_lshl_add_u32 v5, v2, 4, s50")
    k.e("s_mul_i32 s44, s21, 36864")
    k.e("s_mov_b32 s45, s44")
    k.e("s_mov_b32 s46, s44")

    def aload(kb):
        for u in range(2):
            rg = AF + ((kb % AFR) * 2 + u) * 4
            if first:
                k.vm(f"buffer_load_dwordx4 v[{rg}:{rg+3}], v{14+u}, s[28:31], s44 offen offset:{64*kb}", ("a", kb))
            else:
                if kb % 2 == 0 and kb > 0 and u == 0:
                    k.e("s_add_u32 s45, s45, 4096")
                k.vm(f"buffer_load_dwordx4 v[{rg}:{rg+3}], v13, s[28:31], s45 offen offset:{(kb%2)*2048 + u*256} sc1", ("a", kb))

    dma_kq("w0")
    if not first:
        dma_kq("w1")
        k.e("v_lshlrev_b32 v1, 2, v2")
        k.e("s_lshl_b32 s47, s21, 7")
        k.e("s_add_u32 s47, s47, s64")
        poll(k, name, 47, 32, 1, 230)
        k.vq = []
    aload(0); aload(1)
    if first:
        dma_kq("w1")
    APRE = 11 if first else 6
    for kb_ in range(2, APRE):
        aload(kb_)
    ACC = 152
    for a in range(60 if first else 40):
        k.e(f"v_mov_b32 v{ACC+a}, 0")
    ONE = 212
    if first:
        for a in range(4):
            k.e(f"v_mov_b32 v{ONE+a}, 0x3f803f80")
        for a in list(range(220, 228)) + list(range(248, 256)):
            k.e(f"v_mov_b32 v{a}, 0")
    k.e("v_lshrrev_b32 v1, 1, v11")
    k.e("v_xor_b32 v1, v1, v12")
    k.e("v_lshlrev_b32 v1, 4, v1")
    k.e("v_lshl_add_u32 v216, v11, 7, v1")
    k.e("v_xor_b32 v217, 64, v216")
    k.e(f"v_add_u32 v218, {5*9216}, v216")
    k.e(f"v_add_u32 v219, {5*9216}, v217")
    if not first:
        k.e("v_and_b32 v224, 31, v2")
        k.e("v_lshrrev_b32 v225, 5, v2")
        k.e("v_lshlrev_b32 v225, 17, v225")
        k.e("v_lshl_add_u32 v225, v224, 3, v225")
        k.e("s_lshl_b32 s53, s21, 8")
        k.e("s_mul_i32 s47, s54, 320")
        k.e("v_lshlrev_b32 v226, 2, v11")
    k.stamp(1)
    k.wait_vm("w0")
    k.e("s_barrier")
    k.stamp(2)
    sets = [112, 132]

    def bread(kb):
        kq, half = (kb >> 1) % 8, kb & 1
        base = 216 + half + (2 if kq >= 5 else 0)
        kq_ = kq - 5 if kq >= 5 else kq
        sb = sets[kb & 1]
        for T in range(5):
            k.ds(f"ds_read_b128 v[{sb+4*T}:{sb+4*T+3}], v{base} offset:{kq_*9216 + T*2048}", ("b", kb))
    def aperm(kb):
        k.wait_vm(("a", kb))
        for u in range(2):
            rg = AF + ((kb % AFR) * 2 + u) * 4
            k.ds(f"ds_write_b128 v5, v[{rg}:{rg+3}] offset:{u*1024}", ("pw", kb))
        for u in range(2):
            rg = AF + ((kb % AFR) * 2 + u) * 4
            k.ds(f"ds_read_b128 v[{rg}:{rg+3}], v7 offset:{u*1024}", ("p", kb))
    if first:
        aperm(0)
    bread(0)
    for kb in range(18):
        if kb == 7:
            k.wait_vm("w1")
            k.e("s_barrier")
            k.e("s_and_b32 s50, s20, 1")
            k.e("s_cmp_eq_u32 s50, 1")
            k.e("s_cselect_b64 vcc, -1, 0")
            k.e("v_cndmask_b32 v1, v8, v9, vcc")
            k.e("s_lshl_b32 s50, s50, 4")
            k.e("s_lshr_b32 s51, s20, 1")
            k.e("s_lshl_b32 s51, s51, 2")
            k.e("s_add_u32 s50, s50, s51")
            k.e("s_mul_i32 s50, s50, 1152")
            k.e(f"s_mul_i32 s48, s23, {72*1152}")
            k.e("s_add_u32 s48, s48, 1024")
            k.e("s_add_u32 s50, s50, s48")
            k.e("s_lshl_b32 s51, s20, 10")
            k.e("s_mov_b32 m0, s51")
            k.e("s_nop 0")
            k.vm("buffer_load_dwordx4 v1, s[24:27], s50 offen lds", "w2")
            k.e("s_add_u32 m0, s51, 4096")
            k.e(f"s_add_u32 s50, s50, {32*1152}")
            k.vm("buffer_load_dwordx4 v1, s[24:27], s50 offen lds", "w2")
            k.e("s_mov_b32 m0, 8192")
            k.e(f"s_add_u32 s50, s48, {64*1152}")
            k.e("s_lshl_b32 s51, s20, 4")
            k.e("s_mov_b64 exec, 0xffff")
            k.e("s_lshl_b64 exec, exec, s51")
            k.vm("buffer_load_dwordx4 v10, s[24:27], s50 offen lds", "w2")
            k.e("s_mov_b64 exec, -1")
        if kb == 15:
            k.wait_vm("w2")
            k.e("s_barrier")
        if kb + APRE < 18:
            aload(kb + APRE)
        k.wait_ds(("b", kb))
        if kb + 1 < 18:
            if first:
                aperm(kb + 1)
            bread(kb + 1)
        if not first and kb == 14:
            stats_load(k, 16, 225, 32, 53, "st")
            for T in range(5):
                k.vm(f"buffer_load_dword v{192+4*T}, v226, s[36:39], s47 offen offset:{64*T}", "st")
        k.wait_vm(("a", kb))
        k.wait_ds(("b", kb))
        sb = sets[kb & 1]
        for u in range(2):
            af = AF + ((kb % AFR) * 2 + u) * 4
            for T in range(5):
                acc = ACC + (u * 5 + T) * 4
                k.e(f"v_mfma_f32_16x16x32_bf16 v[{acc}:{acc+3}], v[{af}:{af+3}], v[{sb+4*T}:{sb+4*T+3}], v[{acc}:{acc+3}]")
            if first and not os.environ.get("EXP_NOGRAM"):
                k.e(f"v_mfma_f32_16x16x32_bf16 v[{248+4*u}:{251+4*u}], v[{af}:{af+3}], v[{ONE}:{ONE+3}], v[{248+4*u}:{251+4*u}]")
                k.e(f"v_mfma_f32_16x16x32_bf16 v[{220+4*u}:{223+4*u}], v[{af}:{af+3}], v[{af}:{af+3}], v[{220+4*u}:{223+4*u}]")
    k.stamp(3)
    k.e("s_lshl_b32 s50, s20, 8")
    k.e(f"s_add_u32 s50, s50, {SCR}")
    if first:
        k.e("s_nop 7")
        k.e("v_and_b32 v228, 3, v11")
        for u in range(2):
            for base, dst in ((248 + 4 * u, 232 + 2 * u), (220 + 4 * u, 233 + 2 * u)):
                k.e(f"v_mov_b32 v{dst}, v{base}")
                for r in range(1, 4):
                    k.e(f"v_cmp_eq_u32 vcc, {r}, v228")
                    k.e("s_nop 1")
                    k.e(f"v_cndmask_b32 v{dst}, v{dst}, v{base+r}, vcc")
        k.e("v_lshrrev_b32 v229, 2, v11")
        k.e("v_lshl_add_u32 v230, v11, 3, s50")
        k.e("v_cmp_eq_u32 vcc, v229, v12")
        k.e("s_and_saveexec_b64 s[52:53], vcc")
        k.e("ds_write_b64 v230, v[232:233]")
        k.e("ds_write_b64 v230, v[234:235] offset:128")
        k.e("s_mov_b64 exec, -1")
        k.e("v_and_b32 v224, 31, v2")
        k.e("v_lshl_add_u32 v230, v224, 3, s50")
        k.e("s_waitcnt lgkmcnt(0)")
        k.e("ds_read_b64 v[228:229], v230")
        k.e("s_waitcnt lgkmcnt(0)")
        stats_core(k, 228, 232, 233, 234, 235, 236)
    else:
        k.wait_vm("st")
        stats_finish(k, 16, 232, 233, 234, 235, 236)
    k.e("v_rcp_f32 v233, v233")
    k.e("s_nop 0")
    k.e("v_mul_f32 v232, v232, v233")
    k.e("v_lshl_add_u32 v226, v224, 3, s50")
    k.e("ds_write_b64 v226, v[232:233]")
    k.e("v_lshl_add_u32 v226, v12, 5, s50")
    k.e("s_waitcnt lgkmcnt(0)")
    k.lq = []
    if first:
        k.e("s_barrier")
        k.e("v_lshlrev_b32 v227, 2, v11")
        k.e(f"v_add_u32 v227, {SCR + 1024}, v227")
        for T in range(5):
            k.e(f"ds_read_b32 v{ACC+40+4*T}, v227 offset:{64*T}")
    k.e("ds_read_b128 v[232:235], v226")
    k.e("ds_read_b128 v[236:239], v226 offset:16")
    k.e("ds_read_b128 v[240:243], v226 offset:128")
    k.e("ds_read_b128 v[244:247], v226 offset:144")
    k.e("v_mul_u32_u24 v15, 1152, v12")
    k.e("v_lshl_add_u32 v15, v11, 4, v15")
    k.e(f"s_mul_i32 s46, s54, {ABJ}")
    k.e("s_mul_i32 s47, s21, 4608")
    k.e("s_add_u32 s46, s46, s47")
    k.e("s_waitcnt lgkmcnt(0)")
    if first:
        k.e("s_add_u32 s51, s55, s20")
        k.e("s_mul_i32 s47, s54, 320")
        k.e("s_cmp_eq_u32 s51, 0")
        k.e("s_cselect_b32 s47, s47, 0x7f000000")
        k.e("v_lshlrev_b32 v227, 2, v11")
        for T in range(5):
            k.e(f"buffer_store_dword v{ACC+40+4*T}, v227, s[36:39], s47 offen offset:{64*T}")
    for T in range(5):
        a0, a1, rr = ACC + T * 4, ACC + 20 + T * 4, ACC + 40 + T * 4
        for u, a in ((0, a0), (1, a1)):
            for r in range(4):
                sr = 232 + 8 * u + 2 * r
                k.e(f"v_mul_f32 v{a+r}, v{a+r}, v{sr+1}")
                k.e(f"v_fma_f32 v{a+r}, -v{sr}, v{rr}, v{a+r}")
        o = 48 + 4 * T
        k.e(f"v_cvt_pk_bf16_f32 v{o}, v{a0}, v{a0+1}")
        k.e(f"v_cvt_pk_bf16_f32 v{o+1}, v{a0+2}, v{a0+3}")
        k.e(f"v_cvt_pk_bf16_f32 v{o+2}, v{a1}, v{a1+1}")
        k.e(f"v_cvt_pk_bf16_f32 v{o+3}, v{a1+2}, v{a1+3}")
        if T == 4:
            k.e("v_cmp_gt_u32 vcc, 8, v11")
            k.e("s_and_saveexec_b64 s[50:51], vcc")
        k.e(f"buffer_store_dwordx4 v[{o}:{o+3}], v15, s[40:43], s46 offen offset:{256*T} {STP}")
    k.stamp(4)
    if not first:
        k.e("s_lshl_b32 s47, s54, 8")
        k.e("s_lshl_b32 s3, s21, 2")
        k.e("s_add_u32 s47, s47, s3")
        k.e("s_add_u32 s47, s47, s65")
        publish(k, 47, 1, 3)
    if first:
        k.e(f"s_branch {name}_rdone")
        k.label(f"{name}_rep")
        k.e("s_sub_u32 s20, s20, 4")
        k.e("s_cmp_lt_u32 s2, 72")
        k.e("s_cselect_b32 s4, s12, s14")
        k.e("s_cselect_b32 s5, s13, s15")
        k.e("s_cselect_b32 s64, 0, 1")
        k.e("s_cmp_lt_u32 s2, 144")
        k.e("s_cselect_b32 s4, s4, s16")
        k.e("s_cselect_b32 s5, s5, s17")
        k.e("s_movk_i32 s65, 1152")
        k.e("s_cselect_b32 s65, 9216, s65")
        k.e("s_cselect_b32 s66, 1, 0")
        k.srd_ptr(24, 4, D * F * 2)
        k.e("s_mul_i32 s67, s64, 72")
        k.e("s_sub_u32 s67, s2, s67")
        k.e("s_sub_u32 s68, s2, 144")
        k.e("s_mul_i32 s69, s68, 7282")
        k.e("s_lshr_b32 s69, s69, 16")
        k.e("s_mul_i32 s75, s69, 9")
        k.e("s_sub_u32 s68, s68, s75")
        k.e(f"s_mul_i32 s75, s69, {384*1152}")
        k.e("s_lshl_b32 s58, s68, 7")
        k.e("s_add_u32 s75, s75, s58")
        k.e("s_lshl_b32 s58, s67, 7")
        k.e("s_cmp_eq_u32 s66, 1")
        k.e("s_cselect_b32 s75, s58, s75")
        k.e("s_cselect_b32 s58, 18, 12")
        k.e("s_lshl_b32 s59, s65, 3")
        k.e("s_mul_i32 s56, s20, s59")
        k.e("s_mul_i32 s56, s56, s58")
        k.e("s_add_u32 s75, s75, s56")
        k.e("s_cmp_ge_u32 s2, 252")
        k.e("s_cselect_b32 s58, 0, s58")
        if os.environ.get("EXP_NOC"):
            k.e(f"s_cmp_lt_u32 s2, {os.environ['EXP_NOC']}")
            k.e("s_cselect_b32 s58, 0, s58")
        k.e("v_lshrrev_b32 v3, 3, v2")
        k.e("v_and_b32 v4, 7, v2")
        k.e("v_mul_lo_u32 v6, v3, s65")
        k.e("v_lshl_add_u32 v6, v4, 4, v6")
        k.e("s_mul_i32 s56, s20, 18432")
        k.e(f"s_add_u32 s56, s56, {RPK}")
        def rdma(i):
            k.e(f"s_cmp_gt_u32 s58, {i}")
            k.e("s_cselect_b32 s51, s75, 0x7f000000")
            k.e(f"s_add_u32 m0, s56, {1024*i}")
            k.e("s_add_u32 s75, s75, s59")
            k.e("buffer_load_dwordx4 v6, s[24:27], s51 offen lds")
        k.srd_ptr(28, 6, XC_SZ)
        k.srd_ws(32, 18, "XC0")
        k.e("v_and_b32 v8, 31, v2")
        k.e("v_and_b32 v9, 3, v8")
        k.e("v_bfe_u32 v10, v8, 2, 2")
        k.e("v_lshl_or_b32 v9, v10, 3, v9")
        k.e("v_bfe_u32 v10, v8, 4, 1")
        k.e("v_lshl_or_b32 v9, v10, 2, v9")
        k.e("v_mul_u32_u24 v9, 1152, v9")
        k.e("v_lshrrev_b32 v10, 5, v2")
        k.e("v_lshl_add_u32 v9, v10, 4, v9")
        k.e("v_lshlrev_b32 v8, 4, v8")
        k.e("v_lshl_add_u32 v8, v10, 9, v8")
        k.e("s_lshr_b32 s36, s2, 2")
        k.e("s_mul_i32 s36, s36, 36864")
        k.e("s_and_b32 s37, s2, 3")
        k.e("s_mul_i32 s37, s37, 18")
        k.e("s_lshl_b32 s38, s20, 1")
        k.e("s_add_u32 s37, s37, s38")
        k.e("s_lshl_b32 s38, s37, 4")
        k.e("s_add_u32 s38, s38, s36")
        k.e("s_lshl_b32 s39, s37, 9")
        k.e("s_add_u32 s39, s39, s36")
        k.e("s_add_u32 s40, s38, 256")
        k.e("s_add_u32 s41, s39, 8192")
        k.e("s_cmp_eq_u32 s20, 0")
        k.e("s_cselect_b32 s40, s40, 0x7f000000")
        k.e("s_cselect_b32 s41, s41, 0x7f000000")
        k.e("buffer_load_dwordx4 v[16:19], v9, s[28:31], s38 offen")
        k.e("buffer_load_dwordx4 v[20:23], v9, s[28:31], s38 offen offset:128")
        k.e("buffer_load_dwordx4 v[24:27], v9, s[28:31], s40 offen")
        for i in range(6):
            rdma(i)
        k.e("v_lshrrev_b32 v3, 4, v2")
        k.e("v_and_b32 v4, 15, v2")
        k.e("v_bfe_u32 v10, v2, 2, 2")
        k.e("v_lshlrev_b32 v7, 7, v10")
        k.e("v_lshl_add_u32 v7, v3, 5, v7")
        k.e("v_add_u32 v7, s56, v7")
        k.e("v_and_b32 v10, 1, v2")
        k.e("v_lshlrev_b32 v10, 4, v10")
        k.e("v_bfe_u32 v11, v2, 1, 1")
        k.e("v_lshl_add_u32 v10, v11, 3, v10")
        k.e("v_and_b32 v11, 3, v2")
        k.e("v_lshlrev_b32 v11, 3, v11")
        k.e("s_cmp_eq_u32 s66, 1")
        k.e("s_cselect_b64 s[42:43], -1, 0")
        k.e("s_nop 1")
        k.e("v_cndmask_b32 v10, v11, v10, s[42:43]")
        k.e("v_add_u32 v7, v7, v10")
        k.e("s_lshl_b32 s36, s67, 2")
        k.e("v_add_u32 v12, s36, v3")
        k.e("v_mul_u32_u24 v13, 7282, v12")
        k.e("v_lshrrev_b32 v13, 16, v13")
        k.e("v_mul_u32_u24 v14, 9, v13")
        k.e("v_sub_u32 v14, v12, v14")
        k.e(f"s_mov_b32 s36, {WGU_CB}")
        k.e("v_mul_lo_u32 v13, v13, s36")
        k.e("v_lshl_add_u32 v13, v14, 10, v13")
        k.e("v_lshl_add_u32 v13, v4, 4, v13")
        k.e("s_lshl_b32 s36, s68, 6")
        k.e("v_add_u32 v12, s36, v2")
        k.e("v_mul_u32_u24 v14, 911, v12")
        k.e("v_lshrrev_b32 v14, 16, v14")
        k.e("v_mul_u32_u24 v15, 72, v14")
        k.e("v_sub_u32 v15, v12, v15")
        slotmap_v(k, 15, 12, 10, 11)
        k.e(f"s_mov_b32 s36, {WDJ}")
        k.e("v_mul_lo_u32 v14, v14, s36")
        k.e("v_lshl_add_u32 v14, v12, 4, v14")
        k.e("v_cndmask_b32 v5, v14, v13, s[42:43]")
        k.e(f"s_mov_b32 s36, {WS['WD'][0]}")
        k.e(f"s_mov_b32 s37, {WD_SZ}")
        k.e("s_cmp_eq_u32 s66, 1")
        k.e(f"s_cselect_b32 s36, {WS['WGU'][0]}, s36")
        k.e(f"s_cselect_b32 s46, {WGU_SZ}, s37")
        k.e("s_add_u32 s44, s18, s36")
        k.e("s_addc_u32 s45, s19, 0")
        k.e("s_and_b32 s45, s45, 0xffff")
        k.e("s_mov_b32 s47, 0x00020000")
        k.e("s_lshl_b32 s48, s64, 8")
        k.e(f"s_mul_i32 s49, s20, {9*9216}")
        k.e("s_add_u32 s49, s49, s48")
        k.e(f"s_mul_i32 s36, s69, {48*1152}")
        k.e(f"s_mul_i32 s37, s20, {12*1152}")
        k.e("s_add_u32 s36, s36, s37")
        k.e("s_cmp_eq_u32 s66, 1")
        k.e("s_cselect_b32 s49, s49, s36")
        k.e("s_movk_i32 s52, 1152")
        k.e("s_cselect_b32 s52, 512, s52")
        k.e("s_movk_i32 s53, 1152")
        k.e(f"s_cselect_b32 s53, {9216-512}, s53")
        k.e("v_mov_b32 v14, 0")
        k.e("v_mov_b32 v15, 0")

        def tchunk(c):
            for it in range(6 * c, 6 * c + 6):
                rg = 112 + 4 * it
                k.e(f"ds_read_b64_tr_b16 v[{rg}:{rg+1}], v7 offset:{it*1024}")
                k.e(f"ds_read_b64_tr_b16 v[{rg+2}:{rg+3}], v7 offset:{it*1024+512}")
            for it in range(6 * c, 6 * c + 6):
                rg = 112 + 4 * it
                k.e(f"s_cmp_gt_u32 s58, {it}")
                k.e("s_cselect_b32 s51, s49, 0x7f000000")
                k.e(f"s_waitcnt lgkmcnt({2*(6*c+5-it)})")
                k.e(f"buffer_store_dwordx4 v[{rg}:{rg+3}], v5, s[44:47], s51 offen {STP}")
                k.e(f"s_add_u32 s49, s49, s{52 + (it & 1)}")
                for r in range(4):
                    k.e(f"v_dot2_f32_bf16 v{14 + (r & 1)}, v{rg+r}, v32, v{14 + (r & 1)}")
        k.e("v_and_b32 v11, 15, v2")
        k.e("v_lshrrev_b32 v12, 4, v2")
        k.e("v_lshrrev_b32 v1, 1, v11")
        k.e("v_xor_b32 v1, v1, v12")
        k.e("v_lshlrev_b32 v1, 4, v1")
        k.e("v_lshl_add_u32 v28, v11, 7, v1")
        k.e("v_xor_b32 v29, 64, v28")
        k.e("s_lshl_b32 s36, s20, 11")
        k.e("v_add_u32 v30, s36, v28")
        k.e("v_add_u32 v31, s36, v29")
        for a_ in range(4):
            k.e(f"v_mov_b32 v{32+a_}, 0x3f803f80")
        for a_ in range(8):
            k.e(f"v_mov_b32 v{36+a_}, 0")

        def rpart(kbs):
            for n_, kb in enumerate(kbs):
                kq, half = (kb >> 1) % 8, kb & 1
                rg = 44 + n_ * 8
                off = kq * 9216
                if off + 8192 > 65000:
                    k.e(f"v_add_u32 v1, {off}, v{30+half}")
                    k.e(f"ds_read_b128 v[{rg}:{rg+3}], v1")
                    k.e(f"v_add_u32 v1, {off + 8192}, v{28+half}")
                    k.e(f"ds_read_b128 v[{rg+4}:{rg+7}], v1")
                else:
                    k.e(f"ds_read_b128 v[{rg}:{rg+3}], v{30+half} offset:{off}")
                    k.e(f"ds_read_b128 v[{rg+4}:{rg+7}], v{28+half} offset:{off + 8192}")
            k.e("s_waitcnt lgkmcnt(0)")
            for n_, kb in enumerate(kbs):
                rg = 44 + n_ * 8
                k.e(f"v_mfma_f32_16x16x32_bf16 v[36:39], v[32:35], v[{rg}:{rg+3}], v[36:39]")
                k.e(f"v_mfma_f32_16x16x32_bf16 v[40:43], v[32:35], v[{rg+4}:{rg+7}], v[40:43]")
        k.e("s_barrier")
        rpart(range(0, 8))
        for i in range(6, 12):
            rdma(i)
        k.e("s_waitcnt vmcnt(12)")
        k.e("buffer_store_dwordx4 v[16:19], v8, s[32:35], s39 offen")
        k.e("s_add_u32 s39, s39, 4096")
        k.e("buffer_store_dwordx4 v[20:23], v8, s[32:35], s39 offen")
        k.e("buffer_store_dwordx4 v[24:27], v8, s[32:35], s41 offen")
        k.e("s_barrier")
        rpart(range(8, 16))
        for i in range(12, 18):
            rdma(i)
        k.e("s_waitcnt vmcnt(15)")
        tchunk(0)
        k.e("s_barrier")
        rpart(range(16, 18))
        k.e("s_lshl_b32 s36, s20, 6")
        k.e(f"s_add_u32 s36, s36, {SCR + 1024}")
        k.e("v_lshl_add_u32 v1, v11, 2, s36")
        k.e("v_lshlrev_b32 v28, 2, v11")
        k.e(f"v_add_u32 v28, {SCR + 1024 + 256}, v28")
        k.e("s_nop 7")
        k.e("ds_write_b32 v1, v36")
        k.e("ds_write_b32 v28, v40")
        k.e("s_waitcnt lgkmcnt(0)")
        k.e("s_barrier")
        k.e("s_waitcnt vmcnt(15)")
        tchunk(1)
        k.e("s_waitcnt vmcnt(12)")
        tchunk(2)
        k.e("s_nop 3")
        k.e("v_add_f32 v10, v14, v15")
        k.e("v_cvt_pk_bf16_f32 v11, v10, v10")
        k.e("v_lshlrev_b32 v12, 16, v11")
        k.e("v_sub_f32 v13, v10, v12")
        k.e("v_cvt_pk_bf16_f32 v14, v13, v13")
        k.e("v_lshlrev_b32 v15, 16, v14")
        k.e("v_sub_f32 v13, v13, v15")
        k.e("v_cvt_pk_bf16_f32 v201, v13, v13")
        k.e("v_and_b32 v201, 0xffff, v201")
        k.e("v_and_b32 v200, 0xffff, v11")
        k.e("v_or_b32 v200, v200, v15")
        k.e("s_lshr_b32 s39, s20, 1")
        k.e("s_lshl_b32 s39, s39, 9")
        k.e("s_and_b32 s37, s20, 1")
        k.e("s_lshl_b32 s37, s37, 3")
        k.e("s_add_u32 s39, s39, s37")
        k.e("s_add_u32 s39, s39, s48")
        k.e(f"s_add_u32 s39, s39, {36*9216}")
        k.e("s_cmp_eq_u32 s66, 1")
        k.e("s_cselect_b32 s39, s39, 0x7f000000")
        k.e("buffer_store_dwordx2 v[200:201], v5, s[44:47], s39 offen")
        k.label(f"{name}_rdone")
        if PROF:
            k.e("v_lshrrev_b32 v1, 6, v0")
            k.e("s_nop 0")
            k.e("v_readfirstlane_b32 s20, v1")
    if PROF:
        k.e("s_mov_b64 exec, -1")
        k.wait_vm_all()
    k.stamp(5)
    k.stamp_store(0, 18, 20)
    if not first:
        k.e(f"s_branch {Lend}")
        k.label(f"{name}_idle")
        for _ in range(3):
            k.e("s_barrier")
    k.label(Lend)
    return k, total, 512 if first else 256, (RPK + 73728 + 8192) if first else RPK


REG = 20480
OWNP = int(os.environ.get("OWNP", "0"))
EXSEP = int(os.environ.get("EXSEP", "1"))
SLP = int(os.environ.get("SLP", "4"))
PUB = os.environ.get("PUB", "sc1")
ROT = int(os.environ.get("ROT", "0"))
CPF = int(os.environ.get("CPF", "0"))
MAPG = int(os.environ.get("MAPG", "0"))
MAPD = int(os.environ.get("MAPD", "0"))
STPG = os.environ.get("STPG", "sc1")
EXP_NOMFMA = int(os.environ.get("EXP_NOMFMA", "0"))
EXP_PAD = int(os.environ.get("EXP_PAD", "0"))
BAR = int(os.environ.get("BAR", "0"))
EXP_NOWD = int(os.environ.get("EXP_NOWD", "0"))
EXP_NOHC = int(os.environ.get("EXP_NOHC", "0"))
ILV = int(os.environ.get("ILV", "1"))
KD_W, KD_S = (1, 8) if ILV else (18, 1)
KS_W, KS_S = (1, 4) if ILV else (8, 1)


def t1_decode(k, mp=0):
    k.e("v_lshrrev_b32 v1, 6, v0")
    k.e("v_and_b32 v2, 63, v0")
    k.e("v_readfirstlane_b32 s20, v1")
    k.e("s_and_b32 s22, s2, 7")
    k.e("s_lshr_b32 s23, s2, 3")
    if mp == 0:
        k.e("s_lshr_b32 s21, s22, 1")
        k.e("s_lshl_b32 s21, s21, 3")
        k.e("s_and_b32 s44, s23, 7")
        k.e("s_add_u32 s21, s21, s44")
        k.e("s_and_b32 s22, s22, 1")
        k.e("s_lshl_b32 s22, s22, 2")
        k.e("s_lshr_b32 s23, s23, 3")
        k.e("s_add_u32 s23, s23, s22")
    else:
        k.e("s_lshl_b32 s21, s22, 2")
        k.e("s_and_b32 s44, s23, 3")
        k.e("s_add_u32 s21, s21, s44")
        k.e("s_lshr_b32 s23, s23, 2")


def t1_pre(k, xin_srd):
    sW, sTB, sJ = 20, 21, 23
    k.e(f"s_and_b32 s61, s{sW}, 3")
    k.e(f"s_lshr_b32 s59, s{sW}, 2")
    k.e("s_lshr_b32 s62, s61, 1")
    k.e(f"s_lshl_b32 s63, s{sTB}, 1")
    k.e("s_add_u32 s58, s62, s63")
    k.e("s_and_b32 s62, s61, 1")
    k.e("s_mul_i32 s63, s58, 36864")
    k.e(f"s_mul_i32 s64, s{sJ}, 4608")
    k.e("s_add_u32 s63, s63, s64")
    k.e("s_lshl_b32 s64, s62, 8")
    k.e("s_add_u32 s63, s63, s64")
    k.e("s_add_u32 s64, s63, 4096")
    k.e("s_lshl_b32 s65, s59, 11")
    k.e("s_add_u32 s63, s63, s65")
    k.e("v_and_b32 v20, 15, v0")
    k.e("v_bfe_u32 v21, v0, 4, 2")
    k.e("v_lshlrev_b32 v22, 9, v21")
    k.e("v_lshl_add_u32 v22, v20, 4, v22")
    k.e("v_lshlrev_b32 v23, 3, v21")
    k.e("v_lshl_add_u32 v23, v20, 4, v23")
    k.vm(f"buffer_load_dwordx4 v[250:253], v22, s[{xin_srd}:{xin_srd+3}], s63 offen", "res")
    k.vm(f"buffer_load_dwordx2 v[254:255], v23, s[{xin_srd}:{xin_srd+3}], s64 offen", "res")


def t1_epilogue(k, name, mode, ACC, xin_srd, xout_srd, st_srd, sfinal):
    sW, sTB, sJ = 20, 21, 23
    k.e("v_and_b32 v2, 63, v0")
    k.e(f"s_mul_i32 s60, s{sW}, {REG}")
    k.e("v_lshl_add_u32 v3, v2, 4, s60")
    k.e("v_and_b32 v11, 15, v2")
    k.e("v_lshrrev_b32 v12, 4, v2")
    k.e("v_lshlrev_b32 v4, 9, v12")
    k.e("v_lshl_add_u32 v4, v11, 4, v4")
    k.e("v_lshlrev_b32 v5, 3, v12")
    k.e("v_lshl_add_u32 v5, v11, 4, v5")
    for j in range(16):
        k.e(f"v_permlane32_swap_b32 v{ACC+80+j}, v{24+j}")
    k.e("s_nop 1")
    for j in range(16):
        k.e(f"v_add_f32 v{ACC+64+j}, v{ACC+64+j}, v{24+j}")
    for b in range(4):
        for a in range(5):
            acc = ACC + (a * 4 + b) * 4
            k.e(f"ds_write_b128 v3, v[{acc}:{acc+3}] offset:{(b*5+a)*1024}")
    k.e("s_mul_i32 s60, s61, 5120")
    k.e("v_lshl_add_u32 v6, v2, 4, s60")
    k.e("v_add_u32 v7, s65, v6")
    for j in range(1, 3):
        k.e(f"v_add_u32 v{7+j}, {3*REG*j}, v7")
        k.e(f"v_add_u32 v{12+j}, {3*REG*j}, v6")
    k.e("s_waitcnt lgkmcnt(0)")
    k.e("s_barrier")
    T0 = 24
    for v in range(8):
        base = 7 + v // 3
        for t in range(2):
            rg = T0 + (v * 2 + t) * 4
            k.e(f"ds_read_b128 v[{rg}:{rg+3}], v{base} offset:{(v%3)*REG + t*1024}")
    k.e("s_cmp_lg_u32 s59, 0")
    k.e(f"s_cbranch_scc1 {name}_no4a")
    for v in range(8):
        base = 6 if v < 3 else 12 + v // 3
        rg = 88 + v * 4
        k.e(f"ds_read_b128 v[{rg}:{rg+3}], v{base} offset:{(v%3)*REG + 4096}")
    k.label(f"{name}_no4a")
    k.e("s_waitcnt lgkmcnt(0)")

    def combine(regs_of_wave, n):
        for j in range(n):
            r = [regs_of_wave(v) + j for v in range(8)]
            k.e(f"v_add_f32 v{r[0]}, v{r[0]}, v{r[1]}")
            k.e(f"v_add_f32 v{r[2]}, v{r[2]}, v{r[3]}")
            k.e(f"v_add_f32 v{r[4]}, v{r[4]}, v{r[5]}")
            k.e(f"v_add_f32 v{r[6]}, v{r[6]}, v{r[7]}")
            k.e(f"v_add_f32 v{r[0]}, v{r[0]}, v{r[2]}")
            k.e(f"v_add_f32 v{r[4]}, v{r[4]}, v{r[6]}")
            if mode == "D":
                k.e(f"v_add_f32 v{r[0]}, v{r[0]}, v{r[4]}")
        if mode == "S":
            for j in range(0, n, 2):
                p0 = regs_of_wave(0) + j
                q0 = regs_of_wave(4) + j
                k.e(f"v_cvt_pk_bf16_f32 v22, v{p0}, v{p0+1}")
                k.e(f"v_cvt_pk_bf16_f32 v23, v{q0}, v{q0+1}")
                k.e(f"v_lshlrev_b32 v{p0}, 16, v22")
                k.e(f"v_and_b32 v{p0+1}, 0xffff0000, v22")
                k.e(f"v_lshlrev_b32 v{q0}, 16, v23")
                k.e(f"v_and_b32 v{q0+1}, 0xffff0000, v23")
                k.e(f"v_sub_f32 v{p0}, v{p0}, v{q0}")
                k.e(f"v_sub_f32 v{p0+1}, v{p0+1}, v{q0+1}")

    def resid(ybase, xbase, n):
        for j in range(0, n, 2):
            y0 = ybase + j
            xr = xbase + j // 2
            k.e(f"v_cvt_pk_bf16_f32 v22, v{y0}, v{y0+1}")
            k.e(f"v_lshlrev_b32 v{y0}, 16, v22")
            k.e(f"v_and_b32 v{y0+1}, 0xffff0000, v22")
            k.e(f"v_lshlrev_b32 v22, 16, v{xr}")
            k.e(f"v_and_b32 v23, 0xffff0000, v{xr}")
            k.e(f"v_add_f32 v{y0}, v{y0}, v22")
            k.e(f"v_add_f32 v{y0+1}, v{y0+1}, v23")
            k.e(f"v_cvt_pk_bf16_f32 v{xr}, v{y0}, v{y0+1}")
            unpack_sum(k, xr, 22, 23, 120, 121)

    combine(lambda v: T0 + v * 8, 8)
    k.e("v_mov_b32 v120, 0")
    k.e("v_mov_b32 v121, 0")
    resid(T0, 250, 8)
    k.e("s_cmp_lg_u32 s59, 0")
    k.e(f"s_cbranch_scc1 {name}_no4b")
    k.e("v_cmp_gt_u32 vcc, 2, v12")
    k.e("s_and_saveexec_b64 s[66:67], vcc")
    combine(lambda v: 88 + v * 4, 4)
    resid(88, 254, 4)
    k.e("s_mov_b64 exec, s[66:67]")
    k.label(f"{name}_no4b")
    if sfinal is not None:
        k.e(f"s_cmp_lg_u32 s{sfinal}, 0")
        k.e(f"s_cbranch_scc1 {name}_fin")
    for sw in ("16", "32"):
        k.e("v_mov_b32 v22, v120")
        k.e("v_mov_b32 v23, v121")
        k.e("s_nop 1")
        k.e(f"v_permlane{sw}_swap_b32 v120, v22")
        k.e(f"v_permlane{sw}_swap_b32 v121, v23")
        k.e("s_nop 1")
        k.e("v_add_f32 v120, v120, v22")
        k.e("v_add_f32 v121, v121, v23")
    k.e(f"buffer_store_dwordx4 v[250:253], v4, s[{xout_srd}:{xout_srd+3}], s63 offen")
    k.e("s_lshl_b32 s65, s58, 8")
    k.e("s_lshl_b32 s62, s62, 7")
    k.e("s_add_u32 s65, s65, s62")
    k.e(f"s_lshl_b32 s62, s{sJ}, 15")
    k.e("s_add_u32 s65, s65, s62")
    k.e("s_lshl_b32 s62, s59, 14")
    k.e("s_add_u32 s65, s65, s62")
    k.e("v_lshlrev_b32 v22, 3, v11")
    k.e("v_cmp_gt_u32 vcc, 1, v12")
    k.e("s_and_saveexec_b64 s[68:69], vcc")
    k.e(f"buffer_store_dwordx2 v[120:121], v22, s[{st_srd}:{st_srd+3}], s65 offen")
    k.e("s_mov_b64 exec, s[68:69]")
    k.e("s_cmp_lg_u32 s59, 0")
    k.e(f"s_cbranch_scc1 {name}_done")
    k.e("v_cmp_gt_u32 vcc, 2, v12")
    k.e("s_and_saveexec_b64 s[66:67], vcc")
    k.e(f"buffer_store_dwordx2 v[254:255], v5, s[{xout_srd}:{xout_srd+3}], s64 offen")
    if sfinal is not None:
        k.e(f"s_branch {name}_done")
        k.label(f"{name}_fin")
        k.e("v_lshrrev_b32 v22, 2, v11")
        k.e("v_and_b32 v23, 3, v11")
        k.e("v_lshl_add_u32 v22, v22, 3, v23")
        k.e("v_mul_u32_u24 v22, 1152, v22")
        k.e("v_lshl_add_u32 v23, v12, 4, v22")
        k.e("v_lshl_add_u32 v22, v12, 3, v22")
        k.e("s_lshl_b32 s65, s58, 5")
        k.e("s_lshl_b32 s62, s62, 2")
        k.e("s_add_u32 s65, s65, s62")
        k.e("s_mul_i32 s65, s65, 1152")
        k.e(f"s_mul_i32 s62, s{sJ}, 144")
        k.e("s_add_u32 s65, s65, s62")
        k.e("s_lshl_b32 s62, s59, 6")
        k.e("s_add_u32 s62, s62, s65")
        k.e(f"buffer_store_dwordx4 v[250:253], v23, s[{xout_srd}:{xout_srd+3}], s62 offen")
        k.e("s_cmp_lg_u32 s59, 0")
        k.e(f"s_cbranch_scc1 {name}_done")
        k.e("v_cmp_gt_u32 vcc, 2, v12")
        k.e("s_and_saveexec_b64 s[66:67], vcc")
        k.e(f"buffer_store_dwordx2 v[254:255], v22, s[{xout_srd}:{xout_srd+3}], s65 offen offset:128")
    k.label(f"{name}_done")


def gen_t2(mode):
    name = "ks" if mode == "S" else "kd"
    k = Kern(name, 256, 0, 80)
    Lend = name + "_end"
    NST = 8 if mode == "S" else 9
    RA = 3 if mode == "S" else 4
    ASTG = 36864
    CBASE = RA * ASTG
    AJ = ABJ if mode == "S" else WDJ
    k.e("s_mov_b64 exec, -1")
    k.e("s_barrier")
    if mode == "S":
        k.e("s_load_dwordx4 s[8:11], s[0:1], 8")
    k.e("s_load_dwordx2 s[18:19], s[0:1], 88")
    k.e("s_load_dwordx4 s[12:15], s[0:1], 72")
    k.e("v_lshrrev_b32 v1, 6, v0")
    k.e("v_and_b32 v2, 63, v0")
    k.e("v_readfirstlane_b32 s20, v1")
    k.e("s_and_b32 s22, s2, 7")
    k.e("s_lshr_b32 s23, s2, 3")
    k.e("s_lshr_b32 s44, s22, 1")
    k.e("s_and_b32 s21, s22, 1")
    k.e("s_lshl_b32 s21, s21, 3")
    k.e("s_and_b32 s45, s23, 7")
    k.e("s_add_u32 s21, s21, s45")
    k.e("s_lshr_b32 s23, s23, 3")
    k.e("s_and_b32 s45, s20, 3")
    k.e("s_lshr_b32 s46, s20, 2")
    k.e("s_waitcnt lgkmcnt(0)")
    k.stamp(0)
    if mode == "S":
        k.e("s_cmp_ge_u32 s44, 2")
        k.e("s_cselect_b32 s4, s10, s8")
        k.e("s_cselect_b32 s5, s11, s9")
        k.srd_ptr(24, 4, S * S * 2)
        srd_ws_s(k, 28, 18, 68, AB_SZ)
    else:
        srd_ws_s(k, 24, 18, 68, HC_SZ)
        k.srd_ws(28, 18, "WD")
    srd_ws_s(k, 32, 18, 75, 64*4*8*4608)
    flag_srd(k)
    k.e("s_mov_b32 s66, s69")
    k.e("v_and_b32 v11, 15, v2")
    k.e("v_lshrrev_b32 v12, 4, v2")
    VA = 3
    k.e("v_mul_u32_u24 v13, 1152, v12")
    k.e("v_lshl_add_u32 v14, v11, 4, v13")
    k.e("v_and_b32 v15, 7, v11")
    k.e("v_lshl_add_u32 v15, v15, 4, v13")
    k.e("v_add_u32 v15, 1024, v15")
    k.e("v_lshrrev_b32 v16, 3, v11")
    k.e(f"s_mov_b32 s47, {AJ}")
    k.e("v_mul_lo_u32 v16, v16, s47")
    k.e("v_add_u32 v15, v15, v16")
    k.e("s_lshl_b32 s47, s45, 8")
    k.e("v_add_u32 v3, s47, v14")
    k.e("s_mul_i32 s47, s45, 4608")
    k.e("v_add_u32 v4, s47, v15")
    if mode == "S":
        k.e("s_lshr_b32 s47, s44, 1")
        k.e("s_lshl_b32 s47, s47, 3")
        k.e("s_lshl_b32 s48, s23, 1")
        k.e("s_add_u32 s47, s47, s48")
        k.e(f"s_mul_i32 s48, s47, {AJ}")
        k.e("s_and_b32 s47, s44, 1")
        k.e("s_lshl_b32 s47, s47, 4")
    else:
        k.e("s_lshl_b32 s48, s23, 1")
        k.e(f"s_mul_i32 s48, s48, {AJ}")
        k.e("s_mul_i32 s47, s44, 18")
    k.e("s_add_u32 s47, s47, s46")
    k.e("s_mul_i32 s49, s47, 9216")
    k.e("s_add_u32 s48, s48, s49")
    k.e("s_mul_i32 s50, s46, 18432")
    k.e("s_lshl_b32 s51, s45, 10")
    k.e("s_add_u32 s50, s50, s51")
    k.e("s_lshl_b32 s51, s45, 13")
    k.e("s_add_u32 s5, s50, s51")
    k.e("s_add_u32 s5, s5, 8192")
    k.e("s_cmp_lt_u32 s45, 2")
    k.e("s_cselect_b64 s[52:53], -1, 0")
    k.e("s_mul_i32 s51, s46, 18432")
    k.e("v_lshl_add_u32 v8, v2, 4, s51")
    if RA > 2:
        k.e(f"v_add_u32 v9, {2*ASTG}, v8")
    k.e("s_mov_b32 s4, s47")

    def bsetup():
        if mode == "D":
            k.e("v_lshlrev_b32 v13, 9, v12")
            k.e("v_lshl_add_u32 v10, v11, 4, v13")
            k.e("s_lshl_b32 s51, s21, 2")
            k.e("s_add_u32 s51, s51, s45")
            k.e(f"s_mul_i32 s49, s51, {HCB}")
            k.e("s_lshl_b32 s51, s4, 12")
            k.e("s_add_u32 s49, s49, s51")
        else:
            t = 248
            k.e(f"v_lshrrev_b32 v{t}, 3, v2")
            k.e(f"v_and_b32 v{t+1}, 7, v2")
            k.e(f"v_lshrrev_b32 v{t+2}, 1, v{t}")
            k.e(f"v_xor_b32 v{t+2}, v{t+2}, v{t+1}")
            k.e(f"v_lshlrev_b32 v{t+2}, 4, v{t+2}")
            k.e(f"v_lshrrev_b32 v{t+3}, 2, v{t}")
            k.e(f"v_and_b32 v{t+4}, 3, v{t}")
            k.e(f"v_lshl_add_u32 v{t+3}, v{t+3}, 3, v{t+4}")
            k.e(f"v_lshlrev_b32 v{t+3}, 12, v{t+3}")
            k.e(f"v_add_u32 v{t+5}, v{t+3}, v{t+2}")
            k.e(f"v_xor_b32 v{t+4}, 64, v{t+2}")
            k.e(f"v_add_u32 v{t+6}, v{t+3}, v{t+4}")
            for q in range(4):
                c = (16 * (q & 1) + 4 * ((q >> 1) & 1)) * 4096
                k.e(f"v_add_u32 v{240+q}, {c}, v{t + 5 + (q & 1)}")
            k.e("s_mul_i32 s54, s20, 6144")
            k.e(f"s_add_u32 s54, s54, {CBASE}")
            k.e(f"v_lshrrev_b32 v{t+2}, 1, v11")
            k.e(f"v_xor_b32 v{t+2}, v{t+2}, v12")
            k.e(f"v_lshlrev_b32 v{t+2}, 4, v{t+2}")
            k.e(f"v_lshl_add_u32 v{t+2}, v11, 7, v{t+2}")
            k.e(f"v_add_u32 v244, s54, v{t+2}")
            k.e(f"v_xor_b32 v{t+2}, 64, v{t+2}")
            k.e(f"v_add_u32 v245, s54, v{t+2}")
            k.e("s_lshl_b32 s51, s21, 2")
            k.e("s_add_u32 s51, s51, s45")
            k.e("s_lshl_b32 s49, s51, 17")
            k.e("s_lshl_b32 s51, s4, 7")
            k.e("s_add_u32 s49, s49, s51")

    ACC = 160
    AFB = 16
    BFB = 88

    NF, DEP = 12, 8
    SC = "sc1" if mode == "S" else ""
    pend = []
    issued_c = {}

    def dma_ops(st):
        slot = st % RA
        ops = []
        for j in range(5):
            def f(j=j):
                if j < 4:
                    lo = (0, 4096, 9216, 13312)[j]
                    go = (0, AJ, 4608, AJ + 4608)[j]
                    k.e(f"s_add_u32 m0, s50, {slot*ASTG + lo}")
                    k.e(f"s_add_u32 s47, s48, {st*18432 + go}")
                    k.vm(f"buffer_load_dwordx4 v3, s[28:31], s47 offen {SC} lds", ("d", st))
                else:
                    k.e(f"s_add_u32 m0, s5, {slot*ASTG}")
                    k.e(f"s_add_u32 s47, s48, {st*18432}")
                    k.e("s_mov_b64 exec, s[52:53]")
                    k.vm(f"buffer_load_dwordx4 v4, s[28:31], s47 offen {SC} lds", ("d", st))
                    k.e("s_mov_b64 exec, -1")
            ops.append(f)
        return ops

    def b_ops(st):
        ops = []
        for h in range(2):
            for u in range(2):
                def f(h=h, u=u):
                    rg = BFB + (st % 4) * 16 + (h * 2 + u) * 4
                    k.e(f"s_add_u32 s47, s49, {st*8192}")
                    k.vm(f"buffer_load_dwordx4 v[{rg}:{rg+3}], v10, s[24:27], s47 offen offset:{h*2048 + u*256} sc1", ("b", st))
                ops.append(f)
        return ops

    def c_ops(c):
        st, u = divmod(c, 2)
        ops = []
        for q in range(2):
            def f(q=q):
                k.e(f"s_add_u32 m0, s54, {(c%3)*2048 + q*1024}")
                k.e(f"s_add_u32 s47, s49, {st*256}")
                k.vm(f"buffer_load_dwordx4 v{240+2*u+q}, s[24:27], s47 offen lds", ("c", c))
                issued_c[c] = issued_c.get(c, 0) + 1
            ops.append(f)
        return ops

    def cread(c):
        st, u = divmod(c, 2)
        k.wait_vm(("c", c))
        for h in range(2):
            rg = BFB + (st % 2) * 16 + (h * 2 + u) * 4
            k.ds(f"ds_read_b128 v[{rg}:{rg+3}], v{244+h} offset:{(c%3)*2048}", ("cr", c))

    total = NST * 18

    def aread(f):
        st, r = divmod(f, 18)
        slot = st % RA
        base = 8 if slot < 2 else 9
        rg = AFB + (f % NF) * 4
        k.ds(f"ds_read_b128 v[{rg}:{rg+3}], v{base} offset:{(slot % 2) * ASTG + r*1024}", ("a", f))

    def sync(st):
        while pend:
            pend.pop(0)()
        k.wait_vm(("d", st))
        k.e("s_barrier")
        if st == 0:
            for s2 in range(2, RA):
                pend.extend(dma_ops(s2))
        elif st >= 2 and st + RA - 2 < NST:
            pend.extend(dma_ops(st + RA - 2))
        if mode == "D" and st + 2 < NST:
            pend.extend(b_ops(st + 2))

    k.e("v_lshlrev_b32 v1, 2, v2")
    if mode == "D":
        for f in dma_ops(0) + dma_ops(1):
            f()
        bsetup()
        k.e("s_lshl_b32 s47, s21, 2")
        k.e("s_add_u32 s47, s47, s45")
        k.e("s_lshl_b32 s47, s47, 7")
        k.e("s_lshl_b32 s3, s44, 5")
        k.e("s_add_u32 s47, s47, s3")
        k.e("s_add_u32 s47, s47, s64")
        poll(k, name, 47, 8, 1, 152)
        k.vq = []
        for f in b_ops(0) + b_ops(1):
            f()
    else:
        bsetup()
        for f in c_ops(0) + c_ops(1) + c_ops(2):
            f()
        k.e("v_and_b32 v153, 31, v2")
        k.e("v_lshrrev_b32 v154, 5, v2")
        k.e("v_lshlrev_b32 v153, 2, v153")
        k.e("v_lshl_add_u32 v153, v154, 8, v153")
        k.e("s_lshr_b32 s47, s44, 1")
        k.e("s_lshl_b32 s47, s47, 3")
        k.e("s_lshl_b32 s3, s23, 1")
        k.e("s_add_u32 s47, s47, s3")
        k.e("s_lshl_b32 s47, s47, 8")
        k.e("s_and_b32 s3, s44, 1")
        k.e("s_lshl_b32 s3, s3, 7")
        k.e("s_add_u32 s47, s47, s3")
        k.e("s_add_u32 s47, s47, s64")
        poll(k, name, 47, 64, 153, 152, skip_if_neg=64)
        for f in dma_ops(0) + dma_ops(1):
            f()
    code_prefetch(k, name, 152, 76, 156, 8, 20)
    for a in range(72):
        k.e(f"v_mov_b32 v{ACC+a}, 0")
    XOFF = ASTG if mode == "D" else 0
    k.e("s_mul_i32 s51, s20, 9216")
    k.e(f"s_add_u32 s51, s51, {XOFF}")
    k.e("v_lshl_add_u32 v232, v2, 4, s51")
    k.e("s_xor_b32 s51, s20, 4")
    k.e("s_mul_i32 s51, s51, 9216")
    k.e(f"s_add_u32 s51, s51, {XOFF}")
    k.e("v_lshl_add_u32 v233, v2, 4, s51")
    k.e("s_lshl_b32 s55, s21, 2")
    k.e("s_add_u32 s55, s55, s23")
    k.e("s_lshl_b32 s51, s55, 2")
    k.e("s_add_u32 s51, s51, s44")
    k.e("s_lshl_b32 s51, s51, 3")
    k.e("s_lshl_b32 s3, s45, 1")
    k.e("s_add_u32 s51, s51, s3")
    k.e("s_add_u32 s51, s51, s46")
    k.e("s_mul_i32 s75, s51, 4608")
    if OWNP:
        k.e("s_cmp_eq_u32 s45, s44")
        k.e("s_cselect_b32 s4, s75, 0x7f000000")
        k.e("s_cselect_b32 s75, 0x7f000000, s75")
    k.e("v_lshlrev_b32 v234, 4, v2")
    k.e("v_lshlrev_b32 v235, 3, v2")
    k.e("v_add_u32 v235, 4096, v235")
    srd_ws_s(k, 36, 18, 70, XC_SZ)
    srd_ws_s(k, 40, 18, 71, XC_SZ)
    srd_ws_s(k, 60, 18, 72, ST_SZ)
    k.e("s_cmp_lg_u32 s73, 0")
    k.e("s_cselect_b32 s40, s12, s40")
    k.e("s_cselect_b32 s41, s13, s41")
    k.e("s_and_b32 s41, s41, 0xffff")
    k.e("s_and_b32 s56, s20, 1")
    k.e("s_lshr_b32 s57, s20, 1")
    k.e("s_lshl_b32 s58, s21, 2")
    k.e("s_add_u32 s58, s58, s44")
    k.e("s_mul_i32 s59, s58, 36864")
    k.e("s_mul_i32 s3, s23, 9216")
    k.e("s_add_u32 s59, s59, s3")
    k.e("s_lshl_b32 s3, s56, 8")
    k.e("s_add_u32 s59, s59, s3")
    k.e("s_lshr_b32 s3, s57, 1")
    k.e("s_mul_i32 s3, s3, 4608")
    k.e("s_and_b32 s51, s57, 1")
    k.e("s_lshl_b32 s51, s51, 11")
    k.e("s_add_u32 s3, s3, s51")
    k.e("s_add_u32 s68, s59, s3")
    k.e("v_lshlrev_b32 v236, 9, v12")
    k.e("v_lshl_add_u32 v236, v11, 4, v236")
    k.e("v_lshrrev_b32 v237, 1, v12")
    k.e("v_mul_u32_u24 v237, 4608, v237")
    k.e("v_and_b32 v238, 1, v12")
    k.e("v_lshl_add_u32 v237, v238, 3, v237")
    k.e("v_lshl_add_u32 v237, v11, 4, v237")
    k.e("v_add_u32 v237, 4096, v237")
    k.e("s_cmp_eq_u32 s57, 0")
    k.e("s_cselect_b32 s69, s59, 0x7f000000")
    k.vm("buffer_load_dwordx4 v[248:251], v236, s[36:39], s68 offen sc1", "res")
    k.vm("buffer_load_dwordx2 v[252:253], v237, s[36:39], s69 offen sc1", "res")
    k.e("s_lshl_b32 s51, s55, 5")
    k.e("s_lshl_b32 s3, s44, 1")
    k.e("s_add_u32 s51, s51, s3")
    k.e("s_add_u32 s51, s51, s56")
    k.e("s_mul_i32 s51, s51, 4608")
    k.e("s_lshl_b32 s3, s57, 10")
    k.e("s_add_u32 s6, s3, s51")
    k.e("s_cmp_eq_u32 s57, 0")
    k.e("s_cselect_b32 s7, s51, 0x7f000000")
    k.e("v_lshrrev_b32 v238, 2, v11")
    k.e("v_and_b32 v239, 3, v11")
    k.e("v_lshl_add_u32 v238, v238, 3, v239")
    k.e("v_mul_u32_u24 v238, 1152, v238")
    k.e("v_lshl_add_u32 v239, v12, 4, v238")
    k.e("v_lshrrev_b32 v246, 1, v12")
    k.e("v_mul_u32_u24 v246, 144, v246")
    k.e("v_add_u32 v238, v238, v246")
    k.e("v_and_b32 v246, 1, v12")
    k.e("v_lshl_add_u32 v238, v246, 3, v238")
    k.e("v_add_u32 v238, 128, v238")
    k.e("s_lshl_b32 s51, s58, 5")
    k.e("s_lshl_b32 s3, s56, 2")
    k.e("s_add_u32 s51, s51, s3")
    k.e("s_mul_i32 s51, s51, 1152")
    k.e("s_mul_i32 s3, s23, 288")
    k.e("s_add_u32 s51, s51, s3")
    k.e("s_lshr_b32 s3, s57, 1")
    k.e("s_mul_i32 s3, s3, 144")
    k.e("s_and_b32 s16, s57, 1")
    k.e("s_lshl_b32 s16, s16, 6")
    k.e("s_add_u32 s3, s3, s16")
    k.e("s_add_u32 s3, s3, s51")
    k.e("s_cmp_eq_u32 s57, 0")
    k.e("s_cselect_b32 s51, s51, 0x7f000000")
    k.e("s_cmp_lg_u32 s73, 0")
    k.e("s_cselect_b32 s16, s3, s68")
    k.e("s_cselect_b32 s17, s51, s69")
    k.e("s_cselect_b64 vcc, -1, 0")
    k.e("v_cndmask_b32 v246, v236, v239, vcc")
    k.e("v_cndmask_b32 v247, v237, v238, vcc")
    k.e("s_lshl_b32 s51, s23, 2")
    k.e("s_add_u32 s51, s51, s57")
    k.e("s_lshl_b32 s51, s51, 14")
    k.e("s_lshl_b32 s3, s58, 8")
    k.e("s_add_u32 s51, s51, s3")
    k.e("s_lshl_b32 s3, s56, 7")
    k.e("s_add_u32 s51, s51, s3")
    k.e("s_cmp_lg_u32 s73, 0")
    k.e("s_cselect_b32 s59, 0x7f000000, s51")
    k.e("v_lshlrev_b32 v238, 3, v11")
    k.e("s_lshl_b32 s3, s55, 3")
    k.e("s_lshl_b32 s51, s44, 1")
    k.e("s_add_u32 s51, s51, s3")
    k.e("s_add_u32 s51, s51, s56")
    k.e("s_lshl_b32 s56, s51, 7")
    k.e("s_add_u32 s56, s56, s66")
    k.e("s_lshl_b32 s51, s45, 1")
    k.e("s_add_u32 s51, s51, s3")
    k.e("s_add_u32 s51, s51, s46")
    k.e("s_lshl_b32 s51, s51, 7")
    k.e("s_lshl_b32 s57, s44, 2")
    k.e("s_add_u32 s57, s57, s51")
    k.e("s_add_u32 s57, s57, s66")
    k.e("s_lshl_b32 s67, s58, 7")
    k.e("s_lshl_b32 s3, s23, 5")
    k.e("s_add_u32 s67, s67, s3")
    k.e("s_lshl_b32 s3, s20, 2")
    k.e("s_add_u32 s67, s67, s3")
    k.e("s_add_u32 s67, s67, s65")
    k.e("s_mov_b32 s58, 0xffff0000")
    done_c = set()
    if mode == "S":
        cread(0); cread(1)
        k.wait_ds(("cr", 1))
        pend.extend(c_ops(3) + c_ops(4))
    sync(0)
    k.stamp(2)
    for f in range(DEP):
        aread(f)
    mi = 0
    for f in range(total):
        nxt = f + DEP
        if nxt < total:
            if nxt % 18 == 0:
                sync(nxt // 18)
            aread(nxt)
        st, r = divmod(f, 18)
        h, T = divmod(r, 9)
        if mode == "D" and r == 0:
            k.wait_vm(("b", st))
        if mode == "S" and st + 1 < NST:
            for rr_, u_ in ((3, 0), (7, 1)):
                c = 2 * (st + 1) + u_
                if r == rr_:
                    while issued_c.get(c, 0) < 2:
                        pend.pop(0)()
                    cread(c)
                    done_c.add(("c", c))
                if r == rr_ + 2 and c + 3 < 2 * NST:
                    k.wait_ds(("cr", c))
                    pend.extend(c_ops(c + 3))
        k.wait_ds(("a", f))
        af = AFB + (f % NF) * 4
        for u in range(2):
            bf = BFB + ((st % 4) if mode == "D" else (st % 2)) * 16 + (h * 2 + u) * 4
            acc = ACC + (u * 9 + T) * 4
            k.e(f"v_mfma_f32_16x16x32_bf16 v[{acc}:{acc+3}], v[{af}:{af+3}], v[{bf}:{bf+3}], v[{acc}:{acc+3}]")
            mi += 1
            if pend and (mi % 3 == 0 or st == 0):
                pend.pop(0)()
    k.stamp(3)
    if mode == "S":
        k.e("s_barrier")
    k.e("s_nop 5")
    k.e("s_cmp_eq_u32 s46, 0")
    k.e(f"s_cbranch_scc1 {name}_x0")

    def xch(send, keep, lab_after):
        for T in range(9):
            k.e(f"ds_write_b128 v232, v[{send+4*T}:{send+4*T+3}] offset:{T*1024}")
        k.e("s_waitcnt lgkmcnt(0)")
        k.e("s_barrier")
        for T in range(9):
            k.e(f"ds_read_b128 v[{88+4*T}:{91+4*T}], v233 offset:{T*1024}")
        for T in range(9):
            k.e(f"s_waitcnt lgkmcnt({8-T})")
            for r in range(4):
                k.e(f"v_add_f32 v{keep+4*T+r}, v{keep+4*T+r}, v{88+4*T+r}")
            k.e(f"v_cvt_pk_bf16_f32 v{16+2*T}, v{keep+4*T}, v{keep+4*T+1}")
            k.e(f"v_cvt_pk_bf16_f32 v{17+2*T}, v{keep+4*T+2}, v{keep+4*T+3}")
            if T % 2 == 1:
                k.e(f"buffer_store_dwordx4 v[{14+2*T}:{17+2*T}], v234, s[32:35], s75 offen offset:{(T//2)*1024} {PUB}")
                if OWNP:
                    k.e(f"buffer_store_dwordx4 v[{14+2*T}:{17+2*T}], v234, s[32:35], s4 offen offset:{(T//2)*1024}")
    xch(ACC, ACC + 36, None)
    k.e(f"s_branch {name}_x1")
    k.label(f"{name}_x0")
    xch(ACC + 36, ACC, None)
    k.label(f"{name}_x1")
    k.e(f"buffer_store_dwordx2 v[32:33], v235, s[32:35], s75 offen {PUB}")
    if OWNP:
        k.e("buffer_store_dwordx2 v[32:33], v235, s[32:35], s4 offen")
    k.e("v_mov_b32 v9, 1")
    k.e("v_mov_b32 v10, 0")
    k.e("s_mov_b32 s53, 0")
    k.e("s_waitcnt vmcnt(0)")
    k.stamp(4)
    k.e("s_mov_b64 exec, 1")
    k.e("buffer_store_dword v9, v10, s[76:79], s57 offen sc1")
    k.label(f"{name}_poll")
    k.e("buffer_load_dwordx4 v[108:111], v10, s[76:79], s56 offen sc1")
    k.e("s_add_u32 s53, s53, 1")
    k.e("s_waitcnt vmcnt(0)")
    k.e("v_and_b32 v108, v108, v109")
    k.e("v_and_b32 v110, v110, v111")
    k.e("v_and_b32 v108, v108, v110")
    k.e("s_nop 0")
    k.e("v_readfirstlane_b32 s54, v108")
    k.e("s_cmp_ge_u32 s53, 0x40000")
    k.e(f"s_cbranch_scc1 {name}_pollx")
    k.e("s_cmp_eq_u32 s54, 1")
    k.e(f"s_cbranch_scc1 {name}_pollx")
    if SLP:
        k.e(f"s_sleep {SLP}")
    k.e(f"s_branch {name}_poll")
    k.label(f"{name}_pollx")
    k.e("s_mov_b64 exec, -1")
    k.stamp(1)
    for q in range(4):
        k.e(f"buffer_load_dwordx4 v[{16+6*q}:{19+6*q}], v234, s[32:35], s6 offen sc1")
        k.e(f"buffer_load_dwordx2 v[{20+6*q}:{21+6*q}], v235, s[32:35], s7 offen sc1")
        if q < 3:
            k.e(f"s_add_u32 s6, s6, {8*4608}")
            k.e(f"s_add_u32 s7, s7, {8*4608}")
    k.e("v_mov_b32 v120, 0")
    k.e("v_mov_b32 v121, 0")
    for j in range(6):
        k.e(f"v_lshlrev_b32 v{60+2*j}, 16, v{248+j}")
        k.e(f"v_and_b32 v{61+2*j}, s58, v{248+j}")
    k.e("s_waitcnt vmcnt(0)")
    for j in range(6):
        r = [16 + 6 * q + j for q in range(4)]
        for q in range(4):
            k.e(f"v_lshlrev_b32 v{40+2*q}, 16, v{r[q]}")
            k.e(f"v_and_b32 v{41+2*q}, s58, v{r[q]}")
        k.e("v_add_f32 v40, v40, v42")
        k.e("v_add_f32 v41, v41, v43")
        k.e("v_add_f32 v44, v44, v46")
        k.e("v_add_f32 v45, v45, v47")
        if mode == "S":
            k.e("v_cvt_pk_bf16_f32 v48, v40, v41")
            k.e("v_cvt_pk_bf16_f32 v49, v44, v45")
            k.e("v_lshlrev_b32 v40, 16, v48")
            k.e("v_and_b32 v41, s58, v48")
            k.e("v_lshlrev_b32 v44, 16, v49")
            k.e("v_and_b32 v45, s58, v49")
            k.e("v_sub_f32 v40, v40, v44")
            k.e("v_sub_f32 v41, v41, v45")
        else:
            k.e("v_add_f32 v40, v40, v44")
            k.e("v_add_f32 v41, v41, v45")
        k.e("v_cvt_pk_bf16_f32 v48, v40, v41")
        k.e("v_lshlrev_b32 v40, 16, v48")
        k.e("v_and_b32 v41, s58, v48")
        k.e(f"v_add_f32 v40, v40, v{60+2*j}")
        k.e(f"v_add_f32 v41, v41, v{61+2*j}")
        k.e(f"v_cvt_pk_bf16_f32 v{248+j}, v40, v41")
        k.e(f"v_lshlrev_b32 v40, 16, v{248+j}")
        k.e(f"v_and_b32 v41, s58, v{248+j}")
        k.e("v_add_f32 v120, v120, v40")
        k.e("v_fmac_f32 v121, v40, v40")
        k.e("v_add_f32 v120, v120, v41")
        k.e("v_fmac_f32 v121, v41, v41")
        if j == 3:
            k.e("buffer_store_dwordx4 v[248:251], v246, s[40:43], s16 offen sc1")
    k.e("buffer_store_dwordx2 v[252:253], v247, s[40:43], s17 offen sc1")
    for sw in ("16", "32"):
        k.e("v_mov_b32 v44, v120")
        k.e("v_mov_b32 v45, v121")
        k.e("s_nop 1")
        k.e(f"v_permlane{sw}_swap_b32 v120, v44")
        k.e(f"v_permlane{sw}_swap_b32 v121, v45")
        k.e("s_nop 1")
        k.e("v_add_f32 v120, v120, v44")
        k.e("v_add_f32 v121, v121, v45")
    k.e("s_mov_b64 exec, 0xffff")
    k.e("buffer_store_dwordx2 v[120:121], v238, s[60:63], s59 offen sc1")
    publish(k, 67, 9, 10)
    if PROF:
        k.wait_vm_all()
    k.stamp(5)
    k.stamp_store(2, 18, 20)
    k.label(Lend)
    return k, 256, 512, CBASE + (49152 if mode == "S" else 0)


def gen_kg():
    name = "kg"
    k = Kern(name, 256, 0, 80)
    Lend = name + "_end"
    STG = 36864
    EXT = 4 * STG
    k.e("s_mov_b64 exec, -1")
    k.e("s_barrier")
    k.e("s_load_dwordx2 s[18:19], s[0:1], 88")
    k.e("v_lshrrev_b32 v1, 6, v0")
    k.e("v_and_b32 v2, 63, v0")
    k.e("v_readfirstlane_b32 s20, v1")
    k.e("s_and_b32 s22, s2, 7")
    k.e("s_lshr_b32 s23, s2, 3")
    if MAPG == 0:
        k.e("s_and_b32 s21, s23, 7")
        k.e("s_lshr_b32 s23, s23, 3")
        k.e("s_lshl_b32 s22, s22, 2")
        k.e("s_add_u32 s23, s23, s22")
    elif MAPG == 1:
        k.e("s_mov_b32 s21, s22")
    else:
        k.e("s_and_b32 s21, s22, 6")
        k.e("s_and_b32 s44, s23, 1")
        k.e("s_add_u32 s21, s21, s44")
        k.e("s_and_b32 s22, s22, 1")
        k.e("s_lshl_b32 s22, s22, 4")
        k.e("s_lshr_b32 s23, s23, 1")
        k.e("s_add_u32 s23, s23, s22")
    k.e("s_lshl_b32 s21, s21, 3")
    k.e("s_add_u32 s21, s21, s20")
    k.e("s_waitcnt lgkmcnt(0)")
    k.stamp(0)
    flag_srd(k)
    k.srd_ws(24, 18, "WGU")
    srd_ws_s(k, 28, 18, 70, XC_SZ)
    srd_ws_s(k, 32, 18, 71, ST_SZ)
    srd_ws_s(k, 40, 18, 72, HC_SZ)
    k.e("v_lshlrev_b32 v3, 4, v2")
    k.e(f"s_mul_i32 s44, s23, {WGU_CB}")
    k.e("s_mul_i32 s45, s20, 4608")
    k.e("s_add_u32 s43+1, s44, s45".replace("s43+1", "s50"))
    k.e("s_mul_i32 s46, s21, 36864")
    k.e("s_mul_i32 s52, s20, 1152")
    k.e(f"s_add_u32 s51, s44, {36*9216}")
    k.e("s_add_u32 s51, s51, s52")
    NST = 9
    ACC = 112
    BFB = 16
    AFB = 80
    XB = 104
    NF, DEP = 6, int(os.environ.get('KG_DEP', '4'))
    PRIO = int(os.environ.get('PRIO', '0'))
    VSP = int(os.environ.get('VSP', '3'))
    for s_ in range(5):
        if s_ == 0:
            k.e("v_mov_b32 v4, v3")
        else:
            k.e(f"v_add_u32 v{4+s_}, {s_*STG}, v3")

    pend = []

    def dma_ops(st_):
        slot = st_ % 4
        ops = []
        for e_ in range(4):
            def f(e_=e_):
                k.e(f"s_add_u32 m0, s45, {slot*STG}")
                k.e(f"s_add_u32 s47, s50, {st_*STG}")
                k.vm(f"buffer_load_dwordx4 v3, s[24:27], s47 offen offset:{e_*1024} lds", ("d", st_))
            ops.append(f)
        def f5():
            k.e(f"s_add_u32 m0, s45, {slot*STG + 4096}")
            k.e(f"s_add_u32 s47, s50, {st_*STG + 4096}")
            k.e("s_mov_b32 exec_hi, 0")
            k.vm("buffer_load_dwordx4 v3, s[24:27], s47 offen lds", ("d", st_))
            k.e("s_mov_b64 exec, -1")
        ops.append(f5)
        return ops

    def ext_ops():
        def f1():
            k.e(f"s_add_u32 m0, s52, {EXT}")
            k.e("s_nop 0")
            k.vm("buffer_load_dwordx4 v3, s[24:27], s51 offen lds", ("d", "x"))
        def f2():
            k.e(f"s_add_u32 m0, s52, {EXT}")
            k.e("s_mov_b64 exec, 0xff")
            k.vm("buffer_load_dwordx4 v3, s[24:27], s51 offen offset:1024 lds", ("d", "x"))
            k.e("s_mov_b64 exec, -1")
        return [f1, f2]

    def b_ops(st_):
        ops = []
        for j in range(4):
            def f(j=j):
                rg = BFB + (st_ % 4) * 16 + j * 4
                k.e(f"s_add_u32 s47, s46, {st_*4096}")
                k.vm(f"buffer_load_dwordx4 v[{rg}:{rg+3}], v3, s[28:31], s47 offen offset:{j*1024} sc1", ("b", st_))
            ops.append(f)
        return ops

    STB = 64

    for f in dma_ops(0) + dma_ops(1):
        f()
    k.e("v_lshlrev_b32 v1, 2, v2")
    k.e("s_lshl_b32 s47, s21, 7")
    k.e("s_add_u32 s47, s47, s64")
    poll(k, name, 47, 32, 1, 108)
    k.vq = []
    for f in b_ops(0):
        f()
    k.e("v_and_b32 v9, 31, v2")
    k.e("v_lshrrev_b32 v10, 5, v2")
    k.e("v_lshlrev_b32 v10, 17, v10")
    k.e("v_lshl_add_u32 v9, v9, 3, v10")
    k.e("s_lshl_b32 s53, s21, 8")
    for a in range(144):
        k.e(f"v_mov_b32 v{ACC+a}, 0")

    def st_ops():
        ops = []
        for i in range(8):
            def f(i=i):
                k.e(f"s_add_u32 s57, s53, {i*16384}")
                k.vm(f"buffer_load_dwordx2 v[{STB+2*i}:{STB+2*i+1}], v9, s[32:35], s57 offen sc1", "st")
            ops.append(f)
        return ops

    def st_finish():
        k.wait_vm("st")
        stats_finish(k, STB, 12, 10, 13, 14, 15)
        k.e("v_rcp_f32 v11, v10")
        k.e("v_xor_b32 v12, 0x80000000, v12")
        k.e("v_mul_f32 v11, 0xbfb8aa3b, v11")
        k.e("v_lshrrev_b32 v13, 16, v12")
        k.e("v_or_b32 v14, v12, v13")
        k.e(f"v_mov_b32 v{XB}, v14")
        k.e(f"v_mov_b32 v{XB+1}, v13")
        k.e(f"v_mov_b32 v{XB+2}, v14")
        k.e(f"v_mov_b32 v{XB+3}, v13")
    if PRIO == 1:
        k.e("s_cmp_ge_u32 s20, 4")
        k.e(f"s_cbranch_scc0 {name}_np")
        k.e("s_setprio 1")
        k.label(f"{name}_np")
    elif PRIO == 2:
        k.e("s_cmp_lt_u32 s20, 4")
        k.e(f"s_cbranch_scc0 {name}_np")
        k.e("s_setprio 1")
        k.label(f"{name}_np")
    k.stamp(1)
    k.wait_vm(("d", 0))
    k.e("s_barrier")
    k.stamp(2)
    pend += b_ops(1) + dma_ops(2) + st_ops() + b_ops(2) + dma_ops(3) + ext_ops()

    seq = []
    for st_ in range(7):
        for kk in range(4):
            for ft in range(9):
                seq.append((st_, kk, ft))
    NMAIN = len(seq)
    for ft in range(9):
        for st_ in (7, 8):
            for kk in range(4):
                seq.append((st_, kk, ft))
        seq.append(("x", 0, ft))
    total = len(seq)

    def aread(m):
        if os.environ.get("EXP_NODS"):
            return
        if os.environ.get("EXP_HALFDS") and m % 2 == 1:
            return
        st_, kk, ft = seq[m]
        rg = AFB + (m % NF) * 4
        if st_ == "x":
            k.ds(f"ds_read_b128 v[{rg}:{rg+3}], v8 offset:{ft*1024}", m)
        else:
            k.ds(f"ds_read_b128 v[{rg}:{rg+3}], v{4 + st_ % 4} offset:{(kk*9+ft)*1024}", m)

    def stage_sync(st_):
        while pend:
            pend.pop(0)()
        if st_ == 7:
            k.wait_vm([("d", 7), ("d", 8), ("d", "x")])
        else:
            k.wait_vm(("d", st_))
        if not os.environ.get("EXP_NOBAR"):
            k.e("s_barrier")
        if st_ == 1:
            st_finish()
        if st_ >= 2 and st_ + 2 < NST and not os.environ.get("EXP_NOVM"):
            pend.extend(dma_ops(st_ + 2))
        if st_ >= 1 and st_ + 2 < NST and not os.environ.get("EXP_NOVM"):
            pend.extend(b_ops(st_ + 2))

    k.e(f"s_mul_i32 s48, s21, {HCB}")
    k.e("s_mul_i32 s49, s23, 9216")
    k.e("s_add_u32 s48, s48, s49")

    def epi(ft):
        a = ACC + ft * 16
        t = 32 + (ft % 2) * 12
        ins = []
        for j in range(8):
            ins.append(f"v_mul_f32 v{t+j}, v{a+j}, v11")
        for j in range(8):
            ins.append(f"v_exp_f32 v{t+j}, v{t+j}")
        for j in range(8):
            ins.append(f"v_fma_f32 v{t+j}, v{t+j}, v10, v10")
        for j in range(8):
            ins.append(f"v_rcp_f32 v{t+j}, v{t+j}")
        for j in range(8):
            ins.append(f"v_mul_f32 v{t+j}, v{t+j}, v{a+8+j}")
        for j in range(4):
            ins.append(f"v_cvt_pk_bf16_f32 v{t+8+j}, v{t+2*j}, v{t+2*j+1}")
        ins.append(("store", t + 8, ft))
        return ins

    def emit_epi(ins):
        if isinstance(ins, tuple):
            _, rg, ft = ins
            k.vm(f"buffer_store_dwordx4 v[{rg}:{rg+3}], v3, s[40:43], s48 offen {STPG}", ("o", ft))
            k.e("s_add_u32 s48, s48, 1024")
        else:
            k.e(ins)

    for m in range(DEP):
        aread(m)
    epq = []
    for m in range(total):
        nxt = m + DEP
        if nxt < total:
            if nxt < NMAIN and nxt % 36 == 0:
                stage_sync(nxt // 36)
            if nxt == NMAIN:
                stage_sync(7)
            aread(nxt)
        st_, kk, ft = seq[m]
        if m < NMAIN:
            if m % 36 == 0:
                k.wait_vm(("b", st_))
        elif m == NMAIN:
            k.wait_vm([("b", 7), ("b", 8)])
            k.stamp(3)
        k.wait_ds(m)
        af = AFB + ((m - (m % 2 if os.environ.get("EXP_HALFDS") else 0)) % NF) * 4
        bf = XB if st_ == "x" else BFB + (st_ % 4) * 16 + kk * 4
        acc = ACC + ft * 16
        k.e(f"v_mfma_f32_32x32x16_bf16 v[{acc}:{acc+15}], v[{af}:{af+3}], v[{bf}:{bf+3}], v[{acc}:{acc+15}]")
        if pend and (m % VSP == VSP - 1 or m < 36):
            pend.pop(0)()
        if m >= NMAIN:
            r = (m - NMAIN) % 9
            if r == 8:
                while epq:
                    emit_epi(epq.pop(0))
                epq = epi(ft)
            elif r >= 3:
                for _ in range(9):
                    if epq:
                        emit_epi(epq.pop(0))
    k.e("s_nop 15")
    while epq:
        emit_epi(epq.pop(0))
    k.e("s_lshl_b32 s47, s21, 7")
    k.e("s_lshl_b32 s3, s23, 2")
    k.e("s_add_u32 s47, s47, s3")
    k.e("s_add_u32 s47, s47, s65")
    publish(k, 47, 1, 9)
    k.stamp(4)
    if PROF:
        k.wait_vm_all()
    k.stamp(5)
    k.stamp_store(3, 18, 20)
    k.label(Lend)
    return k, 256, 512, 4 * STG + 9216


def build():
    def mv(*pairs):
        return [f" s_mov_b32 s{r}, {v}" for r, v in pairs]
    X = lambda i: WS[f"XC{i}"][0]
    T = lambda i: WS[f"ST{i}"][0]
    FL = lambda i: i * 65536
    DF = lambda layer, j: 262144 + layer * 32768 + j * 8192
    EX = lambda i: WS["PART"][0] + i * 9437184
    AB = [WS["AB2"][0], WS["AB"][0]]
    HC = [WS["HC2"][0], WS["HC"][0]]
    kh1 = gen_kh_full(True)
    kh = gen_kh_full(False); ks = gen_t2("S"); kg = gen_kg(); kd = gen_t2("D")
    phases = [
        ("ks", mv((70, X(0)), (71, X(1)), (72, T(1)), (73, 0), (75, EX(0)), (68, AB[0]), (69, FL(0)), (64, -1), (65, DF(0, 0)))),
        ("kg", mv((70, X(1)), (71, T(1)), (72, HC[0]), (64, DF(0, 0)), (65, DF(0, 1)))),
        ("kd", mv((70, X(1)), (71, X(2)), (72, T(2)), (73, 0), (75, EX(1)), (68, HC[0]), (69, FL(1)), (64, DF(0, 1)), (65, DF(0, 2)))),
        ("kh", mv((70, X(2)), (71, T(2)), (72, AB[1]), (64, DF(0, 2)), (65, DF(0, 3)))),
        ("ks", mv((70, X(2)), (71, X(3)), (72, T(3)), (73, 0), (75, EX(2)), (68, AB[1]), (69, FL(2)), (64, DF(0, 3)), (65, DF(1, 0)))),
        ("kg", mv((70, X(3)), (71, T(3)), (72, HC[1]), (64, DF(1, 0)), (65, DF(1, 1)))),
        ("kd", mv((70, X(3)), (71, X(2)), (72, T(2)), (73, 1), (75, EX(3)), (68, HC[1]), (69, FL(3)), (64, DF(1, 1)), (65, DF(1, 2)))),
    ]
    lds = max(x[3] for x in (kh, ks, kg, kd))
    head = ["; generated by dev/gen14.py -- FNet/GLU interleaved layers: prep kernel + persistent dataflow kernel",
            f"; @launch kernel=kh1_kernel grid=(256,1,1) block=(512,1,1) lds={kh1[3]}",
            f"; @launch kernel=mega_kernel grid=(256,1,1) block=(512,1,1) lds={lds}"]
    out = head + ['.amdgcn_target "amdgcn-amd-amdhsa--gfx950"', ".text"]
    e1 = [x.strip() for x in mv((72, AB[0]))] + ([f"s_mov_b32 s74, 0"] if PROF else [])
    t, descs = ktext(kh1[0], [("kh1_kernel", e1)])
    out.append(t)
    out += [".globl mega_kernel", ".p2align 8", ".type mega_kernel,@function", "mega_kernel:",
            " s_cmp_ge_u32 s2, 256", " s_cbranch_scc1 mega_exit"]
    for i, (nm, ins) in enumerate(phases):
        out.append(f"mega_p{i}:")
        out += ins
        out.append(f" s_mov_b32 s100, {i}")
        if PROF:
            out.append(f" s_mov_b32 s74, {(i+1)*512*256}")
        out.append(f" s_branch {nm}_body")
    out += ["mega_exit:", " s_endpgm"]
    nxt = {"ks": [(0, 1), (4, 5)], "kg": [(1, 2), (5, 6)], "kd": [(2, 3)], "kh": [(3, 4)]}
    for kk_ in (kh, ks, kg, kd):
        k = kk_[0]
        out += [".p2align 6", f"{k.name}_body:"]
        out += [x.replace("    ", " ", 1) for x in k.L]
        for cur, n in nxt[k.name]:
            out += [f" s_cmp_eq_u32 s100, {cur}", f" s_cbranch_scc1 mega_p{n}"]
        out += [" s_endpgm"]
    descs.append("\n".join([".amdhsa_kernel mega_kernel", "  .amdhsa_next_free_vgpr 256", "  .amdhsa_next_free_sgpr 102", "  .amdhsa_accum_offset 256",
                "  .amdhsa_group_segment_fixed_size 0", "  .amdhsa_kernarg_size 96", "  .amdhsa_user_sgpr_count 2",
                "  .amdhsa_user_sgpr_kernarg_segment_ptr 1", "  .amdhsa_system_sgpr_workgroup_id_x 1", ".end_amdhsa_kernel"]))
    out.append('.section .rodata,"a"')
    for d in descs:
        out.append(".p2align 6")
        out.append(d)
    return "\n".join(out) + "\n"


if __name__ == "__main__":
    path = sys.argv[1] if len(sys.argv) > 1 else "interleave_layers__spectral_fnet__glu_gated_glu__prompt.s"
    open(path, "w").write(build())
    print("wrote", path, "ws bytes", WS_TOTAL)
```

```python
import sys

S, D, F = 2048, 576, 4608
import os
PROF = bool(int(os.environ.get("PROF", "0")))
NW_T1 = 8

XC_SZ = S * D * 2
ST_SZ = S * 16 * 2 * 4
PADH = int(os.environ.get("PADH", "0")); PADW = int(os.environ.get("PADW", "0")); PADA = int(os.environ.get("PADA", "0"))
ABJ = 256 * 1152 + PADA
HCB = 576 * 512 + PADH
WDJ = 576 * 1152 + PADW
AB_SZ = 16 * ABJ
HC_SZ = 64 * HCB
WGU_SZ = 32 * 37 * 9 * 1024
WGU_CB = 37 * 9216
WD_SZ = 8 * WDJ
CS_SZ = 288 * 2 * 2 * 8 * 4
RS_SZ = 2 * 8 * 80 * 4


def _al(x, a=4096):
    return (x + a - 1) // a * a


_off = 0
WS = {}
for name, sz in [("XC0", XC_SZ), ("XC1", XC_SZ), ("XC2", XC_SZ), ("XC3", XC_SZ),
                 ("ST0", ST_SZ), ("ST1", ST_SZ), ("ST2", ST_SZ), ("ST3", ST_SZ),
                 ("AB", AB_SZ), ("HC", HC_SZ), ("WGU", WGU_SZ), ("WD", WD_SZ),
                 ("CS", CS_SZ), ("RS", RS_SZ), ("PART", 4*128*4*9216*2), ("LC", XC_SZ), ("FLG", 524288), ("AB2", AB_SZ), ("HC2", HC_SZ), ("DBG", 16*512*256)]:
    WS[name] = (_off, sz)
    _off += _al(sz + 4096)
WS_TOTAL = _off

KA = dict(x=0, seq_re=8, seq_im=16, hid_re=24, hid_im=32, bx=40, wg=48, wu=56, wd=64, out=72, dbg=80, ws=88)


class Kern:
    def __init__(self, name, nvgpr, nagpr=0, nsgpr=100):
        self.name = name
        self.L = []
        self.vq = []
        self.lq = []
        self.nvgpr = nvgpr
        self.nagpr = nagpr
        self.nsgpr = nsgpr
        self.lab = 0

    def e(self, s):
        self.L.append("    " + s)

    def c(self, s):
        self.L.append("    ; " + s)

    def label(self, s):
        self.L.append(s + ":")

    def newlabel(self, p="L"):
        self.lab += 1
        return f"{self.name}_{p}{self.lab}"

    def vm(self, s, tag):
        self.e(s)
        self.vq.append(tag)
        assert len(self.vq) <= 63, f"too many vmem outstanding in {self.name}"

    def wait_vm(self, tags):
        if not isinstance(tags, (list, set)):
            tags = [tags]
        idx = -1
        for i, t in enumerate(self.vq):
            if t in tags:
                idx = i
        if idx < 0:
            return
        n = len(self.vq) - 1 - idx
        self.e(f"s_waitcnt vmcnt({n})")
        self.vq = self.vq[idx + 1:]

    def wait_vm_all(self):
        self.e("s_waitcnt vmcnt(0)")
        self.vq = []

    def ds(self, s, tag):
        self.e(s)
        self.lq.append(tag)

    def wait_ds(self, tags):
        if not isinstance(tags, (list, set)):
            tags = [tags]
        idx = -1
        for i, t in enumerate(self.lq):
            if t in tags:
                idx = i
        if idx < 0:
            return
        n = len(self.lq) - 1 - idx
        assert n <= 15
        self.e(f"s_waitcnt lgkmcnt({n})")
        self.lq = self.lq[idx + 1:]

    def wait_ds_all(self):
        self.e("s_waitcnt lgkmcnt(0)")
        self.lq = []

    def stamp(self, i):
        if not PROF:
            return
        self.e("s_waitcnt lgkmcnt(0)")
        self.lq = []
        self.e(f"s_memtime s[{80+2*i}:{81+2*i}]")
        if i == 0:
            self.e("s_memrealtime s[94:95]")
        self.e("s_waitcnt lgkmcnt(0)")
        self.nst = max(getattr(self, "nst", 0), i + 1)

    def stamp_store(self, kidx, wsbase, swave):
        if not PROF:
            return
        self.e("s_mov_b64 exec, -1")
        self.e("s_memrealtime s[96:97]")
        self.srd_ws(76, wsbase, "DBG")
        self.e("s_waitcnt lgkmcnt(0)")
        self.e(f"s_lshl_b32 s98, s2, 8")
        self.e(f"s_lshl_b32 s99, s{swave}, 5")
        self.e("s_add_u32 s98, s98, s99")
        self.e("s_add_u32 s98, s98, s74")
        self.e("v_mov_b32 v1, 0")
        for i in range(self.nst):
            self.e(f"v_mov_b32 v2, s{80+2*i}")
            self.e(f"buffer_store_dword v2, v1, s[76:79], s98 offen offset:{4*i}")
        self.e("v_mov_b32 v2, s96")
        self.e(f"buffer_store_dword v2, v1, s[76:79], s98 offen offset:28")
        self.e("v_mov_b32 v2, s94")
        self.e(f"buffer_store_dword v2, v1, s[76:79], s98 offen offset:24")

    def srd_ptr(self, d, base, nbytes):
        self.e(f"s_mov_b32 s{d}, s{base}")
        self.e(f"s_and_b32 s{d+1}, s{base+1}, 0xffff")
        self.e(f"s_mov_b32 s{d+2}, {nbytes}")
        self.e(f"s_mov_b32 s{d+3}, 0x00020000")

    def srd_ws(self, d, wsbase, region):
        off, sz = WS[region]
        self.e(f"s_add_u32 s{d}, s{wsbase}, {off}")
        self.e(f"s_addc_u32 s{d+1}, s{wsbase+1}, 0")
        self.e(f"s_and_b32 s{d+1}, s{d+1}, 0xffff")
        self.e(f"s_mov_b32 s{d+2}, {sz}")
        self.e(f"s_mov_b32 s{d+3}, 0x00020000")

    def text(self):
        tot = self.nvgpr if self.nagpr == 0 else (self.nvgpr + 3) // 4 * 4 + self.nagpr
        acc = (self.nvgpr + 3) // 4 * 4
        out = [f".globl {self.name}", ".p2align 8", f".type {self.name},@function", f"{self.name}:"]
        out += self.L
        out += ["    s_endpgm"]
        desc = [f".amdhsa_kernel {self.name}",
                f"  .amdhsa_next_free_vgpr {tot}",
                f"  .amdhsa_next_free_sgpr {100 if PROF else self.nsgpr}",
                f"  .amdhsa_accum_offset {acc}",
                "  .amdhsa_group_segment_fixed_size 0",
                "  .amdhsa_kernarg_size 96",
                "  .amdhsa_user_sgpr_count 2",
                "  .amdhsa_user_sgpr_kernarg_segment_ptr 1",
                "  .amdhsa_system_sgpr_workgroup_id_x 1",
                ".end_amdhsa_kernel"]
        return "\n".join(out), "\n".join(desc)


def R(kind, i, n=1):
    if n == 1:
        return f"{kind}{i}"
    return f"{kind}[{i}:{i+n-1}]"


def unpack_sum(k, src, lo, hi, sacc, qacc):
    k.e(f"v_lshlrev_b32 v{lo}, 16, v{src}")
    k.e(f"v_and_b32 v{hi}, 0xffff0000, v{src}")
    k.e(f"v_add_f32 v{sacc}, v{sacc}, v{lo}")
    if qacc is not None:
        k.e(f"v_fmac_f32 v{qacc}, v{lo}, v{lo}")
    k.e(f"v_add_f32 v{sacc}, v{sacc}, v{hi}")
    if qacc is not None:
        k.e(f"v_fmac_f32 v{qacc}, v{hi}, v{hi}")


def xlane_add(k, val, tmp, addr, lane, mask):
    k.e(f"v_xor_b32 v{addr}, {mask}, v{lane}")
    k.e(f"v_lshlrev_b32 v{addr}, 2, v{addr}")
    k.e(f"ds_bpermute_b32 v{tmp}, v{addr}, v{val}")
    k.e("s_waitcnt lgkmcnt(0)")
    k.e(f"v_add_f32 v{val}, v{val}, v{tmp}")


def slotmap_v(k, dd, out, t0, t1):
    k.e(f"v_and_b32 v{out}, 0x23, v{dd}")
    k.e(f"v_bfe_u32 v{t0}, v{dd}, 2, 1")
    k.e(f"v_lshl_or_b32 v{out}, v{t0}, 4, v{out}")
    k.e(f"v_bfe_u32 v{t0}, v{dd}, 3, 2")
    k.e(f"v_lshl_or_b32 v{out}, v{t0}, 2, v{out}")
    k.e(f"v_cmp_gt_u32 vcc, 64, v{dd}")
    k.e("s_nop 1")
    k.e(f"v_cndmask_b32 v{out}, v{dd}, v{out}, vcc")


NA_, NB_, NC_, ND_ = 64, 36, 144, 144


def gen_k0():
    k = Kern("k0_kernel", 64, 0, 64)
    total = NA_ + NB_ + NC_ + ND_
    Lend = "k0_end"
    k.e(f"s_cmp_ge_u32 s2, {total}")
    k.e(f"s_cbranch_scc1 {Lend}")
    k.e("s_load_dwordx2 s[4:5], s[0:1], 0")
    k.e("s_load_dwordx4 s[8:11], s[0:1], 24")
    k.e("s_load_dwordx4 s[12:15], s[0:1], 48")
    k.e("s_load_dwordx2 s[16:17], s[0:1], 64")
    k.e("s_load_dwordx2 s[18:19], s[0:1], 88")
    k.e("v_lshrrev_b32 v1, 6, v0")
    k.e("v_and_b32 v2, 63, v0")
    k.e("v_readfirstlane_b32 s20, v1")
    k.e("s_waitcnt lgkmcnt(0)")
    k.e(f"s_cmp_lt_u32 s2, {NC_}")
    k.e("s_cbranch_scc1 k0_roleC")
    k.e(f"s_cmp_lt_u32 s2, {NC_ + ND_}")
    k.e("s_cbranch_scc1 k0_roleD")
    k.e(f"s_cmp_lt_u32 s2, {NC_ + ND_ + NA_}")
    k.e("s_cbranch_scc1 k0_roleA")
    k.e("s_branch k0_roleB")

    k.label("k0_roleA")
    k.e(f"s_sub_u32 s21, s2, {NC_ + ND_}")
    k.srd_ptr(24, 4, XC_SZ)
    k.srd_ws(28, 18, "XC0")
    k.srd_ws(32, 18, "ST0")
    k.e("v_and_b32 v3, 31, v0")
    k.e("v_lshrrev_b32 v4, 5, v0")
    k.e("v_and_b32 v5, 3, v3")
    k.e("v_bfe_u32 v6, v3, 2, 2")
    k.e("v_lshl_or_b32 v5, v6, 3, v5")
    k.e("v_bfe_u32 v6, v3, 4, 1")
    k.e("v_lshl_or_b32 v5, v6, 2, v5")
    k.e("s_movk_i32 s22, 1152")
    k.e("v_mul_lo_u32 v5, v5, s22")
    k.e("v_mul_u32_u24 v6, 144, v4")
    k.e("v_add_u32 v5, v5, v6")
    k.e("s_mul_i32 s23, s21, 36864")
    for it in range(9):
        k.e(f"buffer_load_dwordx4 v[{16+4*it}:{19+4*it}], v5, s[24:27], s23 offen offset:{16*it}")
    k.e("v_mul_u32_u24 v6, 4608, v4")
    k.e("v_lshl_add_u32 v6, v3, 4, v6")
    k.e("v_add_u32 v7, 2048, v6")
    k.e("v_mov_b32 v8, 0")
    k.e("v_mov_b32 v9, 0")
    k.e("s_waitcnt vmcnt(0)")
    for it in range(9):
        vo, im = (6, it * 512) if it < 4 else (7, (it - 4) * 512)
        k.e(f"buffer_store_dwordx4 v[{16+4*it}:{19+4*it}], v{vo}, s[28:31], s23 offen offset:{im}")
    for r in range(36):
        unpack_sum(k, 16 + r, 10, 11, 8, 9)
    k.e("v_lshlrev_b32 v12, 3, v3")
    k.e("v_lshl_add_u32 v12, v4, 15, v12")
    k.e("s_lshl_b32 s23, s21, 8")
    k.e("v_mov_b32 v10, 0")
    k.e("v_mov_b32 v11, 0")
    k.e("buffer_store_dwordx2 v[8:9], v12, s[32:35], s23 offen")
    k.e("v_add_u32 v12, 16384, v12")
    k.e("buffer_store_dwordx2 v[10:11], v12, s[32:35], s23 offen")
    k.e(f"s_branch {Lend}")

    k.label("k0_roleB")
    k.e(f"s_sub_u32 s21, s2, {NC_ + ND_ + NA_}")
    k.e("s_cmp_ge_u32 s21, 18")
    k.e("s_cselect_b32 s22, 1, 0")
    k.e("s_cselect_b32 s4, s10, s8")
    k.e("s_cselect_b32 s5, s11, s9")
    k.e("s_mul_i32 s23, s22, 18")
    k.e("s_sub_u32 s21, s21, s23")
    k.srd_ptr(24, 4, D * D * 2)
    k.srd_ws(28, 18, "RS")
    k.e("s_lshl_b32 s23, s21, 5")
    k.e("s_lshl_b32 s36, s20, 3")
    k.e("s_add_u32 s23, s23, s36")
    k.e("v_lshrrev_b32 v3, 3, v2")
    k.e("v_add_u32 v3, s23, v3")
    k.e("v_and_b32 v4, 7, v2")
    k.e("s_movk_i32 s36, 1152")
    k.e("v_mul_lo_u32 v5, v3, s36")
    k.e("v_lshl_add_u32 v5, v4, 4, v5")
    for it in range(9):
        k.e(f"buffer_load_dwordx4 v[{16+4*it}:{19+4*it}], v5, s[24:27], 0 offen offset:{128*it}")
    k.e("v_mov_b32 v8, 0")
    k.e("s_waitcnt vmcnt(0)")
    for r in range(36):
        unpack_sum(k, 16 + r, 10, 11, 8, None)
    for m in (1, 2, 4):
        xlane_add(k, 8, 10, 11, 2, m)
    k.e("v_mul_u32_u24 v6, 911, v3")
    k.e("v_lshrrev_b32 v6, 16, v6")
    k.e("v_mul_u32_u24 v7, 72, v6")
    k.e("v_sub_u32 v7, v3, v7")
    slotmap_v(k, 7, 12, 13, 14)
    k.e("v_mul_u32_u24 v6, 80, v6")
    k.e("v_add_u32 v6, v6, v12")
    k.e("v_lshlrev_b32 v6, 2, v6")
    k.e("s_mul_i32 s23, s22, 2560")
    k.e("v_cmp_eq_u32 vcc, 0, v4")
    k.e("s_and_saveexec_b64 s[38:39], vcc")
    k.e("buffer_store_dword v8, v6, s[28:31], s23 offen")
    k.e(f"s_branch {Lend}")

    k.label("k0_roleC")
    k.e("s_cmp_ge_u32 s2, 72")
    k.e("s_cselect_b32 s22, 1, 0")
    k.e("s_cselect_b32 s4, s14, s12")
    k.e("s_cselect_b32 s5, s15, s13")
    k.e("s_mul_i32 s23, s22, 72")
    k.e("s_sub_u32 s21, s2, s23")
    k.srd_ptr(24, 4, D * F * 2)
    k.srd_ws(28, 18, "WGU")
    k.srd_ws(32, 18, "CS")
    k.e("v_lshrrev_b32 v3, 3, v2")
    k.e("v_and_b32 v4, 7, v2")
    k.e("v_mul_u32_u24 v5, 9216, v3")
    k.e("v_lshl_add_u32 v5, v4, 4, v5")
    k.e("s_mul_i32 s36, s20, 73728")
    k.e("s_lshl_b32 s37, s21, 7")
    k.e("s_add_u32 s36, s36, s37")
    k.e("s_lshl_b32 s37, s20, 10")
    for i in range(18):
        k.e(f"s_add_u32 m0, s37, {4096*i}")
        k.e("s_nop 0")
        k.e("buffer_load_dwordx4 v5, s[24:27], s36 offen lds")
        k.e(f"s_add_u32 s36, s36, {4*73728}")
    k.e("v_lshrrev_b32 v3, 4, v2")
    k.e("v_and_b32 v4, 15, v2")
    k.e("v_bfe_u32 v6, v2, 2, 2")
    k.e("v_lshlrev_b32 v7, 10, v3")
    k.e("v_lshl_add_u32 v7, v6, 7, v7")
    k.e("v_and_b32 v6, 1, v2")
    k.e("v_lshl_add_u32 v7, v6, 4, v7")
    k.e("v_bfe_u32 v6, v2, 1, 1")
    k.e("v_lshl_add_u32 v7, v6, 3, v7")
    k.e("s_lshl_b32 s36, s20, 5")
    k.e("v_add_u32 v7, s36, v7")
    k.e("v_add_u32 v8, 0x8000, v7")
    k.e("s_lshl_b32 s36, s21, 2")
    k.e("s_add_u32 s36, s36, s20")
    k.e("s_mul_i32 s37, s36, 7282")
    k.e("s_lshr_b32 s37, s37, 16")
    k.e("s_mul_i32 s38, s37, 9")
    k.e("s_sub_u32 s38, s36, s38")
    k.e(f"s_mul_i32 s39, s37, {WGU_CB}")
    k.e("s_lshl_b32 s38, s38, 10")
    k.e("s_add_u32 s39, s39, s38")
    k.e("s_lshl_b32 s38, s22, 8")
    k.e("s_add_u32 s39, s39, s38")
    k.e("v_lshrrev_b32 v9, 1, v3")
    k.e("v_mul_u32_u24 v9, 9216, v9")
    k.e("v_and_b32 v6, 1, v3")
    k.e("v_lshl_add_u32 v9, v6, 9, v9")
    k.e("v_lshl_add_u32 v9, v4, 4, v9")
    k.e("v_mov_b32 v10, 0")
    k.e("s_waitcnt vmcnt(0)")
    k.e("s_barrier")
    for it in range(18):
        base, im = (7, it * 4096) if it < 8 else (8, (it - 8) * 4096)
        rg = 16 + 4 * (it % 8)
        k.e(f"ds_read_b64_tr_b16 v[{rg}:{rg+1}], v{base} offset:{im}")
        k.e(f"ds_read_b64_tr_b16 v[{rg+2}:{rg+3}], v{base} offset:{im+512}")
        k.e("s_waitcnt lgkmcnt(0)")
        k.e(f"buffer_store_dwordx4 v[{rg}:{rg+3}], v9, s[28:31], s39 offen")
        k.e(f"s_add_u32 s39, s39, 18432")
        for r in range(4):
            unpack_sum(k, rg + r, 11, 12, 10, None)
        if it % 8 == 7:
            k.e("s_waitcnt vmcnt(0)")
    xlane_add(k, 10, 11, 12, 2, 16)
    xlane_add(k, 10, 11, 12, 2, 32)
    k.e("v_cvt_pk_bf16_f32 v11, v10, v10")
    k.e("v_lshlrev_b32 v12, 16, v11")
    k.e("v_sub_f32 v13, v10, v12")
    k.e("v_cvt_pk_bf16_f32 v14, v13, v13")
    k.e("v_lshlrev_b32 v15, 16, v14")
    k.e("v_sub_f32 v13, v13, v15")
    k.e("v_cvt_pk_bf16_f32 v17, v13, v13")
    k.e("v_and_b32 v17, 0xffff, v17")
    k.e("v_and_b32 v16, 0xffff, v11")
    k.e("v_or_b32 v16, v16, v15")
    k.e("v_mov_b32 v18, 0")
    k.e("v_mov_b32 v19, 0")
    k.e("v_cmp_gt_u32 vcc, 16, v2")
    k.e("s_nop 1")
    k.e("v_cndmask_b32 v16, 0, v16, vcc")
    k.e("v_cndmask_b32 v17, 0, v17, vcc")
    k.e("v_lshlrev_b32 v11, 4, v4")
    k.e("v_lshl_add_u32 v11, v3, 9, v11")
    k.e("v_cmp_gt_u32 vcc, 32, v2")
    k.e("s_and_saveexec_b64 s[40:41], vcc")
    k.e("buffer_store_dwordx4 v[16:19], v11, s[28:31], s39 offen")
    k.e(f"s_branch {Lend}")

    k.label("k0_roleD")
    k.e(f"s_sub_u32 s21, s2, {NC_}")
    k.e("s_mul_i32 s22, s21, 7282")
    k.e("s_lshr_b32 s22, s22, 16")
    k.e("s_mul_i32 s23, s22, 9")
    k.e("s_sub_u32 s21, s21, s23")
    k.srd_ptr(24, 16, D * F * 2)
    k.srd_ws(28, 18, "WD")
    k.e("v_lshrrev_b32 v3, 3, v2")
    k.e("v_and_b32 v4, 7, v2")
    k.e("v_mul_u32_u24 v5, 1152, v3")
    k.e("v_lshl_add_u32 v5, v4, 4, v5")
    k.e(f"s_mul_i32 s36, s22, {288*1152}")
    k.e("s_mul_i32 s37, s20, 9216")
    k.e("s_add_u32 s36, s36, s37")
    k.e("s_lshl_b32 s37, s21, 7")
    k.e("s_add_u32 s36, s36, s37")
    k.e("s_lshl_b32 s37, s20, 10")
    for i in range(9):
        k.e(f"s_add_u32 m0, s37, {4096*i}")
        k.e("s_nop 0")
        k.e("buffer_load_dwordx4 v5, s[24:27], s36 offen lds")
        k.e(f"s_add_u32 s36, s36, {4*9216}")
    k.e("v_lshrrev_b32 v3, 4, v2")
    k.e("v_and_b32 v4, 15, v2")
    k.e("v_bfe_u32 v6, v2, 2, 2")
    k.e("v_lshlrev_b32 v7, 10, v3")
    k.e("v_lshl_add_u32 v7, v6, 7, v7")
    k.e("v_and_b32 v6, 3, v2")
    k.e("v_lshl_add_u32 v7, v6, 3, v7")
    k.e("s_lshl_b32 s36, s20, 5")
    k.e("v_add_u32 v7, s36, v7")
    k.e("s_lshl_b32 s36, s21, 6")
    k.e("s_lshl_b32 s37, s20, 4")
    k.e("s_add_u32 s36, s36, s37")
    k.e("v_add_u32 v8, s36, v4")
    k.e("v_mul_u32_u24 v9, 911, v8")
    k.e("v_lshrrev_b32 v9, 16, v9")
    k.e("v_mul_u32_u24 v10, 72, v9")
    k.e("v_sub_u32 v10, v8, v10")
    slotmap_v(k, 10, 11, 12, 13)
    k.e("s_mov_b32 s36, 663552")
    k.e("v_mul_lo_u32 v9, v9, s36")
    k.e("v_lshl_add_u32 v9, v11, 4, v9")
    k.e("v_mul_u32_u24 v12, 1152, v3")
    k.e("v_add_u32 v9, v9, v12")
    k.e(f"s_mul_i32 s39, s22, {36*1152}")
    k.e("s_waitcnt vmcnt(0)")
    k.e("s_barrier")
    for it in range(9):
        rg = 16 + 4 * it
        k.e(f"ds_read_b64_tr_b16 v[{rg}:{rg+1}], v7 offset:{it*4096}")
        k.e(f"ds_read_b64_tr_b16 v[{rg+2}:{rg+3}], v7 offset:{it*4096+512}")
    for it in range(9):
        rg = 16 + 4 * it
        k.e(f"s_waitcnt lgkmcnt({min(15, 2*(8-it))})")
        k.e(f"buffer_store_dwordx4 v[{rg}:{rg+3}], v9, s[28:31], s39 offen")
        k.e(f"s_add_u32 s39, s39, 4608")
    k.label(Lend)
    return k, total, 256, 73728


def srd_ws_s(k, d, wsbase, sreg, size):
    k.e(f"s_add_u32 s{d}, s{wsbase}, s{sreg}")
    k.e(f"s_addc_u32 s{d+1}, s{wsbase+1}, 0")
    k.e(f"s_and_b32 s{d+1}, s{d+1}, 0xffff")
    k.e(f"s_mov_b32 s{d+2}, {size}")
    k.e(f"s_mov_b32 s{d+3}, 0x00020000")


def ktext(k, entries):
    tot = k.nvgpr if k.nagpr == 0 else (k.nvgpr + 3) // 4 * 4 + k.nagpr
    acc = (k.nvgpr + 3) // 4 * 4
    out, descs = [], []
    for name, ins in entries:
        out += [f".globl {name}", ".p2align 8", f".type {name},@function", f"{name}:"]
        out += [" " + x for x in ins]
        out += [f" s_branch {k.name}_body"]
        descs.append("\n".join([f".amdhsa_kernel {name}",
                f"  .amdhsa_next_free_vgpr {tot}",
                f"  .amdhsa_next_free_sgpr {100 if PROF else k.nsgpr}",
                f"  .amdhsa_accum_offset {acc}",
                "  .amdhsa_group_segment_fixed_size 0",
                "  .amdhsa_kernarg_size 96",
                "  .amdhsa_user_sgpr_count 2",
                "  .amdhsa_user_sgpr_kernarg_segment_ptr 1",
                "  .amdhsa_system_sgpr_workgroup_id_x 1",
                ".end_amdhsa_kernel"]))
    out += [".p2align 6", f"{k.name}_body:"]
    out += [x.replace("    ", " ", 1) for x in k.L]
    out += [" s_endpgm"]
    return "\n".join(out), descs


CPRE = int(os.environ.get("CPRE", "0"))


def code_prefetch(k, name, dummy, srd, vtmp, nwaves, swave, track=True):
    if not CPRE:
        return
    lab = k.newlabel("pc")
    k.e(f"s_getpc_b64 s[{srd}:{srd+1}]")
    k.label(lab)
    k.e(f"s_sub_u32 s{srd}, s{srd}, {lab}-{name}_body")
    k.e(f"s_subb_u32 s{srd+1}, s{srd+1}, 0")
    k.e(f"s_and_b32 s{srd+1}, s{srd+1}, 0xffff")
    k.e(f"s_mov_b32 s{srd+2}, {name}_end-{name}_body")
    k.e(f"s_mov_b32 s{srd+3}, 0x00020000")
    k.e(f"v_lshlrev_b32 v{vtmp}, 4, v0")
    k.e("s_bfe_u32 s3, s2, 0x20003")
    k.e(f"s_mul_i32 s3, s3, {nwaves*1024}")
    for j in range(CPRE):
        ins = f"buffer_load_dwordx4 v[{dummy}:{dummy+3}], v{vtmp}, s[{srd}:{srd+3}], s3 offen"
        if track:
            k.vm(ins, "cp")
        else:
            k.e(ins)
        if j + 1 < CPRE:
            k.e(f"s_add_u32 s3, s3, {4*nwaves*1024}")


def flag_srd(k):
    k.srd_ws(76, 18, "FLG")


def poll(k, name, soff, nlanes, vaddr, vtmp, skip_if_neg=None):
    lab = k.newlabel("pl")
    if skip_if_neg is not None:
        k.e(f"s_cmp_lt_i32 s{skip_if_neg}, 0")
        k.e(f"s_cbranch_scc1 {lab}x")
    k.e("s_mov_b32 s3, 0")
    if nlanes < 64:
        k.e(f"s_mov_b64 exec, {(1 << nlanes) - 1 if nlanes < 32 else 0xffffffff}")
        if nlanes == 32:
            k.e("s_mov_b32 exec_hi, 0")
    k.label(lab)
    k.e(f"buffer_load_dword v{vtmp}, v{vaddr}, s[76:79], s{soff} offen sc1")
    k.e("s_add_u32 s3, s3, 1")
    k.e("s_waitcnt vmcnt(0)")
    k.e(f"v_cmp_ne_u32 vcc, s101, v{vtmp}")
    k.e("s_cmp_ge_u32 s3, 0x40000")
    k.e(f"s_cbranch_scc1 {lab}y")
    k.e("s_cmp_eq_u64 vcc, 0")
    k.e(f"s_cbranch_scc1 {lab}y")
    k.e("s_sleep 3")
    k.e(f"s_branch {lab}")
    k.label(lab + "y")
    k.e("s_mov_b64 exec, -1")
    k.label(lab + "x")


def publish(k, soff, v1_, v2_):
    k.e("s_mov_b64 exec, -1")
    k.e(f"v_mov_b32 v{v1_}, s101")
    k.e(f"v_mov_b32 v{v2_}, 0")
    k.e("s_waitcnt vmcnt(0)")
    k.vq = []
    k.e("s_mov_b64 exec, 1")
    k.e(f"buffer_store_dword v{v1_}, v{v2_}, s[76:79], s{soff} offen sc1")
    k.e("s_mov_b64 exec, -1")


def dbg_srd(k, d):
    k.e(f"s_load_dwordx2 s[{d}:{d+1}], s[0:1], 80")
    k.e("s_waitcnt lgkmcnt(0)")
    k.e(f"s_and_b32 s{d+1}, s{d+1}, 0xffff")
    k.e(f"s_mov_b32 s{d+2}, 256")
    k.e(f"s_mov_b32 s{d+3}, 0x00020000")


def dbg_add(k, d, word0, v1_, v2_, wait=True):
    k.e("s_mov_b64 exec, -1")
    k.e(f"v_mov_b32 v{v1_}, 1")
    k.e(f"v_mov_b32 v{v2_}, 0")
    k.e("s_and_b32 s3, s2, 15")
    k.e("s_lshl_b32 s3, s3, 2")
    if wait:
        k.e("s_waitcnt vmcnt(0)")
    k.e("s_mov_b64 exec, 1")
    k.e(f"buffer_atomic_add v{v1_}, v{v2_}, s[{d}:{d+3}], s3 offen offset:{4*word0} sc1")
    k.e("s_mov_b64 exec, -1")


def dbg_wait(k, d, word0, val, vaddr, vtmp, skip_sgpr=None):
    lab = k.newlabel("dw")
    if skip_sgpr is not None:
        k.e(f"s_cmp_lg_u32 s{skip_sgpr[0]}, {skip_sgpr[1]}")
        k.e(f"s_cbranch_scc1 {lab}x")
    dbg_srd(k, d)
    k.e("s_mov_b32 s3, 0")
    k.e("s_mov_b64 exec, 0xffff")
    k.label(lab)
    k.e(f"buffer_load_dword v{vtmp}, v{vaddr}, s[{d}:{d+3}], 0 offen offset:{4*word0} sc1")
    k.e("s_add_u32 s3, s3, 1")
    k.e("s_waitcnt vmcnt(0)")
    k.e(f"v_cmp_ne_u32 vcc, {val}, v{vtmp}")
    k.e("s_cmp_ge_u32 s3, 0x40000")
    k.e(f"s_cbranch_scc1 {lab}y")
    k.e("s_cmp_eq_u64 vcc, 0")
    k.e(f"s_cbranch_scc1 {lab}y")
    k.e("s_sleep 8")
    k.e(f"s_branch {lab}")
    k.label(lab + "y")
    k.e("s_mov_b64 exec, -1")
    k.label(lab + "x")


def get_nonce(k, d, v1_, v2_):
    lab = k.newlabel("gn")
    dbg_srd(k, d)
    k.e("s_mov_b64 exec, -1")
    k.e(f"v_mov_b32 v{v1_}, 0")
    k.e("s_mov_b32 s3, 0")
    k.e("s_mov_b64 exec, 1")
    k.label(lab)
    k.e(f"buffer_load_dword v{v2_}, v{v1_}, s[{d}:{d+3}], 0 offen sc1")
    k.e("s_add_u32 s3, s3, 1")
    k.e("s_waitcnt vmcnt(0)")
    k.e(f"v_readfirstlane_b32 s101, v{v2_}")
    k.e("s_cmp_ge_u32 s3, 0x40000")
    k.e(f"s_cbranch_scc1 {lab}y")
    k.e("s_cmp_lg_u32 s101, 0")
    k.e(f"s_cbranch_scc1 {lab}y")
    k.e("s_sleep 8")
    k.e(f"s_branch {lab}")
    k.label(lab + "y")
    k.e("s_mov_b64 exec, -1")
    k.e("s_nop 1")

def stats_load(k, base, vaddr, srd, soff, tag=None):
    for i in range(8):
        k.e(f"s_add_u32 s57, s{soff}, {i*16384}")
        ins = f"buffer_load_dwordx2 v[{base+2*i}:{base+2*i+1}], v{vaddr}, s[{srd}:{srd+3}], s57 offen sc1"
        if tag is None:
            k.e(ins)
        else:
            k.vm(ins, tag)


def stats_finish(k, base, vm_, vsd, t0, t1, t2):
    for j in range(1, 8):
        k.e(f"v_add_f32 v{base}, v{base}, v{base+2*j}")
        k.e(f"v_add_f32 v{base+1}, v{base+1}, v{base+2*j+1}")
    k.e(f"v_mov_b32 v{base+2}, v{base}")
    k.e(f"v_mov_b32 v{base+3}, v{base+1}")
    k.e("s_nop 1")
    k.e(f"v_permlane32_swap_b32 v{base}, v{base+2}")
    k.e(f"v_permlane32_swap_b32 v{base+1}, v{base+3}")
    k.e("s_nop 1")
    k.e(f"v_add_f32 v{base}, v{base}, v{base+2}")
    k.e(f"v_add_f32 v{base+1}, v{base+1}, v{base+3}")
    stats_core(k, base, vm_, vsd, t0, t1, t2)


def stats_core(k, base, vm_, vsd, t0, t1, t2):
    k.e(f"v_mov_b32 v{t0}, 0x3ae38e39")
    k.e(f"v_mul_f32 v{t1}, v{base}, v{t0}")
    k.e(f"v_mul_f32 v{t2}, v{base+1}, v{t0}")
    k.e(f"v_fma_f32 v{t2}, -v{t1}, v{t1}, v{t2}")
    k.e(f"v_max_f32 v{t2}, 0, v{t2}")
    k.e(f"v_cvt_pk_bf16_f32 v{t0}, v{t1}, v{t2}")
    k.e(f"v_lshlrev_b32 v{vm_}, 16, v{t0}")
    k.e(f"v_and_b32 v{t2}, 0xffff0000, v{t0}")
    k.e(f"v_add_f32 v{t2}, 0x3727c5ac, v{t2}")
    k.e(f"v_cvt_pk_bf16_f32 v{t0}, v{t2}, v{t2}")
    k.e(f"v_lshlrev_b32 v{t2}, 16, v{t0}")
    k.e(f"v_sqrt_f32 v{t2}, v{t2}")
    k.e("s_nop 0")
    k.e(f"v_cvt_pk_bf16_f32 v{t0}, v{t2}, v{t2}")
    k.e(f"v_lshlrev_b32 v{vsd}, 16, v{t0}")


NPF = int(os.environ.get('NPF', '0'))
STP = os.environ.get("STP", "sc1")


def gen_kh_full(first):
    name = "kh1" if first else "kh"
    k = Kern(name, 256, 0, 92)
    Lend = name + "_end"
    LDS_W = 8 * 9216
    SCR = LDS_W + 1024
    total = 256
    RPK = 77824
    if not first:
        k.e("s_mov_b64 exec, -1")
        k.e("s_barrier")
    k.e("s_load_dwordx4 s[8:11], s[0:1], 24")
    k.e("s_load_dwordx2 s[18:19], s[0:1], 88")
    if first:
        k.e("s_load_dwordx2 s[6:7], s[0:1], 0")
        k.e("s_load_dwordx4 s[12:15], s[0:1], 48")
        k.e("s_load_dwordx2 s[16:17], s[0:1], 64")
        k.e("s_load_dwordx4 s[60:63], s[0:1], 8")
    k.e("v_lshrrev_b32 v1, 6, v0")
    k.e("v_and_b32 v2, 63, v0")
    k.e("v_readfirstlane_b32 s20, v1")
    k.e("s_and_b32 s21, s2, 7")
    k.e("s_lshr_b32 s22, s2, 3")
    k.e("s_lshl_b32 s21, s21, 1")
    k.e("s_and_b32 s23, s22, 1")
    k.e("s_add_u32 s21, s21, s23")
    k.e("s_mov_b32 s55, s21")
    k.e("s_lshr_b32 s22, s22, 1")
    k.e("s_mov_b32 s54, s22")
    k.e("s_and_b32 s23, s22, 7")
    k.e("s_lshr_b32 s22, s22, 3")
    k.e("s_lshl_b32 s21, s21, 2")
    k.e("s_add_u32 s21, s21, s20")
    k.e("s_waitcnt lgkmcnt(0)")
    k.stamp(0)
    flag_srd(k)
    if first:
        k.e("s_lshl_b32 s3, s2, 3")
        k.e("s_add_u32 s3, s3, s20")
        k.e("s_cmp_lg_u32 s3, 7")
        k.e(f"s_cbranch_scc1 {name}_nononce")
        k.e("s_memrealtime s[4:5]")
        dbg_srd(k, 24)
        k.e("s_or_b32 s4, s4, 1")
        k.e("v_mov_b32 v3, s4")
        k.e("v_mov_b32 v4, 0")
        k.e("s_mov_b64 exec, 1")
        k.e("buffer_store_dword v3, v4, s[24:27], 0 offen sc1")
        k.e("s_mov_b64 exec, -1")
        k.label(f"{name}_nononce")
    else:
        k.e("s_cmp_ge_u32 s20, 4")
        k.e(f"s_cbranch_scc1 {name}_idle")
    if first:
        k.e("s_cmp_ge_u32 s20, 4")
        k.e(f"s_cbranch_scc1 {name}_rep")
    k.e("s_cmp_eq_u32 s22, 1")
    k.e("s_cselect_b32 s4, s10, s8")
    k.e("s_cselect_b32 s5, s11, s9")
    k.srd_ptr(24, 4, D * D * 2)
    if first:
        k.srd_ptr(28, 6, XC_SZ)
        k.srd_ws(32, 18, "XC0")
    else:
        srd_ws_s(k, 28, 18, 70, XC_SZ)
        srd_ws_s(k, 32, 18, 71, ST_SZ)
    k.srd_ws(36, 18, "RS")
    srd_ws_s(k, 40, 18, 72, AB_SZ)
    k.e("v_lshrrev_b32 v3, 3, v2")
    k.e("v_and_b32 v4, 7, v2")
    k.e("v_lshrrev_b32 v5, 1, v3")
    k.e("v_xor_b32 v5, v5, v4")
    k.e("v_lshlrev_b32 v5, 4, v5")
    k.e("v_lshrrev_b32 v6, 2, v3")
    k.e("v_and_b32 v7, 3, v3")
    k.e("v_lshl_add_u32 v6, v6, 3, v7")
    k.e("v_mul_u32_u24 v6, 1152, v6")
    k.e("v_add_u32 v8, v6, v5")
    k.e("v_xor_b32 v7, 64, v5")
    k.e("v_add_u32 v9, v6, v7")
    k.e("v_mul_u32_u24 v6, 1152, v3")
    k.e("v_add_u32 v10, v6, v5")
    k.e("v_and_b32 v11, 15, v2")
    k.e("v_lshrrev_b32 v12, 4, v2")
    k.e("v_lshlrev_b32 v13, 9, v12")
    k.e("v_lshl_add_u32 v13, v11, 4, v13")
    k.e(f"s_mul_i32 s48, s23, {72*1152}")
    k.e("s_lshl_b32 s49, s20, 7")
    k.e("s_add_u32 s48, s48, s49")
    k.e("s_mul_i32 s49, s20, 9216")
    qc = lambda q: (32 * (q >> 2) + 16 * (q & 1) + 4 * ((q >> 1) & 1)) * 1152 if q < 8 else 64 * 1152

    def dma_kq(tag, track=True):
        for q in range(9):
            v = 8 + (q & 1) if q < 8 else 10
            k.e(f"s_add_u32 m0, s49, {1024*q}")
            k.e(f"s_add_u32 s50, s48, {qc(q)}")
            ins = f"buffer_load_dwordx4 v{v}, s[24:27], s50 offen lds"
            if track:
                k.vm(ins, tag)
            else:
                k.e(ins)
        k.e("s_add_u32 s48, s48, 512")
        k.e(f"s_add_u32 s49, s49, {4*9216}")

    AFR = 12
    AF = 16
    if first:
        k.e("v_lshrrev_b32 v14, 4, v2")
        k.e("v_bfe_u32 v15, v2, 2, 2")
        k.e("v_lshl_add_u32 v14, v14, 3, v15")
        k.e("v_mul_u32_u24 v14, 1152, v14")
        k.e("v_and_b32 v15, 3, v2")
        k.e("v_lshl_add_u32 v14, v15, 4, v14")
        k.e("v_add_u32 v15, 4608, v14")
        k.e("v_lshl_add_u32 v7, v11, 2, v12")
        k.e("s_lshl_b32 s50, s20, 11")
        k.e(f"s_add_u32 s50, s50, {RPK + 73728}")
        k.e("v_lshl_add_u32 v7, v7, 4, s50")
        k.e("v_lshl_add_u32 v5, v2, 4, s50")
    k.e("s_mul_i32 s44, s21, 36864")
    k.e("s_mov_b32 s45, s44")
    k.e("s_mov_b32 s46, s44")

    def aload(kb):
        for u in range(2):
            rg = AF + ((kb % AFR) * 2 + u) * 4
            if first:
                k.vm(f"buffer_load_dwordx4 v[{rg}:{rg+3}], v{14+u}, s[28:31], s44 offen offset:{64*kb}", ("a", kb))
            else:
                if kb % 2 == 0 and kb > 0 and u == 0:
                    k.e("s_add_u32 s45, s45, 4096")
                k.vm(f"buffer_load_dwordx4 v[{rg}:{rg+3}], v13, s[28:31], s45 offen offset:{(kb%2)*2048 + u*256} sc1", ("a", kb))

    dma_kq("w0")
    if not first:
        dma_kq("w1")
        k.e("v_lshlrev_b32 v1, 2, v2")
        k.e("s_lshl_b32 s47, s21, 7")
        k.e("s_add_u32 s47, s47, s64")
        poll(k, name, 47, 32, 1, 230)
        k.vq = []
    aload(0); aload(1)
    if first:
        dma_kq("w1")
    APRE = 11 if first else 6
    for kb_ in range(2, APRE):
        aload(kb_)
    ACC = 152
    for a in range(60 if first else 40):
        k.e(f"v_mov_b32 v{ACC+a}, 0")
    ONE = 212
    if first:
        for a in range(4):
            k.e(f"v_mov_b32 v{ONE+a}, 0x3f803f80")
        for a in list(range(220, 228)) + list(range(248, 256)):
            k.e(f"v_mov_b32 v{a}, 0")
    k.e("v_lshrrev_b32 v1, 1, v11")
    k.e("v_xor_b32 v1, v1, v12")
    k.e("v_lshlrev_b32 v1, 4, v1")
    k.e("v_lshl_add_u32 v216, v11, 7, v1")
    k.e("v_xor_b32 v217, 64, v216")
    k.e(f"v_add_u32 v218, {5*9216}, v216")
    k.e(f"v_add_u32 v219, {5*9216}, v217")
    if not first:
        k.e("v_and_b32 v224, 31, v2")
        k.e("v_lshrrev_b32 v225, 5, v2")
        k.e("v_lshlrev_b32 v225, 17, v225")
        k.e("v_lshl_add_u32 v225, v224, 3, v225")
        k.e("s_lshl_b32 s53, s21, 8")
        k.e("s_mul_i32 s47, s54, 320")
        k.e("v_lshlrev_b32 v226, 2, v11")
    k.stamp(1)
    k.wait_vm("w0")
    k.e("s_barrier")
    k.stamp(2)
    sets = [112, 132]

    def bread(kb):
        kq, half = (kb >> 1) % 8, kb & 1
        base = 216 + half + (2 if kq >= 5 else 0)
        kq_ = kq - 5 if kq >= 5 else kq
        sb = sets[kb & 1]
        for T in range(5):
            k.ds(f"ds_read_b128 v[{sb+4*T}:{sb+4*T+3}], v{base} offset:{kq_*9216 + T*2048}", ("b", kb))
    def aperm(kb):
        k.wait_vm(("a", kb))
        for u in range(2):
            rg = AF + ((kb % AFR) * 2 + u) * 4
            k.ds(f"ds_write_b128 v5, v[{rg}:{rg+3}] offset:{u*1024}", ("pw", kb))
        for u in range(2):
            rg = AF + ((kb % AFR) * 2 + u) * 4
            k.ds(f"ds_read_b128 v[{rg}:{rg+3}], v7 offset:{u*1024}", ("p", kb))
    if first:
        aperm(0)
    bread(0)
    for kb in range(18):
        if kb == 7:
            k.wait_vm("w1")
            k.e("s_barrier")
            k.e("s_and_b32 s50, s20, 1")
            k.e("s_cmp_eq_u32 s50, 1")
            k.e("s_cselect_b64 vcc, -1, 0")
            k.e("v_cndmask_b32 v1, v8, v9, vcc")
            k.e("s_lshl_b32 s50, s50, 4")
            k.e("s_lshr_b32 s51, s20, 1")
            k.e("s_lshl_b32 s51, s51, 2")
            k.e("s_add_u32 s50, s50, s51")
            k.e("s_mul_i32 s50, s50, 1152")
            k.e(f"s_mul_i32 s48, s23, {72*1152}")
            k.e("s_add_u32 s48, s48, 1024")
            k.e("s_add_u32 s50, s50, s48")
            k.e("s_lshl_b32 s51, s20, 10")
            k.e("s_mov_b32 m0, s51")
            k.e("s_nop 0")
            k.vm("buffer_load_dwordx4 v1, s[24:27], s50 offen lds", "w2")
            k.e("s_add_u32 m0, s51, 4096")
            k.e(f"s_add_u32 s50, s50, {32*1152}")
            k.vm("buffer_load_dwordx4 v1, s[24:27], s50 offen lds", "w2")
            k.e("s_mov_b32 m0, 8192")
            k.e(f"s_add_u32 s50, s48, {64*1152}")
            k.e("s_lshl_b32 s51, s20, 4")
            k.e("s_mov_b64 exec, 0xffff")
            k.e("s_lshl_b64 exec, exec, s51")
            k.vm("buffer_load_dwordx4 v10, s[24:27], s50 offen lds", "w2")
            k.e("s_mov_b64 exec, -1")
        if kb == 15:
            k.wait_vm("w2")
            k.e("s_barrier")
        if kb + APRE < 18:
            aload(kb + APRE)
        k.wait_ds(("b", kb))
        if kb + 1 < 18:
            if first:
                aperm(kb + 1)
            bread(kb + 1)
        if not first and kb == 14:
            stats_load(k, 16, 225, 32, 53, "st")
            for T in range(5):
                k.vm(f"buffer_load_dword v{192+4*T}, v226, s[36:39], s47 offen offset:{64*T}", "st")
        k.wait_vm(("a", kb))
        k.wait_ds(("b", kb))
        sb = sets[kb & 1]
        for u in range(2):
            af = AF + ((kb % AFR) * 2 + u) * 4
            for T in range(5):
                acc = ACC + (u * 5 + T) * 4
                k.e(f"v_mfma_f32_16x16x32_bf16 v[{acc}:{acc+3}], v[{af}:{af+3}], v[{sb+4*T}:{sb+4*T+3}], v[{acc}:{acc+3}]")
            if first and not os.environ.get("EXP_NOGRAM"):
                k.e(f"v_mfma_f32_16x16x32_bf16 v[{248+4*u}:{251+4*u}], v[{af}:{af+3}], v[{ONE}:{ONE+3}], v[{248+4*u}:{251+4*u}]")
                k.e(f"v_mfma_f32_16x16x32_bf16 v[{220+4*u}:{223+4*u}], v[{af}:{af+3}], v[{af}:{af+3}], v[{220+4*u}:{223+4*u}]")
    k.stamp(3)
    k.e("s_lshl_b32 s50, s20, 8")
    k.e(f"s_add_u32 s50, s50, {SCR}")
    if first:
        k.e("s_nop 7")
        k.e("v_and_b32 v228, 3, v11")
        for u in range(2):
            for base, dst in ((248 + 4 * u, 232 + 2 * u), (220 + 4 * u, 233 + 2 * u)):
                k.e(f"v_mov_b32 v{dst}, v{base}")
                for r in range(1, 4):
                    k.e(f"v_cmp_eq_u32 vcc, {r}, v228")
                    k.e("s_nop 1")
                    k.e(f"v_cndmask_b32 v{dst}, v{dst}, v{base+r}, vcc")
        k.e("v_lshrrev_b32 v229, 2, v11")
        k.e("v_lshl_add_u32 v230, v11, 3, s50")
        k.e("v_cmp_eq_u32 vcc, v229, v12")
        k.e("s_and_saveexec_b64 s[52:53], vcc")
        k.e("ds_write_b64 v230, v[232:233]")
        k.e("ds_write_b64 v230, v[234:235] offset:128")
        k.e("s_mov_b64 exec, -1")
        k.e("v_and_b32 v224, 31, v2")
        k.e("v_lshl_add_u32 v230, v224, 3, s50")
        k.e("s_waitcnt lgkmcnt(0)")
        k.e("ds_read_b64 v[228:229], v230")
        k.e("s_waitcnt lgkmcnt(0)")
        stats_core(k, 228, 232, 233, 234, 235, 236)
    else:
        k.wait_vm("st")
        stats_finish(k, 16, 232, 233, 234, 235, 236)
    k.e("v_rcp_f32 v233, v233")
    k.e("s_nop 0")
    k.e("v_mul_f32 v232, v232, v233")
    k.e("v_lshl_add_u32 v226, v224, 3, s50")
    k.e("ds_write_b64 v226, v[232:233]")
    k.e("v_lshl_add_u32 v226, v12, 5, s50")
    k.e("s_waitcnt lgkmcnt(0)")
    k.lq = []
    if first:
        k.e("s_barrier")
        k.e("v_lshlrev_b32 v227, 2, v11")
        k.e(f"v_add_u32 v227, {SCR + 1024}, v227")
        for T in range(5):
            k.e(f"ds_read_b32 v{ACC+40+4*T}, v227 offset:{64*T}")
    k.e("ds_read_b128 v[232:235], v226")
    k.e("ds_read_b128 v[236:239], v226 offset:16")
    k.e("ds_read_b128 v[240:243], v226 offset:128")
    k.e("ds_read_b128 v[244:247], v226 offset:144")
    k.e("v_mul_u32_u24 v15, 1152, v12")
    k.e("v_lshl_add_u32 v15, v11, 4, v15")
    k.e(f"s_mul_i32 s46, s54, {ABJ}")
    k.e("s_mul_i32 s47, s21, 4608")
    k.e("s_add_u32 s46, s46, s47")
    k.e("s_waitcnt lgkmcnt(0)")
    if first:
        k.e("s_add_u32 s51, s55, s20")
        k.e("s_mul_i32 s47, s54, 320")
        k.e("s_cmp_eq_u32 s51, 0")
        k.e("s_cselect_b32 s47, s47, 0x7f000000")
        k.e("v_lshlrev_b32 v227, 2, v11")
        for T in range(5):
            k.e(f"buffer_store_dword v{ACC+40+4*T}, v227, s[36:39], s47 offen offset:{64*T} sc1")
    for T in range(5):
        a0, a1, rr = ACC + T * 4, ACC + 20 + T * 4, ACC + 40 + T * 4
        for u, a in ((0, a0), (1, a1)):
            for r in range(4):
                sr = 232 + 8 * u + 2 * r
                k.e(f"v_mul_f32 v{a+r}, v{a+r}, v{sr+1}")
                k.e(f"v_fma_f32 v{a+r}, -v{sr}, v{rr}, v{a+r}")
        o = 48 + 4 * T
        k.e(f"v_cvt_pk_bf16_f32 v{o}, v{a0}, v{a0+1}")
        k.e(f"v_cvt_pk_bf16_f32 v{o+1}, v{a0+2}, v{a0+3}")
        k.e(f"v_cvt_pk_bf16_f32 v{o+2}, v{a1}, v{a1+1}")
        k.e(f"v_cvt_pk_bf16_f32 v{o+3}, v{a1+2}, v{a1+3}")
        if T == 4:
            k.e("v_cmp_gt_u32 vcc, 8, v11")
            k.e("s_and_saveexec_b64 s[50:51], vcc")
        k.e(f"buffer_store_dwordx4 v[{o}:{o+3}], v15, s[40:43], s46 offen offset:{256*T} {STP}")
    k.stamp(4)
    if first:
        k.e("s_mov_b64 exec, -1")
        get_nonce(k, 24, 1, 3)
    k.e("s_lshl_b32 s47, s54, 8")
    k.e("s_lshl_b32 s3, s21, 2")
    k.e("s_add_u32 s47, s47, s3")
    k.e(f"s_add_u32 s47, s47, {FH1}" if first else "s_add_u32 s47, s47, s65")
    publish(k, 47, 1, 3)
    if first:
        k.e(f"s_branch {name}_rdone")
        k.label(f"{name}_rep")
        k.e("s_sub_u32 s20, s20, 4")
        k.e("s_cmp_lt_u32 s2, 72")
        k.e("s_cselect_b32 s4, s12, s14")
        k.e("s_cselect_b32 s5, s13, s15")
        k.e("s_cselect_b32 s64, 0, 1")
        k.e("s_cmp_lt_u32 s2, 144")
        k.e("s_cselect_b32 s4, s4, s16")
        k.e("s_cselect_b32 s5, s5, s17")
        k.e("s_movk_i32 s65, 1152")
        k.e("s_cselect_b32 s65, 9216, s65")
        k.e("s_cselect_b32 s66, 1, 0")
        k.srd_ptr(24, 4, D * F * 2)
        k.e("s_mul_i32 s67, s64, 72")
        k.e("s_sub_u32 s67, s2, s67")
        k.e("s_sub_u32 s68, s2, 144")
        k.e("s_mul_i32 s69, s68, 7282")
        k.e("s_lshr_b32 s69, s69, 16")
        k.e("s_mul_i32 s75, s69, 9")
        k.e("s_sub_u32 s68, s68, s75")
        k.e(f"s_mul_i32 s75, s69, {384*1152}")
        k.e("s_lshl_b32 s58, s68, 7")
        k.e("s_add_u32 s75, s75, s58")
        k.e("s_lshl_b32 s58, s67, 7")
        k.e("s_cmp_eq_u32 s66, 1")
        k.e("s_cselect_b32 s75, s58, s75")
        k.e("s_cselect_b32 s58, 18, 12")
        k.e("s_lshl_b32 s59, s65, 3")
        k.e("s_mul_i32 s56, s20, s59")
        k.e("s_mul_i32 s56, s56, s58")
        k.e("s_add_u32 s75, s75, s56")
        k.e("s_cmp_ge_u32 s2, 252")
        k.e("s_cselect_b32 s58, 0, s58")
        if os.environ.get("EXP_NOC"):
            k.e(f"s_cmp_lt_u32 s2, {os.environ['EXP_NOC']}")
            k.e("s_cselect_b32 s58, 0, s58")
        k.e("v_lshrrev_b32 v3, 3, v2")
        k.e("v_and_b32 v4, 7, v2")
        k.e("v_mul_lo_u32 v6, v3, s65")
        k.e("v_lshl_add_u32 v6, v4, 4, v6")
        k.e("s_mul_i32 s56, s20, 18432")
        k.e(f"s_add_u32 s56, s56, {RPK}")
        def rdma(i):
            k.e(f"s_cmp_gt_u32 s58, {i}")
            k.e("s_cselect_b32 s51, s75, 0x7f000000")
            k.e(f"s_add_u32 m0, s56, {1024*i}")
            k.e("s_add_u32 s75, s75, s59")
            k.e("buffer_load_dwordx4 v6, s[24:27], s51 offen lds")
        k.srd_ptr(28, 6, XC_SZ)
        k.srd_ws(32, 18, "XC0")
        k.e("v_and_b32 v8, 31, v2")
        k.e("v_and_b32 v9, 3, v8")
        k.e("v_bfe_u32 v10, v8, 2, 2")
        k.e("v_lshl_or_b32 v9, v10, 3, v9")
        k.e("v_bfe_u32 v10, v8, 4, 1")
        k.e("v_lshl_or_b32 v9, v10, 2, v9")
        k.e("v_mul_u32_u24 v9, 1152, v9")
        k.e("v_lshrrev_b32 v10, 5, v2")
        k.e("v_lshl_add_u32 v9, v10, 4, v9")
        k.e("v_lshlrev_b32 v8, 4, v8")
        k.e("v_lshl_add_u32 v8, v10, 9, v8")
        k.e("s_lshr_b32 s36, s2, 2")
        k.e("s_mul_i32 s36, s36, 36864")
        k.e("s_and_b32 s37, s2, 3")
        k.e("s_mul_i32 s37, s37, 18")
        k.e("s_lshl_b32 s38, s20, 1")
        k.e("s_add_u32 s37, s37, s38")
        k.e("s_lshl_b32 s38, s37, 4")
        k.e("s_add_u32 s38, s38, s36")
        k.e("s_lshl_b32 s39, s37, 9")
        k.e("s_add_u32 s39, s39, s36")
        k.e("s_add_u32 s40, s38, 256")
        k.e("s_add_u32 s41, s39, 8192")
        k.e("s_cmp_eq_u32 s20, 0")
        k.e("s_cselect_b32 s40, s40, 0x7f000000")
        k.e("s_cselect_b32 s41, s41, 0x7f000000")
        k.e("buffer_load_dwordx4 v[16:19], v9, s[28:31], s38 offen")
        k.e("buffer_load_dwordx4 v[20:23], v9, s[28:31], s38 offen offset:128")
        k.e("buffer_load_dwordx4 v[24:27], v9, s[28:31], s40 offen")
        for i in range(6):
            rdma(i)
        k.e("v_lshrrev_b32 v3, 4, v2")
        k.e("v_and_b32 v4, 15, v2")
        k.e("v_bfe_u32 v10, v2, 2, 2")
        k.e("v_lshlrev_b32 v7, 7, v10")
        k.e("v_lshl_add_u32 v7, v3, 5, v7")
        k.e("v_add_u32 v7, s56, v7")
        k.e("v_and_b32 v10, 1, v2")
        k.e("v_lshlrev_b32 v10, 4, v10")
        k.e("v_bfe_u32 v11, v2, 1, 1")
        k.e("v_lshl_add_u32 v10, v11, 3, v10")
        k.e("v_and_b32 v11, 3, v2")
        k.e("v_lshlrev_b32 v11, 3, v11")
        k.e("s_cmp_eq_u32 s66, 1")
        k.e("s_cselect_b64 s[42:43], -1, 0")
        k.e("s_nop 1")
        k.e("v_cndmask_b32 v10, v11, v10, s[42:43]")
        k.e("v_add_u32 v7, v7, v10")
        k.e("s_lshl_b32 s36, s67, 2")
        k.e("v_add_u32 v12, s36, v3")
        k.e("v_mul_u32_u24 v13, 7282, v12")
        k.e("v_lshrrev_b32 v13, 16, v13")
        k.e("v_mul_u32_u24 v14, 9, v13")
        k.e("v_sub_u32 v14, v12, v14")
        k.e(f"s_mov_b32 s36, {WGU_CB}")
        k.e("v_mul_lo_u32 v13, v13, s36")
        k.e("v_lshl_add_u32 v13, v14, 10, v13")
        k.e("v_lshl_add_u32 v13, v4, 4, v13")
        k.e("s_lshl_b32 s36, s68, 6")
        k.e("v_add_u32 v12, s36, v2")
        k.e("v_mul_u32_u24 v14, 911, v12")
        k.e("v_lshrrev_b32 v14, 16, v14")
        k.e("v_mul_u32_u24 v15, 72, v14")
        k.e("v_sub_u32 v15, v12, v15")
        slotmap_v(k, 15, 12, 10, 11)
        k.e(f"s_mov_b32 s36, {WDJ}")
        k.e("v_mul_lo_u32 v14, v14, s36")
        k.e("v_lshl_add_u32 v14, v12, 4, v14")
        k.e("v_cndmask_b32 v5, v14, v13, s[42:43]")
        k.e(f"s_mov_b32 s36, {WS['WD'][0]}")
        k.e(f"s_mov_b32 s37, {WD_SZ}")
        k.e("s_cmp_eq_u32 s66, 1")
        k.e(f"s_cselect_b32 s36, {WS['WGU'][0]}, s36")
        k.e(f"s_cselect_b32 s46, {WGU_SZ}, s37")
        k.e("s_add_u32 s44, s18, s36")
        k.e("s_addc_u32 s45, s19, 0")
        k.e("s_and_b32 s45, s45, 0xffff")
        k.e("s_mov_b32 s47, 0x00020000")
        k.e("s_lshl_b32 s48, s64, 8")
        k.e(f"s_mul_i32 s49, s20, {9*9216}")
        k.e("s_add_u32 s49, s49, s48")
        k.e(f"s_mul_i32 s36, s69, {48*1152}")
        k.e(f"s_mul_i32 s37, s20, {12*1152}")
        k.e("s_add_u32 s36, s36, s37")
        k.e("s_cmp_eq_u32 s66, 1")
        k.e("s_cselect_b32 s49, s49, s36")
        k.e("s_movk_i32 s52, 1152")
        k.e("s_cselect_b32 s52, 512, s52")
        k.e("s_movk_i32 s53, 1152")
        k.e(f"s_cselect_b32 s53, {9216-512}, s53")
        k.e("v_mov_b32 v14, 0")
        k.e("v_mov_b32 v15, 0")

        def tchunk(c):
            for it in range(6 * c, 6 * c + 6):
                rg = 112 + 4 * it
                k.e(f"ds_read_b64_tr_b16 v[{rg}:{rg+1}], v7 offset:{it*1024}")
                k.e(f"ds_read_b64_tr_b16 v[{rg+2}:{rg+3}], v7 offset:{it*1024+512}")
            for it in range(6 * c, 6 * c + 6):
                rg = 112 + 4 * it
                k.e(f"s_cmp_gt_u32 s58, {it}")
                k.e("s_cselect_b32 s51, s49, 0x7f000000")
                k.e(f"s_waitcnt lgkmcnt({2*(6*c+5-it)})")
                k.e(f"buffer_store_dwordx4 v[{rg}:{rg+3}], v5, s[44:47], s51 offen {STP}")
                k.e(f"s_add_u32 s49, s49, s{52 + (it & 1)}")
                for r in range(4):
                    k.e(f"v_dot2_f32_bf16 v{14 + (r & 1)}, v{rg+r}, v32, v{14 + (r & 1)}")
        k.e("v_and_b32 v11, 15, v2")
        k.e("v_lshrrev_b32 v12, 4, v2")
        k.e("v_lshrrev_b32 v1, 1, v11")
        k.e("v_xor_b32 v1, v1, v12")
        k.e("v_lshlrev_b32 v1, 4, v1")
        k.e("v_lshl_add_u32 v28, v11, 7, v1")
        k.e("v_xor_b32 v29, 64, v28")
        k.e("s_lshl_b32 s36, s20, 11")
        k.e("v_add_u32 v30, s36, v28")
        k.e("v_add_u32 v31, s36, v29")
        for a_ in range(4):
            k.e(f"v_mov_b32 v{32+a_}, 0x3f803f80")
        for a_ in range(8):
            k.e(f"v_mov_b32 v{36+a_}, 0")

        def rpart(kbs):
            for n_, kb in enumerate(kbs):
                kq, half = (kb >> 1) % 8, kb & 1
                rg = 44 + n_ * 8
                off = kq * 9216
                if off + 8192 > 65000:
                    k.e(f"v_add_u32 v1, {off}, v{30+half}")
                    k.e(f"ds_read_b128 v[{rg}:{rg+3}], v1")
                    k.e(f"v_add_u32 v1, {off + 8192}, v{28+half}")
                    k.e(f"ds_read_b128 v[{rg+4}:{rg+7}], v1")
                else:
                    k.e(f"ds_read_b128 v[{rg}:{rg+3}], v{30+half} offset:{off}")
                    k.e(f"ds_read_b128 v[{rg+4}:{rg+7}], v{28+half} offset:{off + 8192}")
            k.e("s_waitcnt lgkmcnt(0)")
            for n_, kb in enumerate(kbs):
                rg = 44 + n_ * 8
                k.e(f"v_mfma_f32_16x16x32_bf16 v[36:39], v[32:35], v[{rg}:{rg+3}], v[36:39]")
                k.e(f"v_mfma_f32_16x16x32_bf16 v[40:43], v[32:35], v[{rg+4}:{rg+7}], v[40:43]")
        k.e("s_barrier")
        rpart(range(0, 8))
        for i in range(6, 12):
            rdma(i)
        k.e("s_waitcnt vmcnt(12)")
        k.e("buffer_store_dwordx4 v[16:19], v8, s[32:35], s39 offen sc1")
        k.e("s_add_u32 s39, s39, 4096")
        k.e("buffer_store_dwordx4 v[20:23], v8, s[32:35], s39 offen sc1")
        k.e("buffer_store_dwordx4 v[24:27], v8, s[32:35], s41 offen sc1")
        k.e("s_barrier")
        rpart(range(8, 16))
        for i in range(12, 18):
            rdma(i)
        k.e("s_waitcnt vmcnt(15)")
        tchunk(0)
        k.e("s_barrier")
        rpart(range(16, 18))
        k.e("s_lshl_b32 s36, s20, 6")
        k.e(f"s_add_u32 s36, s36, {SCR + 1024}")
        k.e("v_lshl_add_u32 v1, v11, 2, s36")
        k.e("v_lshlrev_b32 v28, 2, v11")
        k.e(f"v_add_u32 v28, {SCR + 1024 + 256}, v28")
        k.e("s_nop 7")
        k.e("ds_write_b32 v1, v36")
        k.e("ds_write_b32 v28, v40")
        k.e("s_waitcnt lgkmcnt(0)")
        k.e("s_barrier")
        k.e("s_waitcnt vmcnt(15)")
        tchunk(1)
        k.e("s_waitcnt vmcnt(12)")
        tchunk(2)
        k.e("s_nop 3")
        k.e("v_add_f32 v10, v14, v15")
        k.e("v_cvt_pk_bf16_f32 v11, v10, v10")
        k.e("v_lshlrev_b32 v12, 16, v11")
        k.e("v_sub_f32 v13, v10, v12")
        k.e("v_cvt_pk_bf16_f32 v14, v13, v13")
        k.e("v_lshlrev_b32 v15, 16, v14")
        k.e("v_sub_f32 v13, v13, v15")
        k.e("v_cvt_pk_bf16_f32 v201, v13, v13")
        k.e("v_and_b32 v201, 0xffff, v201")
        k.e("v_and_b32 v200, 0xffff, v11")
        k.e("v_or_b32 v200, v200, v15")
        k.e("s_lshr_b32 s39, s20, 1")
        k.e("s_lshl_b32 s39, s39, 9")
        k.e("s_and_b32 s37, s20, 1")
        k.e("s_lshl_b32 s37, s37, 3")
        k.e("s_add_u32 s39, s39, s37")
        k.e("s_add_u32 s39, s39, s48")
        k.e(f"s_add_u32 s39, s39, {36*9216}")
        k.e("s_cmp_eq_u32 s66, 1")
        k.e("s_cselect_b32 s39, s39, 0x7f000000")
        k.e("buffer_store_dwordx2 v[200:201], v5, s[44:47], s39 offen sc1")
        get_nonce(k, 24, 1, 3)
        k.e("s_lshl_b32 s47, s2, 4")
        k.e("s_lshl_b32 s3, s20, 2")
        k.e("s_add_u32 s47, s47, s3")
        k.e(f"s_add_u32 s47, s47, {FROFF}")
        publish(k, 47, 1, 3)
        k.label(f"{name}_rdone")
        if PROF:
            k.e("v_lshrrev_b32 v1, 6, v0")
            k.e("s_nop 0")
            k.e("v_readfirstlane_b32 s20, v1")
    if PROF:
        k.e("s_mov_b64 exec, -1")
        k.wait_vm_all()
    k.stamp(5)
    k.stamp_store(0, 18, 20)
    if not first:
        k.e(f"s_branch {Lend}")
        k.label(f"{name}_idle")
        for _ in range(3):
            k.e("s_barrier")
    k.label(Lend)
    return k, total, 512 if first else 256, (RPK + 73728 + 8192) if first else RPK


REG = 20480
FROFF = 262144 + 65536
FH1 = 262144 + 32768 + 3 * 8192
OWNP = int(os.environ.get("OWNP", "0"))
EXSEP = int(os.environ.get("EXSEP", "1"))
SLP = int(os.environ.get("SLP", "4"))
PUB = os.environ.get("PUB", "sc1")
ROT = int(os.environ.get("ROT", "0"))
CPF = int(os.environ.get("CPF", "0"))
MAPG = int(os.environ.get("MAPG", "0"))
MAPD = int(os.environ.get("MAPD", "0"))
STPG = os.environ.get("STPG", "sc1")
EXP_NOMFMA = int(os.environ.get("EXP_NOMFMA", "0"))
EXP_PAD = int(os.environ.get("EXP_PAD", "0"))
BAR = int(os.environ.get("BAR", "0"))
EXP_NOWD = int(os.environ.get("EXP_NOWD", "0"))
EXP_NOHC = int(os.environ.get("EXP_NOHC", "0"))
ILV = int(os.environ.get("ILV", "1"))
KD_W, KD_S = (1, 8) if ILV else (18, 1)
KS_W, KS_S = (1, 4) if ILV else (8, 1)


def t1_decode(k, mp=0):
    k.e("v_lshrrev_b32 v1, 6, v0")
    k.e("v_and_b32 v2, 63, v0")
    k.e("v_readfirstlane_b32 s20, v1")
    k.e("s_and_b32 s22, s2, 7")
    k.e("s_lshr_b32 s23, s2, 3")
    if mp == 0:
        k.e("s_lshr_b32 s21, s22, 1")
        k.e("s_lshl_b32 s21, s21, 3")
        k.e("s_and_b32 s44, s23, 7")
        k.e("s_add_u32 s21, s21, s44")
        k.e("s_and_b32 s22, s22, 1")
        k.e("s_lshl_b32 s22, s22, 2")
        k.e("s_lshr_b32 s23, s23, 3")
        k.e("s_add_u32 s23, s23, s22")
    else:
        k.e("s_lshl_b32 s21, s22, 2")
        k.e("s_and_b32 s44, s23, 3")
        k.e("s_add_u32 s21, s21, s44")
        k.e("s_lshr_b32 s23, s23, 2")


def t1_pre(k, xin_srd):
    sW, sTB, sJ = 20, 21, 23
    k.e(f"s_and_b32 s61, s{sW}, 3")
    k.e(f"s_lshr_b32 s59, s{sW}, 2")
    k.e("s_lshr_b32 s62, s61, 1")
    k.e(f"s_lshl_b32 s63, s{sTB}, 1")
    k.e("s_add_u32 s58, s62, s63")
    k.e("s_and_b32 s62, s61, 1")
    k.e("s_mul_i32 s63, s58, 36864")
    k.e(f"s_mul_i32 s64, s{sJ}, 4608")
    k.e("s_add_u32 s63, s63, s64")
    k.e("s_lshl_b32 s64, s62, 8")
    k.e("s_add_u32 s63, s63, s64")
    k.e("s_add_u32 s64, s63, 4096")
    k.e("s_lshl_b32 s65, s59, 11")
    k.e("s_add_u32 s63, s63, s65")
    k.e("v_and_b32 v20, 15, v0")
    k.e("v_bfe_u32 v21, v0, 4, 2")
    k.e("v_lshlrev_b32 v22, 9, v21")
    k.e("v_lshl_add_u32 v22, v20, 4, v22")
    k.e("v_lshlrev_b32 v23, 3, v21")
    k.e("v_lshl_add_u32 v23, v20, 4, v23")
    k.vm(f"buffer_load_dwordx4 v[250:253], v22, s[{xin_srd}:{xin_srd+3}], s63 offen", "res")
    k.vm(f"buffer_load_dwordx2 v[254:255], v23, s[{xin_srd}:{xin_srd+3}], s64 offen", "res")


def t1_epilogue(k, name, mode, ACC, xin_srd, xout_srd, st_srd, sfinal):
    sW, sTB, sJ = 20, 21, 23
    k.e("v_and_b32 v2, 63, v0")
    k.e(f"s_mul_i32 s60, s{sW}, {REG}")
    k.e("v_lshl_add_u32 v3, v2, 4, s60")
    k.e("v_and_b32 v11, 15, v2")
    k.e("v_lshrrev_b32 v12, 4, v2")
    k.e("v_lshlrev_b32 v4, 9, v12")
    k.e("v_lshl_add_u32 v4, v11, 4, v4")
    k.e("v_lshlrev_b32 v5, 3, v12")
    k.e("v_lshl_add_u32 v5, v11, 4, v5")
    for j in range(16):
        k.e(f"v_permlane32_swap_b32 v{ACC+80+j}, v{24+j}")
    k.e("s_nop 1")
    for j in range(16):
        k.e(f"v_add_f32 v{ACC+64+j}, v{ACC+64+j}, v{24+j}")
    for b in range(4):
        for a in range(5):
            acc = ACC + (a * 4 + b) * 4
            k.e(f"ds_write_b128 v3, v[{acc}:{acc+3}] offset:{(b*5+a)*1024}")
    k.e("s_mul_i32 s60, s61, 5120")
    k.e("v_lshl_add_u32 v6, v2, 4, s60")
    k.e("v_add_u32 v7, s65, v6")
    for j in range(1, 3):
        k.e(f"v_add_u32 v{7+j}, {3*REG*j}, v7")
        k.e(f"v_add_u32 v{12+j}, {3*REG*j}, v6")
    k.e("s_waitcnt lgkmcnt(0)")
    k.e("s_barrier")
    T0 = 24
    for v in range(8):
        base = 7 + v // 3
        for t in range(2):
            rg = T0 + (v * 2 + t) * 4
            k.e(f"ds_read_b128 v[{rg}:{rg+3}], v{base} offset:{(v%3)*REG + t*1024}")
    k.e("s_cmp_lg_u32 s59, 0")
    k.e(f"s_cbranch_scc1 {name}_no4a")
    for v in range(8):
        base = 6 if v < 3 else 12 + v // 3
        rg = 88 + v * 4
        k.e(f"ds_read_b128 v[{rg}:{rg+3}], v{base} offset:{(v%3)*REG + 4096}")
    k.label(f"{name}_no4a")
    k.e("s_waitcnt lgkmcnt(0)")

    def combine(regs_of_wave, n):
        for j in range(n):
            r = [regs_of_wave(v) + j for v in range(8)]
            k.e(f"v_add_f32 v{r[0]}, v{r[0]}, v{r[1]}")
            k.e(f"v_add_f32 v{r[2]}, v{r[2]}, v{r[3]}")
            k.e(f"v_add_f32 v{r[4]}, v{r[4]}, v{r[5]}")
            k.e(f"v_add_f32 v{r[6]}, v{r[6]}, v{r[7]}")
            k.e(f"v_add_f32 v{r[0]}, v{r[0]}, v{r[2]}")
            k.e(f"v_add_f32 v{r[4]}, v{r[4]}, v{r[6]}")
            if mode == "D":
                k.e(f"v_add_f32 v{r[0]}, v{r[0]}, v{r[4]}")
        if mode == "S":
            for j in range(0, n, 2):
                p0 = regs_of_wave(0) + j
                q0 = regs_of_wave(4) + j
                k.e(f"v_cvt_pk_bf16_f32 v22, v{p0}, v{p0+1}")
                k.e(f"v_cvt_pk_bf16_f32 v23, v{q0}, v{q0+1}")
                k.e(f"v_lshlrev_b32 v{p0}, 16, v22")
                k.e(f"v_and_b32 v{p0+1}, 0xffff0000, v22")
                k.e(f"v_lshlrev_b32 v{q0}, 16, v23")
                k.e(f"v_and_b32 v{q0+1}, 0xffff0000, v23")
                k.e(f"v_sub_f32 v{p0}, v{p0}, v{q0}")
                k.e(f"v_sub_f32 v{p0+1}, v{p0+1}, v{q0+1}")

    def resid(ybase, xbase, n):
        for j in range(0, n, 2):
            y0 = ybase + j
            xr = xbase + j // 2
            k.e(f"v_cvt_pk_bf16_f32 v22, v{y0}, v{y0+1}")
            k.e(f"v_lshlrev_b32 v{y0}, 16, v22")
            k.e(f"v_and_b32 v{y0+1}, 0xffff0000, v22")
            k.e(f"v_lshlrev_b32 v22, 16, v{xr}")
            k.e(f"v_and_b32 v23, 0xffff0000, v{xr}")
            k.e(f"v_add_f32 v{y0}, v{y0}, v22")
            k.e(f"v_add_f32 v{y0+1}, v{y0+1}, v23")
            k.e(f"v_cvt_pk_bf16_f32 v{xr}, v{y0}, v{y0+1}")
            unpack_sum(k, xr, 22, 23, 120, 121)

    combine(lambda v: T0 + v * 8, 8)
    k.e("v_mov_b32 v120, 0")
    k.e("v_mov_b32 v121, 0")
    resid(T0, 250, 8)
    k.e("s_cmp_lg_u32 s59, 0")
    k.e(f"s_cbranch_scc1 {name}_no4b")
    k.e("v_cmp_gt_u32 vcc, 2, v12")
    k.e("s_and_saveexec_b64 s[66:67], vcc")
    combine(lambda v: 88 + v * 4, 4)
    resid(88, 254, 4)
    k.e("s_mov_b64 exec, s[66:67]")
    k.label(f"{name}_no4b")
    if sfinal is not None:
        k.e(f"s_cmp_lg_u32 s{sfinal}, 0")
        k.e(f"s_cbranch_scc1 {name}_fin")
    for sw in ("16", "32"):
        k.e("v_mov_b32 v22, v120")
        k.e("v_mov_b32 v23, v121")
        k.e("s_nop 1")
        k.e(f"v_permlane{sw}_swap_b32 v120, v22")
        k.e(f"v_permlane{sw}_swap_b32 v121, v23")
        k.e("s_nop 1")
        k.e("v_add_f32 v120, v120, v22")
        k.e("v_add_f32 v121, v121, v23")
    k.e(f"buffer_store_dwordx4 v[250:253], v4, s[{xout_srd}:{xout_srd+3}], s63 offen")
    k.e("s_lshl_b32 s65, s58, 8")
    k.e("s_lshl_b32 s62, s62, 7")
    k.e("s_add_u32 s65, s65, s62")
    k.e(f"s_lshl_b32 s62, s{sJ}, 15")
    k.e("s_add_u32 s65, s65, s62")
    k.e("s_lshl_b32 s62, s59, 14")
    k.e("s_add_u32 s65, s65, s62")
    k.e("v_lshlrev_b32 v22, 3, v11")
    k.e("v_cmp_gt_u32 vcc, 1, v12")
    k.e("s_and_saveexec_b64 s[68:69], vcc")
    k.e(f"buffer_store_dwordx2 v[120:121], v22, s[{st_srd}:{st_srd+3}], s65 offen")
    k.e("s_mov_b64 exec, s[68:69]")
    k.e("s_cmp_lg_u32 s59, 0")
    k.e(f"s_cbranch_scc1 {name}_done")
    k.e("v_cmp_gt_u32 vcc, 2, v12")
    k.e("s_and_saveexec_b64 s[66:67], vcc")
    k.e(f"buffer_store_dwordx2 v[254:255], v5, s[{xout_srd}:{xout_srd+3}], s64 offen")
    if sfinal is not None:
        k.e(f"s_branch {name}_done")
        k.label(f"{name}_fin")
        k.e("v_lshrrev_b32 v22, 2, v11")
        k.e("v_and_b32 v23, 3, v11")
        k.e("v_lshl_add_u32 v22, v22, 3, v23")
        k.e("v_mul_u32_u24 v22, 1152, v22")
        k.e("v_lshl_add_u32 v23, v12, 4, v22")
        k.e("v_lshl_add_u32 v22, v12, 3, v22")
        k.e("s_lshl_b32 s65, s58, 5")
        k.e("s_lshl_b32 s62, s62, 2")
        k.e("s_add_u32 s65, s65, s62")
        k.e("s_mul_i32 s65, s65, 1152")
        k.e(f"s_mul_i32 s62, s{sJ}, 144")
        k.e("s_add_u32 s65, s65, s62")
        k.e("s_lshl_b32 s62, s59, 6")
        k.e("s_add_u32 s62, s62, s65")
        k.e(f"buffer_store_dwordx4 v[250:253], v23, s[{xout_srd}:{xout_srd+3}], s62 offen")
        k.e("s_cmp_lg_u32 s59, 0")
        k.e(f"s_cbranch_scc1 {name}_done")
        k.e("v_cmp_gt_u32 vcc, 2, v12")
        k.e("s_and_saveexec_b64 s[66:67], vcc")
        k.e(f"buffer_store_dwordx2 v[254:255], v22, s[{xout_srd}:{xout_srd+3}], s65 offen offset:128")
    k.label(f"{name}_done")


def gen_t2(mode):
    name = "ks" if mode == "S" else "kd"
    k = Kern(name, 256, 0, 80)
    Lend = name + "_end"
    NST = 8 if mode == "S" else 9
    RA = 3 if mode == "S" else 4
    ASTG = 36864
    CBASE = RA * ASTG
    AJ = ABJ if mode == "S" else WDJ
    k.e("s_mov_b64 exec, -1")
    k.e("s_barrier")
    if mode == "S":
        k.e("s_load_dwordx4 s[8:11], s[0:1], 8")
    k.e("s_load_dwordx2 s[18:19], s[0:1], 88")
    k.e("s_load_dwordx4 s[12:15], s[0:1], 72")
    k.e("v_lshrrev_b32 v1, 6, v0")
    k.e("v_and_b32 v2, 63, v0")
    k.e("v_readfirstlane_b32 s20, v1")
    k.e("s_and_b32 s22, s2, 7")
    k.e("s_lshr_b32 s23, s2, 3")
    k.e("s_lshr_b32 s44, s22, 1")
    k.e("s_and_b32 s21, s22, 1")
    k.e("s_lshl_b32 s21, s21, 3")
    k.e("s_and_b32 s45, s23, 7")
    k.e("s_add_u32 s21, s21, s45")
    k.e("s_lshr_b32 s23, s23, 3")
    k.e("s_and_b32 s45, s20, 3")
    k.e("s_lshr_b32 s46, s20, 2")
    k.e("s_waitcnt lgkmcnt(0)")
    k.stamp(0)
    if mode == "S":
        k.e("s_cmp_ge_u32 s44, 2")
        k.e("s_cselect_b32 s4, s10, s8")
        k.e("s_cselect_b32 s5, s11, s9")
        k.srd_ptr(24, 4, S * S * 2)
        srd_ws_s(k, 28, 18, 68, AB_SZ)
    else:
        srd_ws_s(k, 24, 18, 68, HC_SZ)
        k.srd_ws(28, 18, "WD")
    srd_ws_s(k, 32, 18, 75, 64*4*8*4608)
    flag_srd(k)
    k.e("s_mov_b32 s66, s69")
    k.e("v_and_b32 v11, 15, v2")
    k.e("v_lshrrev_b32 v12, 4, v2")
    VA = 3
    k.e("v_mul_u32_u24 v13, 1152, v12")
    k.e("v_lshl_add_u32 v14, v11, 4, v13")
    k.e("v_and_b32 v15, 7, v11")
    k.e("v_lshl_add_u32 v15, v15, 4, v13")
    k.e("v_add_u32 v15, 1024, v15")
    k.e("v_lshrrev_b32 v16, 3, v11")
    k.e(f"s_mov_b32 s47, {AJ}")
    k.e("v_mul_lo_u32 v16, v16, s47")
    k.e("v_add_u32 v15, v15, v16")
    k.e("s_lshl_b32 s47, s45, 8")
    k.e("v_add_u32 v3, s47, v14")
    k.e("s_mul_i32 s47, s45, 4608")
    k.e("v_add_u32 v4, s47, v15")
    if mode == "S":
        k.e("s_lshr_b32 s47, s44, 1")
        k.e("s_lshl_b32 s47, s47, 3")
        k.e("s_lshl_b32 s48, s23, 1")
        k.e("s_add_u32 s47, s47, s48")
        k.e(f"s_mul_i32 s48, s47, {AJ}")
        k.e("s_and_b32 s47, s44, 1")
        k.e("s_lshl_b32 s47, s47, 4")
    else:
        k.e("s_lshl_b32 s48, s23, 1")
        k.e(f"s_mul_i32 s48, s48, {AJ}")
        k.e("s_mul_i32 s47, s44, 18")
    k.e("s_add_u32 s47, s47, s46")
    k.e("s_mul_i32 s49, s47, 9216")
    k.e("s_add_u32 s48, s48, s49")
    k.e("s_mul_i32 s50, s46, 18432")
    k.e("s_lshl_b32 s51, s45, 10")
    k.e("s_add_u32 s50, s50, s51")
    k.e("s_lshl_b32 s51, s45, 13")
    k.e("s_add_u32 s5, s50, s51")
    k.e("s_add_u32 s5, s5, 8192")
    k.e("s_cmp_lt_u32 s45, 2")
    k.e("s_cselect_b64 s[52:53], -1, 0")
    k.e("s_mul_i32 s51, s46, 18432")
    k.e("v_lshl_add_u32 v8, v2, 4, s51")
    if RA > 2:
        k.e(f"v_add_u32 v9, {2*ASTG}, v8")
    k.e("s_mov_b32 s4, s47")

    def bsetup():
        if mode == "D":
            k.e("v_lshlrev_b32 v13, 9, v12")
            k.e("v_lshl_add_u32 v10, v11, 4, v13")
            k.e("s_lshl_b32 s51, s21, 2")
            k.e("s_add_u32 s51, s51, s45")
            k.e(f"s_mul_i32 s49, s51, {HCB}")
            k.e("s_lshl_b32 s51, s4, 12")
            k.e("s_add_u32 s49, s49, s51")
        else:
            t = 248
            k.e(f"v_lshrrev_b32 v{t}, 3, v2")
            k.e(f"v_and_b32 v{t+1}, 7, v2")
            k.e(f"v_lshrrev_b32 v{t+2}, 1, v{t}")
            k.e(f"v_xor_b32 v{t+2}, v{t+2}, v{t+1}")
            k.e(f"v_lshlrev_b32 v{t+2}, 4, v{t+2}")
            k.e(f"v_lshrrev_b32 v{t+3}, 2, v{t}")
            k.e(f"v_and_b32 v{t+4}, 3, v{t}")
            k.e(f"v_lshl_add_u32 v{t+3}, v{t+3}, 3, v{t+4}")
            k.e(f"v_lshlrev_b32 v{t+3}, 12, v{t+3}")
            k.e(f"v_add_u32 v{t+5}, v{t+3}, v{t+2}")
            k.e(f"v_xor_b32 v{t+4}, 64, v{t+2}")
            k.e(f"v_add_u32 v{t+6}, v{t+3}, v{t+4}")
            for q in range(4):
                c = (16 * (q & 1) + 4 * ((q >> 1) & 1)) * 4096
                k.e(f"v_add_u32 v{240+q}, {c}, v{t + 5 + (q & 1)}")
            k.e("s_mul_i32 s54, s20, 6144")
            k.e(f"s_add_u32 s54, s54, {CBASE}")
            k.e(f"v_lshrrev_b32 v{t+2}, 1, v11")
            k.e(f"v_xor_b32 v{t+2}, v{t+2}, v12")
            k.e(f"v_lshlrev_b32 v{t+2}, 4, v{t+2}")
            k.e(f"v_lshl_add_u32 v{t+2}, v11, 7, v{t+2}")
            k.e(f"v_add_u32 v244, s54, v{t+2}")
            k.e(f"v_xor_b32 v{t+2}, 64, v{t+2}")
            k.e(f"v_add_u32 v245, s54, v{t+2}")
            k.e("s_lshl_b32 s51, s21, 2")
            k.e("s_add_u32 s51, s51, s45")
            k.e("s_lshl_b32 s49, s51, 17")
            k.e("s_lshl_b32 s51, s4, 7")
            k.e("s_add_u32 s49, s49, s51")

    ACC = 160
    AFB = 16
    BFB = 88

    NF, DEP = 12, 8
    RESID_LATE = []
    SC = "sc1"
    pend = []
    issued_c = {}

    def dma_ops(st):
        slot = st % RA
        ops = []
        for j in range(5):
            def f(j=j):
                if j < 4:
                    lo = (0, 4096, 9216, 13312)[j]
                    go = (0, AJ, 4608, AJ + 4608)[j]
                    k.e(f"s_add_u32 m0, s50, {slot*ASTG + lo}")
                    k.e(f"s_add_u32 s47, s48, {st*18432 + go}")
                    k.vm(f"buffer_load_dwordx4 v3, s[28:31], s47 offen {SC} lds", ("d", st))
                else:
                    k.e(f"s_add_u32 m0, s5, {slot*ASTG}")
                    k.e(f"s_add_u32 s47, s48, {st*18432}")
                    k.e("s_mov_b64 exec, s[52:53]")
                    k.vm(f"buffer_load_dwordx4 v4, s[28:31], s47 offen {SC} lds", ("d", st))
                    k.e("s_mov_b64 exec, -1")
            ops.append(f)
        return ops

    def b_ops(st):
        ops = []
        for h in range(2):
            for u in range(2):
                def f(h=h, u=u):
                    rg = BFB + (st % 4) * 16 + (h * 2 + u) * 4
                    k.e(f"s_add_u32 s47, s49, {st*8192}")
                    k.vm(f"buffer_load_dwordx4 v[{rg}:{rg+3}], v10, s[24:27], s47 offen offset:{h*2048 + u*256} sc1", ("b", st))
                ops.append(f)
        return ops

    def c_ops(c):
        st, u = divmod(c, 2)
        ops = []
        for q in range(2):
            def f(q=q):
                k.e(f"s_add_u32 m0, s54, {(c%3)*2048 + q*1024}")
                k.e(f"s_add_u32 s47, s49, {st*256}")
                k.vm(f"buffer_load_dwordx4 v{240+2*u+q}, s[24:27], s47 offen lds", ("c", c))
                issued_c[c] = issued_c.get(c, 0) + 1
            ops.append(f)
        return ops

    def cread(c):
        st, u = divmod(c, 2)
        k.wait_vm(("c", c))
        for h in range(2):
            rg = BFB + (st % 2) * 16 + (h * 2 + u) * 4
            k.ds(f"ds_read_b128 v[{rg}:{rg+3}], v{244+h} offset:{(c%3)*2048}", ("cr", c))

    total = NST * 18

    def aread(f):
        st, r = divmod(f, 18)
        slot = st % RA
        base = 8 if slot < 2 else 9
        rg = AFB + (f % NF) * 4
        k.ds(f"ds_read_b128 v[{rg}:{rg+3}], v{base} offset:{(slot % 2) * ASTG + r*1024}", ("a", f))

    def sync(st):
        while pend:
            pend.pop(0)()
        k.wait_vm(("d", st))
        k.e("s_barrier")
        if st == 0:
            for s2 in range(2, RA):
                pend.extend(dma_ops(s2))
        elif st >= 2 and st + RA - 2 < NST:
            pend.extend(dma_ops(st + RA - 2))
        if mode == "D" and st + 2 < NST:
            pend.extend(b_ops(st + 2))

    k.e("v_lshlrev_b32 v1, 2, v2")
    if mode == "D":
        for f in dma_ops(0) + dma_ops(1):
            f()
        bsetup()
        k.e("s_lshl_b32 s47, s21, 2")
        k.e("s_add_u32 s47, s47, s45")
        k.e("s_lshl_b32 s47, s47, 7")
        k.e("s_lshl_b32 s3, s44, 5")
        k.e("s_add_u32 s47, s47, s3")
        k.e("s_add_u32 s47, s47, s64")
        poll(k, name, 47, 8, 1, 152)
        k.vq = []
        for f in b_ops(0) + b_ops(1):
            f()
    else:
        bsetup()
        for f in c_ops(0) + c_ops(1) + c_ops(2):
            f()
        k.e("v_and_b32 v153, 31, v2")
        k.e("v_lshrrev_b32 v154, 5, v2")
        k.e("v_lshlrev_b32 v153, 2, v153")
        k.e("v_lshl_add_u32 v153, v154, 8, v153")
        k.e("s_lshr_b32 s47, s44, 1")
        k.e("s_lshl_b32 s47, s47, 3")
        k.e("s_lshl_b32 s3, s23, 1")
        k.e("s_add_u32 s47, s47, s3")
        k.e("s_lshl_b32 s47, s47, 8")
        k.e("s_and_b32 s3, s44, 1")
        k.e("s_lshl_b32 s3, s3, 7")
        k.e("s_add_u32 s47, s47, s3")
        k.e("s_add_u32 s47, s47, s64")
        poll(k, name, 47, 64, 153, 152)
        k.vq = []
        for f in dma_ops(0) + dma_ops(1):
            f()
    code_prefetch(k, name, 152, 76, 156, 8, 20)
    for a in range(72):
        k.e(f"v_mov_b32 v{ACC+a}, 0")
    XOFF = ASTG if mode == "D" else 0
    k.e("s_mul_i32 s51, s20, 9216")
    k.e(f"s_add_u32 s51, s51, {XOFF}")
    k.e("v_lshl_add_u32 v232, v2, 4, s51")
    k.e("s_xor_b32 s51, s20, 4")
    k.e("s_mul_i32 s51, s51, 9216")
    k.e(f"s_add_u32 s51, s51, {XOFF}")
    k.e("v_lshl_add_u32 v233, v2, 4, s51")
    k.e("s_lshl_b32 s55, s21, 2")
    k.e("s_add_u32 s55, s55, s23")
    k.e("s_lshl_b32 s51, s55, 2")
    k.e("s_add_u32 s51, s51, s44")
    k.e("s_lshl_b32 s51, s51, 3")
    k.e("s_lshl_b32 s3, s45, 1")
    k.e("s_add_u32 s51, s51, s3")
    k.e("s_add_u32 s51, s51, s46")
    k.e("s_mul_i32 s75, s51, 4608")
    if OWNP:
        k.e("s_cmp_eq_u32 s45, s44")
        k.e("s_cselect_b32 s4, s75, 0x7f000000")
        k.e("s_cselect_b32 s75, 0x7f000000, s75")
    k.e("v_lshlrev_b32 v234, 4, v2")
    k.e("v_lshlrev_b32 v235, 3, v2")
    k.e("v_add_u32 v235, 4096, v235")
    srd_ws_s(k, 36, 18, 70, XC_SZ)
    srd_ws_s(k, 40, 18, 71, XC_SZ)
    srd_ws_s(k, 60, 18, 72, ST_SZ)
    k.e("s_cmp_lg_u32 s73, 0")
    k.e("s_cselect_b32 s40, s12, s40")
    k.e("s_cselect_b32 s41, s13, s41")
    k.e("s_and_b32 s41, s41, 0xffff")
    k.e("s_and_b32 s56, s20, 1")
    k.e("s_lshr_b32 s57, s20, 1")
    k.e("s_lshl_b32 s58, s21, 2")
    k.e("s_add_u32 s58, s58, s44")
    k.e("s_mul_i32 s59, s58, 36864")
    k.e("s_mul_i32 s3, s23, 9216")
    k.e("s_add_u32 s59, s59, s3")
    k.e("s_lshl_b32 s3, s56, 8")
    k.e("s_add_u32 s59, s59, s3")
    k.e("s_lshr_b32 s3, s57, 1")
    k.e("s_mul_i32 s3, s3, 4608")
    k.e("s_and_b32 s51, s57, 1")
    k.e("s_lshl_b32 s51, s51, 11")
    k.e("s_add_u32 s3, s3, s51")
    k.e("s_add_u32 s68, s59, s3")
    k.e("v_lshlrev_b32 v236, 9, v12")
    k.e("v_lshl_add_u32 v236, v11, 4, v236")
    k.e("v_lshrrev_b32 v237, 1, v12")
    k.e("v_mul_u32_u24 v237, 4608, v237")
    k.e("v_and_b32 v238, 1, v12")
    k.e("v_lshl_add_u32 v237, v238, 3, v237")
    k.e("v_lshl_add_u32 v237, v11, 4, v237")
    k.e("v_add_u32 v237, 4096, v237")
    k.e("s_cmp_eq_u32 s57, 0")
    k.e("s_cselect_b32 s69, s59, 0x7f000000")
    if mode == "S":
        RESID_LATE.append(1)
    else:
        k.vm("buffer_load_dwordx4 v[248:251], v236, s[36:39], s68 offen sc1", "res")
    if mode != "S":
        k.vm("buffer_load_dwordx2 v[252:253], v237, s[36:39], s69 offen sc1", "res")
    k.e("s_lshl_b32 s51, s55, 5")
    k.e("s_lshl_b32 s3, s44, 1")
    k.e("s_add_u32 s51, s51, s3")
    k.e("s_add_u32 s51, s51, s56")
    k.e("s_mul_i32 s51, s51, 4608")
    k.e("s_lshl_b32 s3, s57, 10")
    k.e("s_add_u32 s6, s3, s51")
    k.e("s_cmp_eq_u32 s57, 0")
    k.e("s_cselect_b32 s7, s51, 0x7f000000")
    k.e("v_lshrrev_b32 v238, 2, v11")
    k.e("v_and_b32 v239, 3, v11")
    k.e("v_lshl_add_u32 v238, v238, 3, v239")
    k.e("v_mul_u32_u24 v238, 1152, v238")
    k.e("v_lshl_add_u32 v239, v12, 4, v238")
    k.e("v_lshrrev_b32 v246, 1, v12")
    k.e("v_mul_u32_u24 v246, 144, v246")
    k.e("v_add_u32 v238, v238, v246")
    k.e("v_and_b32 v246, 1, v12")
    k.e("v_lshl_add_u32 v238, v246, 3, v238")
    k.e("v_add_u32 v238, 128, v238")
    k.e("s_lshl_b32 s51, s58, 5")
    k.e("s_lshl_b32 s3, s56, 2")
    k.e("s_add_u32 s51, s51, s3")
    k.e("s_mul_i32 s51, s51, 1152")
    k.e("s_mul_i32 s3, s23, 288")
    k.e("s_add_u32 s51, s51, s3")
    k.e("s_lshr_b32 s3, s57, 1")
    k.e("s_mul_i32 s3, s3, 144")
    k.e("s_and_b32 s16, s57, 1")
    k.e("s_lshl_b32 s16, s16, 6")
    k.e("s_add_u32 s3, s3, s16")
    k.e("s_add_u32 s3, s3, s51")
    k.e("s_cmp_eq_u32 s57, 0")
    k.e("s_cselect_b32 s51, s51, 0x7f000000")
    k.e("s_cmp_lg_u32 s73, 0")
    k.e("s_cselect_b32 s16, s3, s68")
    k.e("s_cselect_b32 s17, s51, s69")
    k.e("s_cselect_b64 vcc, -1, 0")
    k.e("v_cndmask_b32 v246, v236, v239, vcc")
    k.e("v_cndmask_b32 v247, v237, v238, vcc")
    k.e("s_lshl_b32 s51, s23, 2")
    k.e("s_add_u32 s51, s51, s57")
    k.e("s_lshl_b32 s51, s51, 14")
    k.e("s_lshl_b32 s3, s58, 8")
    k.e("s_add_u32 s51, s51, s3")
    k.e("s_lshl_b32 s3, s56, 7")
    k.e("s_add_u32 s51, s51, s3")
    k.e("s_cmp_lg_u32 s73, 0")
    k.e("s_cselect_b32 s59, 0x7f000000, s51")
    k.e("v_lshlrev_b32 v238, 3, v11")
    k.e("s_lshl_b32 s3, s55, 3")
    k.e("s_lshl_b32 s51, s44, 1")
    k.e("s_add_u32 s51, s51, s3")
    k.e("s_add_u32 s51, s51, s56")
    k.e("s_lshl_b32 s56, s51, 7")
    k.e("s_add_u32 s56, s56, s66")
    k.e("s_lshl_b32 s51, s45, 1")
    k.e("s_add_u32 s51, s51, s3")
    k.e("s_add_u32 s51, s51, s46")
    k.e("s_lshl_b32 s51, s51, 7")
    k.e("s_lshl_b32 s57, s44, 2")
    k.e("s_add_u32 s57, s57, s51")
    k.e("s_add_u32 s57, s57, s66")
    k.e("s_lshl_b32 s67, s58, 7")
    k.e("s_lshl_b32 s3, s23, 5")
    k.e("s_add_u32 s67, s67, s3")
    k.e("s_lshl_b32 s3, s20, 2")
    k.e("s_add_u32 s67, s67, s3")
    k.e("s_add_u32 s67, s67, s65")
    k.e("s_mov_b32 s58, 0xffff0000")
    done_c = set()
    if mode == "S":
        cread(0); cread(1)
        k.wait_ds(("cr", 1))
        pend.extend(c_ops(3) + c_ops(4))
    sync(0)
    k.stamp(2)
    for f in range(DEP):
        aread(f)
    mi = 0
    for f in range(total):
        nxt = f + DEP
        if nxt < total:
            if nxt % 18 == 0:
                sync(nxt // 18)
            aread(nxt)
        st, r = divmod(f, 18)
        h, T = divmod(r, 9)
        if mode == "D" and r == 0:
            k.wait_vm(("b", st))
        if mode == "S" and st + 1 < NST:
            for rr_, u_ in ((3, 0), (7, 1)):
                c = 2 * (st + 1) + u_
                if r == rr_:
                    while issued_c.get(c, 0) < 2:
                        pend.pop(0)()
                    cread(c)
                    done_c.add(("c", c))
                if r == rr_ + 2 and c + 3 < 2 * NST:
                    k.wait_ds(("cr", c))
                    pend.extend(c_ops(c + 3))
        k.wait_ds(("a", f))
        af = AFB + (f % NF) * 4
        for u in range(2):
            bf = BFB + ((st % 4) if mode == "D" else (st % 2)) * 16 + (h * 2 + u) * 4
            acc = ACC + (u * 9 + T) * 4
            k.e(f"v_mfma_f32_16x16x32_bf16 v[{acc}:{acc+3}], v[{af}:{af+3}], v[{bf}:{bf+3}], v[{acc}:{acc+3}]")
            mi += 1
            if pend and (mi % 3 == 0 or st == 0):
                pend.pop(0)()
    k.stamp(3)
    if mode == "S":
        k.e("s_cmp_lg_u32 s100, 1")
        k.e(f"s_cbranch_scc1 {name}_nofr")
        k.e("v_lshlrev_b32 v1, 2, v2")
        k.e("s_lshl_b32 s47, s20, 9")
        k.e(f"s_add_u32 s47, s47, {FROFF}")
        poll(k, name, 47, 64, 1, 152)
        k.e("s_add_u32 s47, s47, 256")
        poll(k, name, 47, 64, 1, 152)
        k.label(f"{name}_nofr")
        k.e("s_barrier")
        k.e("buffer_load_dwordx4 v[248:251], v236, s[36:39], s68 offen sc1")
        k.e("buffer_load_dwordx2 v[252:253], v237, s[36:39], s69 offen sc1")
    k.e("s_nop 5")
    k.e("s_cmp_eq_u32 s46, 0")
    k.e(f"s_cbranch_scc1 {name}_x0")

    def xch(send, keep, lab_after):
        for T in range(9):
            k.e(f"ds_write_b128 v232, v[{send+4*T}:{send+4*T+3}] offset:{T*1024}")
        k.e("s_waitcnt lgkmcnt(0)")
        k.e("s_barrier")
        for T in range(9):
            k.e(f"ds_read_b128 v[{88+4*T}:{91+4*T}], v233 offset:{T*1024}")
        for T in range(9):
            k.e(f"s_waitcnt lgkmcnt({8-T})")
            for r in range(4):
                k.e(f"v_add_f32 v{keep+4*T+r}, v{keep+4*T+r}, v{88+4*T+r}")
            k.e(f"v_cvt_pk_bf16_f32 v{16+2*T}, v{keep+4*T}, v{keep+4*T+1}")
            k.e(f"v_cvt_pk_bf16_f32 v{17+2*T}, v{keep+4*T+2}, v{keep+4*T+3}")
            if T % 2 == 1:
                k.e(f"buffer_store_dwordx4 v[{14+2*T}:{17+2*T}], v234, s[32:35], s75 offen offset:{(T//2)*1024} {PUB}")
                if OWNP:
                    k.e(f"buffer_store_dwordx4 v[{14+2*T}:{17+2*T}], v234, s[32:35], s4 offen offset:{(T//2)*1024}")
    xch(ACC, ACC + 36, None)
    k.e(f"s_branch {name}_x1")
    k.label(f"{name}_x0")
    xch(ACC + 36, ACC, None)
    k.label(f"{name}_x1")
    k.e(f"buffer_store_dwordx2 v[32:33], v235, s[32:35], s75 offen {PUB}")
    if OWNP:
        k.e("buffer_store_dwordx2 v[32:33], v235, s[32:35], s4 offen")
    k.e("v_mov_b32 v9, s101")
    k.e("v_mov_b32 v10, 0")
    k.e("s_mov_b32 s53, 0")
    k.e("s_waitcnt vmcnt(0)")
    k.stamp(4)
    k.e("s_mov_b64 exec, 1")
    k.e("buffer_store_dword v9, v10, s[76:79], s57 offen sc1")
    k.label(f"{name}_poll")
    k.e("buffer_load_dwordx4 v[108:111], v10, s[76:79], s56 offen sc1")
    k.e("s_add_u32 s53, s53, 1")
    k.e("s_waitcnt vmcnt(0)")
    for j in range(4):
        k.e(f"v_xor_b32 v{108+j}, s101, v{108+j}")
    k.e("v_or_b32 v108, v108, v109")
    k.e("v_or_b32 v110, v110, v111")
    k.e("v_or_b32 v108, v108, v110")
    k.e("s_nop 0")
    k.e("v_readfirstlane_b32 s54, v108")
    k.e("s_cmp_ge_u32 s53, 0x40000")
    k.e(f"s_cbranch_scc1 {name}_pollx")
    k.e("s_cmp_eq_u32 s54, 0")
    k.e(f"s_cbranch_scc1 {name}_pollx")
    if SLP:
        k.e(f"s_sleep {SLP}")
    k.e(f"s_branch {name}_poll")
    k.label(f"{name}_pollx")
    k.e("s_mov_b64 exec, -1")
    k.stamp(1)
    for q in range(4):
        k.e(f"buffer_load_dwordx4 v[{16+6*q}:{19+6*q}], v234, s[32:35], s6 offen sc1")
        k.e(f"buffer_load_dwordx2 v[{20+6*q}:{21+6*q}], v235, s[32:35], s7 offen sc1")
        if q < 3:
            k.e(f"s_add_u32 s6, s6, {8*4608}")
            k.e(f"s_add_u32 s7, s7, {8*4608}")
    k.e("v_mov_b32 v120, 0")
    k.e("v_mov_b32 v121, 0")
    for j in range(6):
        k.e(f"v_lshlrev_b32 v{60+2*j}, 16, v{248+j}")
        k.e(f"v_and_b32 v{61+2*j}, s58, v{248+j}")
    k.e("s_waitcnt vmcnt(0)")
    for j in range(6):
        r = [16 + 6 * q + j for q in range(4)]
        for q in range(4):
            k.e(f"v_lshlrev_b32 v{40+2*q}, 16, v{r[q]}")
            k.e(f"v_and_b32 v{41+2*q}, s58, v{r[q]}")
        k.e("v_add_f32 v40, v40, v42")
        k.e("v_add_f32 v41, v41, v43")
        k.e("v_add_f32 v44, v44, v46")
        k.e("v_add_f32 v45, v45, v47")
        if mode == "S":
            k.e("v_cvt_pk_bf16_f32 v48, v40, v41")
            k.e("v_cvt_pk_bf16_f32 v49, v44, v45")
            k.e("v_lshlrev_b32 v40, 16, v48")
            k.e("v_and_b32 v41, s58, v48")
            k.e("v_lshlrev_b32 v44, 16, v49")
            k.e("v_and_b32 v45, s58, v49")
            k.e("v_sub_f32 v40, v40, v44")
            k.e("v_sub_f32 v41, v41, v45")
        else:
            k.e("v_add_f32 v40, v40, v44")
            k.e("v_add_f32 v41, v41, v45")
        k.e("v_cvt_pk_bf16_f32 v48, v40, v41")
        k.e("v_lshlrev_b32 v40, 16, v48")
        k.e("v_and_b32 v41, s58, v48")
        k.e(f"v_add_f32 v40, v40, v{60+2*j}")
        k.e(f"v_add_f32 v41, v41, v{61+2*j}")
        k.e(f"v_cvt_pk_bf16_f32 v{248+j}, v40, v41")
        k.e(f"v_lshlrev_b32 v40, 16, v{248+j}")
        k.e(f"v_and_b32 v41, s58, v{248+j}")
        k.e("v_add_f32 v120, v120, v40")
        k.e("v_fmac_f32 v121, v40, v40")
        k.e("v_add_f32 v120, v120, v41")
        k.e("v_fmac_f32 v121, v41, v41")
        if j == 3:
            k.e("buffer_store_dwordx4 v[248:251], v246, s[40:43], s16 offen sc1")
    k.e("buffer_store_dwordx2 v[252:253], v247, s[40:43], s17 offen sc1")
    for sw in ("16", "32"):
        k.e("v_mov_b32 v44, v120")
        k.e("v_mov_b32 v45, v121")
        k.e("s_nop 1")
        k.e(f"v_permlane{sw}_swap_b32 v120, v44")
        k.e(f"v_permlane{sw}_swap_b32 v121, v45")
        k.e("s_nop 1")
        k.e("v_add_f32 v120, v120, v44")
        k.e("v_add_f32 v121, v121, v45")
    k.e("s_mov_b64 exec, 0xffff")
    k.e("buffer_store_dwordx2 v[120:121], v238, s[60:63], s59 offen sc1")
    publish(k, 67, 9, 10)
    if PROF:
        k.wait_vm_all()
    k.stamp(5)
    k.stamp_store(2, 18, 20)
    k.label(Lend)
    return k, 256, 512, CBASE + (49152 if mode == "S" else 0)


def gen_kg():
    name = "kg"
    k = Kern(name, 256, 0, 80)
    Lend = name + "_end"
    STG = 36864
    EXT = 4 * STG
    k.e("s_mov_b64 exec, -1")
    k.e("s_barrier")
    k.e("s_load_dwordx2 s[18:19], s[0:1], 88")
    k.e("v_lshrrev_b32 v1, 6, v0")
    k.e("v_and_b32 v2, 63, v0")
    k.e("v_readfirstlane_b32 s20, v1")
    k.e("s_and_b32 s22, s2, 7")
    k.e("s_lshr_b32 s23, s2, 3")
    if MAPG == 0:
        k.e("s_and_b32 s21, s23, 7")
        k.e("s_lshr_b32 s23, s23, 3")
        k.e("s_lshl_b32 s22, s22, 2")
        k.e("s_add_u32 s23, s23, s22")
    elif MAPG == 1:
        k.e("s_mov_b32 s21, s22")
    else:
        k.e("s_and_b32 s21, s22, 6")
        k.e("s_and_b32 s44, s23, 1")
        k.e("s_add_u32 s21, s21, s44")
        k.e("s_and_b32 s22, s22, 1")
        k.e("s_lshl_b32 s22, s22, 4")
        k.e("s_lshr_b32 s23, s23, 1")
        k.e("s_add_u32 s23, s23, s22")
    k.e("s_lshl_b32 s21, s21, 3")
    k.e("s_add_u32 s21, s21, s20")
    k.e("s_waitcnt lgkmcnt(0)")
    k.stamp(0)
    flag_srd(k)
    k.srd_ws(24, 18, "WGU")
    srd_ws_s(k, 28, 18, 70, XC_SZ)
    srd_ws_s(k, 32, 18, 71, ST_SZ)
    srd_ws_s(k, 40, 18, 72, HC_SZ)
    k.e("v_lshlrev_b32 v3, 4, v2")
    k.e(f"s_mul_i32 s44, s23, {WGU_CB}")
    k.e("s_mul_i32 s45, s20, 4608")
    k.e("s_add_u32 s43+1, s44, s45".replace("s43+1", "s50"))
    k.e("s_mul_i32 s46, s21, 36864")
    k.e("s_mul_i32 s52, s20, 1152")
    k.e(f"s_add_u32 s51, s44, {36*9216}")
    k.e("s_add_u32 s51, s51, s52")
    NST = 9
    ACC = 112
    BFB = 16
    AFB = 80
    XB = 104
    NF, DEP = 6, int(os.environ.get('KG_DEP', '4'))
    PRIO = int(os.environ.get('PRIO', '0'))
    VSP = int(os.environ.get('VSP', '3'))
    for s_ in range(5):
        if s_ == 0:
            k.e("v_mov_b32 v4, v3")
        else:
            k.e(f"v_add_u32 v{4+s_}, {s_*STG}, v3")

    pend = []

    def dma_ops(st_):
        slot = st_ % 4
        ops = []
        for e_ in range(4):
            def f(e_=e_):
                k.e(f"s_add_u32 m0, s45, {slot*STG}")
                k.e(f"s_add_u32 s47, s50, {st_*STG}")
                k.vm(f"buffer_load_dwordx4 v3, s[24:27], s47 offen offset:{e_*1024} sc1 lds", ("d", st_))
            ops.append(f)
        def f5():
            k.e(f"s_add_u32 m0, s45, {slot*STG + 4096}")
            k.e(f"s_add_u32 s47, s50, {st_*STG + 4096}")
            k.e("s_mov_b32 exec_hi, 0")
            k.vm("buffer_load_dwordx4 v3, s[24:27], s47 offen sc1 lds", ("d", st_))
            k.e("s_mov_b64 exec, -1")
        ops.append(f5)
        return ops

    def ext_ops():
        def f1():
            k.e(f"s_add_u32 m0, s52, {EXT}")
            k.e("s_nop 0")
            k.vm("buffer_load_dwordx4 v3, s[24:27], s51 offen sc1 lds", ("d", "x"))
        def f2():
            k.e(f"s_add_u32 m0, s52, {EXT}")
            k.e("s_mov_b64 exec, 0xff")
            k.vm("buffer_load_dwordx4 v3, s[24:27], s51 offen offset:1024 sc1 lds", ("d", "x"))
            k.e("s_mov_b64 exec, -1")
        return [f1, f2]

    def b_ops(st_):
        ops = []
        for j in range(4):
            def f(j=j):
                rg = BFB + (st_ % 4) * 16 + j * 4
                k.e(f"s_add_u32 s47, s46, {st_*4096}")
                k.vm(f"buffer_load_dwordx4 v[{rg}:{rg+3}], v3, s[28:31], s47 offen offset:{j*1024} sc1", ("b", st_))
            ops.append(f)
        return ops

    STB = 64

    for f in dma_ops(0) + dma_ops(1):
        f()
    k.e("v_lshlrev_b32 v1, 2, v2")
    k.e("s_lshl_b32 s47, s21, 7")
    k.e("s_add_u32 s47, s47, s64")
    poll(k, name, 47, 32, 1, 108)
    k.vq = []
    for f in b_ops(0):
        f()
    k.e("v_and_b32 v9, 31, v2")
    k.e("v_lshrrev_b32 v10, 5, v2")
    k.e("v_lshlrev_b32 v10, 17, v10")
    k.e("v_lshl_add_u32 v9, v9, 3, v10")
    k.e("s_lshl_b32 s53, s21, 8")
    for a in range(144):
        k.e(f"v_mov_b32 v{ACC+a}, 0")

    def st_ops():
        ops = []
        for i in range(8):
            def f(i=i):
                k.e(f"s_add_u32 s57, s53, {i*16384}")
                k.vm(f"buffer_load_dwordx2 v[{STB+2*i}:{STB+2*i+1}], v9, s[32:35], s57 offen sc1", "st")
            ops.append(f)
        return ops

    def st_finish():
        k.wait_vm("st")
        stats_finish(k, STB, 12, 10, 13, 14, 15)
        k.e("v_rcp_f32 v11, v10")
        k.e("v_xor_b32 v12, 0x80000000, v12")
        k.e("v_mul_f32 v11, 0xbfb8aa3b, v11")
        k.e("v_lshrrev_b32 v13, 16, v12")
        k.e("v_or_b32 v14, v12, v13")
        k.e(f"v_mov_b32 v{XB}, v14")
        k.e(f"v_mov_b32 v{XB+1}, v13")
        k.e(f"v_mov_b32 v{XB+2}, v14")
        k.e(f"v_mov_b32 v{XB+3}, v13")
    if PRIO == 1:
        k.e("s_cmp_ge_u32 s20, 4")
        k.e(f"s_cbranch_scc0 {name}_np")
        k.e("s_setprio 1")
        k.label(f"{name}_np")
    elif PRIO == 2:
        k.e("s_cmp_lt_u32 s20, 4")
        k.e(f"s_cbranch_scc0 {name}_np")
        k.e("s_setprio 1")
        k.label(f"{name}_np")
    k.stamp(1)
    k.wait_vm(("d", 0))
    k.e("s_barrier")
    k.stamp(2)
    pend += b_ops(1) + dma_ops(2) + st_ops() + b_ops(2) + dma_ops(3) + ext_ops()

    seq = []
    for st_ in range(7):
        for kk in range(4):
            for ft in range(9):
                seq.append((st_, kk, ft))
    NMAIN = len(seq)
    for ft in range(9):
        for st_ in (7, 8):
            for kk in range(4):
                seq.append((st_, kk, ft))
        seq.append(("x", 0, ft))
    total = len(seq)

    def aread(m):
        if os.environ.get("EXP_NODS"):
            return
        if os.environ.get("EXP_HALFDS") and m % 2 == 1:
            return
        st_, kk, ft = seq[m]
        rg = AFB + (m % NF) * 4
        if st_ == "x":
            k.ds(f"ds_read_b128 v[{rg}:{rg+3}], v8 offset:{ft*1024}", m)
        else:
            k.ds(f"ds_read_b128 v[{rg}:{rg+3}], v{4 + st_ % 4} offset:{(kk*9+ft)*1024}", m)

    def stage_sync(st_):
        while pend:
            pend.pop(0)()
        if st_ == 7:
            k.wait_vm([("d", 7), ("d", 8), ("d", "x")])
        else:
            k.wait_vm(("d", st_))
        if not os.environ.get("EXP_NOBAR"):
            k.e("s_barrier")
        if st_ == 1:
            st_finish()
        if st_ >= 2 and st_ + 2 < NST and not os.environ.get("EXP_NOVM"):
            pend.extend(dma_ops(st_ + 2))
        if st_ >= 1 and st_ + 2 < NST and not os.environ.get("EXP_NOVM"):
            pend.extend(b_ops(st_ + 2))

    k.e(f"s_mul_i32 s48, s21, {HCB}")
    k.e("s_mul_i32 s49, s23, 9216")
    k.e("s_add_u32 s48, s48, s49")

    def epi(ft):
        a = ACC + ft * 16
        t = 32 + (ft % 2) * 12
        ins = []
        for j in range(8):
            ins.append(f"v_mul_f32 v{t+j}, v{a+j}, v11")
        for j in range(8):
            ins.append(f"v_exp_f32 v{t+j}, v{t+j}")
        for j in range(8):
            ins.append(f"v_fma_f32 v{t+j}, v{t+j}, v10, v10")
        for j in range(8):
            ins.append(f"v_rcp_f32 v{t+j}, v{t+j}")
        for j in range(8):
            ins.append(f"v_mul_f32 v{t+j}, v{t+j}, v{a+8+j}")
        for j in range(4):
            ins.append(f"v_cvt_pk_bf16_f32 v{t+8+j}, v{t+2*j}, v{t+2*j+1}")
        ins.append(("store", t + 8, ft))
        return ins

    def emit_epi(ins):
        if isinstance(ins, tuple):
            _, rg, ft = ins
            k.vm(f"buffer_store_dwordx4 v[{rg}:{rg+3}], v3, s[40:43], s48 offen {STPG}", ("o", ft))
            k.e("s_add_u32 s48, s48, 1024")
        else:
            k.e(ins)

    for m in range(DEP):
        aread(m)
    epq = []
    for m in range(total):
        nxt = m + DEP
        if nxt < total:
            if nxt < NMAIN and nxt % 36 == 0:
                stage_sync(nxt // 36)
            if nxt == NMAIN:
                stage_sync(7)
            aread(nxt)
        st_, kk, ft = seq[m]
        if m < NMAIN:
            if m % 36 == 0:
                k.wait_vm(("b", st_))
        elif m == NMAIN:
            k.wait_vm([("b", 7), ("b", 8)])
            k.stamp(3)
        k.wait_ds(m)
        af = AFB + ((m - (m % 2 if os.environ.get("EXP_HALFDS") else 0)) % NF) * 4
        bf = XB if st_ == "x" else BFB + (st_ % 4) * 16 + kk * 4
        acc = ACC + ft * 16
        k.e(f"v_mfma_f32_32x32x16_bf16 v[{acc}:{acc+15}], v[{af}:{af+3}], v[{bf}:{bf+3}], v[{acc}:{acc+15}]")
        if pend and (m % VSP == VSP - 1 or m < 36):
            pend.pop(0)()
        if m >= NMAIN:
            r = (m - NMAIN) % 9
            if r == 8:
                while epq:
                    emit_epi(epq.pop(0))
                epq = epi(ft)
            elif r >= 3:
                for _ in range(9):
                    if epq:
                        emit_epi(epq.pop(0))
    k.e("s_nop 15")
    while epq:
        emit_epi(epq.pop(0))
    k.e("s_lshl_b32 s47, s21, 7")
    k.e("s_lshl_b32 s3, s23, 2")
    k.e("s_add_u32 s47, s47, s3")
    k.e("s_add_u32 s47, s47, s65")
    publish(k, 47, 1, 9)
    k.stamp(4)
    if PROF:
        k.wait_vm_all()
    k.stamp(5)
    k.stamp_store(3, 18, 20)
    k.label(Lend)
    return k, 256, 512, 4 * STG + 9216


def build():
    def mv(*pairs):
        return [f" s_mov_b32 s{r}, {v}" for r, v in pairs]
    X = lambda i: WS[f"XC{i}"][0]
    T = lambda i: WS[f"ST{i}"][0]
    FL = lambda i: i * 65536
    DF = lambda layer, j: 262144 + layer * 32768 + j * 8192
    EX = lambda i: WS["PART"][0] + i * 9437184
    AB = [WS["AB2"][0], WS["AB"][0]]
    HC = [WS["HC2"][0], WS["HC"][0]]
    kh1 = gen_kh_full(True)
    kh = gen_kh_full(False); ks = gen_t2("S"); kg = gen_kg(); kd = gen_t2("D")
    phases = [
        ("kh1", mv((72, AB[0]))),
        ("ks", mv((70, X(0)), (71, X(1)), (72, T(1)), (73, 0), (75, EX(0)), (68, AB[0]), (69, FL(0)), (64, DF(1, 3)), (65, DF(0, 0)))),
        ("kg", mv((70, X(1)), (71, T(1)), (72, HC[0]), (64, DF(0, 0)), (65, DF(0, 1)))),
        ("kd", mv((70, X(1)), (71, X(2)), (72, T(2)), (73, 0), (75, EX(1)), (68, HC[0]), (69, FL(1)), (64, DF(0, 1)), (65, DF(0, 2)))),
        ("kh", mv((70, X(2)), (71, T(2)), (72, AB[1]), (64, DF(0, 2)), (65, DF(0, 3)))),
        ("ks", mv((70, X(2)), (71, X(3)), (72, T(3)), (73, 0), (75, EX(2)), (68, AB[1]), (69, FL(2)), (64, DF(0, 3)), (65, DF(1, 0)))),
        ("kg", mv((70, X(3)), (71, T(3)), (72, HC[1]), (64, DF(1, 0)), (65, DF(1, 1)))),
        ("kd", mv((70, X(3)), (71, X(2)), (72, T(2)), (73, 1), (75, EX(3)), (68, HC[1]), (69, FL(3)), (64, DF(1, 1)), (65, DF(1, 2)))),
    ]
    lds = max(x[3] for x in (kh1, kh, ks, kg, kd))
    head = ["; generated by dev/gen15.py -- FNet/GLU interleaved layers: one persistent dataflow kernel",
            f"; @launch kernel=mega_kernel grid=(256,1,1) block=(512,1,1) lds={lds}"]
    out = head + ['.amdgcn_target "amdgcn-amd-amdhsa--gfx950"', ".text"]
    descs = []
    out += [".globl mega_kernel", ".p2align 8", ".type mega_kernel,@function", "mega_kernel:",
            " s_cmp_ge_u32 s2, 256", " s_cbranch_scc1 mega_exit"]
    for i, (nm, ins) in enumerate(phases):
        out.append(f"mega_p{i}:")
        out += ins
        out.append(f" s_mov_b32 s100, {i}")
        if PROF:
            out.append(f" s_mov_b32 s74, {i*512*256}")
        out.append(f" s_branch {nm}_body")
    out += ["mega_exit:", " s_endpgm"]
    nxt = {"kh1": [(0, 1)], "ks": [(1, 2), (5, 6)], "kg": [(2, 3), (6, 7)], "kd": [(3, 4)], "kh": [(4, 5)]}
    for kk_ in (kh1, kh, ks, kg, kd):
        k = kk_[0]
        out += [".p2align 6", f"{k.name}_body:"]
        out += [x.replace("    ", " ", 1) for x in k.L]
        for cur, n in nxt[k.name]:
            out += [f" s_cmp_eq_u32 s100, {cur}", f" s_cbranch_scc1 mega_p{n}"]
        out += [" s_endpgm"]
    descs.append("\n".join([".amdhsa_kernel mega_kernel", "  .amdhsa_next_free_vgpr 256", "  .amdhsa_next_free_sgpr 102", "  .amdhsa_accum_offset 256",
                "  .amdhsa_group_segment_fixed_size 0", "  .amdhsa_kernarg_size 96", "  .amdhsa_user_sgpr_count 2",
                "  .amdhsa_user_sgpr_kernarg_segment_ptr 1", "  .amdhsa_system_sgpr_workgroup_id_x 1", ".end_amdhsa_kernel"]))
    out.append('.section .rodata,"a"')
    for d in descs:
        out.append(".p2align 6")
        out.append(d)
    return "\n".join(out) + "\n"


if __name__ == "__main__":
    path = sys.argv[1] if len(sys.argv) > 1 else "interleave_layers__spectral_fnet__glu_gated_glu__prompt.s"
    open(path, "w").write(build())
    print("wrote", path, "ws bytes", WS_TOTAL)
```

```python
import sys

S, D, F = 2048, 576, 4608
import os
PROF = bool(int(os.environ.get("PROF", "0")))
NW_T1 = 8

XC_SZ = S * D * 2
ST_SZ = S * 16 * 2 * 4
PADH = int(os.environ.get("PADH", "0")); PADW = int(os.environ.get("PADW", "0")); PADA = int(os.environ.get("PADA", "0"))
ABJ = 256 * 1152 + PADA
HCB = 576 * 512 + PADH
WDJ = 576 * 1152 + PADW
AB_SZ = 16 * ABJ
HC_SZ = 64 * HCB
WGU_SZ = 32 * 37 * 9 * 1024
WGU_CB = 37 * 9216
WD_SZ = 8 * WDJ
CS_SZ = 288 * 2 * 2 * 8 * 4
RS_SZ = 2 * 8 * 80 * 4


def _al(x, a=4096):
    return (x + a - 1) // a * a


_off = 0
WS = {}
for name, sz in [("XC0", XC_SZ), ("XC1", XC_SZ), ("XC2", XC_SZ), ("XC3", XC_SZ),
                 ("ST0", ST_SZ), ("ST1", ST_SZ), ("ST2", ST_SZ), ("ST3", ST_SZ),
                 ("AB", AB_SZ), ("HC", HC_SZ), ("WGU", WGU_SZ), ("WD", WD_SZ),
                 ("CS", CS_SZ), ("RS", RS_SZ), ("PART", 4*128*4*9216*2), ("LC", XC_SZ), ("FLG", 524288), ("AB2", AB_SZ), ("HC2", HC_SZ), ("DBG", 16*512*256)]:
    WS[name] = (_off, sz)
    _off += _al(sz + 4096)
WS_TOTAL = _off

KA = dict(x=0, seq_re=8, seq_im=16, hid_re=24, hid_im=32, bx=40, wg=48, wu=56, wd=64, out=72, dbg=80, ws=88)


class Kern:
    def __init__(self, name, nvgpr, nagpr=0, nsgpr=100):
        self.name = name
        self.L = []
        self.vq = []
        self.lq = []
        self.nvgpr = nvgpr
        self.nagpr = nagpr
        self.nsgpr = nsgpr
        self.lab = 0

    def e(self, s):
        self.L.append("    " + s)

    def c(self, s):
        self.L.append("    ; " + s)

    def label(self, s):
        self.L.append(s + ":")

    def newlabel(self, p="L"):
        self.lab += 1
        return f"{self.name}_{p}{self.lab}"

    def vm(self, s, tag):
        self.e(s)
        self.vq.append(tag)
        assert len(self.vq) <= 63, f"too many vmem outstanding in {self.name}"

    def wait_vm(self, tags):
        if not isinstance(tags, (list, set)):
            tags = [tags]
        idx = -1
        for i, t in enumerate(self.vq):
            if t in tags:
                idx = i
        if idx < 0:
            return
        n = len(self.vq) - 1 - idx
        self.e(f"s_waitcnt vmcnt({n})")
        self.vq = self.vq[idx + 1:]

    def wait_vm_all(self):
        self.e("s_waitcnt vmcnt(0)")
        self.vq = []

    def ds(self, s, tag):
        self.e(s)
        self.lq.append(tag)

    def wait_ds(self, tags):
        if not isinstance(tags, (list, set)):
            tags = [tags]
        idx = -1
        for i, t in enumerate(self.lq):
            if t in tags:
                idx = i
        if idx < 0:
            return
        n = len(self.lq) - 1 - idx
        assert n <= 15
        self.e(f"s_waitcnt lgkmcnt({n})")
        self.lq = self.lq[idx + 1:]

    def wait_ds_all(self):
        self.e("s_waitcnt lgkmcnt(0)")
        self.lq = []

    def stamp(self, i):
        if not PROF:
            return
        self.e("s_waitcnt lgkmcnt(0)")
        self.lq = []
        self.e(f"s_memtime s[{80+2*i}:{81+2*i}]")
        if i == 0:
            self.e("s_memrealtime s[94:95]")
        self.e("s_waitcnt lgkmcnt(0)")
        self.nst = max(getattr(self, "nst", 0), i + 1)

    def stamp_store(self, kidx, wsbase, swave):
        if not PROF:
            return
        self.e("s_mov_b64 exec, -1")
        self.e("s_memrealtime s[96:97]")
        self.srd_ws(76, wsbase, "DBG")
        self.e("s_waitcnt lgkmcnt(0)")
        self.e(f"s_lshl_b32 s98, s2, 8")
        self.e(f"s_lshl_b32 s99, s{swave}, 5")
        self.e("s_add_u32 s98, s98, s99")
        self.e("s_add_u32 s98, s98, s74")
        self.e("v_mov_b32 v1, 0")
        for i in range(self.nst):
            self.e(f"v_mov_b32 v2, s{80+2*i}")
            self.e(f"buffer_store_dword v2, v1, s[76:79], s98 offen offset:{4*i}")
        self.e("v_mov_b32 v2, s96")
        self.e(f"buffer_store_dword v2, v1, s[76:79], s98 offen offset:28")
        self.e("v_mov_b32 v2, s94")
        self.e(f"buffer_store_dword v2, v1, s[76:79], s98 offen offset:24")

    def srd_ptr(self, d, base, nbytes):
        self.e(f"s_mov_b32 s{d}, s{base}")
        self.e(f"s_and_b32 s{d+1}, s{base+1}, 0xffff")
        self.e(f"s_mov_b32 s{d+2}, {nbytes}")
        self.e(f"s_mov_b32 s{d+3}, 0x00020000")

    def srd_ws(self, d, wsbase, region):
        off, sz = WS[region]
        self.e(f"s_add_u32 s{d}, s{wsbase}, {off}")
        self.e(f"s_addc_u32 s{d+1}, s{wsbase+1}, 0")
        self.e(f"s_and_b32 s{d+1}, s{d+1}, 0xffff")
        self.e(f"s_mov_b32 s{d+2}, {sz}")
        self.e(f"s_mov_b32 s{d+3}, 0x00020000")

    def text(self):
        tot = self.nvgpr if self.nagpr == 0 else (self.nvgpr + 3) // 4 * 4 + self.nagpr
        acc = (self.nvgpr + 3) // 4 * 4
        out = [f".globl {self.name}", ".p2align 8", f".type {self.name},@function", f"{self.name}:"]
        out += self.L
        out += ["    s_endpgm"]
        desc = [f".amdhsa_kernel {self.name}",
                f"  .amdhsa_next_free_vgpr {tot}",
                f"  .amdhsa_next_free_sgpr {100 if PROF else self.nsgpr}",
                f"  .amdhsa_accum_offset {acc}",
                "  .amdhsa_group_segment_fixed_size 0",
                "  .amdhsa_kernarg_size 96",
                "  .amdhsa_user_sgpr_count 2",
                "  .amdhsa_user_sgpr_kernarg_segment_ptr 1",
                "  .amdhsa_system_sgpr_workgroup_id_x 1",
                ".end_amdhsa_kernel"]
        return "\n".join(out), "\n".join(desc)


def R(kind, i, n=1):
    if n == 1:
        return f"{kind}{i}"
    return f"{kind}[{i}:{i+n-1}]"


def unpack_sum(k, src, lo, hi, sacc, qacc):
    k.e(f"v_lshlrev_b32 v{lo}, 16, v{src}")
    k.e(f"v_and_b32 v{hi}, 0xffff0000, v{src}")
    k.e(f"v_add_f32 v{sacc}, v{sacc}, v{lo}")
    if qacc is not None:
        k.e(f"v_fmac_f32 v{qacc}, v{lo}, v{lo}")
    k.e(f"v_add_f32 v{sacc}, v{sacc}, v{hi}")
    if qacc is not None:
        k.e(f"v_fmac_f32 v{qacc}, v{hi}, v{hi}")


def xlane_add(k, val, tmp, addr, lane, mask):
    k.e(f"v_xor_b32 v{addr}, {mask}, v{lane}")
    k.e(f"v_lshlrev_b32 v{addr}, 2, v{addr}")
    k.e(f"ds_bpermute_b32 v{tmp}, v{addr}, v{val}")
    k.e("s_waitcnt lgkmcnt(0)")
    k.e(f"v_add_f32 v{val}, v{val}, v{tmp}")


def slotmap_v(k, dd, out, t0, t1):
    k.e(f"v_and_b32 v{out}, 0x23, v{dd}")
    k.e(f"v_bfe_u32 v{t0}, v{dd}, 2, 1")
    k.e(f"v_lshl_or_b32 v{out}, v{t0}, 4, v{out}")
    k.e(f"v_bfe_u32 v{t0}, v{dd}, 3, 2")
    k.e(f"v_lshl_or_b32 v{out}, v{t0}, 2, v{out}")
    k.e(f"v_cmp_gt_u32 vcc, 64, v{dd}")
    k.e("s_nop 1")
    k.e(f"v_cndmask_b32 v{out}, v{dd}, v{out}, vcc")


NA_, NB_, NC_, ND_ = 64, 36, 144, 144


def gen_k0():
    k = Kern("k0_kernel", 64, 0, 64)
    total = NA_ + NB_ + NC_ + ND_
    Lend = "k0_end"
    k.e(f"s_cmp_ge_u32 s2, {total}")
    k.e(f"s_cbranch_scc1 {Lend}")
    k.e("s_load_dwordx2 s[4:5], s[0:1], 0")
    k.e("s_load_dwordx4 s[8:11], s[0:1], 24")
    k.e("s_load_dwordx4 s[12:15], s[0:1], 48")
    k.e("s_load_dwordx2 s[16:17], s[0:1], 64")
    k.e("s_load_dwordx2 s[18:19], s[0:1], 88")
    k.e("v_lshrrev_b32 v1, 6, v0")
    k.e("v_and_b32 v2, 63, v0")
    k.e("v_readfirstlane_b32 s20, v1")
    k.e("s_waitcnt lgkmcnt(0)")
    k.e(f"s_cmp_lt_u32 s2, {NC_}")
    k.e("s_cbranch_scc1 k0_roleC")
    k.e(f"s_cmp_lt_u32 s2, {NC_ + ND_}")
    k.e("s_cbranch_scc1 k0_roleD")
    k.e(f"s_cmp_lt_u32 s2, {NC_ + ND_ + NA_}")
    k.e("s_cbranch_scc1 k0_roleA")
    k.e("s_branch k0_roleB")

    k.label("k0_roleA")
    k.e(f"s_sub_u32 s21, s2, {NC_ + ND_}")
    k.srd_ptr(24, 4, XC_SZ)
    k.srd_ws(28, 18, "XC0")
    k.srd_ws(32, 18, "ST0")
    k.e("v_and_b32 v3, 31, v0")
    k.e("v_lshrrev_b32 v4, 5, v0")
    k.e("v_and_b32 v5, 3, v3")
    k.e("v_bfe_u32 v6, v3, 2, 2")
    k.e("v_lshl_or_b32 v5, v6, 3, v5")
    k.e("v_bfe_u32 v6, v3, 4, 1")
    k.e("v_lshl_or_b32 v5, v6, 2, v5")
    k.e("s_movk_i32 s22, 1152")
    k.e("v_mul_lo_u32 v5, v5, s22")
    k.e("v_mul_u32_u24 v6, 144, v4")
    k.e("v_add_u32 v5, v5, v6")
    k.e("s_mul_i32 s23, s21, 36864")
    for it in range(9):
        k.e(f"buffer_load_dwordx4 v[{16+4*it}:{19+4*it}], v5, s[24:27], s23 offen offset:{16*it}")
    k.e("v_mul_u32_u24 v6, 4608, v4")
    k.e("v_lshl_add_u32 v6, v3, 4, v6")
    k.e("v_add_u32 v7, 2048, v6")
    k.e("v_mov_b32 v8, 0")
    k.e("v_mov_b32 v9, 0")
    k.e("s_waitcnt vmcnt(0)")
    for it in range(9):
        vo, im = (6, it * 512) if it < 4 else (7, (it - 4) * 512)
        k.e(f"buffer_store_dwordx4 v[{16+4*it}:{19+4*it}], v{vo}, s[28:31], s23 offen offset:{im}")
    for r in range(36):
        unpack_sum(k, 16 + r, 10, 11, 8, 9)
    k.e("v_lshlrev_b32 v12, 3, v3")
    k.e("v_lshl_add_u32 v12, v4, 15, v12")
    k.e("s_lshl_b32 s23, s21, 8")
    k.e("v_mov_b32 v10, 0")
    k.e("v_mov_b32 v11, 0")
    k.e("buffer_store_dwordx2 v[8:9], v12, s[32:35], s23 offen")
    k.e("v_add_u32 v12, 16384, v12")
    k.e("buffer_store_dwordx2 v[10:11], v12, s[32:35], s23 offen")
    k.e(f"s_branch {Lend}")

    k.label("k0_roleB")
    k.e(f"s_sub_u32 s21, s2, {NC_ + ND_ + NA_}")
    k.e("s_cmp_ge_u32 s21, 18")
    k.e("s_cselect_b32 s22, 1, 0")
    k.e("s_cselect_b32 s4, s10, s8")
    k.e("s_cselect_b32 s5, s11, s9")
    k.e("s_mul_i32 s23, s22, 18")
    k.e("s_sub_u32 s21, s21, s23")
    k.srd_ptr(24, 4, D * D * 2)
    k.srd_ws(28, 18, "RS")
    k.e("s_lshl_b32 s23, s21, 5")
    k.e("s_lshl_b32 s36, s20, 3")
    k.e("s_add_u32 s23, s23, s36")
    k.e("v_lshrrev_b32 v3, 3, v2")
    k.e("v_add_u32 v3, s23, v3")
    k.e("v_and_b32 v4, 7, v2")
    k.e("s_movk_i32 s36, 1152")
    k.e("v_mul_lo_u32 v5, v3, s36")
    k.e("v_lshl_add_u32 v5, v4, 4, v5")
    for it in range(9):
        k.e(f"buffer_load_dwordx4 v[{16+4*it}:{19+4*it}], v5, s[24:27], 0 offen offset:{128*it}")
    k.e("v_mov_b32 v8, 0")
    k.e("s_waitcnt vmcnt(0)")
    for r in range(36):
        unpack_sum(k, 16 + r, 10, 11, 8, None)
    for m in (1, 2, 4):
        xlane_add(k, 8, 10, 11, 2, m)
    k.e("v_mul_u32_u24 v6, 911, v3")
    k.e("v_lshrrev_b32 v6, 16, v6")
    k.e("v_mul_u32_u24 v7, 72, v6")
    k.e("v_sub_u32 v7, v3, v7")
    slotmap_v(k, 7, 12, 13, 14)
    k.e("v_mul_u32_u24 v6, 80, v6")
    k.e("v_add_u32 v6, v6, v12")
    k.e("v_lshlrev_b32 v6, 2, v6")
    k.e("s_mul_i32 s23, s22, 2560")
    k.e("v_cmp_eq_u32 vcc, 0, v4")
    k.e("s_and_saveexec_b64 s[38:39], vcc")
    k.e("buffer_store_dword v8, v6, s[28:31], s23 offen")
    k.e(f"s_branch {Lend}")

    k.label("k0_roleC")
    k.e("s_cmp_ge_u32 s2, 72")
    k.e("s_cselect_b32 s22, 1, 0")
    k.e("s_cselect_b32 s4, s14, s12")
    k.e("s_cselect_b32 s5, s15, s13")
    k.e("s_mul_i32 s23, s22, 72")
    k.e("s_sub_u32 s21, s2, s23")
    k.srd_ptr(24, 4, D * F * 2)
    k.srd_ws(28, 18, "WGU")
    k.srd_ws(32, 18, "CS")
    k.e("v_lshrrev_b32 v3, 3, v2")
    k.e("v_and_b32 v4, 7, v2")
    k.e("v_mul_u32_u24 v5, 9216, v3")
    k.e("v_lshl_add_u32 v5, v4, 4, v5")
    k.e("s_mul_i32 s36, s20, 73728")
    k.e("s_lshl_b32 s37, s21, 7")
    k.e("s_add_u32 s36, s36, s37")
    k.e("s_lshl_b32 s37, s20, 10")
    for i in range(18):
        k.e(f"s_add_u32 m0, s37, {4096*i}")
        k.e("s_nop 0")
        k.e("buffer_load_dwordx4 v5, s[24:27], s36 offen lds")
        k.e(f"s_add_u32 s36, s36, {4*73728}")
    k.e("v_lshrrev_b32 v3, 4, v2")
    k.e("v_and_b32 v4, 15, v2")
    k.e("v_bfe_u32 v6, v2, 2, 2")
    k.e("v_lshlrev_b32 v7, 10, v3")
    k.e("v_lshl_add_u32 v7, v6, 7, v7")
    k.e("v_and_b32 v6, 1, v2")
    k.e("v_lshl_add_u32 v7, v6, 4, v7")
    k.e("v_bfe_u32 v6, v2, 1, 1")
    k.e("v_lshl_add_u32 v7, v6, 3, v7")
    k.e("s_lshl_b32 s36, s20, 5")
    k.e("v_add_u32 v7, s36, v7")
    k.e("v_add_u32 v8, 0x8000, v7")
    k.e("s_lshl_b32 s36, s21, 2")
    k.e("s_add_u32 s36, s36, s20")
    k.e("s_mul_i32 s37, s36, 7282")
    k.e("s_lshr_b32 s37, s37, 16")
    k.e("s_mul_i32 s38, s37, 9")
    k.e("s_sub_u32 s38, s36, s38")
    k.e(f"s_mul_i32 s39, s37, {WGU_CB}")
    k.e("s_lshl_b32 s38, s38, 10")
    k.e("s_add_u32 s39, s39, s38")
    k.e("s_lshl_b32 s38, s22, 8")
    k.e("s_add_u32 s39, s39, s38")
    k.e("v_lshrrev_b32 v9, 1, v3")
    k.e("v_mul_u32_u24 v9, 9216, v9")
    k.e("v_and_b32 v6, 1, v3")
    k.e("v_lshl_add_u32 v9, v6, 9, v9")
    k.e("v_lshl_add_u32 v9, v4, 4, v9")
    k.e("v_mov_b32 v10, 0")
    k.e("s_waitcnt vmcnt(0)")
    k.e("s_barrier")
    for it in range(18):
        base, im = (7, it * 4096) if it < 8 else (8, (it - 8) * 4096)
        rg = 16 + 4 * (it % 8)
        k.e(f"ds_read_b64_tr_b16 v[{rg}:{rg+1}], v{base} offset:{im}")
        k.e(f"ds_read_b64_tr_b16 v[{rg+2}:{rg+3}], v{base} offset:{im+512}")
        k.e("s_waitcnt lgkmcnt(0)")
        k.e(f"buffer_store_dwordx4 v[{rg}:{rg+3}], v9, s[28:31], s39 offen")
        k.e(f"s_add_u32 s39, s39, 18432")
        for r in range(4):
            unpack_sum(k, rg + r, 11, 12, 10, None)
        if it % 8 == 7:
            k.e("s_waitcnt vmcnt(0)")
    xlane_add(k, 10, 11, 12, 2, 16)
    xlane_add(k, 10, 11, 12, 2, 32)
    k.e("v_cvt_pk_bf16_f32 v11, v10, v10")
    k.e("v_lshlrev_b32 v12, 16, v11")
    k.e("v_sub_f32 v13, v10, v12")
    k.e("v_cvt_pk_bf16_f32 v14, v13, v13")
    k.e("v_lshlrev_b32 v15, 16, v14")
    k.e("v_sub_f32 v13, v13, v15")
    k.e("v_cvt_pk_bf16_f32 v17, v13, v13")
    k.e("v_and_b32 v17, 0xffff, v17")
    k.e("v_and_b32 v16, 0xffff, v11")
    k.e("v_or_b32 v16, v16, v15")
    k.e("v_mov_b32 v18, 0")
    k.e("v_mov_b32 v19, 0")
    k.e("v_cmp_gt_u32 vcc, 16, v2")
    k.e("s_nop 1")
    k.e("v_cndmask_b32 v16, 0, v16, vcc")
    k.e("v_cndmask_b32 v17, 0, v17, vcc")
    k.e("v_lshlrev_b32 v11, 4, v4")
    k.e("v_lshl_add_u32 v11, v3, 9, v11")
    k.e("v_cmp_gt_u32 vcc, 32, v2")
    k.e("s_and_saveexec_b64 s[40:41], vcc")
    k.e("buffer_store_dwordx4 v[16:19], v11, s[28:31], s39 offen")
    k.e(f"s_branch {Lend}")

    k.label("k0_roleD")
    k.e(f"s_sub_u32 s21, s2, {NC_}")
    k.e("s_mul_i32 s22, s21, 7282")
    k.e("s_lshr_b32 s22, s22, 16")
    k.e("s_mul_i32 s23, s22, 9")
    k.e("s_sub_u32 s21, s21, s23")
    k.srd_ptr(24, 16, D * F * 2)
    k.srd_ws(28, 18, "WD")
    k.e("v_lshrrev_b32 v3, 3, v2")
    k.e("v_and_b32 v4, 7, v2")
    k.e("v_mul_u32_u24 v5, 1152, v3")
    k.e("v_lshl_add_u32 v5, v4, 4, v5")
    k.e(f"s_mul_i32 s36, s22, {288*1152}")
    k.e("s_mul_i32 s37, s20, 9216")
    k.e("s_add_u32 s36, s36, s37")
    k.e("s_lshl_b32 s37, s21, 7")
    k.e("s_add_u32 s36, s36, s37")
    k.e("s_lshl_b32 s37, s20, 10")
    for i in range(9):
        k.e(f"s_add_u32 m0, s37, {4096*i}")
        k.e("s_nop 0")
        k.e("buffer_load_dwordx4 v5, s[24:27], s36 offen lds")
        k.e(f"s_add_u32 s36, s36, {4*9216}")
    k.e("v_lshrrev_b32 v3, 4, v2")
    k.e("v_and_b32 v4, 15, v2")
    k.e("v_bfe_u32 v6, v2, 2, 2")
    k.e("v_lshlrev_b32 v7, 10, v3")
    k.e("v_lshl_add_u32 v7, v6, 7, v7")
    k.e("v_and_b32 v6, 3, v2")
    k.e("v_lshl_add_u32 v7, v6, 3, v7")
    k.e("s_lshl_b32 s36, s20, 5")
    k.e("v_add_u32 v7, s36, v7")
    k.e("s_lshl_b32 s36, s21, 6")
    k.e("s_lshl_b32 s37, s20, 4")
    k.e("s_add_u32 s36, s36, s37")
    k.e("v_add_u32 v8, s36, v4")
    k.e("v_mul_u32_u24 v9, 911, v8")
    k.e("v_lshrrev_b32 v9, 16, v9")
    k.e("v_mul_u32_u24 v10, 72, v9")
    k.e("v_sub_u32 v10, v8, v10")
    slotmap_v(k, 10, 11, 12, 13)
    k.e("s_mov_b32 s36, 663552")
    k.e("v_mul_lo_u32 v9, v9, s36")
    k.e("v_lshl_add_u32 v9, v11, 4, v9")
    k.e("v_mul_u32_u24 v12, 1152, v3")
    k.e("v_add_u32 v9, v9, v12")
    k.e(f"s_mul_i32 s39, s22, {36*1152}")
    k.e("s_waitcnt vmcnt(0)")
    k.e("s_barrier")
    for it in range(9):
        rg = 16 + 4 * it
        k.e(f"ds_read_b64_tr_b16 v[{rg}:{rg+1}], v7 offset:{it*4096}")
        k.e(f"ds_read_b64_tr_b16 v[{rg+2}:{rg+3}], v7 offset:{it*4096+512}")
    for it in range(9):
        rg = 16 + 4 * it
        k.e(f"s_waitcnt lgkmcnt({min(15, 2*(8-it))})")
        k.e(f"buffer_store_dwordx4 v[{rg}:{rg+3}], v9, s[28:31], s39 offen")
        k.e(f"s_add_u32 s39, s39, 4608")
    k.label(Lend)
    return k, total, 256, 73728


def srd_ws_s(k, d, wsbase, sreg, size):
    k.e(f"s_add_u32 s{d}, s{wsbase}, s{sreg}")
    k.e(f"s_addc_u32 s{d+1}, s{wsbase+1}, 0")
    k.e(f"s_and_b32 s{d+1}, s{d+1}, 0xffff")
    k.e(f"s_mov_b32 s{d+2}, {size}")
    k.e(f"s_mov_b32 s{d+3}, 0x00020000")


def ktext(k, entries):
    tot = k.nvgpr if k.nagpr == 0 else (k.nvgpr + 3) // 4 * 4 + k.nagpr
    acc = (k.nvgpr + 3) // 4 * 4
    out, descs = [], []
    for name, ins in entries:
        out += [f".globl {name}", ".p2align 8", f".type {name},@function", f"{name}:"]
        out += [" " + x for x in ins]
        out += [f" s_branch {k.name}_body"]
        descs.append("\n".join([f".amdhsa_kernel {name}",
                f"  .amdhsa_next_free_vgpr {tot}",
                f"  .amdhsa_next_free_sgpr {100 if PROF else k.nsgpr}",
                f"  .amdhsa_accum_offset {acc}",
                "  .amdhsa_group_segment_fixed_size 0",
                "  .amdhsa_kernarg_size 96",
                "  .amdhsa_user_sgpr_count 2",
                "  .amdhsa_user_sgpr_kernarg_segment_ptr 1",
                "  .amdhsa_system_sgpr_workgroup_id_x 1",
                ".end_amdhsa_kernel"]))
    out += [".p2align 6", f"{k.name}_body:"]
    out += [x.replace("    ", " ", 1) for x in k.L]
    out += [" s_endpgm"]
    return "\n".join(out), descs


CPRE = int(os.environ.get("CPRE", "0"))


def code_prefetch(k, name, dummy, srd, vtmp, nwaves, swave, track=True):
    if not CPRE:
        return
    lab = k.newlabel("pc")
    k.e(f"s_getpc_b64 s[{srd}:{srd+1}]")
    k.label(lab)
    k.e(f"s_sub_u32 s{srd}, s{srd}, {lab}-{name}_body")
    k.e(f"s_subb_u32 s{srd+1}, s{srd+1}, 0")
    k.e(f"s_and_b32 s{srd+1}, s{srd+1}, 0xffff")
    k.e(f"s_mov_b32 s{srd+2}, {name}_end-{name}_body")
    k.e(f"s_mov_b32 s{srd+3}, 0x00020000")
    k.e(f"v_lshlrev_b32 v{vtmp}, 4, v0")
    k.e("s_bfe_u32 s3, s2, 0x20003")
    k.e(f"s_mul_i32 s3, s3, {nwaves*1024}")
    for j in range(CPRE):
        ins = f"buffer_load_dwordx4 v[{dummy}:{dummy+3}], v{vtmp}, s[{srd}:{srd+3}], s3 offen"
        if track:
            k.vm(ins, "cp")
        else:
            k.e(ins)
        if j + 1 < CPRE:
            k.e(f"s_add_u32 s3, s3, {4*nwaves*1024}")


def flag_srd(k):
    k.srd_ws(76, 18, "FLG")


def poll(k, name, soff, nlanes, vaddr, vtmp, skip_if_neg=None):
    lab = k.newlabel("pl")
    if skip_if_neg is not None:
        k.e(f"s_cmp_lt_i32 s{skip_if_neg}, 0")
        k.e(f"s_cbranch_scc1 {lab}x")
    k.e("s_mov_b32 s3, 0")
    if nlanes < 64:
        k.e(f"s_mov_b64 exec, {(1 << nlanes) - 1 if nlanes < 32 else 0xffffffff}")
        if nlanes == 32:
            k.e("s_mov_b32 exec_hi, 0")
    k.label(lab)
    k.e(f"buffer_load_dword v{vtmp}, v{vaddr}, s[76:79], s{soff} offen sc1")
    k.e("s_add_u32 s3, s3, 1")
    k.e("s_waitcnt vmcnt(0)")
    k.e(f"v_cmp_ne_u32 vcc, s101, v{vtmp}")
    k.e("s_cmp_ge_u32 s3, 0x40000")
    k.e(f"s_cbranch_scc1 {lab}y")
    k.e("s_cmp_eq_u64 vcc, 0")
    k.e(f"s_cbranch_scc1 {lab}y")
    k.e("s_sleep 3")
    k.e(f"s_branch {lab}")
    k.label(lab + "y")
    k.e("s_mov_b64 exec, -1")
    k.label(lab + "x")


def publish(k, soff, v1_, v2_):
    k.e("s_mov_b64 exec, -1")
    k.e(f"v_mov_b32 v{v1_}, s101")
    k.e(f"v_mov_b32 v{v2_}, 0")
    k.e("s_waitcnt vmcnt(0)")
    k.vq = []
    k.e("s_mov_b64 exec, 1")
    k.e(f"buffer_store_dword v{v1_}, v{v2_}, s[76:79], s{soff} offen sc1")
    k.e("s_mov_b64 exec, -1")


def dbg_srd(k, d):
    k.e(f"s_load_dwordx2 s[{d}:{d+1}], s[0:1], 80")
    k.e("s_waitcnt lgkmcnt(0)")
    k.e(f"s_and_b32 s{d+1}, s{d+1}, 0xffff")
    k.e(f"s_mov_b32 s{d+2}, 256")
    k.e(f"s_mov_b32 s{d+3}, 0x00020000")


def dbg_add(k, d, word0, v1_, v2_, wait=True):
    k.e("s_mov_b64 exec, -1")
    k.e(f"v_mov_b32 v{v1_}, 1")
    k.e(f"v_mov_b32 v{v2_}, 0")
    k.e("s_and_b32 s3, s2, 15")
    k.e("s_lshl_b32 s3, s3, 2")
    if wait:
        k.e("s_waitcnt vmcnt(0)")
    k.e("s_mov_b64 exec, 1")
    k.e(f"buffer_atomic_add v{v1_}, v{v2_}, s[{d}:{d+3}], s3 offen offset:{4*word0} sc1")
    k.e("s_mov_b64 exec, -1")


def dbg_wait(k, d, word0, val, vaddr, vtmp, skip_sgpr=None):
    lab = k.newlabel("dw")
    if skip_sgpr is not None:
        k.e(f"s_cmp_lg_u32 s{skip_sgpr[0]}, {skip_sgpr[1]}")
        k.e(f"s_cbranch_scc1 {lab}x")
    dbg_srd(k, d)
    k.e("s_mov_b32 s3, 0")
    k.e("s_mov_b64 exec, 0xffff")
    k.label(lab)
    k.e(f"buffer_load_dword v{vtmp}, v{vaddr}, s[{d}:{d+3}], 0 offen offset:{4*word0} sc1")
    k.e("s_add_u32 s3, s3, 1")
    k.e("s_waitcnt vmcnt(0)")
    k.e(f"v_cmp_ne_u32 vcc, {val}, v{vtmp}")
    k.e("s_cmp_ge_u32 s3, 0x40000")
    k.e(f"s_cbranch_scc1 {lab}y")
    k.e("s_cmp_eq_u64 vcc, 0")
    k.e(f"s_cbranch_scc1 {lab}y")
    k.e("s_sleep 8")
    k.e(f"s_branch {lab}")
    k.label(lab + "y")
    k.e("s_mov_b64 exec, -1")
    k.label(lab + "x")


def get_nonce(k, d, v1_, v2_):
    lab = k.newlabel("gn")
    dbg_srd(k, d)
    k.e("s_mov_b64 exec, -1")
    k.e(f"v_and_b32 v{v1_}, 63, v0")
    k.e(f"v_lshlrev_b32 v{v1_}, 2, v{v1_}")
    k.e("s_mov_b32 s3, 0")
    k.e("s_mov_b32 s4, 0x01010101")
    k.label(lab)
    k.e(f"buffer_load_dword v{v2_}, v{v1_}, s[{d}:{d+3}], 0 offen sc1")
    k.e("s_add_u32 s3, s3, 1")
    k.e("s_waitcnt vmcnt(0)")
    k.e(f"v_cmp_ne_u32 vcc, s4, v{v2_}")
    k.e("s_cmp_ge_u32 s3, 0x40000")
    k.e(f"s_cbranch_scc1 {lab}y")
    k.e("s_cmp_eq_u64 vcc, 0")
    k.e(f"s_cbranch_scc1 {lab}y")
    k.e("s_sleep 16")
    k.e(f"s_branch {lab}")
    k.label(lab + "y")


def prefetch_G(k, vl16):
    k.srd_ws(8, 18, "WGU")
    k.e("s_and_b32 s12, s2, 7")
    k.e("s_lshr_b32 s13, s2, 6")
    k.e("s_lshl_b32 s12, s12, 2")
    k.e("s_add_u32 s12, s12, s13")
    k.e(f"s_mul_i32 s12, s12, {WGU_CB}")
    k.e("s_mul_i32 s13, s20, 4608")
    k.e("s_add_u32 s12, s12, s13")
    for st in range(2):
        slot = (st + 2) % 4
        k.e(f"s_add_u32 m0, s13, {slot*36864}")
        k.e(f"s_add_u32 s14, s12, {st*36864}")
        for e_ in range(4):
            k.e(f"buffer_load_dwordx4 v{vl16}, s[8:11], s14 offen offset:{e_*1024} sc1 lds")
        k.e(f"s_add_u32 m0, s13, {slot*36864 + 4096}")
        k.e("s_add_u32 s14, s14, 4096")
        k.e("s_mov_b32 exec_hi, 0")
        k.e(f"buffer_load_dwordx4 v{vl16}, s[8:11], s14 offen sc1 lds")
        k.e("s_mov_b64 exec, -1")


HB = 73728


def prefetch_H(k, vt):
    k.e("s_load_dwordx4 s[12:15], s[0:1], 24")
    k.e(f"v_and_b32 v{vt}, 63, v0")
    k.e(f"v_lshrrev_b32 v{vt+1}, 3, v{vt}")
    k.e(f"v_and_b32 v{vt+2}, 7, v{vt}")
    k.e(f"v_lshrrev_b32 v{vt+3}, 1, v{vt+1}")
    k.e(f"v_xor_b32 v{vt+3}, v{vt+3}, v{vt+2}")
    k.e(f"v_lshlrev_b32 v{vt+3}, 4, v{vt+3}")
    k.e(f"v_lshrrev_b32 v{vt+4}, 2, v{vt+1}")
    k.e(f"v_and_b32 v{vt+2}, 3, v{vt+1}")
    k.e(f"v_lshl_add_u32 v{vt+4}, v{vt+4}, 3, v{vt+2}")
    k.e(f"v_mul_u32_u24 v{vt+4}, 1152, v{vt+4}")
    k.e(f"v_add_u32 v{vt+5}, v{vt+4}, v{vt+3}")
    k.e(f"v_xor_b32 v{vt+2}, 64, v{vt+3}")
    k.e(f"v_add_u32 v{vt+6}, v{vt+4}, v{vt+2}")
    k.e(f"v_mul_u32_u24 v{vt+4}, 1152, v{vt+1}")
    k.e(f"v_add_u32 v{vt+7}, v{vt+4}, v{vt+3}")
    k.e("s_lshr_b32 s4, s2, 4")
    k.e("s_waitcnt lgkmcnt(0)")
    k.e("s_cmp_ge_u32 s4, 8")
    k.e("s_cselect_b32 s8, s14, s12")
    k.e("s_cselect_b32 s9, s15, s13")
    k.e("s_and_b32 s9, s9, 0xffff")
    k.e(f"s_mov_b32 s10, {D*D*2}")
    k.e("s_mov_b32 s11, 0x00020000")
    k.e("s_and_b32 s4, s4, 7")
    k.e(f"s_mul_i32 s12, s4, {72*1152}")
    k.e("s_lshl_b32 s13, s20, 7")
    k.e("s_add_u32 s12, s12, s13")
    k.e("s_mul_i32 s13, s20, 9216")
    for q in range(9):
        c = (32 * (q >> 2) + 16 * (q & 1) + 4 * ((q >> 1) & 1)) * 1152 if q < 8 else 64 * 1152
        v = vt + 5 + (q & 1) if q < 8 else vt + 7
        k.e(f"s_add_u32 m0, s13, {HB + 1024*q}")
        k.e(f"s_add_u32 s14, s12, {c}")
        k.e(f"buffer_load_dwordx4 v{v}, s[8:11], s14 offen lds")

def stats_load(k, base, vaddr, srd, soff, tag=None):
    for i in range(8):
        k.e(f"s_add_u32 s57, s{soff}, {i*16384}")
        ins = f"buffer_load_dwordx2 v[{base+2*i}:{base+2*i+1}], v{vaddr}, s[{srd}:{srd+3}], s57 offen sc1"
        if tag is None:
            k.e(ins)
        else:
            k.vm(ins, tag)


def stats_finish(k, base, vm_, vsd, t0, t1, t2):
    for j in range(1, 8):
        k.e(f"v_add_f32 v{base}, v{base}, v{base+2*j}")
        k.e(f"v_add_f32 v{base+1}, v{base+1}, v{base+2*j+1}")
    k.e(f"v_mov_b32 v{base+2}, v{base}")
    k.e(f"v_mov_b32 v{base+3}, v{base+1}")
    k.e("s_nop 1")
    k.e(f"v_permlane32_swap_b32 v{base}, v{base+2}")
    k.e(f"v_permlane32_swap_b32 v{base+1}, v{base+3}")
    k.e("s_nop 1")
    k.e(f"v_add_f32 v{base}, v{base}, v{base+2}")
    k.e(f"v_add_f32 v{base+1}, v{base+1}, v{base+3}")
    stats_core(k, base, vm_, vsd, t0, t1, t2)


def stats_core(k, base, vm_, vsd, t0, t1, t2):
    k.e(f"v_mov_b32 v{t0}, 0x3ae38e39")
    k.e(f"v_mul_f32 v{t1}, v{base}, v{t0}")
    k.e(f"v_mul_f32 v{t2}, v{base+1}, v{t0}")
    k.e(f"v_fma_f32 v{t2}, -v{t1}, v{t1}, v{t2}")
    k.e(f"v_max_f32 v{t2}, 0, v{t2}")
    k.e(f"v_cvt_pk_bf16_f32 v{t0}, v{t1}, v{t2}")
    k.e(f"v_lshlrev_b32 v{vm_}, 16, v{t0}")
    k.e(f"v_and_b32 v{t2}, 0xffff0000, v{t0}")
    k.e(f"v_add_f32 v{t2}, 0x3727c5ac, v{t2}")
    k.e(f"v_cvt_pk_bf16_f32 v{t0}, v{t2}, v{t2}")
    k.e(f"v_lshlrev_b32 v{t2}, 16, v{t0}")
    k.e(f"v_sqrt_f32 v{t2}, v{t2}")
    k.e("s_nop 0")
    k.e(f"v_cvt_pk_bf16_f32 v{t0}, v{t2}, v{t2}")
    k.e(f"v_lshlrev_b32 v{vsd}, 16, v{t0}")


NPF = int(os.environ.get('NPF', '0'))
STP = os.environ.get("STP", "sc1")


def gen_kh_full(first):
    name = "kh1" if first else "kh"
    k = Kern(name, 256, 0, 92)
    Lend = name + "_end"
    B0 = 0 if first else HB
    LDS_W = B0 + 8 * 9216
    SCR = LDS_W + 1024
    total = 256
    RPK = 77824
    if not first:
        k.e("s_mov_b64 exec, -1")
        k.e("s_barrier")
    k.e("s_load_dwordx4 s[8:11], s[0:1], 24")
    k.e("s_load_dwordx2 s[18:19], s[0:1], 88")
    if first:
        k.e("s_load_dwordx2 s[6:7], s[0:1], 0")
        k.e("s_load_dwordx4 s[12:15], s[0:1], 48")
        k.e("s_load_dwordx2 s[16:17], s[0:1], 64")
        k.e("s_load_dwordx4 s[60:63], s[0:1], 8")
    k.e("v_lshrrev_b32 v1, 6, v0")
    k.e("v_and_b32 v2, 63, v0")
    k.e("v_readfirstlane_b32 s20, v1")
    k.e("s_and_b32 s21, s2, 7")
    k.e("s_lshr_b32 s22, s2, 3")
    k.e("s_lshl_b32 s21, s21, 1")
    k.e("s_and_b32 s23, s22, 1")
    k.e("s_add_u32 s21, s21, s23")
    k.e("s_mov_b32 s55, s21")
    k.e("s_lshr_b32 s22, s22, 1")
    k.e("s_mov_b32 s54, s22")
    k.e("s_and_b32 s23, s22, 7")
    k.e("s_lshr_b32 s22, s22, 3")
    k.e("s_lshl_b32 s21, s21, 2")
    k.e("s_add_u32 s21, s21, s20")
    k.e("s_waitcnt lgkmcnt(0)")
    k.stamp(0)
    flag_srd(k)
    if first:
        k.e("s_mov_b32 s101, 1")
    else:
        k.e("s_cmp_ge_u32 s20, 4")
        k.e(f"s_cbranch_scc1 {name}_idle")
    if first:
        k.e("s_cmp_ge_u32 s20, 4")
        k.e(f"s_cbranch_scc1 {name}_rep")
    k.e("s_cmp_eq_u32 s22, 1")
    k.e("s_cselect_b32 s4, s10, s8")
    k.e("s_cselect_b32 s5, s11, s9")
    k.srd_ptr(24, 4, D * D * 2)
    if first:
        k.srd_ptr(28, 6, XC_SZ)
        k.srd_ws(32, 18, "XC0")
    else:
        srd_ws_s(k, 28, 18, 70, XC_SZ)
        srd_ws_s(k, 32, 18, 71, ST_SZ)
    k.srd_ws(36, 18, "RS")
    srd_ws_s(k, 40, 18, 72, AB_SZ)
    k.e("v_lshrrev_b32 v3, 3, v2")
    k.e("v_and_b32 v4, 7, v2")
    k.e("v_lshrrev_b32 v5, 1, v3")
    k.e("v_xor_b32 v5, v5, v4")
    k.e("v_lshlrev_b32 v5, 4, v5")
    k.e("v_lshrrev_b32 v6, 2, v3")
    k.e("v_and_b32 v7, 3, v3")
    k.e("v_lshl_add_u32 v6, v6, 3, v7")
    k.e("v_mul_u32_u24 v6, 1152, v6")
    k.e("v_add_u32 v8, v6, v5")
    k.e("v_xor_b32 v7, 64, v5")
    k.e("v_add_u32 v9, v6, v7")
    k.e("v_mul_u32_u24 v6, 1152, v3")
    k.e("v_add_u32 v10, v6, v5")
    k.e("v_and_b32 v11, 15, v2")
    k.e("v_lshrrev_b32 v12, 4, v2")
    k.e("v_lshlrev_b32 v13, 9, v12")
    k.e("v_lshl_add_u32 v13, v11, 4, v13")
    k.e(f"s_mul_i32 s48, s23, {72*1152}")
    k.e("s_lshl_b32 s49, s20, 7")
    k.e("s_add_u32 s48, s48, s49")
    k.e("s_mul_i32 s49, s20, 9216")
    qc = lambda q: (32 * (q >> 2) + 16 * (q & 1) + 4 * ((q >> 1) & 1)) * 1152 if q < 8 else 64 * 1152

    def dma_kq(tag, track=True):
        for q in range(9):
            v = 8 + (q & 1) if q < 8 else 10
            k.e(f"s_add_u32 m0, s49, {1024*q}")
            k.e(f"s_add_u32 s50, s48, {qc(q)}")
            ins = f"buffer_load_dwordx4 v{v}, s[24:27], s50 offen lds"
            if track:
                k.vm(ins, tag)
            else:
                k.e(ins)
        k.e("s_add_u32 s48, s48, 512")
        k.e(f"s_add_u32 s49, s49, {4*9216}")

    AFR = 12
    AF = 16
    if first:
        k.e("v_lshrrev_b32 v14, 4, v2")
        k.e("v_bfe_u32 v15, v2, 2, 2")
        k.e("v_lshl_add_u32 v14, v14, 3, v15")
        k.e("v_mul_u32_u24 v14, 1152, v14")
        k.e("v_and_b32 v15, 3, v2")
        k.e("v_lshl_add_u32 v14, v15, 4, v14")
        k.e("v_add_u32 v15, 4608, v14")
        k.e("v_lshl_add_u32 v7, v11, 2, v12")
        k.e("s_lshl_b32 s50, s20, 11")
        k.e(f"s_add_u32 s50, s50, {RPK + 73728}")
        k.e("v_lshl_add_u32 v7, v7, 4, s50")
        k.e("v_lshl_add_u32 v5, v2, 4, s50")
    k.e("s_mul_i32 s44, s21, 36864")
    k.e("s_mov_b32 s45, s44")
    k.e("s_mov_b32 s46, s44")

    def aload(kb):
        for u in range(2):
            rg = AF + ((kb % AFR) * 2 + u) * 4
            if first:
                k.vm(f"buffer_load_dwordx4 v[{rg}:{rg+3}], v{14+u}, s[28:31], s44 offen offset:{64*kb}", ("a", kb))
            else:
                if kb % 2 == 0 and kb > 0 and u == 0:
                    k.e("s_add_u32 s45, s45, 4096")
                k.vm(f"buffer_load_dwordx4 v[{rg}:{rg+3}], v13, s[28:31], s45 offen offset:{(kb%2)*2048 + u*256} sc1", ("a", kb))

    if first:
        dma_kq("w0")
    if not first:
        k.e("v_lshlrev_b32 v1, 2, v2")
        k.e("s_lshl_b32 s47, s21, 7")
        k.e("s_add_u32 s47, s47, s64")
        poll(k, name, 47, 32, 1, 230)
        k.vq = []
    aload(0); aload(1)
    if first:
        dma_kq("w1")
    APRE = 11 if first else 6
    for kb_ in range(2, APRE):
        aload(kb_)
    ACC = 152
    for a in range(60 if first else 40):
        k.e(f"v_mov_b32 v{ACC+a}, 0")
    ONE = 212
    if first:
        for a in range(4):
            k.e(f"v_mov_b32 v{ONE+a}, 0x3f803f80")
        for a in list(range(220, 228)) + list(range(248, 256)):
            k.e(f"v_mov_b32 v{a}, 0")
    k.e("v_lshrrev_b32 v1, 1, v11")
    k.e("v_xor_b32 v1, v1, v12")
    k.e("v_lshlrev_b32 v1, 4, v1")
    k.e("v_lshl_add_u32 v216, v11, 7, v1")
    if B0:
        k.e(f"v_add_u32 v216, {B0}, v216")
    k.e("v_xor_b32 v217, 64, v216")
    k.e(f"v_add_u32 v218, {5*9216}, v216")
    k.e(f"v_add_u32 v219, {5*9216}, v217")
    if not first:
        k.e("v_and_b32 v224, 31, v2")
        k.e("v_lshrrev_b32 v225, 5, v2")
        k.e("v_lshlrev_b32 v225, 17, v225")
        k.e("v_lshl_add_u32 v225, v224, 3, v225")
        k.e("s_lshl_b32 s53, s21, 8")
        k.e("s_mul_i32 s47, s54, 320")
        k.e("v_lshlrev_b32 v226, 2, v11")
    k.stamp(1)
    k.wait_vm("w0")
    k.e("s_barrier")
    k.stamp(2)
    sets = [112, 132]

    def bread(kb):
        kq, half = (kb >> 1) % 8, kb & 1
        base = 216 + half + (2 if kq >= 5 else 0)
        kq_ = kq - 5 if kq >= 5 else kq
        sb = sets[kb & 1]
        for T in range(5):
            k.ds(f"ds_read_b128 v[{sb+4*T}:{sb+4*T+3}], v{base} offset:{kq_*9216 + T*2048}", ("b", kb))
    def aperm(kb):
        k.wait_vm(("a", kb))
        for u in range(2):
            rg = AF + ((kb % AFR) * 2 + u) * 4
            k.ds(f"ds_write_b128 v5, v[{rg}:{rg+3}] offset:{u*1024}", ("pw", kb))
        for u in range(2):
            rg = AF + ((kb % AFR) * 2 + u) * 4
            k.ds(f"ds_read_b128 v[{rg}:{rg+3}], v7 offset:{u*1024}", ("p", kb))
    if first:
        aperm(0)
    bread(0)
    for kb in range(18):
        if kb == 7:
            k.wait_vm("w1")
            k.e("s_barrier")
            k.e("s_and_b32 s50, s20, 1")
            k.e("s_cmp_eq_u32 s50, 1")
            k.e("s_cselect_b64 vcc, -1, 0")
            k.e("v_cndmask_b32 v1, v8, v9, vcc")
            k.e("s_lshl_b32 s50, s50, 4")
            k.e("s_lshr_b32 s51, s20, 1")
            k.e("s_lshl_b32 s51, s51, 2")
            k.e("s_add_u32 s50, s50, s51")
            k.e("s_mul_i32 s50, s50, 1152")
            k.e(f"s_mul_i32 s48, s23, {72*1152}")
            k.e("s_add_u32 s48, s48, 1024")
            k.e("s_add_u32 s50, s50, s48")
            k.e("s_lshl_b32 s51, s20, 10")
            k.e(f"s_add_u32 s51, s51, {B0}")
            k.e("s_mov_b32 m0, s51")
            k.e("s_nop 0")
            k.vm("buffer_load_dwordx4 v1, s[24:27], s50 offen lds", "w2")
            k.e("s_add_u32 m0, s51, 4096")
            k.e(f"s_add_u32 s50, s50, {32*1152}")
            k.vm("buffer_load_dwordx4 v1, s[24:27], s50 offen lds", "w2")
            k.e(f"s_mov_b32 m0, {B0 + 8192}")
            k.e(f"s_add_u32 s50, s48, {64*1152}")
            k.e("s_lshl_b32 s51, s20, 4")
            k.e("s_mov_b64 exec, 0xffff")
            k.e("s_lshl_b64 exec, exec, s51")
            k.vm("buffer_load_dwordx4 v10, s[24:27], s50 offen lds", "w2")
            k.e("s_mov_b64 exec, -1")
        if kb == 15:
            k.wait_vm("w2")
            k.e("s_barrier")
        if kb + APRE < 18:
            aload(kb + APRE)
        k.wait_ds(("b", kb))
        if kb + 1 < 18:
            if first:
                aperm(kb + 1)
            bread(kb + 1)
        if not first and kb == 14:
            stats_load(k, 16, 225, 32, 53, "st")
            for T in range(5):
                k.vm(f"buffer_load_dword v{192+4*T}, v226, s[36:39], s47 offen offset:{64*T} sc1", "st")
        k.wait_vm(("a", kb))
        k.wait_ds(("b", kb))
        sb = sets[kb & 1]
        for u in range(2):
            af = AF + ((kb % AFR) * 2 + u) * 4
            for T in range(5):
                acc = ACC + (u * 5 + T) * 4
                k.e(f"v_mfma_f32_16x16x32_bf16 v[{acc}:{acc+3}], v[{af}:{af+3}], v[{sb+4*T}:{sb+4*T+3}], v[{acc}:{acc+3}]")
            if first and not os.environ.get("EXP_NOGRAM"):
                k.e(f"v_mfma_f32_16x16x32_bf16 v[{248+4*u}:{251+4*u}], v[{af}:{af+3}], v[{ONE}:{ONE+3}], v[{248+4*u}:{251+4*u}]")
                k.e(f"v_mfma_f32_16x16x32_bf16 v[{220+4*u}:{223+4*u}], v[{af}:{af+3}], v[{af}:{af+3}], v[{220+4*u}:{223+4*u}]")
    k.stamp(3)
    k.e("s_lshl_b32 s50, s20, 8")
    k.e(f"s_add_u32 s50, s50, {SCR}")
    if first:
        k.e("s_nop 7")
        k.e("v_and_b32 v228, 3, v11")
        for u in range(2):
            for base, dst in ((248 + 4 * u, 232 + 2 * u), (220 + 4 * u, 233 + 2 * u)):
                k.e(f"v_mov_b32 v{dst}, v{base}")
                for r in range(1, 4):
                    k.e(f"v_cmp_eq_u32 vcc, {r}, v228")
                    k.e("s_nop 1")
                    k.e(f"v_cndmask_b32 v{dst}, v{dst}, v{base+r}, vcc")
        k.e("v_lshrrev_b32 v229, 2, v11")
        k.e("v_lshl_add_u32 v230, v11, 3, s50")
        k.e("v_cmp_eq_u32 vcc, v229, v12")
        k.e("s_and_saveexec_b64 s[52:53], vcc")
        k.e("ds_write_b64 v230, v[232:233]")
        k.e("ds_write_b64 v230, v[234:235] offset:128")
        k.e("s_mov_b64 exec, -1")
        k.e("v_and_b32 v224, 31, v2")
        k.e("v_lshl_add_u32 v230, v224, 3, s50")
        k.e("s_waitcnt lgkmcnt(0)")
        k.e("ds_read_b64 v[228:229], v230")
        k.e("s_waitcnt lgkmcnt(0)")
        stats_core(k, 228, 232, 233, 234, 235, 236)
    else:
        k.wait_vm("st")
        stats_finish(k, 16, 232, 233, 234, 235, 236)
    k.e("v_rcp_f32 v233, v233")
    k.e("s_nop 0")
    k.e("v_mul_f32 v232, v232, v233")
    k.e("v_lshl_add_u32 v226, v224, 3, s50")
    k.e("ds_write_b64 v226, v[232:233]")
    k.e("v_lshl_add_u32 v226, v12, 5, s50")
    k.e("s_waitcnt lgkmcnt(0)")
    k.lq = []
    if first:
        k.e("s_barrier")
        k.e("v_lshlrev_b32 v227, 2, v11")
        k.e(f"v_add_u32 v227, {SCR + 1024}, v227")
        for T in range(5):
            k.e(f"ds_read_b32 v{ACC+40+4*T}, v227 offset:{64*T}")
    k.e("ds_read_b128 v[232:235], v226")
    k.e("ds_read_b128 v[236:239], v226 offset:16")
    k.e("ds_read_b128 v[240:243], v226 offset:128")
    k.e("ds_read_b128 v[244:247], v226 offset:144")
    k.e("v_mul_u32_u24 v15, 1152, v12")
    k.e("v_lshl_add_u32 v15, v11, 4, v15")
    k.e(f"s_mul_i32 s46, s54, {ABJ}")
    k.e("s_mul_i32 s47, s21, 4608")
    k.e("s_add_u32 s46, s46, s47")
    k.e("s_waitcnt lgkmcnt(0)")
    if first:
        k.e("s_add_u32 s51, s55, s20")
        k.e("s_mul_i32 s47, s54, 320")
        k.e("s_cmp_eq_u32 s51, 0")
        k.e("s_cselect_b32 s47, s47, 0x7f000000")
        k.e("v_lshlrev_b32 v227, 2, v11")
        for T in range(5):
            k.e(f"buffer_store_dword v{ACC+40+4*T}, v227, s[36:39], s47 offen offset:{64*T} sc1")
    for T in range(5):
        a0, a1, rr = ACC + T * 4, ACC + 20 + T * 4, ACC + 40 + T * 4
        for u, a in ((0, a0), (1, a1)):
            for r in range(4):
                sr = 232 + 8 * u + 2 * r
                k.e(f"v_mul_f32 v{a+r}, v{a+r}, v{sr+1}")
                k.e(f"v_fma_f32 v{a+r}, -v{sr}, v{rr}, v{a+r}")
        o = 48 + 4 * T
        k.e(f"v_cvt_pk_bf16_f32 v{o}, v{a0}, v{a0+1}")
        k.e(f"v_cvt_pk_bf16_f32 v{o+1}, v{a0+2}, v{a0+3}")
        k.e(f"v_cvt_pk_bf16_f32 v{o+2}, v{a1}, v{a1+1}")
        k.e(f"v_cvt_pk_bf16_f32 v{o+3}, v{a1+2}, v{a1+3}")
        if T == 4:
            k.e("v_cmp_gt_u32 vcc, 8, v11")
            k.e("s_and_saveexec_b64 s[50:51], vcc")
        k.e(f"buffer_store_dwordx4 v[{o}:{o+3}], v15, s[40:43], s46 offen offset:{256*T} {STP}")
    k.stamp(4)
    if first:
        k.e("s_mov_b64 exec, -1")
        get_nonce(k, 24, 1, 3)
    k.e("s_lshl_b32 s47, s54, 8")
    k.e("s_lshl_b32 s3, s21, 2")
    k.e("s_add_u32 s47, s47, s3")
    k.e(f"s_add_u32 s47, s47, {FH1}" if first else "s_add_u32 s47, s47, s65")
    publish(k, 47, 1, 3)
    if first:
        k.e(f"s_branch {name}_rdone")
        k.label(f"{name}_rep")
        k.e("s_sub_u32 s20, s20, 4")
        k.e("s_lshl_b32 s3, s2, 11")
        k.e("s_cmp_eq_u32 s20, 0")
        k.e("s_cselect_b32 s3, s3, 0x7f000000")
        k.e("v_lshlrev_b32 v1, 4, v2")
        for a_ in range(4):
            k.e(f"v_mov_b32 v{108+a_}, 0")
        k.e("buffer_store_dwordx4 v[108:111], v1, s[76:79], s3 offen sc1")
        k.e("buffer_store_dwordx4 v[108:111], v1, s[76:79], s3 offen offset:1024 sc1")
        k.e("s_cmp_lt_u32 s2, 72")
        k.e("s_cselect_b32 s4, s12, s14")
        k.e("s_cselect_b32 s5, s13, s15")
        k.e("s_cselect_b32 s64, 0, 1")
        k.e("s_cmp_lt_u32 s2, 144")
        k.e("s_cselect_b32 s4, s4, s16")
        k.e("s_cselect_b32 s5, s5, s17")
        k.e("s_movk_i32 s65, 1152")
        k.e("s_cselect_b32 s65, 9216, s65")
        k.e("s_cselect_b32 s66, 1, 0")
        k.srd_ptr(24, 4, D * F * 2)
        k.e("s_mul_i32 s67, s64, 72")
        k.e("s_sub_u32 s67, s2, s67")
        k.e("s_sub_u32 s68, s2, 144")
        k.e("s_mul_i32 s69, s68, 7282")
        k.e("s_lshr_b32 s69, s69, 16")
        k.e("s_mul_i32 s75, s69, 9")
        k.e("s_sub_u32 s68, s68, s75")
        k.e(f"s_mul_i32 s75, s69, {384*1152}")
        k.e("s_lshl_b32 s58, s68, 7")
        k.e("s_add_u32 s75, s75, s58")
        k.e("s_lshl_b32 s58, s67, 7")
        k.e("s_cmp_eq_u32 s66, 1")
        k.e("s_cselect_b32 s75, s58, s75")
        k.e("s_cselect_b32 s58, 18, 12")
        k.e("s_lshl_b32 s59, s65, 3")
        k.e("s_mul_i32 s56, s20, s59")
        k.e("s_mul_i32 s56, s56, s58")
        k.e("s_add_u32 s75, s75, s56")
        k.e("s_cmp_ge_u32 s2, 252")
        k.e("s_cselect_b32 s58, 0, s58")
        if os.environ.get("EXP_NOC"):
            k.e(f"s_cmp_lt_u32 s2, {os.environ['EXP_NOC']}")
            k.e("s_cselect_b32 s58, 0, s58")
        k.e("v_lshrrev_b32 v3, 3, v2")
        k.e("v_and_b32 v4, 7, v2")
        k.e("v_mul_lo_u32 v6, v3, s65")
        k.e("v_lshl_add_u32 v6, v4, 4, v6")
        k.e("s_mul_i32 s56, s20, 18432")
        k.e(f"s_add_u32 s56, s56, {RPK}")
        def rdma(i):
            k.e(f"s_cmp_gt_u32 s58, {i}")
            k.e("s_cselect_b32 s51, s75, 0x7f000000")
            k.e(f"s_add_u32 m0, s56, {1024*i}")
            k.e("s_add_u32 s75, s75, s59")
            k.e("buffer_load_dwordx4 v6, s[24:27], s51 offen lds")
        k.srd_ptr(28, 6, XC_SZ)
        k.srd_ws(32, 18, "XC0")
        k.e("v_and_b32 v8, 31, v2")
        k.e("v_and_b32 v9, 3, v8")
        k.e("v_bfe_u32 v10, v8, 2, 2")
        k.e("v_lshl_or_b32 v9, v10, 3, v9")
        k.e("v_bfe_u32 v10, v8, 4, 1")
        k.e("v_lshl_or_b32 v9, v10, 2, v9")
        k.e("v_mul_u32_u24 v9, 1152, v9")
        k.e("v_lshrrev_b32 v10, 5, v2")
        k.e("v_lshl_add_u32 v9, v10, 4, v9")
        k.e("v_lshlrev_b32 v8, 4, v8")
        k.e("v_lshl_add_u32 v8, v10, 9, v8")
        k.e("s_lshr_b32 s36, s2, 2")
        k.e("s_mul_i32 s36, s36, 36864")
        k.e("s_and_b32 s37, s2, 3")
        k.e("s_mul_i32 s37, s37, 18")
        k.e("s_lshl_b32 s38, s20, 1")
        k.e("s_add_u32 s37, s37, s38")
        k.e("s_lshl_b32 s38, s37, 4")
        k.e("s_add_u32 s38, s38, s36")
        k.e("s_lshl_b32 s39, s37, 9")
        k.e("s_add_u32 s39, s39, s36")
        k.e("s_add_u32 s40, s38, 256")
        k.e("s_add_u32 s41, s39, 8192")
        k.e("s_cmp_eq_u32 s20, 0")
        k.e("s_cselect_b32 s40, s40, 0x7f000000")
        k.e("s_cselect_b32 s41, s41, 0x7f000000")
        k.e("buffer_load_dwordx4 v[16:19], v9, s[28:31], s38 offen")
        k.e("buffer_load_dwordx4 v[20:23], v9, s[28:31], s38 offen offset:128")
        k.e("buffer_load_dwordx4 v[24:27], v9, s[28:31], s40 offen")
        for i in range(6):
            rdma(i)
        k.e("v_lshrrev_b32 v3, 4, v2")
        k.e("v_and_b32 v4, 15, v2")
        k.e("v_bfe_u32 v10, v2, 2, 2")
        k.e("v_lshlrev_b32 v7, 7, v10")
        k.e("v_lshl_add_u32 v7, v3, 5, v7")
        k.e("v_add_u32 v7, s56, v7")
        k.e("v_and_b32 v10, 1, v2")
        k.e("v_lshlrev_b32 v10, 4, v10")
        k.e("v_bfe_u32 v11, v2, 1, 1")
        k.e("v_lshl_add_u32 v10, v11, 3, v10")
        k.e("v_and_b32 v11, 3, v2")
        k.e("v_lshlrev_b32 v11, 3, v11")
        k.e("s_cmp_eq_u32 s66, 1")
        k.e("s_cselect_b64 s[42:43], -1, 0")
        k.e("s_nop 1")
        k.e("v_cndmask_b32 v10, v11, v10, s[42:43]")
        k.e("v_add_u32 v7, v7, v10")
        k.e("s_lshl_b32 s36, s67, 2")
        k.e("v_add_u32 v12, s36, v3")
        k.e("v_mul_u32_u24 v13, 7282, v12")
        k.e("v_lshrrev_b32 v13, 16, v13")
        k.e("v_mul_u32_u24 v14, 9, v13")
        k.e("v_sub_u32 v14, v12, v14")
        k.e(f"s_mov_b32 s36, {WGU_CB}")
        k.e("v_mul_lo_u32 v13, v13, s36")
        k.e("v_lshl_add_u32 v13, v14, 10, v13")
        k.e("v_lshl_add_u32 v13, v4, 4, v13")
        k.e("s_lshl_b32 s36, s68, 6")
        k.e("v_add_u32 v12, s36, v2")
        k.e("v_mul_u32_u24 v14, 911, v12")
        k.e("v_lshrrev_b32 v14, 16, v14")
        k.e("v_mul_u32_u24 v15, 72, v14")
        k.e("v_sub_u32 v15, v12, v15")
        slotmap_v(k, 15, 12, 10, 11)
        k.e(f"s_mov_b32 s36, {WDJ}")
        k.e("v_mul_lo_u32 v14, v14, s36")
        k.e("v_lshl_add_u32 v14, v12, 4, v14")
        k.e("v_cndmask_b32 v5, v14, v13, s[42:43]")
        k.e(f"s_mov_b32 s36, {WS['WD'][0]}")
        k.e(f"s_mov_b32 s37, {WD_SZ}")
        k.e("s_cmp_eq_u32 s66, 1")
        k.e(f"s_cselect_b32 s36, {WS['WGU'][0]}, s36")
        k.e(f"s_cselect_b32 s46, {WGU_SZ}, s37")
        k.e("s_add_u32 s44, s18, s36")
        k.e("s_addc_u32 s45, s19, 0")
        k.e("s_and_b32 s45, s45, 0xffff")
        k.e("s_mov_b32 s47, 0x00020000")
        k.e("s_lshl_b32 s48, s64, 8")
        k.e(f"s_mul_i32 s49, s20, {9*9216}")
        k.e("s_add_u32 s49, s49, s48")
        k.e(f"s_mul_i32 s36, s69, {48*1152}")
        k.e(f"s_mul_i32 s37, s20, {12*1152}")
        k.e("s_add_u32 s36, s36, s37")
        k.e("s_cmp_eq_u32 s66, 1")
        k.e("s_cselect_b32 s49, s49, s36")
        k.e("s_movk_i32 s52, 1152")
        k.e("s_cselect_b32 s52, 512, s52")
        k.e("s_movk_i32 s53, 1152")
        k.e(f"s_cselect_b32 s53, {9216-512}, s53")
        k.e("v_mov_b32 v14, 0")
        k.e("v_mov_b32 v15, 0")

        def tchunk(c):
            for it in range(6 * c, 6 * c + 6):
                rg = 112 + 4 * it
                k.e(f"ds_read_b64_tr_b16 v[{rg}:{rg+1}], v7 offset:{it*1024}")
                k.e(f"ds_read_b64_tr_b16 v[{rg+2}:{rg+3}], v7 offset:{it*1024+512}")
            for it in range(6 * c, 6 * c + 6):
                rg = 112 + 4 * it
                k.e(f"s_cmp_gt_u32 s58, {it}")
                k.e("s_cselect_b32 s51, s49, 0x7f000000")
                k.e(f"s_waitcnt lgkmcnt({2*(6*c+5-it)})")
                k.e(f"buffer_store_dwordx4 v[{rg}:{rg+3}], v5, s[44:47], s51 offen {STP}")
                k.e(f"s_add_u32 s49, s49, s{52 + (it & 1)}")
                for r in range(4):
                    k.e(f"v_dot2_f32_bf16 v{14 + (r & 1)}, v{rg+r}, v32, v{14 + (r & 1)}")
        k.e("v_and_b32 v11, 15, v2")
        k.e("v_lshrrev_b32 v12, 4, v2")
        k.e("v_lshrrev_b32 v1, 1, v11")
        k.e("v_xor_b32 v1, v1, v12")
        k.e("v_lshlrev_b32 v1, 4, v1")
        k.e("v_lshl_add_u32 v28, v11, 7, v1")
        k.e("v_xor_b32 v29, 64, v28")
        k.e("s_lshl_b32 s36, s20, 11")
        k.e("v_add_u32 v30, s36, v28")
        k.e("v_add_u32 v31, s36, v29")
        for a_ in range(4):
            k.e(f"v_mov_b32 v{32+a_}, 0x3f803f80")
        for a_ in range(8):
            k.e(f"v_mov_b32 v{36+a_}, 0")

        def rpart(kbs):
            for n_, kb in enumerate(kbs):
                kq, half = (kb >> 1) % 8, kb & 1
                rg = 44 + n_ * 8
                off = kq * 9216
                if off + 8192 > 65000:
                    k.e(f"v_add_u32 v1, {off}, v{30+half}")
                    k.e(f"ds_read_b128 v[{rg}:{rg+3}], v1")
                    k.e(f"v_add_u32 v1, {off + 8192}, v{28+half}")
                    k.e(f"ds_read_b128 v[{rg+4}:{rg+7}], v1")
                else:
                    k.e(f"ds_read_b128 v[{rg}:{rg+3}], v{30+half} offset:{off}")
                    k.e(f"ds_read_b128 v[{rg+4}:{rg+7}], v{28+half} offset:{off + 8192}")
            k.e("s_waitcnt lgkmcnt(0)")
            for n_, kb in enumerate(kbs):
                rg = 44 + n_ * 8
                k.e(f"v_mfma_f32_16x16x32_bf16 v[36:39], v[32:35], v[{rg}:{rg+3}], v[36:39]")
                k.e(f"v_mfma_f32_16x16x32_bf16 v[40:43], v[32:35], v[{rg+4}:{rg+7}], v[40:43]")
        k.e("s_barrier")
        rpart(range(0, 8))
        for i in range(6, 12):
            rdma(i)
        k.e("s_waitcnt vmcnt(12)")
        dbg_srd(k, 60)
        k.e("s_cmp_eq_u32 s20, 0")
        k.e("s_cselect_b32 s3, s2, 0x7f000000")
        k.e("v_mov_b32 v108, 1")
        k.e("s_mov_b64 exec, 1")
        k.e("buffer_store_byte v108, v109, s[60:63], s3 offen sc1")
        k.e("s_mov_b64 exec, -1")
        k.e("buffer_store_dwordx4 v[16:19], v8, s[32:35], s39 offen sc1")
        k.e("s_add_u32 s39, s39, 4096")
        k.e("buffer_store_dwordx4 v[20:23], v8, s[32:35], s39 offen sc1")
        k.e("buffer_store_dwordx4 v[24:27], v8, s[32:35], s41 offen sc1")
        k.e("s_barrier")
        rpart(range(8, 16))
        for i in range(12, 18):
            rdma(i)
        k.e("s_waitcnt vmcnt(16)")
        tchunk(0)
        k.e("s_barrier")
        rpart(range(16, 18))
        k.e("s_lshl_b32 s36, s20, 6")
        k.e(f"s_add_u32 s36, s36, {SCR + 1024}")
        k.e("v_lshl_add_u32 v1, v11, 2, s36")
        k.e("v_lshlrev_b32 v28, 2, v11")
        k.e(f"v_add_u32 v28, {SCR + 1024 + 256}, v28")
        k.e("s_nop 7")
        k.e("ds_write_b32 v1, v36")
        k.e("ds_write_b32 v28, v40")
        k.e("s_waitcnt lgkmcnt(0)")
        k.e("s_barrier")
        k.e("s_waitcnt vmcnt(16)")
        tchunk(1)
        k.e("s_waitcnt vmcnt(12)")
        tchunk(2)
        k.e("s_nop 3")
        k.e("v_add_f32 v10, v14, v15")
        k.e("v_cvt_pk_bf16_f32 v11, v10, v10")
        k.e("v_lshlrev_b32 v12, 16, v11")
        k.e("v_sub_f32 v13, v10, v12")
        k.e("v_cvt_pk_bf16_f32 v14, v13, v13")
        k.e("v_lshlrev_b32 v15, 16, v14")
        k.e("v_sub_f32 v13, v13, v15")
        k.e("v_cvt_pk_bf16_f32 v201, v13, v13")
        k.e("v_and_b32 v201, 0xffff, v201")
        k.e("v_and_b32 v200, 0xffff, v11")
        k.e("v_or_b32 v200, v200, v15")
        k.e("s_lshr_b32 s39, s20, 1")
        k.e("s_lshl_b32 s39, s39, 9")
        k.e("s_and_b32 s37, s20, 1")
        k.e("s_lshl_b32 s37, s37, 3")
        k.e("s_add_u32 s39, s39, s37")
        k.e("s_add_u32 s39, s39, s48")
        k.e(f"s_add_u32 s39, s39, {36*9216}")
        k.e("s_cmp_eq_u32 s66, 1")
        k.e("s_cselect_b32 s39, s39, 0x7f000000")
        k.e("buffer_store_dwordx2 v[200:201], v5, s[44:47], s39 offen sc1")
        get_nonce(k, 24, 1, 3)
        k.e("s_lshl_b32 s47, s2, 4")
        k.e("s_lshl_b32 s3, s20, 2")
        k.e("s_add_u32 s47, s47, s3")
        k.e(f"s_add_u32 s47, s47, {FROFF}")
        publish(k, 47, 1, 3)
        k.label(f"{name}_rdone")
        if PROF:
            k.e("v_lshrrev_b32 v1, 6, v0")
            k.e("s_nop 0")
            k.e("v_readfirstlane_b32 s20, v1")
    if PROF:
        k.e("s_mov_b64 exec, -1")
        k.wait_vm_all()
    k.stamp(5)
    k.stamp_store(0, 18, 20)
    if not first:
        k.e(f"s_branch {Lend}")
        k.label(f"{name}_idle")
        k.e("s_waitcnt vmcnt(0)")
        for _ in range(3):
            k.e("s_barrier")
    k.label(Lend)
    return k, total, 512 if first else 256, (RPK + 73728 + 8192) if first else HB + RPK


REG = 20480
FROFF = 262144 + 65536
FH1 = 262144 + 32768 + 3 * 8192
OWNP = int(os.environ.get("OWNP", "0"))
EXSEP = int(os.environ.get("EXSEP", "1"))
SLP = int(os.environ.get("SLP", "4"))
PUB = os.environ.get("PUB", "sc1")
ROT = int(os.environ.get("ROT", "0"))
CPF = int(os.environ.get("CPF", "0"))
MAPG = int(os.environ.get("MAPG", "0"))
MAPD = int(os.environ.get("MAPD", "0"))
STPG = os.environ.get("STPG", "sc1")
EXP_NOMFMA = int(os.environ.get("EXP_NOMFMA", "0"))
EXP_PAD = int(os.environ.get("EXP_PAD", "0"))
BAR = int(os.environ.get("BAR", "0"))
EXP_NOWD = int(os.environ.get("EXP_NOWD", "0"))
EXP_NOHC = int(os.environ.get("EXP_NOHC", "0"))
ILV = int(os.environ.get("ILV", "1"))
KD_W, KD_S = (1, 8) if ILV else (18, 1)
KS_W, KS_S = (1, 4) if ILV else (8, 1)


def t1_decode(k, mp=0):
    k.e("v_lshrrev_b32 v1, 6, v0")
    k.e("v_and_b32 v2, 63, v0")
    k.e("v_readfirstlane_b32 s20, v1")
    k.e("s_and_b32 s22, s2, 7")
    k.e("s_lshr_b32 s23, s2, 3")
    if mp == 0:
        k.e("s_lshr_b32 s21, s22, 1")
        k.e("s_lshl_b32 s21, s21, 3")
        k.e("s_and_b32 s44, s23, 7")
        k.e("s_add_u32 s21, s21, s44")
        k.e("s_and_b32 s22, s22, 1")
        k.e("s_lshl_b32 s22, s22, 2")
        k.e("s_lshr_b32 s23, s23, 3")
        k.e("s_add_u32 s23, s23, s22")
    else:
        k.e("s_lshl_b32 s21, s22, 2")
        k.e("s_and_b32 s44, s23, 3")
        k.e("s_add_u32 s21, s21, s44")
        k.e("s_lshr_b32 s23, s23, 2")


def t1_pre(k, xin_srd):
    sW, sTB, sJ = 20, 21, 23
    k.e(f"s_and_b32 s61, s{sW}, 3")
    k.e(f"s_lshr_b32 s59, s{sW}, 2")
    k.e("s_lshr_b32 s62, s61, 1")
    k.e(f"s_lshl_b32 s63, s{sTB}, 1")
    k.e("s_add_u32 s58, s62, s63")
    k.e("s_and_b32 s62, s61, 1")
    k.e("s_mul_i32 s63, s58, 36864")
    k.e(f"s_mul_i32 s64, s{sJ}, 4608")
    k.e("s_add_u32 s63, s63, s64")
    k.e("s_lshl_b32 s64, s62, 8")
    k.e("s_add_u32 s63, s63, s64")
    k.e("s_add_u32 s64, s63, 4096")
    k.e("s_lshl_b32 s65, s59, 11")
    k.e("s_add_u32 s63, s63, s65")
    k.e("v_and_b32 v20, 15, v0")
    k.e("v_bfe_u32 v21, v0, 4, 2")
    k.e("v_lshlrev_b32 v22, 9, v21")
    k.e("v_lshl_add_u32 v22, v20, 4, v22")
    k.e("v_lshlrev_b32 v23, 3, v21")
    k.e("v_lshl_add_u32 v23, v20, 4, v23")
    k.vm(f"buffer_load_dwordx4 v[250:253], v22, s[{xin_srd}:{xin_srd+3}], s63 offen", "res")
    k.vm(f"buffer_load_dwordx2 v[254:255], v23, s[{xin_srd}:{xin_srd+3}], s64 offen", "res")


def t1_epilogue(k, name, mode, ACC, xin_srd, xout_srd, st_srd, sfinal):
    sW, sTB, sJ = 20, 21, 23
    k.e("v_and_b32 v2, 63, v0")
    k.e(f"s_mul_i32 s60, s{sW}, {REG}")
    k.e("v_lshl_add_u32 v3, v2, 4, s60")
    k.e("v_and_b32 v11, 15, v2")
    k.e("v_lshrrev_b32 v12, 4, v2")
    k.e("v_lshlrev_b32 v4, 9, v12")
    k.e("v_lshl_add_u32 v4, v11, 4, v4")
    k.e("v_lshlrev_b32 v5, 3, v12")
    k.e("v_lshl_add_u32 v5, v11, 4, v5")
    for j in range(16):
        k.e(f"v_permlane32_swap_b32 v{ACC+80+j}, v{24+j}")
    k.e("s_nop 1")
    for j in range(16):
        k.e(f"v_add_f32 v{ACC+64+j}, v{ACC+64+j}, v{24+j}")
    for b in range(4):
        for a in range(5):
            acc = ACC + (a * 4 + b) * 4
            k.e(f"ds_write_b128 v3, v[{acc}:{acc+3}] offset:{(b*5+a)*1024}")
    k.e("s_mul_i32 s60, s61, 5120")
    k.e("v_lshl_add_u32 v6, v2, 4, s60")
    k.e("v_add_u32 v7, s65, v6")
    for j in range(1, 3):
        k.e(f"v_add_u32 v{7+j}, {3*REG*j}, v7")
        k.e(f"v_add_u32 v{12+j}, {3*REG*j}, v6")
    k.e("s_waitcnt lgkmcnt(0)")
    k.e("s_barrier")
    T0 = 24
    for v in range(8):
        base = 7 + v // 3
        for t in range(2):
            rg = T0 + (v * 2 + t) * 4
            k.e(f"ds_read_b128 v[{rg}:{rg+3}], v{base} offset:{(v%3)*REG + t*1024}")
    k.e("s_cmp_lg_u32 s59, 0")
    k.e(f"s_cbranch_scc1 {name}_no4a")
    for v in range(8):
        base = 6 if v < 3 else 12 + v // 3
        rg = 88 + v * 4
        k.e(f"ds_read_b128 v[{rg}:{rg+3}], v{base} offset:{(v%3)*REG + 4096}")
    k.label(f"{name}_no4a")
    k.e("s_waitcnt lgkmcnt(0)")

    def combine(regs_of_wave, n):
        for j in range(n):
            r = [regs_of_wave(v) + j for v in range(8)]
            k.e(f"v_add_f32 v{r[0]}, v{r[0]}, v{r[1]}")
            k.e(f"v_add_f32 v{r[2]}, v{r[2]}, v{r[3]}")
            k.e(f"v_add_f32 v{r[4]}, v{r[4]}, v{r[5]}")
            k.e(f"v_add_f32 v{r[6]}, v{r[6]}, v{r[7]}")
            k.e(f"v_add_f32 v{r[0]}, v{r[0]}, v{r[2]}")
            k.e(f"v_add_f32 v{r[4]}, v{r[4]}, v{r[6]}")
            if mode == "D":
                k.e(f"v_add_f32 v{r[0]}, v{r[0]}, v{r[4]}")
        if mode == "S":
            for j in range(0, n, 2):
                p0 = regs_of_wave(0) + j
                q0 = regs_of_wave(4) + j
                k.e(f"v_cvt_pk_bf16_f32 v22, v{p0}, v{p0+1}")
                k.e(f"v_cvt_pk_bf16_f32 v23, v{q0}, v{q0+1}")
                k.e(f"v_lshlrev_b32 v{p0}, 16, v22")
                k.e(f"v_and_b32 v{p0+1}, 0xffff0000, v22")
                k.e(f"v_lshlrev_b32 v{q0}, 16, v23")
                k.e(f"v_and_b32 v{q0+1}, 0xffff0000, v23")
                k.e(f"v_sub_f32 v{p0}, v{p0}, v{q0}")
                k.e(f"v_sub_f32 v{p0+1}, v{p0+1}, v{q0+1}")

    def resid(ybase, xbase, n):
        for j in range(0, n, 2):
            y0 = ybase + j
            xr = xbase + j // 2
            k.e(f"v_cvt_pk_bf16_f32 v22, v{y0}, v{y0+1}")
            k.e(f"v_lshlrev_b32 v{y0}, 16, v22")
            k.e(f"v_and_b32 v{y0+1}, 0xffff0000, v22")
            k.e(f"v_lshlrev_b32 v22, 16, v{xr}")
            k.e(f"v_and_b32 v23, 0xffff0000, v{xr}")
            k.e(f"v_add_f32 v{y0}, v{y0}, v22")
            k.e(f"v_add_f32 v{y0+1}, v{y0+1}, v23")
            k.e(f"v_cvt_pk_bf16_f32 v{xr}, v{y0}, v{y0+1}")
            unpack_sum(k, xr, 22, 23, 120, 121)

    combine(lambda v: T0 + v * 8, 8)
    k.e("v_mov_b32 v120, 0")
    k.e("v_mov_b32 v121, 0")
    resid(T0, 250, 8)
    k.e("s_cmp_lg_u32 s59, 0")
    k.e(f"s_cbranch_scc1 {name}_no4b")
    k.e("v_cmp_gt_u32 vcc, 2, v12")
    k.e("s_and_saveexec_b64 s[66:67], vcc")
    combine(lambda v: 88 + v * 4, 4)
    resid(88, 254, 4)
    k.e("s_mov_b64 exec, s[66:67]")
    k.label(f"{name}_no4b")
    if sfinal is not None:
        k.e(f"s_cmp_lg_u32 s{sfinal}, 0")
        k.e(f"s_cbranch_scc1 {name}_fin")
    for sw in ("16", "32"):
        k.e("v_mov_b32 v22, v120")
        k.e("v_mov_b32 v23, v121")
        k.e("s_nop 1")
        k.e(f"v_permlane{sw}_swap_b32 v120, v22")
        k.e(f"v_permlane{sw}_swap_b32 v121, v23")
        k.e("s_nop 1")
        k.e("v_add_f32 v120, v120, v22")
        k.e("v_add_f32 v121, v121, v23")
    k.e(f"buffer_store_dwordx4 v[250:253], v4, s[{xout_srd}:{xout_srd+3}], s63 offen")
    k.e("s_lshl_b32 s65, s58, 8")
    k.e("s_lshl_b32 s62, s62, 7")
    k.e("s_add_u32 s65, s65, s62")
    k.e(f"s_lshl_b32 s62, s{sJ}, 15")
    k.e("s_add_u32 s65, s65, s62")
    k.e("s_lshl_b32 s62, s59, 14")
    k.e("s_add_u32 s65, s65, s62")
    k.e("v_lshlrev_b32 v22, 3, v11")
    k.e("v_cmp_gt_u32 vcc, 1, v12")
    k.e("s_and_saveexec_b64 s[68:69], vcc")
    k.e(f"buffer_store_dwordx2 v[120:121], v22, s[{st_srd}:{st_srd+3}], s65 offen")
    k.e("s_mov_b64 exec, s[68:69]")
    k.e("s_cmp_lg_u32 s59, 0")
    k.e(f"s_cbranch_scc1 {name}_done")
    k.e("v_cmp_gt_u32 vcc, 2, v12")
    k.e("s_and_saveexec_b64 s[66:67], vcc")
    k.e(f"buffer_store_dwordx2 v[254:255], v5, s[{xout_srd}:{xout_srd+3}], s64 offen")
    if sfinal is not None:
        k.e(f"s_branch {name}_done")
        k.label(f"{name}_fin")
        k.e("v_lshrrev_b32 v22, 2, v11")
        k.e("v_and_b32 v23, 3, v11")
        k.e("v_lshl_add_u32 v22, v22, 3, v23")
        k.e("v_mul_u32_u24 v22, 1152, v22")
        k.e("v_lshl_add_u32 v23, v12, 4, v22")
        k.e("v_lshl_add_u32 v22, v12, 3, v22")
        k.e("s_lshl_b32 s65, s58, 5")
        k.e("s_lshl_b32 s62, s62, 2")
        k.e("s_add_u32 s65, s65, s62")
        k.e("s_mul_i32 s65, s65, 1152")
        k.e(f"s_mul_i32 s62, s{sJ}, 144")
        k.e("s_add_u32 s65, s65, s62")
        k.e("s_lshl_b32 s62, s59, 6")
        k.e("s_add_u32 s62, s62, s65")
        k.e(f"buffer_store_dwordx4 v[250:253], v23, s[{xout_srd}:{xout_srd+3}], s62 offen")
        k.e("s_cmp_lg_u32 s59, 0")
        k.e(f"s_cbranch_scc1 {name}_done")
        k.e("v_cmp_gt_u32 vcc, 2, v12")
        k.e("s_and_saveexec_b64 s[66:67], vcc")
        k.e(f"buffer_store_dwordx2 v[254:255], v22, s[{xout_srd}:{xout_srd+3}], s65 offen offset:128")
    k.label(f"{name}_done")


def gen_t2(mode):
    name = "ks" if mode == "S" else "kd"
    k = Kern(name, 256, 0, 80)
    Lend = name + "_end"
    NST = 8 if mode == "S" else 9
    RA = 3 if mode == "S" else 4
    ASTG = 36864
    CBASE = RA * ASTG
    AJ = ABJ if mode == "S" else WDJ
    k.e("s_mov_b64 exec, -1")
    k.e("s_barrier")
    if mode == "S":
        k.e("s_load_dwordx4 s[8:11], s[0:1], 8")
    k.e("s_load_dwordx2 s[18:19], s[0:1], 88")
    k.e("s_load_dwordx4 s[12:15], s[0:1], 72")
    k.e("v_lshrrev_b32 v1, 6, v0")
    k.e("v_and_b32 v2, 63, v0")
    k.e("v_readfirstlane_b32 s20, v1")
    k.e("s_and_b32 s22, s2, 7")
    k.e("s_lshr_b32 s23, s2, 3")
    k.e("s_lshr_b32 s44, s22, 1")
    k.e("s_and_b32 s21, s22, 1")
    k.e("s_lshl_b32 s21, s21, 3")
    k.e("s_and_b32 s45, s23, 7")
    k.e("s_add_u32 s21, s21, s45")
    k.e("s_lshr_b32 s23, s23, 3")
    k.e("s_and_b32 s45, s20, 3")
    k.e("s_lshr_b32 s46, s20, 2")
    k.e("s_waitcnt lgkmcnt(0)")
    k.stamp(0)
    if mode == "S":
        k.e("s_cmp_ge_u32 s44, 2")
        k.e("s_cselect_b32 s4, s10, s8")
        k.e("s_cselect_b32 s5, s11, s9")
        k.srd_ptr(24, 4, S * S * 2)
        srd_ws_s(k, 28, 18, 68, AB_SZ)
    else:
        srd_ws_s(k, 24, 18, 68, HC_SZ)
        k.srd_ws(28, 18, "WD")
    srd_ws_s(k, 32, 18, 75, 64*4*8*4608)
    flag_srd(k)
    k.e("s_mov_b32 s66, s69")
    k.e("v_and_b32 v11, 15, v2")
    k.e("v_lshrrev_b32 v12, 4, v2")
    VA = 3
    k.e("v_mul_u32_u24 v13, 1152, v12")
    k.e("v_lshl_add_u32 v14, v11, 4, v13")
    k.e("v_and_b32 v15, 7, v11")
    k.e("v_lshl_add_u32 v15, v15, 4, v13")
    k.e("v_add_u32 v15, 1024, v15")
    k.e("v_lshrrev_b32 v16, 3, v11")
    k.e(f"s_mov_b32 s47, {AJ}")
    k.e("v_mul_lo_u32 v16, v16, s47")
    k.e("v_add_u32 v15, v15, v16")
    k.e("s_lshl_b32 s47, s45, 8")
    k.e("v_add_u32 v3, s47, v14")
    k.e("s_mul_i32 s47, s45, 4608")
    k.e("v_add_u32 v4, s47, v15")
    if mode == "S":
        k.e("s_lshr_b32 s47, s44, 1")
        k.e("s_lshl_b32 s47, s47, 3")
        k.e("s_lshl_b32 s48, s23, 1")
        k.e("s_add_u32 s47, s47, s48")
        k.e(f"s_mul_i32 s48, s47, {AJ}")
        k.e("s_and_b32 s47, s44, 1")
        k.e("s_lshl_b32 s47, s47, 4")
    else:
        k.e("s_lshl_b32 s48, s23, 1")
        k.e(f"s_mul_i32 s48, s48, {AJ}")
        k.e("s_mul_i32 s47, s44, 18")
    k.e("s_add_u32 s47, s47, s46")
    k.e("s_mul_i32 s49, s47, 9216")
    k.e("s_add_u32 s48, s48, s49")
    k.e("s_mul_i32 s50, s46, 18432")
    k.e("s_lshl_b32 s51, s45, 10")
    k.e("s_add_u32 s50, s50, s51")
    k.e("s_lshl_b32 s51, s45, 13")
    k.e("s_add_u32 s5, s50, s51")
    k.e("s_add_u32 s5, s5, 8192")
    k.e("s_cmp_lt_u32 s45, 2")
    k.e("s_cselect_b64 s[52:53], -1, 0")
    k.e("s_mul_i32 s51, s46, 18432")
    k.e("v_lshl_add_u32 v8, v2, 4, s51")
    if RA > 2:
        k.e(f"v_add_u32 v9, {2*ASTG}, v8")
    k.e("s_mov_b32 s4, s47")

    def bsetup():
        if mode == "D":
            k.e("v_lshlrev_b32 v13, 9, v12")
            k.e("v_lshl_add_u32 v10, v11, 4, v13")
            k.e("s_lshl_b32 s51, s21, 2")
            k.e("s_add_u32 s51, s51, s45")
            k.e(f"s_mul_i32 s49, s51, {HCB}")
            k.e("s_lshl_b32 s51, s4, 12")
            k.e("s_add_u32 s49, s49, s51")
        else:
            t = 248
            k.e(f"v_lshrrev_b32 v{t}, 3, v2")
            k.e(f"v_and_b32 v{t+1}, 7, v2")
            k.e(f"v_lshrrev_b32 v{t+2}, 1, v{t}")
            k.e(f"v_xor_b32 v{t+2}, v{t+2}, v{t+1}")
            k.e(f"v_lshlrev_b32 v{t+2}, 4, v{t+2}")
            k.e(f"v_lshrrev_b32 v{t+3}, 2, v{t}")
            k.e(f"v_and_b32 v{t+4}, 3, v{t}")
            k.e(f"v_lshl_add_u32 v{t+3}, v{t+3}, 3, v{t+4}")
            k.e(f"v_lshlrev_b32 v{t+3}, 12, v{t+3}")
            k.e(f"v_add_u32 v{t+5}, v{t+3}, v{t+2}")
            k.e(f"v_xor_b32 v{t+4}, 64, v{t+2}")
            k.e(f"v_add_u32 v{t+6}, v{t+3}, v{t+4}")
            for q in range(4):
                c = (16 * (q & 1) + 4 * ((q >> 1) & 1)) * 4096
                k.e(f"v_add_u32 v{240+q}, {c}, v{t + 5 + (q & 1)}")
            k.e("s_mul_i32 s54, s20, 6144")
            k.e(f"s_add_u32 s54, s54, {CBASE}")
            k.e(f"v_lshrrev_b32 v{t+2}, 1, v11")
            k.e(f"v_xor_b32 v{t+2}, v{t+2}, v12")
            k.e(f"v_lshlrev_b32 v{t+2}, 4, v{t+2}")
            k.e(f"v_lshl_add_u32 v{t+2}, v11, 7, v{t+2}")
            k.e(f"v_add_u32 v244, s54, v{t+2}")
            k.e(f"v_xor_b32 v{t+2}, 64, v{t+2}")
            k.e(f"v_add_u32 v245, s54, v{t+2}")
            k.e("s_lshl_b32 s51, s21, 2")
            k.e("s_add_u32 s51, s51, s45")
            k.e("s_lshl_b32 s49, s51, 17")
            k.e("s_lshl_b32 s51, s4, 7")
            k.e("s_add_u32 s49, s49, s51")

    ACC = 160
    AFB = 16
    BFB = 88

    NF, DEP = 12, 8
    ROFF = 3 if mode == "D" else 0
    RESID_LATE = []
    SC = "sc1"
    pend = []
    issued_c = {}

    def dma_ops(st):
        slot = (st + ROFF) % RA
        ops = []
        for j in range(5):
            def f(j=j):
                if j < 4:
                    lo = (0, 4096, 9216, 13312)[j]
                    go = (0, AJ, 4608, AJ + 4608)[j]
                    k.e(f"s_add_u32 m0, s50, {slot*ASTG + lo}")
                    k.e(f"s_add_u32 s47, s48, {st*18432 + go}")
                    k.vm(f"buffer_load_dwordx4 v3, s[28:31], s47 offen {SC} lds", ("d", st))
                else:
                    k.e(f"s_add_u32 m0, s5, {slot*ASTG}")
                    k.e(f"s_add_u32 s47, s48, {st*18432}")
                    k.e("s_mov_b64 exec, s[52:53]")
                    k.vm(f"buffer_load_dwordx4 v4, s[28:31], s47 offen {SC} lds", ("d", st))
                    k.e("s_mov_b64 exec, -1")
            ops.append(f)
        return ops

    def b_ops(st):
        ops = []
        for h in range(2):
            for u in range(2):
                def f(h=h, u=u):
                    rg = BFB + (st % 4) * 16 + (h * 2 + u) * 4
                    k.e(f"s_add_u32 s47, s49, {st*8192}")
                    k.vm(f"buffer_load_dwordx4 v[{rg}:{rg+3}], v10, s[24:27], s47 offen offset:{h*2048 + u*256} sc1", ("b", st))
                ops.append(f)
        return ops

    def c_ops(c):
        st, u = divmod(c, 2)
        ops = []
        for q in range(2):
            def f(q=q):
                k.e(f"s_add_u32 m0, s54, {(c%3)*2048 + q*1024}")
                k.e(f"s_add_u32 s47, s49, {st*256}")
                k.vm(f"buffer_load_dwordx4 v{240+2*u+q}, s[24:27], s47 offen lds", ("c", c))
                issued_c[c] = issued_c.get(c, 0) + 1
            ops.append(f)
        return ops

    def cread(c):
        st, u = divmod(c, 2)
        k.wait_vm(("c", c))
        for h in range(2):
            rg = BFB + (st % 2) * 16 + (h * 2 + u) * 4
            k.ds(f"ds_read_b128 v[{rg}:{rg+3}], v{244+h} offset:{(c%3)*2048}", ("cr", c))

    total = NST * 18

    def aread(f):
        st, r = divmod(f, 18)
        slot = (st + ROFF) % RA
        base = 8 if slot < 2 else 9
        rg = AFB + (f % NF) * 4
        k.ds(f"ds_read_b128 v[{rg}:{rg+3}], v{base} offset:{(slot % 2) * ASTG + r*1024}", ("a", f))

    def sync(st):
        while pend:
            pend.pop(0)()
        k.wait_vm(("d", st))
        k.e("s_barrier")
        if st == 0:
            for s2 in range(2, RA):
                pend.extend(dma_ops(s2))
        elif st >= 2 and st + RA - 2 < NST:
            pend.extend(dma_ops(st + RA - 2))
        if mode == "D" and st + 2 < NST:
            pend.extend(b_ops(st + 2))

    k.e("v_lshlrev_b32 v1, 2, v2")
    if mode == "D":
        for f in dma_ops(0) + dma_ops(1):
            f()
        bsetup()
        k.e("s_lshl_b32 s47, s21, 2")
        k.e("s_add_u32 s47, s47, s45")
        k.e("s_lshl_b32 s47, s47, 7")
        k.e("s_lshl_b32 s3, s44, 5")
        k.e("s_add_u32 s47, s47, s3")
        k.e("s_add_u32 s47, s47, s64")
        poll(k, name, 47, 8, 1, 152)
        k.vq = []
        for f in b_ops(0) + b_ops(1):
            f()
    else:
        bsetup()
        for f in c_ops(0) + c_ops(1) + c_ops(2):
            f()
        k.e("v_and_b32 v153, 31, v2")
        k.e("v_lshrrev_b32 v154, 5, v2")
        k.e("v_lshlrev_b32 v153, 2, v153")
        k.e("v_lshl_add_u32 v153, v154, 8, v153")
        k.e("s_lshr_b32 s47, s44, 1")
        k.e("s_lshl_b32 s47, s47, 3")
        k.e("s_lshl_b32 s3, s23, 1")
        k.e("s_add_u32 s47, s47, s3")
        k.e("s_lshl_b32 s47, s47, 8")
        k.e("s_and_b32 s3, s44, 1")
        k.e("s_lshl_b32 s3, s3, 7")
        k.e("s_add_u32 s47, s47, s3")
        k.e("s_add_u32 s47, s47, s64")
        poll(k, name, 47, 64, 153, 152)
        k.vq = []
        for f in dma_ops(0) + dma_ops(1):
            f()
    code_prefetch(k, name, 152, 76, 156, 8, 20)
    for a in range(72):
        k.e(f"v_mov_b32 v{ACC+a}, 0")
    XOFF = 0
    k.e("s_mul_i32 s51, s20, 9216")
    k.e(f"s_add_u32 s51, s51, {XOFF}")
    k.e("v_lshl_add_u32 v232, v2, 4, s51")
    k.e("s_xor_b32 s51, s20, 4")
    k.e("s_mul_i32 s51, s51, 9216")
    k.e(f"s_add_u32 s51, s51, {XOFF}")
    k.e("v_lshl_add_u32 v233, v2, 4, s51")
    k.e("s_lshl_b32 s55, s21, 2")
    k.e("s_add_u32 s55, s55, s23")
    k.e("s_lshl_b32 s51, s55, 2")
    k.e("s_add_u32 s51, s51, s44")
    k.e("s_lshl_b32 s51, s51, 3")
    k.e("s_lshl_b32 s3, s45, 1")
    k.e("s_add_u32 s51, s51, s3")
    k.e("s_add_u32 s51, s51, s46")
    k.e("s_mul_i32 s75, s51, 4608")
    if OWNP:
        k.e("s_cmp_eq_u32 s45, s44")
        k.e("s_cselect_b32 s4, s75, 0x7f000000")
        k.e("s_cselect_b32 s75, 0x7f000000, s75")
    k.e("v_lshlrev_b32 v234, 4, v2")
    k.e("v_lshlrev_b32 v235, 3, v2")
    k.e("v_add_u32 v235, 4096, v235")
    srd_ws_s(k, 36, 18, 70, XC_SZ)
    srd_ws_s(k, 40, 18, 71, XC_SZ)
    srd_ws_s(k, 60, 18, 72, ST_SZ)
    k.e("s_cmp_lg_u32 s73, 0")
    k.e("s_cselect_b32 s40, s12, s40")
    k.e("s_cselect_b32 s41, s13, s41")
    k.e("s_and_b32 s41, s41, 0xffff")
    k.e("s_and_b32 s56, s20, 1")
    k.e("s_lshr_b32 s57, s20, 1")
    k.e("s_lshl_b32 s58, s21, 2")
    k.e("s_add_u32 s58, s58, s44")
    k.e("s_mul_i32 s59, s58, 36864")
    k.e("s_mul_i32 s3, s23, 9216")
    k.e("s_add_u32 s59, s59, s3")
    k.e("s_lshl_b32 s3, s56, 8")
    k.e("s_add_u32 s59, s59, s3")
    k.e("s_lshr_b32 s3, s57, 1")
    k.e("s_mul_i32 s3, s3, 4608")
    k.e("s_and_b32 s51, s57, 1")
    k.e("s_lshl_b32 s51, s51, 11")
    k.e("s_add_u32 s3, s3, s51")
    k.e("s_add_u32 s68, s59, s3")
    k.e("v_lshlrev_b32 v236, 9, v12")
    k.e("v_lshl_add_u32 v236, v11, 4, v236")
    k.e("v_lshrrev_b32 v237, 1, v12")
    k.e("v_mul_u32_u24 v237, 4608, v237")
    k.e("v_and_b32 v238, 1, v12")
    k.e("v_lshl_add_u32 v237, v238, 3, v237")
    k.e("v_lshl_add_u32 v237, v11, 4, v237")
    k.e("v_add_u32 v237, 4096, v237")
    k.e("s_cmp_eq_u32 s57, 0")
    k.e("s_cselect_b32 s69, s59, 0x7f000000")
    if mode == "S":
        RESID_LATE.append(1)
    else:
        k.vm("buffer_load_dwordx4 v[248:251], v236, s[36:39], s68 offen sc1", "res")
    if mode != "S":
        k.vm("buffer_load_dwordx2 v[252:253], v237, s[36:39], s69 offen sc1", "res")
    k.e("s_lshl_b32 s51, s55, 5")
    k.e("s_lshl_b32 s3, s44, 1")
    k.e("s_add_u32 s51, s51, s3")
    k.e("s_add_u32 s51, s51, s56")
    k.e("s_mul_i32 s51, s51, 4608")
    k.e("s_lshl_b32 s3, s57, 10")
    k.e("s_add_u32 s6, s3, s51")
    k.e("s_cmp_eq_u32 s57, 0")
    k.e("s_cselect_b32 s7, s51, 0x7f000000")
    k.e("v_lshrrev_b32 v238, 2, v11")
    k.e("v_and_b32 v239, 3, v11")
    k.e("v_lshl_add_u32 v238, v238, 3, v239")
    k.e("v_mul_u32_u24 v238, 1152, v238")
    k.e("v_lshl_add_u32 v239, v12, 4, v238")
    k.e("v_lshrrev_b32 v246, 1, v12")
    k.e("v_mul_u32_u24 v246, 144, v246")
    k.e("v_add_u32 v238, v238, v246")
    k.e("v_and_b32 v246, 1, v12")
    k.e("v_lshl_add_u32 v238, v246, 3, v238")
    k.e("v_add_u32 v238, 128, v238")
    k.e("s_lshl_b32 s51, s58, 5")
    k.e("s_lshl_b32 s3, s56, 2")
    k.e("s_add_u32 s51, s51, s3")
    k.e("s_mul_i32 s51, s51, 1152")
    k.e("s_mul_i32 s3, s23, 288")
    k.e("s_add_u32 s51, s51, s3")
    k.e("s_lshr_b32 s3, s57, 1")
    k.e("s_mul_i32 s3, s3, 144")
    k.e("s_and_b32 s16, s57, 1")
    k.e("s_lshl_b32 s16, s16, 6")
    k.e("s_add_u32 s3, s3, s16")
    k.e("s_add_u32 s3, s3, s51")
    k.e("s_cmp_eq_u32 s57, 0")
    k.e("s_cselect_b32 s51, s51, 0x7f000000")
    k.e("s_cmp_lg_u32 s73, 0")
    k.e("s_cselect_b32 s16, s3, s68")
    k.e("s_cselect_b32 s17, s51, s69")
    k.e("s_cselect_b64 vcc, -1, 0")
    k.e("v_cndmask_b32 v246, v236, v239, vcc")
    k.e("v_cndmask_b32 v247, v237, v238, vcc")
    k.e("s_lshl_b32 s51, s23, 2")
    k.e("s_add_u32 s51, s51, s57")
    k.e("s_lshl_b32 s51, s51, 14")
    k.e("s_lshl_b32 s3, s58, 8")
    k.e("s_add_u32 s51, s51, s3")
    k.e("s_lshl_b32 s3, s56, 7")
    k.e("s_add_u32 s51, s51, s3")
    k.e("s_cmp_lg_u32 s73, 0")
    k.e("s_cselect_b32 s59, 0x7f000000, s51")
    k.e("v_lshlrev_b32 v238, 3, v11")
    k.e("s_lshl_b32 s3, s55, 3")
    k.e("s_lshl_b32 s51, s44, 1")
    k.e("s_add_u32 s51, s51, s3")
    k.e("s_add_u32 s51, s51, s56")
    k.e("s_lshl_b32 s56, s51, 7")
    k.e("s_add_u32 s56, s56, s66")
    k.e("s_lshl_b32 s51, s45, 1")
    k.e("s_add_u32 s51, s51, s3")
    k.e("s_add_u32 s51, s51, s46")
    k.e("s_lshl_b32 s51, s51, 7")
    k.e("s_lshl_b32 s57, s44, 2")
    k.e("s_add_u32 s57, s57, s51")
    k.e("s_add_u32 s57, s57, s66")
    k.e("s_lshl_b32 s67, s58, 7")
    k.e("s_lshl_b32 s3, s23, 5")
    k.e("s_add_u32 s67, s67, s3")
    k.e("s_lshl_b32 s3, s20, 2")
    k.e("s_add_u32 s67, s67, s3")
    k.e("s_add_u32 s67, s67, s65")
    k.e("s_mov_b32 s58, 0xffff0000")
    done_c = set()
    if mode == "S":
        cread(0); cread(1)
        k.wait_ds(("cr", 1))
        pend.extend(c_ops(3) + c_ops(4))
    sync(0)
    k.stamp(2)
    for f in range(DEP):
        aread(f)
    mi = 0
    for f in range(total):
        nxt = f + DEP
        if nxt < total:
            if nxt % 18 == 0:
                sync(nxt // 18)
            aread(nxt)
        st, r = divmod(f, 18)
        h, T = divmod(r, 9)
        if mode == "D" and r == 0:
            k.wait_vm(("b", st))
        if mode == "S" and st + 1 < NST:
            for rr_, u_ in ((3, 0), (7, 1)):
                c = 2 * (st + 1) + u_
                if r == rr_:
                    while issued_c.get(c, 0) < 2:
                        pend.pop(0)()
                    cread(c)
                    done_c.add(("c", c))
                if r == rr_ + 2 and c + 3 < 2 * NST:
                    k.wait_ds(("cr", c))
                    pend.extend(c_ops(c + 3))
        k.wait_ds(("a", f))
        af = AFB + (f % NF) * 4
        for u in range(2):
            bf = BFB + ((st % 4) if mode == "D" else (st % 2)) * 16 + (h * 2 + u) * 4
            acc = ACC + (u * 9 + T) * 4
            k.e(f"v_mfma_f32_16x16x32_bf16 v[{acc}:{acc+3}], v[{af}:{af+3}], v[{bf}:{bf+3}], v[{acc}:{acc+3}]")
            mi += 1
            if pend and (mi % 3 == 0 or st == 0):
                pend.pop(0)()
    k.stamp(3)
    if mode == "S":
        k.e("s_cmp_lg_u32 s100, 1")
        k.e(f"s_cbranch_scc1 {name}_nofr")
        k.e("v_lshlrev_b32 v1, 2, v2")
        k.e("s_lshl_b32 s47, s20, 9")
        k.e(f"s_add_u32 s47, s47, {FROFF}")
        poll(k, name, 47, 64, 1, 152)
        k.e("s_add_u32 s47, s47, 256")
        poll(k, name, 47, 64, 1, 152)
        k.label(f"{name}_nofr")
        k.e("s_barrier")
        k.e("buffer_load_dwordx4 v[248:251], v236, s[36:39], s68 offen sc1")
        k.e("buffer_load_dwordx2 v[252:253], v237, s[36:39], s69 offen sc1")
    k.e("s_nop 5")
    k.e("s_cmp_eq_u32 s46, 0")
    k.e(f"s_cbranch_scc1 {name}_x0")

    def xch(send, keep, lab_after):
        for T in range(9):
            k.e(f"ds_write_b128 v232, v[{send+4*T}:{send+4*T+3}] offset:{T*1024}")
        k.e("s_waitcnt lgkmcnt(0)")
        k.e("s_barrier")
        for T in range(9):
            k.e(f"ds_read_b128 v[{88+4*T}:{91+4*T}], v233 offset:{T*1024}")
        for T in range(9):
            k.e(f"s_waitcnt lgkmcnt({8-T})")
            for r in range(4):
                k.e(f"v_add_f32 v{keep+4*T+r}, v{keep+4*T+r}, v{88+4*T+r}")
            k.e(f"v_cvt_pk_bf16_f32 v{16+2*T}, v{keep+4*T}, v{keep+4*T+1}")
            k.e(f"v_cvt_pk_bf16_f32 v{17+2*T}, v{keep+4*T+2}, v{keep+4*T+3}")
            if T % 2 == 1:
                k.e(f"buffer_store_dwordx4 v[{14+2*T}:{17+2*T}], v234, s[32:35], s75 offen offset:{(T//2)*1024} {PUB}")
                if OWNP:
                    k.e(f"buffer_store_dwordx4 v[{14+2*T}:{17+2*T}], v234, s[32:35], s4 offen offset:{(T//2)*1024}")
    xch(ACC, ACC + 36, None)
    k.e(f"s_branch {name}_x1")
    k.label(f"{name}_x0")
    xch(ACC + 36, ACC, None)
    k.label(f"{name}_x1")
    k.e(f"buffer_store_dwordx2 v[32:33], v235, s[32:35], s75 offen {PUB}")
    if OWNP:
        k.e("buffer_store_dwordx2 v[32:33], v235, s[32:35], s4 offen")
    k.e("v_mov_b32 v9, s101")
    k.e("v_mov_b32 v10, 0")
    k.e("s_mov_b32 s53, 0")
    k.e("s_waitcnt vmcnt(0)")
    k.stamp(4)
    k.e("s_mov_b64 exec, 1")
    k.e("buffer_store_dword v9, v10, s[76:79], s57 offen sc1")
    k.e("s_mov_b64 exec, -1")
    if mode == "S":
        prefetch_G(k, 234)
    else:
        k.e("s_cmp_lg_u32 s73, 0")
        k.e(f"s_cbranch_scc1 {name}_nopf")
        prefetch_H(k, 124)
        k.label(f"{name}_nopf")
    k.e("s_mov_b64 exec, 1")
    k.label(f"{name}_poll")
    k.e("buffer_load_dwordx4 v[108:111], v10, s[76:79], s56 offen sc1")
    k.e("s_add_u32 s53, s53, 1")
    k.e("s_waitcnt vmcnt(0)")
    for j in range(4):
        k.e(f"v_xor_b32 v{108+j}, s101, v{108+j}")
    k.e("v_or_b32 v108, v108, v109")
    k.e("v_or_b32 v110, v110, v111")
    k.e("v_or_b32 v108, v108, v110")
    k.e("s_nop 0")
    k.e("v_readfirstlane_b32 s54, v108")
    k.e("s_cmp_ge_u32 s53, 0x40000")
    k.e(f"s_cbranch_scc1 {name}_pollx")
    k.e("s_cmp_eq_u32 s54, 0")
    k.e(f"s_cbranch_scc1 {name}_pollx")
    if SLP:
        k.e(f"s_sleep {SLP}")
    k.e(f"s_branch {name}_poll")
    k.label(f"{name}_pollx")
    k.e("s_mov_b64 exec, -1")
    k.stamp(1)
    for q in range(4):
        k.e(f"buffer_load_dwordx4 v[{16+6*q}:{19+6*q}], v234, s[32:35], s6 offen sc1")
        k.e(f"buffer_load_dwordx2 v[{20+6*q}:{21+6*q}], v235, s[32:35], s7 offen sc1")
        if q < 3:
            k.e(f"s_add_u32 s6, s6, {8*4608}")
            k.e(f"s_add_u32 s7, s7, {8*4608}")
    k.e("v_mov_b32 v120, 0")
    k.e("v_mov_b32 v121, 0")
    for j in range(6):
        k.e(f"v_lshlrev_b32 v{60+2*j}, 16, v{248+j}")
        k.e(f"v_and_b32 v{61+2*j}, s58, v{248+j}")
    k.e("s_waitcnt vmcnt(0)")
    for j in range(6):
        r = [16 + 6 * q + j for q in range(4)]
        for q in range(4):
            k.e(f"v_lshlrev_b32 v{40+2*q}, 16, v{r[q]}")
            k.e(f"v_and_b32 v{41+2*q}, s58, v{r[q]}")
        k.e("v_add_f32 v40, v40, v42")
        k.e("v_add_f32 v41, v41, v43")
        k.e("v_add_f32 v44, v44, v46")
        k.e("v_add_f32 v45, v45, v47")
        if mode == "S":
            k.e("v_cvt_pk_bf16_f32 v48, v40, v41")
            k.e("v_cvt_pk_bf16_f32 v49, v44, v45")
            k.e("v_lshlrev_b32 v40, 16, v48")
            k.e("v_and_b32 v41, s58, v48")
            k.e("v_lshlrev_b32 v44, 16, v49")
            k.e("v_and_b32 v45, s58, v49")
            k.e("v_sub_f32 v40, v40, v44")
            k.e("v_sub_f32 v41, v41, v45")
        else:
            k.e("v_add_f32 v40, v40, v44")
            k.e("v_add_f32 v41, v41, v45")
        k.e("v_cvt_pk_bf16_f32 v48, v40, v41")
        k.e("v_lshlrev_b32 v40, 16, v48")
        k.e("v_and_b32 v41, s58, v48")
        k.e(f"v_add_f32 v40, v40, v{60+2*j}")
        k.e(f"v_add_f32 v41, v41, v{61+2*j}")
        k.e(f"v_cvt_pk_bf16_f32 v{248+j}, v40, v41")
        k.e(f"v_lshlrev_b32 v40, 16, v{248+j}")
        k.e(f"v_and_b32 v41, s58, v{248+j}")
        k.e("v_add_f32 v120, v120, v40")
        k.e("v_fmac_f32 v121, v40, v40")
        k.e("v_add_f32 v120, v120, v41")
        k.e("v_fmac_f32 v121, v41, v41")
        if j == 3:
            k.e("buffer_store_dwordx4 v[248:251], v246, s[40:43], s16 offen sc1")
    k.e("buffer_store_dwordx2 v[252:253], v247, s[40:43], s17 offen sc1")
    for sw in ("16", "32"):
        k.e("v_mov_b32 v44, v120")
        k.e("v_mov_b32 v45, v121")
        k.e("s_nop 1")
        k.e(f"v_permlane{sw}_swap_b32 v120, v44")
        k.e(f"v_permlane{sw}_swap_b32 v121, v45")
        k.e("s_nop 1")
        k.e("v_add_f32 v120, v120, v44")
        k.e("v_add_f32 v121, v121, v45")
    k.e("s_mov_b64 exec, 0xffff")
    k.e("buffer_store_dwordx2 v[120:121], v238, s[60:63], s59 offen sc1")
    publish(k, 67, 9, 10)
    if PROF:
        k.wait_vm_all()
    k.stamp(5)
    k.stamp_store(2, 18, 20)
    k.label(Lend)
    return k, 256, 512, CBASE + (49152 if mode == "S" else 0)


def gen_kg():
    name = "kg"
    k = Kern(name, 256, 0, 80)
    Lend = name + "_end"
    STG = 36864
    EXT = 4 * STG
    k.e("s_mov_b64 exec, -1")
    k.e("s_barrier")
    k.e("s_load_dwordx2 s[18:19], s[0:1], 88")
    k.e("v_lshrrev_b32 v1, 6, v0")
    k.e("v_and_b32 v2, 63, v0")
    k.e("v_readfirstlane_b32 s20, v1")
    k.e("s_and_b32 s22, s2, 7")
    k.e("s_lshr_b32 s23, s2, 3")
    if MAPG == 0:
        k.e("s_and_b32 s21, s23, 7")
        k.e("s_lshr_b32 s23, s23, 3")
        k.e("s_lshl_b32 s22, s22, 2")
        k.e("s_add_u32 s23, s23, s22")
    elif MAPG == 1:
        k.e("s_mov_b32 s21, s22")
    else:
        k.e("s_and_b32 s21, s22, 6")
        k.e("s_and_b32 s44, s23, 1")
        k.e("s_add_u32 s21, s21, s44")
        k.e("s_and_b32 s22, s22, 1")
        k.e("s_lshl_b32 s22, s22, 4")
        k.e("s_lshr_b32 s23, s23, 1")
        k.e("s_add_u32 s23, s23, s22")
    k.e("s_lshl_b32 s21, s21, 3")
    k.e("s_add_u32 s21, s21, s20")
    k.e("s_waitcnt lgkmcnt(0)")
    k.stamp(0)
    flag_srd(k)
    k.srd_ws(24, 18, "WGU")
    srd_ws_s(k, 28, 18, 70, XC_SZ)
    srd_ws_s(k, 32, 18, 71, ST_SZ)
    srd_ws_s(k, 40, 18, 72, HC_SZ)
    k.e("v_lshlrev_b32 v3, 4, v2")
    k.e(f"s_mul_i32 s44, s23, {WGU_CB}")
    k.e("s_mul_i32 s45, s20, 4608")
    k.e("s_add_u32 s43+1, s44, s45".replace("s43+1", "s50"))
    k.e("s_mul_i32 s46, s21, 36864")
    k.e("s_mul_i32 s52, s20, 1152")
    k.e(f"s_add_u32 s51, s44, {36*9216}")
    k.e("s_add_u32 s51, s51, s52")
    NST = 9
    ACC = 112
    BFB = 16
    AFB = 80
    XB = 104
    NF, DEP = 6, int(os.environ.get('KG_DEP', '4'))
    PRIO = int(os.environ.get('PRIO', '0'))
    VSP = int(os.environ.get('VSP', '3'))
    for s_ in range(5):
        if s_ == 0:
            k.e("v_mov_b32 v4, v3")
        else:
            k.e(f"v_add_u32 v{4+s_}, {s_*STG}, v3")

    pend = []

    def dma_ops(st_):
        slot = (st_ + 2) % 4
        ops = []
        for e_ in range(4):
            def f(e_=e_):
                k.e(f"s_add_u32 m0, s45, {slot*STG}")
                k.e(f"s_add_u32 s47, s50, {st_*STG}")
                k.vm(f"buffer_load_dwordx4 v3, s[24:27], s47 offen offset:{e_*1024} sc1 lds", ("d", st_))
            ops.append(f)
        def f5():
            k.e(f"s_add_u32 m0, s45, {slot*STG + 4096}")
            k.e(f"s_add_u32 s47, s50, {st_*STG + 4096}")
            k.e("s_mov_b32 exec_hi, 0")
            k.vm("buffer_load_dwordx4 v3, s[24:27], s47 offen sc1 lds", ("d", st_))
            k.e("s_mov_b64 exec, -1")
        ops.append(f5)
        return ops

    def ext_ops():
        def f1():
            k.e(f"s_add_u32 m0, s52, {EXT}")
            k.e("s_nop 0")
            k.vm("buffer_load_dwordx4 v3, s[24:27], s51 offen sc1 lds", ("d", "x"))
        def f2():
            k.e(f"s_add_u32 m0, s52, {EXT}")
            k.e("s_mov_b64 exec, 0xff")
            k.vm("buffer_load_dwordx4 v3, s[24:27], s51 offen offset:1024 sc1 lds", ("d", "x"))
            k.e("s_mov_b64 exec, -1")
        return [f1, f2]

    def b_ops(st_):
        ops = []
        for j in range(4):
            def f(j=j):
                rg = BFB + (st_ % 4) * 16 + j * 4
                k.e(f"s_add_u32 s47, s46, {st_*4096}")
                k.vm(f"buffer_load_dwordx4 v[{rg}:{rg+3}], v3, s[28:31], s47 offen offset:{j*1024} sc1", ("b", st_))
            ops.append(f)
        return ops

    STB = 64

    k.e("v_lshlrev_b32 v1, 2, v2")
    k.e("s_lshl_b32 s47, s21, 7")
    k.e("s_add_u32 s47, s47, s64")
    poll(k, name, 47, 32, 1, 108)
    k.vq = []
    for f in b_ops(0):
        f()
    k.e("v_and_b32 v9, 31, v2")
    k.e("v_lshrrev_b32 v10, 5, v2")
    k.e("v_lshlrev_b32 v10, 17, v10")
    k.e("v_lshl_add_u32 v9, v9, 3, v10")
    k.e("s_lshl_b32 s53, s21, 8")
    for a in range(144):
        k.e(f"v_mov_b32 v{ACC+a}, 0")

    def st_ops():
        ops = []
        for i in range(8):
            def f(i=i):
                k.e(f"s_add_u32 s57, s53, {i*16384}")
                k.vm(f"buffer_load_dwordx2 v[{STB+2*i}:{STB+2*i+1}], v9, s[32:35], s57 offen sc1", "st")
            ops.append(f)
        return ops

    def st_finish():
        k.wait_vm("st")
        stats_finish(k, STB, 12, 10, 13, 14, 15)
        k.e("v_rcp_f32 v11, v10")
        k.e("v_xor_b32 v12, 0x80000000, v12")
        k.e("v_mul_f32 v11, 0xbfb8aa3b, v11")
        k.e("v_lshrrev_b32 v13, 16, v12")
        k.e("v_or_b32 v14, v12, v13")
        k.e(f"v_mov_b32 v{XB}, v14")
        k.e(f"v_mov_b32 v{XB+1}, v13")
        k.e(f"v_mov_b32 v{XB+2}, v14")
        k.e(f"v_mov_b32 v{XB+3}, v13")
    if PRIO == 1:
        k.e("s_cmp_ge_u32 s20, 4")
        k.e(f"s_cbranch_scc0 {name}_np")
        k.e("s_setprio 1")
        k.label(f"{name}_np")
    elif PRIO == 2:
        k.e("s_cmp_lt_u32 s20, 4")
        k.e(f"s_cbranch_scc0 {name}_np")
        k.e("s_setprio 1")
        k.label(f"{name}_np")
    k.stamp(1)
    k.wait_vm(("d", 0))
    k.e("s_barrier")
    k.stamp(2)
    pend += b_ops(1) + dma_ops(2) + st_ops() + b_ops(2) + dma_ops(3) + ext_ops()

    seq = []
    for st_ in range(7):
        for kk in range(4):
            for ft in range(9):
                seq.append((st_, kk, ft))
    NMAIN = len(seq)
    for ft in range(9):
        for st_ in (7, 8):
            for kk in range(4):
                seq.append((st_, kk, ft))
        seq.append(("x", 0, ft))
    total = len(seq)

    def aread(m):
        if os.environ.get("EXP_NODS"):
            return
        if os.environ.get("EXP_HALFDS") and m % 2 == 1:
            return
        st_, kk, ft = seq[m]
        rg = AFB + (m % NF) * 4
        if st_ == "x":
            k.ds(f"ds_read_b128 v[{rg}:{rg+3}], v8 offset:{ft*1024}", m)
        else:
            k.ds(f"ds_read_b128 v[{rg}:{rg+3}], v{4 + (st_ + 2) % 4} offset:{(kk*9+ft)*1024}", m)

    def stage_sync(st_):
        while pend:
            pend.pop(0)()
        if st_ == 7:
            k.wait_vm([("d", 7), ("d", 8), ("d", "x")])
        else:
            k.wait_vm(("d", st_))
        if not os.environ.get("EXP_NOBAR"):
            k.e("s_barrier")
        if st_ == 1:
            st_finish()
        if st_ >= 2 and st_ + 2 < NST and not os.environ.get("EXP_NOVM"):
            pend.extend(dma_ops(st_ + 2))
        if st_ >= 1 and st_ + 2 < NST and not os.environ.get("EXP_NOVM"):
            pend.extend(b_ops(st_ + 2))

    k.e(f"s_mul_i32 s48, s21, {HCB}")
    k.e("s_mul_i32 s49, s23, 9216")
    k.e("s_add_u32 s48, s48, s49")

    def epi(ft):
        a = ACC + ft * 16
        t = 32 + (ft % 2) * 12
        ins = []
        for j in range(8):
            ins.append(f"v_mul_f32 v{t+j}, v{a+j}, v11")
        for j in range(8):
            ins.append(f"v_exp_f32 v{t+j}, v{t+j}")
        for j in range(8):
            ins.append(f"v_fma_f32 v{t+j}, v{t+j}, v10, v10")
        for j in range(8):
            ins.append(f"v_rcp_f32 v{t+j}, v{t+j}")
        for j in range(8):
            ins.append(f"v_mul_f32 v{t+j}, v{t+j}, v{a+8+j}")
        for j in range(4):
            ins.append(f"v_cvt_pk_bf16_f32 v{t+8+j}, v{t+2*j}, v{t+2*j+1}")
        ins.append(("store", t + 8, ft))
        return ins

    def emit_epi(ins):
        if isinstance(ins, tuple):
            _, rg, ft = ins
            k.vm(f"buffer_store_dwordx4 v[{rg}:{rg+3}], v3, s[40:43], s48 offen {STPG}", ("o", ft))
            k.e("s_add_u32 s48, s48, 1024")
        else:
            k.e(ins)

    for m in range(DEP):
        aread(m)
    epq = []
    for m in range(total):
        nxt = m + DEP
        if nxt < total:
            if nxt < NMAIN and nxt % 36 == 0:
                stage_sync(nxt // 36)
            if nxt == NMAIN:
                stage_sync(7)
            aread(nxt)
        st_, kk, ft = seq[m]
        if m < NMAIN:
            if m % 36 == 0:
                k.wait_vm(("b", st_))
        elif m == NMAIN:
            k.wait_vm([("b", 7), ("b", 8)])
            k.stamp(3)
        k.wait_ds(m)
        af = AFB + ((m - (m % 2 if os.environ.get("EXP_HALFDS") else 0)) % NF) * 4
        bf = XB if st_ == "x" else BFB + (st_ % 4) * 16 + kk * 4
        acc = ACC + ft * 16
        k.e(f"v_mfma_f32_32x32x16_bf16 v[{acc}:{acc+15}], v[{af}:{af+3}], v[{bf}:{bf+3}], v[{acc}:{acc+15}]")
        if pend and (m % VSP == VSP - 1 or m < 36):
            pend.pop(0)()
        if m >= NMAIN:
            r = (m - NMAIN) % 9
            if r == 8:
                while epq:
                    emit_epi(epq.pop(0))
                epq = epi(ft)
            elif r >= 3:
                for _ in range(9):
                    if epq:
                        emit_epi(epq.pop(0))
    k.e("s_nop 15")
    while epq:
        emit_epi(epq.pop(0))
    k.e("s_lshl_b32 s47, s21, 7")
    k.e("s_lshl_b32 s3, s23, 2")
    k.e("s_add_u32 s47, s47, s3")
    k.e("s_add_u32 s47, s47, s65")
    publish(k, 47, 1, 9)
    k.stamp(4)
    if PROF:
        k.wait_vm_all()
    k.stamp(5)
    k.stamp_store(3, 18, 20)
    k.label(Lend)
    return k, 256, 512, 4 * STG + 9216


def build():
    def mv(*pairs):
        return [f" s_mov_b32 s{r}, {v}" for r, v in pairs]
    X = lambda i: WS[f"XC{i}"][0]
    T = lambda i: WS[f"ST{i}"][0]
    FL = lambda i: i * 65536
    DF = lambda layer, j: 262144 + layer * 32768 + j * 8192
    EX = lambda i: WS["PART"][0] + i * 9437184
    AB = [WS["AB2"][0], WS["AB"][0]]
    HC = [WS["HC2"][0], WS["HC"][0]]
    kh1 = gen_kh_full(True)
    kh = gen_kh_full(False); ks = gen_t2("S"); kg = gen_kg(); kd = gen_t2("D")
    phases = [
        ("kh1", mv((72, AB[0]))),
        ("ks", mv((70, X(0)), (71, X(1)), (72, T(1)), (73, 0), (75, EX(0)), (68, AB[0]), (69, FL(0)), (64, DF(1, 3)), (65, DF(0, 0)))),
        ("kg", mv((70, X(1)), (71, T(1)), (72, HC[0]), (64, DF(0, 0)), (65, DF(0, 1)))),
        ("kd", mv((70, X(1)), (71, X(2)), (72, T(2)), (73, 0), (75, EX(1)), (68, HC[0]), (69, FL(1)), (64, DF(0, 1)), (65, DF(0, 2)))),
        ("kh", mv((70, X(2)), (71, T(2)), (72, AB[1]), (64, DF(0, 2)), (65, DF(0, 3)))),
        ("ks", mv((70, X(2)), (71, X(3)), (72, T(3)), (73, 0), (75, EX(2)), (68, AB[1]), (69, FL(2)), (64, DF(0, 3)), (65, DF(1, 0)))),
        ("kg", mv((70, X(3)), (71, T(3)), (72, HC[1]), (64, DF(1, 0)), (65, DF(1, 1)))),
        ("kd", mv((70, X(3)), (71, X(2)), (72, T(2)), (73, 1), (75, EX(3)), (68, HC[1]), (69, FL(3)), (64, DF(1, 1)), (65, DF(1, 2)))),
    ]
    lds = max(x[3] for x in (kh1, kh, ks, kg, kd))
    head = ["; generated by dev/gen15.py -- FNet/GLU interleaved layers: one persistent dataflow kernel",
            f"; @launch kernel=mega_kernel grid=(256,1,1) block=(512,1,1) lds={lds}"]
    out = head + ['.amdgcn_target "amdgcn-amd-amdhsa--gfx950"', ".text"]
    descs = []
    out += [".globl mega_kernel", ".p2align 8", ".type mega_kernel,@function", "mega_kernel:",
            " s_cmp_ge_u32 s2, 256", " s_cbranch_scc1 mega_exit"]
    for i, (nm, ins) in enumerate(phases):
        out.append(f"mega_p{i}:")
        out += ins
        out.append(f" s_mov_b32 s100, {i}")
        if PROF:
            out.append(f" s_mov_b32 s74, {i*512*256}")
        out.append(f" s_branch {nm}_body")
    out += ["mega_exit:", " s_endpgm"]
    nxt = {"kh1": [(0, 1)], "ks": [(1, 2), (5, 6)], "kg": [(2, 3), (6, 7)], "kd": [(3, 4)], "kh": [(4, 5)]}
    for kk_ in (kh1, kh, ks, kg, kd):
        k = kk_[0]
        out += [".p2align 6", f"{k.name}_body:"]
        out += [x.replace("    ", " ", 1) for x in k.L]
        for cur, n in nxt[k.name]:
            out += [f" s_cmp_eq_u32 s100, {cur}", f" s_cbranch_scc1 mega_p{n}"]
        out += [" s_endpgm"]
    descs.append("\n".join([".amdhsa_kernel mega_kernel", "  .amdhsa_next_free_vgpr 256", "  .amdhsa_next_free_sgpr 102", "  .amdhsa_accum_offset 256",
                "  .amdhsa_group_segment_fixed_size 0", "  .amdhsa_kernarg_size 96", "  .amdhsa_user_sgpr_count 2",
                "  .amdhsa_user_sgpr_kernarg_segment_ptr 1", "  .amdhsa_system_sgpr_workgroup_id_x 1", ".end_amdhsa_kernel"]))
    out.append('.section .rodata,"a"')
    for d in descs:
        out.append(".p2align 6")
        out.append(d)
    return "\n".join(out) + "\n"


if __name__ == "__main__":
    path = sys.argv[1] if len(sys.argv) > 1 else "interleave_layers__spectral_fnet__glu_gated_glu__prompt.s"
    open(path, "w").write(build())
    print("wrote", path, "ws bytes", WS_TOTAL)
```
